```python
import torch

def _softmax(x, axis=-1):
    return torch.softmax(x, dim=axis)

def _gelu(x):
    return torch.nn.functional.gelu(x, approximate='tanh')

def _silu(x):
    return torch.nn.functional.silu(x)

def _sigmoid(x):
    return torch.sigmoid(x)

def _layernorm(x, axis=-1, eps=1e-05):
    m = x.mean(dim=axis, keepdim=True)
    v = x.var(dim=axis, keepdim=True, unbiased=False)
    return (x - m) / torch.sqrt(v + eps)

def _scatter_add(tgt, idx, src, axis=0):
    return tgt.clone().index_add_(axis, idx, src)

def _segment_sum(src, seg, n):
    out = torch.zeros((n,) + src.shape[1:], dtype=src.dtype)
    return out.index_add_(0, seg, src)

def _pad(x, pw):
    flat = tuple((v for pair in reversed(pw) for v in pair))
    return torch.nn.functional.pad(x, flat)
kernel_name = 'sequential_preLN__memory_aug_recurrent_mem_tr__mixer_gmlp__prompt'

def setup_inputs():

    _w = lambda a: (lambda t: t.to(torch.bfloat16) if t.is_floating_point() else t)(torch.as_tensor(a))

    def _A_setup():
        B, S, Dm = (1, 2048, 512)
        H, Dh = (32, 128)
        M, seg = (8, 32)
        seg = min(seg, S)
        S = S // seg * seg
        return {'x': _w((lambda *s: torch.randn(*s, dtype=torch.bfloat16) * 0.05)(B, S, Dm)), 'mem0': _w((lambda *s: torch.randn(*s, dtype=torch.bfloat16) * 0.2)(B, M, Dm)), 'Wq': _w((lambda *s: torch.randn(*s, dtype=torch.bfloat16) * 1.6)(Dm, H, Dh) * Dm ** (-0.5)), 'Wk': _w((lambda *s: torch.randn(*s, dtype=torch.bfloat16) * 1.6)(Dm, H, Dh) * Dm ** (-0.5)), 'Wv': _w((lambda *s: torch.randn(*s, dtype=torch.bfloat16) * 0.2)(Dm, H, Dh) * Dm ** (-0.5)), 'Wo': _w((lambda *s: torch.randn(*s, dtype=torch.bfloat16) * 0.2)(H, Dh, Dm) * (H * Dh) ** (-0.5)), 'seg_len': seg}
    _A_in = _A_setup()

    def _B_setup():
        B, S, D, F = (1, 2048, 512, 1376)
        Fh = F // 2
        return {'x': _w((lambda *s: torch.randn(*s, dtype=torch.bfloat16) * 0.05)(B, S, D)), 'w_in': _w((lambda *s: torch.randn(*s, dtype=torch.bfloat16) * 0.4)(D, 2 * Fh)), 'w_sp': _w(0.01 * (lambda *s: torch.randn(*s, dtype=torch.bfloat16) * 0.4)(S, S)), 'b_sp': _w(1.0 + 0.01 * (lambda *s: torch.randn(*s, dtype=torch.bfloat16) * 0.05)(S)), 'w_out': _w((lambda *s: torch.randn(*s, dtype=torch.bfloat16) * 0.05)(Fh, D))}
    _B_in = _B_setup()
    return {'A_x': _A_in['x'], 'A_mem0': _A_in['mem0'], 'A_Wq': _A_in['Wq'], 'A_Wk': _A_in['Wk'], 'A_Wv': _A_in['Wv'], 'A_Wo': _A_in['Wo'], 'A_seg_len': _A_in['seg_len'], 'B_x': _B_in['x'], 'B_w_in': _B_in['w_in'], 'B_w_sp': _B_in['w_sp'], 'B_b_sp': _B_in['b_sp'], 'B_w_out': _B_in['w_out']}

def reference(A_x, A_mem0, A_Wq, A_Wk, A_Wv, A_Wo, A_seg_len, B_x, B_w_in, B_w_sp, B_b_sp, B_w_out):

    def _A_ref(x, mem0, Wq, Wk, Wv, Wo, seg_len):
        B, S, Dm = x.shape
        H, Dh = (Wq.shape[1], Wq.shape[2])
        M = mem0.shape[1]
        scale = Dh ** (-0.5)
        n_seg = S // seg_len
        L = M + seg_len
        idx = torch.arange(L)
        mask = (idx[:, None] < M) | (idx[:, None] >= idx[None, :])
        mem = mem0
        outs = []
        for s in range(n_seg):
            xs = x[:, s * seg_len:(s + 1) * seg_len, :].clone()
            h = torch.concatenate([mem, xs], axis=1)
            q = torch.einsum('btd,dhe->bhte', h, Wq)
            k = torch.einsum('btd,dhe->bhte', h, Wk)
            v = torch.einsum('btd,dhe->bhte', h, Wv)
            scores = torch.einsum('bhqe,bhke->bhqk', q, k) * scale
            scores = torch.where(mask[None, None], scores, -1000000000.0)
            p = _softmax(scores, axis=-1)
            o = torch.einsum('bhqk,bhke->bhqe', p, v)
            o = torch.einsum('bhte,hed->btd', o, Wo)
            mem = o[:, :M, :].clone()
            outs.append(o[:, M:, :])
        return torch.concatenate(outs, axis=1)

    def _B_ref(x, w_in, w_sp, b_sp, w_out):
        B, S, D = x.shape
        F = w_in.shape[-1]
        Fh = F // 2
        z = _gelu(torch.einsum('bsd,df->bsf', x, w_in))
        z1 = z[..., :Fh].clone()
        z2 = _layernorm(z[..., Fh:], axis=-1)
        g = torch.einsum('ts,bsf->btf', w_sp, z2) + b_sp[None, :, None]
        return torch.einsum('bsf,fd->bsd', z1 * g, w_out)
    x = A_x
    h = x + _A_ref(_layernorm(x, axis=-1), A_mem0, A_Wq, A_Wk, A_Wv, A_Wo, A_seg_len)
    h2 = h + _B_ref(_layernorm(h, axis=-1), B_w_in, B_w_sp, B_b_sp, B_w_out)
    return h2
```

```python
import re

TRANS = ("v_exp_f32", "v_log_f32", "v_rcp_f32", "v_rsq_f32", "v_sqrt_f32", "v_sin_f32", "v_cos_f32", "v_rcp_iflag_f32")

def regs_of(tok):
    tok = tok.strip()
    tok = tok.lstrip("-")
    m = re.match(r"^abs\((.*)\)$", tok)
    if m: tok = m.group(1)
    m = re.match(r"^\|(.*)\|$", tok)
    if m: tok = m.group(1)
    m = re.match(r"^([vas])(\d+)$", tok)
    if m: return {m.group(1) + m.group(2)}
    m = re.match(r"^([vas])\[(\d+):(\d+)\]$", tok)
    if m: return {m.group(1) + str(i) for i in range(int(m.group(2)), int(m.group(3)) + 1)}
    if tok in ("vcc", "vcc_lo", "vcc_hi"): return {"vcc"}
    if tok in ("exec", "exec_lo", "exec_hi"): return {"exec"}
    if tok == "m0": return {"m0"}
    return set()

class Ins:
    def __init__(self, text):
        self.text = text
        t = text.split(";")[0].strip()
        parts = t.split(None, 1)
        self.op = parts[0]
        rest = parts[1] if len(parts) > 1 else ""
        rest2 = re.sub(r"\b(op_sel|op_sel_hi|neg_lo|neg_hi|quad_perm):\[[^\]]*\]", "", rest)
        ops = [o.strip() for o in rest2.split(",")] if rest2.strip() else []
        if ops:
            ops[-1] = ops[-1].split()[0] if ops[-1].split() else ""
        self.ops = ops
        self.mods = rest
        op = self.op
        self.is_mfma = op.startswith("v_mfma") or op.startswith("v_smfmac")
        self.is_smf = op.startswith("v_smfmac")
        self.is_valu = op.startswith("v_") and not self.is_mfma
        self.is_salu = op.startswith("s_")
        self.is_vmem = op.startswith(("buffer_", "global_", "flat_"))
        self.is_ds = op.startswith("ds_")
        self.is_trans = any(op.startswith(x) for x in TRANS)
        self.is_perm = op.startswith("v_permlane")
        self.is_dpp = "_dpp" in op or "row_" in rest or "quad_perm" in rest
        self.is_rdlane = op.startswith(("v_readlane", "v_readfirstlane"))
        self.is_ldsdma = self.is_vmem and re.search(r"\blds\b", rest) is not None
        self.wr = set(); self.rd = set()
        R = [regs_of(o) for o in ops]
        if self.is_mfma:
            self.passes = 8 if "32x32" in op else 4
            self.D = R[0]; self.A = R[1]; self.B = R[2]
            if self.is_smf:
                self.C = R[0]; self.IDX = R[3]
            else:
                self.C = R[3]; self.IDX = set()
            self.wr = set(self.D); self.rd = self.A | self.B | self.C | self.IDX
        elif self.is_valu:
            if op.startswith("v_cmp"):
                self.wr = set(R[0]); self.rd = set().union(*R[1:])
            elif self.is_perm:
                self.wr = R[0] | R[1]; self.rd = R[0] | R[1]
            elif op.startswith(("v_add_co", "v_sub_co", "v_addc_co", "v_subb_co")):
                self.wr = R[0] | R[1]; self.rd = set().union(*R[2:])
            elif op.startswith("v_nop"):
                pass
            else:
                self.wr = set(R[0]); self.rd = set().union(*R[1:]) if len(R) > 1 else set()
                if op.startswith(("v_fmac", "v_pk_fmac", "v_dot2c", "v_writelane")) or self.is_dpp:
                    self.rd |= R[0]
                if op.startswith("v_cndmask") and len(R) == 3:
                    self.rd |= {"vcc"}
        elif self.is_vmem:
            allr = set().union(*R) if R else set()
            if "_load" in op and not self.is_ldsdma:
                self.wr = set(R[0]); self.rd = set().union(*R[1:])
            elif "atomic" in op and "sc0" in rest:
                self.wr = set(R[0]); self.rd = allr
            else:
                self.rd = allr
            self.store_data = set()
            if "_store" in op and ("x4" in op or "x3" in op):
                self.store_data = R[0] if op.startswith("buffer_") else R[1]
        elif self.is_ds:
            if op.startswith(("ds_read", "ds_bpermute", "ds_permute", "ds_swizzle")):
                self.wr = set(R[0]); self.rd = set().union(*R[1:])
            else:
                self.rd = set().union(*R) if R else set()
        elif self.is_salu:
            if op.startswith(("s_cmp", "s_cbranch", "s_branch", "s_waitcnt", "s_barrier", "s_nop", "s_endpgm", "s_setprio", "s_sleep", "s_bitcmp")):
                self.rd = set().union(*R) if R else set()
            else:
                self.wr = set(R[0]) if R else set(); self.rd = set().union(*R[1:]) if len(R) > 1 else set()
                if "saveexec" in op: self.wr |= {"exec"}
        self.states = 1
        if op == "s_nop": self.states = int(ops[0], 0) + 1

def need(p, c):
    n = 0
    vp = {r for r in p.wr if r[0] in "va" and r != "vcc"}
    if p.is_valu:
        if c.is_mfma and vp & c.rd: n = max(n, 2)
        if (c.is_perm or c.is_dpp) and vp & c.rd: n = max(n, 2)
        if c.is_rdlane and vp & c.rd: n = max(n, 1)
        if p.is_trans and c.is_valu and not c.is_trans and vp & c.rd: n = max(n, 1)
        if p.is_trans and (c.is_vmem or c.is_ds) and vp & c.rd: n = max(n, 1)
        sp = {r for r in p.wr if r[0] == "s" or r == "vcc"}
        if sp:
            if c.is_valu and sp & c.rd: n = max(n, 4 if c.op.startswith(("v_readlane", "v_writelane")) else 2)
            if c.is_vmem and sp & c.rd: n = max(n, 5)
            if c.is_salu and sp & c.rd: n = max(n, 1)
    if p.is_mfma:
        big = 8 if p.passes == 4 else 12
        if c.is_mfma:
            if p.D & (c.A | c.B | c.IDX): n = max(n, big)
            if p.D & c.C:
                if not (p.D == c.C and p.op == c.op): n = max(n, 6 if p.passes == 4 else 10)
            elif p.D & c.D: n = max(n, big)
        else:
            if p.D & (c.rd | c.wr): n = max(n, big)
            if c.is_valu and p.C & c.wr: n = max(n, 3 if p.passes == 4 else 7)
    if p.is_salu and "m0" in p.wr and c.is_ldsdma: n = max(n, 1)
    if p.is_vmem and getattr(p, "store_data", None) and p.store_data & c.wr:
        n = max(n, 2 if c.is_valu else 1)
    if p.is_ds and p.op.startswith(("ds_write_b128", "ds_write_b96", "ds_write2_b64")) and c.is_valu:
        pass
    return n

class Asm:
    def __init__(self):
        self.lines = []
        self.hist = []
        self.nops = 0
        self.uid = 0
    def raw(self, s):
        self.lines.append(s)
    def label(self, name):
        self.lines.append(name + ":")
    def newlabel(self, p="L"):
        self.uid += 1
        return f"{p}_{self.uid}"
    def comment(self, s):
        self.lines.append("    ; " + s)
    def fence(self):
        self.I("s_nop 7"); self.I("s_nop 3")
    def I(self, text):
        for t in text.split("\n"):
            t = t.strip()
            if not t: continue
            if t.startswith(";"):
                self.lines.append("    " + t); continue
            if t.endswith(":"):
                self.lines.append(t); continue
            ins = Ins(t)
            dist = 0; req = 0
            for p in reversed(self.hist):
                n = need(p, ins)
                if n > dist: req = max(req, n - dist)
                dist += p.states
                if dist >= 20: break
            if req > 0:
                self.nops += req
                nop = Ins(f"s_nop {req-1}")
                self.hist.append(nop); self.lines.append(f"    s_nop {req-1}")
            self.hist.append(ins)
            if len(self.hist) > 40: self.hist = self.hist[-40:]
            self.lines.append("    " + t)
    def text(self):
        return "\n".join(self.lines) + "\n"

def kd(name, vgpr, sgpr, accum):
    return f""".amdhsa_kernel {name}
  .amdhsa_next_free_vgpr {vgpr}
  .amdhsa_next_free_sgpr {sgpr}
  .amdhsa_accum_offset {accum}
  .amdhsa_group_segment_fixed_size 0
  .amdhsa_kernarg_size 120
  .amdhsa_user_sgpr_count 2
  .amdhsa_user_sgpr_kernarg_segment_ptr 1
  .amdhsa_system_sgpr_workgroup_id_x 1
.end_amdhsa_kernel
"""
```

```python
from asmlib import *
import struct

WS_KV = 2 << 20
WS_KM = (36 << 20) + 4096
WS_HA = 48 << 20
WS_HB = 49 << 20
WS_XN = 50 << 20
WS_H = 52 << 20
WS_HN = 54 << 20
WS_Z = 56 << 20
WS_ZS = 62 << 20
WS_PART = 64 << 20
F_KV = 0; F_KM = 8192; F_PART = 16384; F_HN = 24576; F_Z = 32768
NG = 5
WS_BYTES = 256 << 20
LW = 128 << 10
L_MEM = 0; L_QK = 0; L_O = 4096; L_V = 8192; L_K = 16384
LDS_BYTES = 160 << 10
SCALE_LOG2E = (128 ** -0.5) * 1.4426950408889634

SPIN_MAX = 1 << 18
def f2u(x): return struct.unpack("<I", struct.pack("<f", x))[0]
def vr(b, n): return f"v[{b}:{b+n-1}]"
def ar(b, n): return f"a[{b}:{b+n-1}]"

vIDX, vL16, vT, vMW, vOR, vKR, vSEL = 0, 1, 2, 4, 5, 6, 7
vXW, vTR, vOW, vF0, vF1, vAST, vALD, vBST = 8, 9, 10, 11, 12, 13, 14, 15
PZ = 16
M = 20; AQ = 52; AK = 60; AV = 68; KX = 76; VX = 108; S = 116
sWS = 4
sW = 8
sDBG = 12
sH, sWV, sSTEP, sHA, sHB, sKV, sKM, sSPIN, sT0, sT1, sT2, sT3, sSC = 16, 17, 18, 19, 20, 21, 22, 23, 24, 25, 26, 27, 28
sM0A, sM0B, sRA, sRB, sRC, sPF, sSPA, sB0, sB1 = 29, 30, 31, 32, 33, 34, 35, 36, 37
sRDY = 38
vFL = 14
sMSK = 52

LRES = [(0, 0, 0), (0, 1, 0), (1, 0, 0), (1, 1, 0), (0, 0, 1), (0, 1, 1)]
LBUF = [VX, VX + 8, KX, KX + 8, KX + 16, KX + 24]
WOL = [(3, 0, 2), (3, 1, 1), (3, 1, 3), (3, 1, 2), (3, 2, 1), (3, 2, 3), (3, 2, 2), (3, 3, 1), (3, 3, 3), (3, 3, 2)]
WBUF = [M + 8, M + 16, M + 24, KX + 16, KX + 24, KX, KX + 8, M, S, M + 8]
NL = len(LRES); NW = len(WOL)
_slots = {}
def _assign():
    n = 0
    for mat in range(3):
        for tau in range(2):
            for p in range(8):
                if (mat, tau, p) in LRES: continue
                _slots[(mat, tau, p)] = n; n += 1
    for p in range(4):
        for j in range(4):
            if (3, p, j) in WOL: continue
            _slots[(3, p, j)] = n; n += 1
    assert n == 48
_assign()
def slot_reg(key, off, n):
    i = _slots[key] * 8 + off
    return ar(i, n) if i < 256 else vr(128 + i - 256, n)
def wfrag(*key):
    if key in LRES: return vr(LBUF[LRES.index(key)], 8)
    if key in WOL: return vr(WBUF[WOL.index(key)], 8)
    return slot_reg(key, 0, 8)

def smf(acc, a, b): return f"v_smfmac_f32_16x16x64_bf16 {vr(acc,4)}, {vr(a,4)}, {b}, v{vIDX}"
def mf32(d, a, b, c): return f"v_mfma_f32_16x16x32_bf16 {vr(d,4)}, {vr(a,4)}, {vr(b,4)}, {c}"
def mf16(d, a, b, c): return f"v_mfma_f32_16x16x16_bf16 {vr(d,4)}, {vr(a,2)}, {vr(b,2)}, {c}"

def chain_setup(A, st):
    I = A.I
    WS = f"s[{sWS}:{sWS+3}]"
    LN, C, G, R, R0, R1, G0, G1, CP, X, Y, Z = 40, 41, 42, 43, 44, 45, 46, 47, 48, 49, 50, 51
    I(f"v_lshrrev_b32 v{X}, 6, v0")
    I(f"v_and_b32 v{LN}, 63, v0")
    I(f"v_readfirstlane_b32 s{sWV}, v{X}")
    I(f"v_and_b32 v{C}, 15, v{LN}")
    I(f"v_lshrrev_b32 v{G}, 4, v{LN}")
    I(f"v_lshrrev_b32 v{R}, 2, v{C}")
    I(f"v_and_b32 v{R0}, 1, v{R}")
    I(f"v_lshrrev_b32 v{R1}, 1, v{R}")
    I(f"v_and_b32 v{G0}, 1, v{G}")
    I(f"v_lshrrev_b32 v{G1}, 1, v{G}")
    I(f"v_and_b32 v{CP}, 3, v{C}")
    I(f"s_and_b32 s{sT0}, s{sWV}, 1")
    I(f"s_lshl_b32 s{sT0}, s{sT0}, 2")
    I(f"s_lshr_b32 s{sT1}, s{sWV}, 1")
    I(f"s_lshl_b32 s{sT1}, s{sT1}, 4")
    I(f"s_add_u32 s{sT0}, s{sT0}, s{sT1}")
    I(f"v_add_u32 v20, s{sT0}, v{G}")
    I("v_lshlrev_b32 v20, 13, v20")
    I(f"s_lshl_b32 s{sT0}, s{sWV}, 2")
    I(f"v_lshlrev_b32 v{X}, 1, v{G1}")
    I(f"v_or_b32 v{X}, s{sT0}, v{X}")
    I(f"v_xor_b32 v{X}, v{C}, v{X}")
    I(f"v_lshl_add_u32 v20, v{X}, 4, v20")
    I(f"s_lshl_b32 s{sT1}, s{sH}, 8")
    I(f"v_add_u32 v20, s{sT1}, v20")

    chunks = [(0, 0), (0, 1), (1, 0), (1, 1), (2, 0), (2, 1), (3, 0), (3, 1)]
    HOLD = 32; HW = HOLD + 8*NL
    def srd_for(mat):
        I(f"s_load_dwordx2 s[{sW}:{sW+1}], s[0:1], {16 + 8*mat}")
        I(f"s_mov_b32 s{sW+2}, {4<<20}")
        I(f"s_mov_b32 s{sW+3}, 0x20000")
        I("s_waitcnt lgkmcnt(0)")
    def dma(ci):
        mat, half = chunks[ci]
        if half == 0: srd_for(mat)
        reg = half * 65536
        if mat < 3:
            I(f"s_lshl_b32 s{sT0}, s{sWV}, 10")
            for i in range(16):
                I(f"s_add_u32 m0, s{sT0}, {reg + i*4096}")
                I(f"s_mov_b32 s{sT1}, {(32*i + 8*half)*8192}")
                I(f"buffer_load_dwordx4 v20, s[{sW}:{sW+3}], s{sT1} offen lds")
        else:
            I(f"s_lshl_b32 s{sT0}, s{sWV}, 14")
            for i in range(16):
                I(f"s_add_u32 m0, s{sT0}, {reg + i*1024}")
                I(f"s_mov_b32 s{sT1}, {((i&7) + 64*(i>>3) + 8*half)*1024}")
                I(f"buffer_load_dwordx4 v{21 + (i&1)}, s[{sW}:{sW+3}], s{sT1} offen lds")
    dma(0); dma(1)
    I(f"s_and_b32 s{sT0}, s{sWV}, 1")
    I(f"s_lshl_b32 s{sT0}, s{sT0}, 3")
    I(f"v_xor_b32 v21, s{sT0}, v{LN}")
    I("v_xor_b32 v22, 4, v21")
    I(f"s_lshl_b32 s{sT1}, s{sH}, 17")
    I(f"s_lshl_b32 s{sT2}, s{sWV}, 14")
    I(f"s_add_u32 s{sT1}, s{sT1}, s{sT2}")
    I("v_lshlrev_b32 v21, 4, v21")
    I("v_lshlrev_b32 v22, 4, v22")
    I(f"v_add_u32 v21, s{sT1}, v21")
    I(f"v_add_u32 v22, s{sT1}, v22")
    I(f"v_lshl_add_u32 v{X}, v{R1}, 1, v{G0}")
    I(f"v_lshl_add_u32 v{X}, v{R0}, 2, v{X}")
    I(f"v_lshlrev_b32 v{Y}, 9, v{X}")
    I(f"v_lshl_add_u32 v{Y}, v{G1}, 14, v{Y}")
    I(f"v_lshl_add_u32 v{Y}, v{CP}, 3, v{Y}")
    I(f"s_lshl_b32 s{sT1}, s{sWV}, 1")
    I(f"v_xor_b32 v{X}, s{sT1}, v{X}")
    I(f"v_lshl_add_u32 v23, v{X}, 5, v{Y}")
    I("v_xor_b32 v24, 32, v23")
    I(f"v_lshl_add_u32 v{Y}, v{G1}, 2, v{R0}")
    I(f"v_lshl_add_u32 v{Y}, v{G0}, 4, v{Y}")
    I(f"v_lshlrev_b32 v{Y}, 10, v{Y}")
    I(f"v_lshl_add_u32 v{Y}, v{CP}, 3, v{Y}")
    I(f"v_lshl_add_u32 v{X}, v{R0}, 1, v{R1}")
    I(f"v_lshl_add_u32 v{X}, v{G0}, 2, v{X}")
    I(f"v_lshl_add_u32 v{Y}, v{X}, 5, v{Y}")
    I(f"s_lshl_b32 s{sT1}, s{sWV}, 8")
    I(f"v_add_u32 v25, s{sT1}, v{Y}")
    I(f"v_lshlrev_b32 v{vL16}, 4, v{LN}")
    I(f"s_lshl_b32 s{sT1}, s{sWV}, 14")
    I(f"v_add_u32 v{vF0}, s{sT1}, v{vL16}")
    I(f"v_add_u32 v{vF1}, 0x10000, v{vF0}")
    I(f"v_add_u32 v{vL16}, {LW}, v{vL16}")
    I(f"s_lshl_b32 s{sT1}, s{sWV}, 11")
    I(f"v_add_u32 v{vMW}, s{sT1}, v{vL16}")
    I(f"s_lshl_b32 s{sT1}, s{sWV}, 10")
    I(f"v_add_u32 v{vOW}, s{sT1}, v{vL16}")
    I(f"v_and_b32 v{vOR}, {hex(0xffffffff ^ 32)}, v{vOW}")
    I(f"v_lshlrev_b32 v{X}, 5, v{C}")
    I(f"v_lshl_add_u32 v{X}, v{G}, 3, v{X}")
    I(f"s_add_u32 s{sT1}, s{sT1}, {LW}")
    I(f"v_add_u32 v{vXW}, s{sT1}, v{X}")
    I(f"v_lshlrev_b32 v{X}, 3, v{LN}")
    I(f"v_add_u32 v{vTR}, {LW}, v{X}")
    I(f"v_lshl_add_u32 v{X}, v{R1}, 2, v{G}")
    I(f"v_lshlrev_b32 v{X}, 13, v{X}")
    I(f"v_and_b32 v{Y}, 7, v{C}")
    I(f"v_lshl_add_u32 v{X}, v{Y}, 3, v{X}")
    I(f"s_lshl_b32 s{sT1}, s{sWV}, 16")
    I(f"s_lshl_b32 s{sT2}, s{sH}, 6")
    I(f"s_add_u32 s{sT1}, s{sT1}, s{sT2}")
    I(f"v_add_u32 v{vAST}, s{sT1}, v{X}")
    I(f"s_lshl_b32 s{sT1}, s{sWV}, 11")
    I(f"s_and_b32 s{sT2}, s{sH}, 4")
    I(f"s_lshl_b32 s{sT2}, s{sT2}, 8")
    I(f"s_add_u32 s{sT1}, s{sT1}, s{sT2}")
    I(f"s_lshr_b32 s{sT2}, s{sH}, 3")
    I(f"s_lshl_b32 s{sT2}, s{sT2}, 8")
    I(f"s_add_u32 s{sT1}, s{sT1}, s{sT2}")
    I(f"s_and_b32 s{sT2}, s{sH}, 3")
    I(f"s_lshl_b32 s{sT2}, s{sT2}, 6")
    I(f"s_add_u32 s{sT1}, s{sT1}, s{sT2}")
    I(f"v_and_b32 v{Y}, 1, v{C}")
    I(f"v_and_b32 v{Z}, 2, v{C}")
    I(f"v_add_u32 v{X}, v{Z}, v{G0}")
    I(f"v_lshlrev_b32 v{X}, 4, v{X}")
    I(f"v_lshl_add_u32 v{X}, v{Y}, 3, v{X}")
    I(f"v_lshl_add_u32 v{X}, v{G1}, 2, v{X}")
    I(f"v_add_u32 v{X}, s{sT1}, v{X}")
    I(f"v_mov_b32 v{Z}, 0x40000000")
    I(f"v_cmp_gt_u32 vcc, 4, v{C}")
    I(f"v_cndmask_b32 v{vBST}, v{Z}, v{X}, vcc")
    for i in range(4):
        I(f"s_mov_b32 s{sMSK+2*i}, {hex(0x000f000f << (4*i))}")
        I(f"s_mov_b32 s{sMSK+2*i+1}, {hex(0x000f000f << (4*i))}")
    I(f"s_lshl_b32 s{sT1}, s{sH}, 7")
    I(f"s_add_u32 s{sT1}, s{sT1}, {F_KM}")
    I(f"v_mov_b32 v{X}, s{sT1}")
    I(f"v_cmp_eq_u32 vcc, 0, v0")
    I(f"v_cndmask_b32 v{vFL}, v{Z}, v{X}, vcc")
    I(f"v_lshlrev_b32 v{Z}, 4, v{Y}")
    I(f"v_mov_b32 v{X}, 0x3f80")
    I(f"v_lshlrev_b32 v{vSEL}, v{Z}, v{X}")
    I(f"v_add_u32 v{vKR}, {L_K}, v{vL16}")
    I(f"v_lshl_add_u32 v{X}, v{R}, 1, v{Y}")
    I(f"v_lshlrev_b32 v{X}, 10, v{X}")
    I(f"v_lshl_add_u32 v{X}, v{G}, 8, v{X}")
    I(f"v_and_b32 v{Y}, 2, v{C}")
    I(f"v_lshl_add_u32 v{vT}, v{Y}, 2, v{X}")
    I(f"v_mov_b32 v{X}, 0x44444444")
    I(f"v_mov_b32 v{Z}, 0xeeeeeeee")
    I(f"v_cmp_eq_u32 vcc, 0, v{Y}")
    I(f"v_cndmask_b32 v{vIDX}, v{Z}, v{X}, vcc")
    for i in range(4): I(f"v_mov_b32 v{PZ+i}, 0")
    I("s_waitcnt lgkmcnt(0)")

    for ci in range(8):
        mat, half = chunks[ci]
        I(f"s_waitcnt vmcnt({16 if ci < 7 else 0})")
        I("s_barrier")
        if mat < 3:
            for pp in range(4):
                for tau in range(2):
                    key = (mat, tau, 2*pp + half)
                    for u in range(4):
                        off = (u >> 1) * 32768 + (u & 1) * 256 + pp * 4096
                        dst = vr(HOLD + 8*LRES.index(key) + 2*u, 2) if key in LRES else slot_reg(key, 2*u, 2)
                        I(f"ds_read_b64_tr_b16 {dst}, v{23+tau} offset:{off}")
            I("s_waitcnt lgkmcnt(0)")
            I("v_xor_b32 v23, 0x10000, v23"); I("v_xor_b32 v24, 0x10000, v24")
            I("s_barrier")
            if ci + 2 < 8: dma(ci + 2)
        else:
            for j in range(4):
                I(f"s_xor_b32 s{sT1}, s{sWV}, {j}")
                I(f"s_lshr_b32 s{sT2}, s{sT1}, 1")
                I(f"s_lshl_b32 s{sT2}, s{sT2}, 13")
                I(f"s_and_b32 s{sT1}, s{sT1}, 1")
                I(f"s_lshl_b32 s{sT1}, s{sT1}, 15")
                I(f"s_add_u32 s{sT1}, s{sT1}, s{sT2}")
                I(f"s_add_u32 s{sT1}, s{sT1}, {half*65536}")
                I(f"v_add_u32 v26, s{sT1}, v25")
                for p in range(4):
                    I(f"v_xor_b32 v27, {p<<6}, v26")
                    key = (3, p, j)
                    for u1 in range(2):
                        dst = vr(HW + 4*WOL.index(key) + 2*u1, 2) if key in WOL else slot_reg(key, 4*half + 2*u1, 2)
                        I(f"ds_read_b64_tr_b16 {dst}, v27 offset:{u1*2048}")
            I("s_waitcnt lgkmcnt(0)")
            I("s_barrier")
            a = vF1 if half else vF0
            for i in range(NL): I(f"ds_write_b128 v{a}, {vr(HOLD+8*i+4*half,4)} offset:{i*1024}")
            for i in range(NW): I(f"ds_write_b128 v{a}, {vr(HW+4*i,4)} offset:{(NL+i)*1024}")
            I("s_waitcnt lgkmcnt(0)")
    I(f"s_load_dwordx2 s[{sW}:{sW+1}], s[0:1], 8")
    I(f"s_mov_b32 s{sW+2}, 8192")
    I("s_waitcnt lgkmcnt(0)")
    for k in range(8):
        I(f"buffer_load_dwordx2 {vr(60+4*k,2)}, v{vT}, s[{sW}:{sW+3}], 0 offen offset:{64*(k>>1) + 16*(k&1)}")
        I(f"buffer_load_dwordx2 {vr(62+4*k,2)}, v{vT}, s[{sW}:{sW+3}], 0 offen offset:{64*(k>>1) + 16*(k&1) + 32}")
    I(f"s_mov_b32 s{sT1}, 0x05040100")
    I(f"s_mov_b32 s{sT2}, 0x07060302")
    I(f"s_mov_b32 s{sHB}, {WS_HB}")
    I(f"s_mov_b32 s{sB0}, {WS_HB - LW}")
    I(f"s_lshl_b32 s{sB1}, s{sWV}, 11")
    I(f"s_add_u32 s{sB1}, s{sB1}, {LW + L_MEM}")
    I("s_waitcnt vmcnt(0)")
    for k in range(8):
        for x in range(4):
            I(f"v_perm_b32 v{M+4*k+x}, v{62+4*k+(x>>1)}, v{60+4*k+(x>>1)}, s{sT2 if x&1 else sT1}")
            I(f"v_min_u32 v{M+4*k+x}, -2, v{M+4*k+x}")
    for k in range(8):
        I(f"ds_write_b128 v{vL16}, {vr(M+4*k,4)} offset:{L_MEM + k*1024}")
    I(f"s_mov_b32 s{sSTEP}, 0")
    I(f"s_mov_b32 s{sHA}, {WS_HA}")
    I(f"s_lshl_b32 s{sRC}, s{sH}, 13")
    I(f"s_sub_u32 s{sRC}, s{sRC}, {LW}")
    I(f"s_add_u32 s{sRA}, s{sRC}, {WS_HA + (256<<10)}")
    I(f"s_mov_b32 s{sRB}, {WS_HB + 3*8192}")
    I(f"s_lshl_b32 s{sKV}, s{sH}, 14")
    I(f"s_add_u32 s{sKV}, s{sKV}, {WS_KV - LW}")
    I(f"s_mul_i32 s{sKM}, s{sH}, {65*4096}")
    I(f"s_add_u32 s{sKM}, s{sKM}, {WS_KM - LW - 4096}")
    I(f"s_mov_b32 s{sSPIN}, 0")
    I(f"s_mov_b32 s{sSPA}, 0")
    I(f"s_mov_b32 s{sSC}, {hex(f2u(SCALE_LOG2E))}")
    I(f"s_lshl_b32 s{sM0A}, s{sWV}, 11")
    I(f"s_add_u32 s{sM0B}, s{sM0A}, {LW + L_V}")
    I(f"s_add_u32 s{sM0A}, s{sM0A}, {LW + L_K}")
    I(f"s_lshl_b32 s{sPF}, s{sWV}, 10")
    I(f"s_add_u32 s{sPF}, s{sPF}, {LW + L_MEM + 4096}")

def kv_dma(A, ld=""):
    return [f"s_mov_b32 m0, s{sM0A}",
            f"s_add_u32 s{sT3}, s{sKV}, 8192",
            f"buffer_load_dwordx4 v{vMW}, s[{sWS}:{sWS+3}], s{sKV} offen {ld} lds",
            f"buffer_load_dwordx4 v{vMW}, s[{sWS}:{sWS+3}], s{sKV} offen offset:1024 {ld} lds",
            f"s_mov_b32 m0, s{sM0B}",
            f"s_xor_b32 s{sM0A}, s{sM0A}, 8192",
            f"buffer_load_dwordx4 v{vMW}, s[{sWS}:{sWS+3}], s{sT3} offen {ld} lds",
            f"buffer_load_dwordx4 v{vMW}, s[{sWS}:{sWS+3}], s{sT3} offen offset:1024 {ld} lds",
            f"s_add_u32 s{sKV}, s{sKV}, {32*16384}"]

def kv_wait(A, pfx, need_minus1):
    I = A.I
    WS = f"s[{sWS}:{sWS+3}]"
    A.label(f"{pfx}_kvw")
    I(f"v_lshrrev_b32 v{vT}, 2, v{vL16}")
    I(f"s_lshl_b32 s{sT3}, s{sH}, 7")
    I(f"v_subrev_u32 v{vT}, {LW//4}, v{vT}")
    I(f"s_add_u32 s{sT3}, s{sT3}, {F_KV}")
    I(f"buffer_load_dword v{vT+1}, v{vT}, {WS}, s{sT3} offen sc1")
    I(f"s_add_u32 s{sSPIN}, s{sSPIN}, 1")
    I("s_waitcnt vmcnt(0)")
    I(f"v_readlane_b32 s{sRDY}, v{vT+1}, 0")
    I(f"s_mul_i32 s{sRDY}, s{sRDY}, {NG}")
    for g in range(1, NG):
        I(f"v_readlane_b32 s{sT3}, v{vT+1}, {g}")
        I(f"s_mul_i32 s{sT3}, s{sT3}, {NG}")
        I(f"s_add_u32 s{sT3}, s{sT3}, {g}")
        I(f"s_min_u32 s{sRDY}, s{sRDY}, s{sT3}")
    I(f"s_cmp_gt_u32 s{sSPIN}, {SPIN_MAX}")
    I(f"s_cbranch_scc1 {pfx}_kvw_done")
    I(f"s_add_u32 s{sT3}, s{sSTEP}, {need_minus1}")
    I(f"s_cmp_ge_u32 s{sT3}, s{sRDY}")
    I(f"s_cbranch_scc1 {pfx}_kvw")
    A.label(f"{pfx}_kvw_done")
    I(f"s_sub_u32 s{sRDY}, s{sRDY}, 1")

def hs(x): return f"v_pk_add_f32 {vr(x,2)}, {vr(x,2)}, {vr(x+2,2)}"
def hs2(x): return [f"v_add_f32 v{x}, v{x}, v{x+2}", f"v_add_f32 v{x+1}, v{x+1}, v{x+3}"]
def cv(d, x): return f"v_cvt_pk_bf16_f32 v{d}, v{x}, v{x+1}"
def zero(base, n): return [f"v_mov_b64 {vr(base+2*i,2)}, 0" for i in range(n // 2)]
def frag_rd(i, dst):
    return [f"ds_read_b128 {vr(dst,4)}, v{vF0} offset:{i*1024}", f"ds_read_b128 {vr(dst+4,4)}, v{vF1} offset:{i*1024}"]
def chk(base, tmp):
    return [f"v_max3_u32 v{tmp}, v{base}, v{base+1}, v{base+2}", f"v_max3_u32 v{tmp+1}, v{base+3}, v{base+4}, v{base+5}",
            f"v_max3_u32 v{tmp}, v{tmp}, v{base+6}, v{base+7}", f"v_max_u32 v{tmp}, v{tmp}, v{tmp+1}", f"v_cmp_eq_u32 vcc, -1, v{tmp}"]
def delay(A, n):
    while n > 0:
        k = min(n, 16); A.I(f"s_nop {k-1}"); n -= k
def slots(A, mfmas, fills):
    for i, m in enumerate(mfmas):
        A.I(m)
        if i < len(fills):
            for f in fills[i]: A.I(f)


def chain_loop(A, st, pfx, stamp=None, pub="sc1", opt={}):
    I = A.I
    WS = f"s[{sWS}:{sWS+3}]"
    nohop = opt.get("nohop")
    def T(i):
        if stamp: stamp(A, i)
    lres_rd = sum([frag_rd(i, LBUF[i]) for i in range(NL)], [])
    PB = S + 8
    NEG = S + 4
    mega = opt.get("mega")
    kld = "sc1" if mega else ""
    I("s_waitcnt lgkmcnt(0)")
    if mega: kv_wait(A, pfx + "_i", 0)
    for x in kv_dma(A, kld) + lres_rd + zero(AQ, 24): I(x)
    I("s_waitcnt vmcnt(0) lgkmcnt(0)")
    I("s_barrier")
    I(f"s_branch {pfx}_go0")
    BS = [M + 16, M + 24]
    def pollB(b): return [f"buffer_load_dwordx4 {vr(b,4)}, v{vMW}, {WS}, s{sB0} offen sc1", f"buffer_load_dwordx4 {vr(b+4,4)}, v{vMW}, {WS}, s{sB0} offen offset:1024 sc1",
                          f"buffer_load_dwordx4 v{vMW}, {WS}, s{sB0} offen sc1 lds", f"buffer_load_dwordx4 v{vMW}, {WS}, s{sB0} offen offset:1024 sc1 lds"]
    NE = opt.get("NE", 2)
    mr = [f"ds_read_b128 {vr(M+4*k,4)}, v{vL16} offset:{L_MEM+1024*k}" for k in range(8)]
    def ckr(lo, hi):
        regs = list(range(M + 4*lo, M + 4*hi))
        out = [f"v_max3_u32 v{vT}, v{regs[0]}, v{regs[1]}, v{regs[2]}"]
        for i in range(3, len(regs) - 1, 2): out.append(f"v_max3_u32 v{vT}, v{vT}, v{regs[i]}, v{regs[i+1]}")
        out.append(f"v_max_u32 v{vT}, v{vT}, v{regs[-1]}")
        out.append(f"v_cmp_eq_u32 vcc, -1, v{vT}")
        return out
    assert NE == 2
    lateD = f"buffer_load_dwordx4 v{vOW}, {WS}, s{sT2} offen sc1 lds"
    if mega:
        kv_wait(A, pfx + "_l", 1)
        I(f"s_branch {pfx}_kv_ok")
    A.label(f"{pfx}_lateB")
    I(lateD)
    I(f"s_add_u32 s{sSPIN}, s{sSPIN}, 1")
    I(f"s_cmp_gt_u32 s{sSPIN}, {SPIN_MAX}")
    I("s_waitcnt vmcnt(1)")
    I(f"s_cbranch_scc1 {pfx}_lateB_ok")
    for x in mr[2*NE:]: I(x)
    I("s_waitcnt lgkmcnt(0)")
    for x in ckr(2*NE, 8): I(x)
    I(f"s_cbranch_vccnz {pfx}_lateB")
    A.label(f"{pfx}_lateB_ok")
    I("s_waitcnt vmcnt(0)")
    I(f"s_branch {pfx}_late_done")
    A.label(f"{pfx}_earlyB_retry")
    for x in pollB(BS[0]): I(x)
    I("s_waitcnt vmcnt(6)")
    c = chk(BS[1], vT)
    for x in c[:4]: I(x)
    I("s_waitcnt vmcnt(4)"); I(c[4])
    I(f"s_cbranch_vccz {pfx}_go")
    for x in pollB(BS[1]): I(x)
    I(f"s_add_u32 s{sSPIN}, s{sSPIN}, 1")
    I(f"s_cmp_gt_u32 s{sSPIN}, {SPIN_MAX}")
    I(f"s_cbranch_scc1 {pfx}_go")
    A.label(f"{pfx}_earlyB")
    I("s_waitcnt vmcnt(6)")
    c = chk(BS[0], vT)
    for x in c: I(x)
    I("s_waitcnt vmcnt(4)")
    if not nohop: I(f"s_cbranch_vccnz {pfx}_earlyB_retry")
    A.label(f"{pfx}_go")
    I(f"s_mov_b32 m0, s{sPF}")
    I("s_barrier")
    I(lateD)
    A.label(f"{pfx}_go0")
    T(0)
    acc = {0: AQ, 1: AK, 2: AV}
    def m1(mat, tau, p): return smf(acc[mat] + 4*tau, M + 4*p, wfrag(mat, tau, p))
    def mm(mat, p): return [m1(mat, 0, p), m1(mat, 1, p)]
    kx = [f"ds_read_b128 {vr(KX+4*i,4)}, v{vKR} offset:{1024*i}" for i in range(8)]
    vx = [f"ds_read_b128 {vr(VX+4*i,4)}, v{vMW} offset:{L_V+1024*i}" for i in range(2)]
    q0p = hs2(AQ) + [cv(AQ+2, AQ)]; q1p = hs2(AQ+4) + [cv(AQ+6, AQ+4)]
    k0p = hs2(AK) + [cv(AQ+3, AK)]; k1p = hs2(AK+4) + [cv(AQ+7, AK+4)]
    def ck(k):
        b = M + 4*k
        if k == 0: return [f"v_max3_u32 v{vT}, v{b}, v{b+1}, v{b+2}", f"v_max_u32 v{vT}, v{vT}, v{b+3}"]
        return [f"v_max3_u32 v{vT}, v{vT}, v{b}, v{b+1}", f"v_max3_u32 v{vT}, v{vT}, v{b+2}, v{b+3}"]
    cmpv = f"v_cmp_eq_u32 vcc, -1, v{vT}"
    dma = ["s_nop 0"]*9 if opt.get("nodma") else kv_dma(A, kld)
    resets = [f"buffer_store_dwordx4 {vr(NEG,4)}, v{vMW}, {WS}, s{sRA} offen {st}",
              f"buffer_store_dwordx4 {vr(NEG,4)}, v{vMW}, {WS}, s{sRA} offen offset:1024 {st}",
              f"buffer_store_dword v{NEG}, v{vBST}, {WS}, s{sRB} offen {st}"]
    publish = [] if opt.get("nopub") else [f"buffer_store_dwordx4 {vr(PB,4)}, v{vOW}, {WS}, s{sKM} offen {pub}"]
    for x in mr[:2*NE]: I(x)
    I(f"s_waitcnt lgkmcnt({2*NE-1})")
    T(10)
    vm = sum([mm(2, p) for p in range(8)], [])
    nvf = opt.get("nvf", 8)
    nb = opt.get("nb", 11)
    ph1 = sum([mm(0, k) + mm(1, k) for k in range(2*NE)], []) + vm[:nvf]
    vm = vm[nvf:]
    kvr = vx + kx
    fl = [[], ["s_waitcnt lgkmcnt(0)"]] + [[] for _ in range(nb - 2)]
    for i in range(5, nb - 1): fl[i].append(kvr.pop(0))
    slots(A, ph1[:nb], fl)
    I("s_waitcnt vmcnt(0)")
    T(11)
    I("s_barrier")
    T(12)
    rest = ph1[nb:]
    nl = 8 - 2*NE
    c = ckr(2*NE, 8)
    neg = [f"v_mov_b64 {vr(NEG,2)}, -1", f"v_mov_b64 {vr(NEG+2,2)}, -1"]
    fl = [[] for _ in rest]
    I(mr[4]); I(mr[5])
    fl[0] += [mr[6]]; fl[1] += [mr[7]]
    st0 = len(rest) - 1 - len(c)
    nk = len(kvr)
    fl[st0].append("s_waitcnt lgkmcnt(2)")
    fl[st0+3].append("s_waitcnt lgkmcnt(0)")
    for i, x in enumerate(c):
        if i >= 4 and kvr: fl[st0+i].append(kvr.pop(0))
        fl[st0+i].append(x)
    fl[2] = publish + fl[2]
    if mega:
        fl[0] += [f"v_mov_b32 v{vT+1}, s{sSTEP}"]
        fl[len(rest)-1] += [f"buffer_store_dword v{vT+1}, v{vFL}, {WS}, 0 offen sc1"]
    slots(A, rest, fl)
    if not nohop: I(f"s_cbranch_vccnz {pfx}_lateB")
    A.label(f"{pfx}_late_done")
    if mega:
        I(f"s_cmp_ge_u32 s{sSTEP}, s{sRDY}")
        I(f"s_cbranch_scc1 {pfx}_l_kvw")
        A.label(f"{pfx}_kv_ok")
    T(14)
    qs = sum([mm(0, k) + mm(1, k) for k in range(2*NE, 4)], []) + mm(0, 4) + mm(0, 5) + mm(0, 6) + mm(0, 7)
    fl = [[kvr.pop(0)] if kvr else [] for _ in qs]
    fl[0] += [dma[0]]; fl[1] += [dma[2]]; fl[2] += [dma[1]] + neg[:1]; fl[3] += neg[1:]; fl[5] += [dma[3], dma[4]]; fl[6] += [dma[5]]
    fl[7] += ["s_waitcnt lgkmcnt(8)"]
    slots(A, qs, fl)
    ks = [m1(1, 0, p) for p in range(4, 8)] + [m1(1, 1, p) for p in range(4, 8)]
    slots(A, ks, [["s_nop 2"], [dma[6], "s_nop 0", q0p[0]], [q0p[1]], [q0p[2]], [q1p[0]], [dma[7], dma[8], q1p[1]], [q1p[2]], [k0p[0]]])
    T(13)
    for x in k0p[1:]: I(x)
    I(f"ds_write_b64 v{vXW}, {vr(AQ+2,2)} offset:{L_QK}")
    for x in k1p: I(x)
    I(f"ds_write_b64 v{vXW}, {vr(AQ+6,2)} offset:{L_QK+512}")
    T(20)
    wo = sum([frag_rd(NL + i, WBUF[i]) for i in range(NW)], [])
    nv = opt.get("nv", 4)
    slots(A, vm[:nv], [resets[:1], [wo[0], cv(AK, AK)], [wo[1], cv(AK+1, AK+4)], resets[2:], []])
    I(f"s_waitcnt lgkmcnt(2)")
    T(22)
    I("s_barrier")
    T(2)
    F = [M, M + 4, AQ, AQ + 4]
    frd = [f"ds_read_b64_tr_b16 {vr(F[sg]+2*rho,2)}, v{vTR} offset:{L_QK + sg*1024 + rho*512}" for sg in range(4) for rho in range(2)]
    for x in frd[:2]: I(x)
    nrem = len(vm) - nv
    fl = [frd[2:4], frd[4:6], frd[6:8]] + [[] for _ in range(nrem - 3)]
    slots(A, vm[nv:], fl)
    ONES = AV; LA = AK + 4; OA = AQ; tmx = AK + 4
    def sx(tau, sg): return mf32(S + 4 + 4*tau, KX + 16*tau + 4*sg, F[sg], "0" if sg == 0 else vr(S + 4 + 4*tau, 4))
    def s0(sg): return mf32(S, F[sg], F[sg], "0" if sg == 0 else vr(S, 4))
    I("s_waitcnt lgkmcnt(4)")
    slots(A, [sx(1, sg) for sg in range(4)], [resets[1:2], ["s_waitcnt lgkmcnt(0)", wo[2]], [wo[3]], [wo[4], wo[5]]])
    slots(A, [sx(0, sg) for sg in range(4)], [[wo[6]] + hs2(AV)[:1], [wo[7]] + hs2(AV)[1:], [wo[8]] + hs2(AV+4)[:1], [wo[9]] + hs2(AV+4)[1:]])
    slots(A, [s0(sg) for sg in range(4)],
          [[wo[10], f"v_max3_f32 v{tmx}, v{S+8}, v{S+9}, v{S+10}"], [wo[11], cv(AK+2, AV)], [wo[12], cv(AK+3, AV+4)],
           [wo[13], f"v_max3_f32 v{tmx}, v{tmx}, v{S+11}, v{S+4}"]])
    T(3)
    I(f"v_max3_f32 v{tmx}, v{tmx}, v{S+5}, v{S+6}")
    I(f"v_max_f32 v{tmx}, v{tmx}, v{S+7}")
    I(f"v_mov_b32 v{tmx+2}, s{sSC}")
    I(f"v_xor_b32 v{vKR}, {0 if opt.get('nodma') else 8192}, v{vKR}")
    for x in zero(AV + 4, 4): I(x)
    I(f"v_max3_f32 v{tmx}, v{tmx}, v{S+2}, v{S+3}")
    I(f"v_mov_b32 v{tmx+1}, v{tmx}")
    I(f"v_mov_b32 v{ONES}, 0x3f803f80")
    I(f"v_mov_b32 v{ONES+1}, 0x3f803f80")
    I(f"v_permlane32_swap_b32 v{tmx}, v{tmx+1}")
    I(f"v_max_f32 v{tmx}, v{tmx}, v{tmx+1}")
    I(f"v_mov_b32 v{tmx+1}, v{tmx}")
    I(f"v_mov_b64 {vr(ONES+2,2)}, {vr(ONES,2)}")
    I(f"v_permlane16_swap_b32 v{tmx}, v{tmx+1}")
    I(f"v_max_f32 v{tmx}, v{tmx}, v{tmx+1}")
    I(f"v_mul_f32 v{tmx}, s{sSC}, v{tmx}")
    for i in range(1, 6):
        I(f"v_pk_fma_f32 {vr(S+2*i,2)}, {vr(S+2*i,2)}, {vr(tmx+2,2)}, {vr(tmx,2)} op_sel_hi:[1,0,0] neg_lo:[0,0,1] neg_hi:[0,0,1]")
    ex = [f"v_exp_f32 v{S+i}, v{S+i}" for i in range(12)]
    I(ex[2]); I(ex[3]); I(ex[4])
    I(cv(PZ, S+2)); I(cv(PZ+3, S+2))
    I(ex[5])
    T(4)
    pk = [cv(S+4+i, S+4+2*i) for i in range(4)]
    slots(A, [mf16(OA, AK+2, PZ, "0"), mf16(OA+4, AK+2, PZ+2, "0"), mf16(LA, ONES, PZ, "0")],
          [[ex[6], ex[7]], [ex[8], ex[9]], [ex[10], ex[11]]])
    for x in pk: I(x)
    I(f"v_mov_b64 {vr(PB,2)}, {vr(AK,2)}"); I(f"v_mov_b64 {vr(PB+2,2)}, {vr(AK+2,2)}")
    slots(A, [mf32(LA, ONES, S+4, vr(LA,4)), mf32(OA, VX, S+4, vr(OA,4)), mf32(OA+4, VX+4, S+4, vr(OA+4,4))],
          [[wo[14]] + zero(AK, 2), [wo[15]] + zero(AK+2, 2), zero(AV, 4)])
    wrest = wo[16:]
    I(f"s_cmp_eq_u32 s{sSTEP}, 63")
    I(f"s_cbranch_scc1 {pfx}_done")
    T(40)
    I(f"v_rcp_f32 v{LA}, v{LA}")
    for i in range(4):
        I(f"v_pk_mul_f32 {vr(OA+2*i,2)}, {vr(OA+2*i,2)}, {vr(LA,2)} op_sel_hi:[1,0]")
    for i in range(4): I(cv(OA+i, OA+2*i))
    I(f"ds_write_b128 v{vOW}, {vr(OA,4)} offset:{L_O}")
    T(41)
    WA = [AV, AV + 4, AK, AK + 4]
    OF = [OA, OA + 4, VX, VX + 4]
    def wm(p, j): return smf(WA[p], OF[j], wfrag(3, p, j))
    for i in range(4): I(f"v_mov_b32_dpp v{OA+i}, v{OA+i} quad_perm:[0,1,0,1] row_mask:0xf bank_mask:0xf")
    z = zero(AK + 4, 4)
    oa = [vT, vT + 1, VX]
    xo = [f"v_xor_b32 v{oa[j-1]}, {j<<10}, v{vOR}" for j in (1, 2, 3)]
    I(z[0]); I(z[1])
    slots(A, [wm(0, 0), wm(1, 0), wm(2, 0)], [[xo[0]], [xo[1]], [xo[2]]])
    I("s_waitcnt lgkmcnt(0)")
    T(42)
    I("s_barrier")
    T(5)
    for j in (1, 3, 2): I(f"ds_read_b128 {vr(OF[j],4)}, v{oa[j-1]} offset:{L_O}")
    sal = [f"s_add_u32 s{sT1}, s{sHA}, 4096", f"s_mov_b32 s{sRB}, s{sHB}", f"s_add_u32 s{sHB}, s{sHB}, 8192",
           f"s_and_b32 s{sHB}, s{sHB}, {hex(0xffffffff ^ (1<<15))}", f"s_sub_u32 s{sB0}, s{sHB}, {LW}", f"s_add_u32 s{sRA}, s{sRC}, s{sHA}",
           f"s_add_u32 s{sKM}, s{sKM}, 4096", f"s_add_u32 s{sSTEP}, s{sSTEP}, 1"]
    slots(A, [wm(3, 0)], [sal[:3]])
    I("s_waitcnt lgkmcnt(2)")
    T(31)
    def post(p):
        x = WA[p]
        return [f"v_cvt_pk_bf16_f32 v{x}, v{x}, v{x+2}", f"v_cvt_pk_bf16_f32 v{x+1}, v{x+1}, v{x+3}",
                f"buffer_store_dwordx2 {vr(x,2)}, v{vAST}, {WS}, s{sHA if p < 2 else sT1} offen offset:{2048*(p&1)} {st}"]
    P = [post(p) for p in range(4)]
    ms = [wm(p, j) for p in range(4) for j in (1, 3, 2)]
    fl = [["s_waitcnt lgkmcnt(1)", wrest[0]], ["s_waitcnt lgkmcnt(1)", wrest[1]], [wrest[2], sal[3]],
          [wrest[3], sal[4]], sal[5:7] + [P[0][0]], sal[7:8] + ["s_nop 0", P[0][1]],
          [P[0][2]], ["s_nop 1", P[1][0]], ["s_waitcnt lgkmcnt(0)", "s_nop 0", P[1][1]],
          [P[1][2]], ["s_nop 1", P[2][0]], P[2][1:3]]
    slots(A, ms, fl)
    T(34)
    for x in P[3]: I(x)
    T(6)
    RAs = [M, M + 8]; SEL = M + 16; RD = M + 20
    def pollA(b): return [f"buffer_load_dwordx4 {vr(b,4)}, v{vMW}, {WS}, s{sRA} offen sc1", f"buffer_load_dwordx4 {vr(b+4,4)}, v{vMW}, {WS}, s{sRA} offen offset:1024 sc1"]
    npre = opt.get("npre", 8)
    if opt.get("bar6", 1): I("s_barrier")
    for x in lres_rd[:npre]: I(x)
    dw = opt.get("dw", 10)
    delay(A, opt.get("delA", 0))
    for wv in (1, 2, 3):
        I(f"s_cmp_lt_u32 s{sWV}, {wv}")
        I(f"s_cbranch_scc1 {pfx}_pollA0")
        delay(A, dw)
    A.label(f"{pfx}_pollA0")
    T(51)
    for x in pollA(RAs[0]): I(x)
    for x in zero(AQ, 24): I(x)
    for i in range(4): I(f"v_cndmask_b32 v{SEL+i}, 0, v{vSEL}, s[{sMSK+2*i}:{sMSK+2*i+1}]")
    delay(A, opt.get("gapA", 8))
    for x in pollA(RAs[1]): I(x)
    for x in lres_rd[npre:]: I(x)
    I(f"s_xor_b32 s{sHA}, s{sHA}, {256<<10}")
    I(f"s_mov_b32 m0, s{sB1}")
    I(f"s_branch {pfx}_waitA")
    def red(b):
        I(f"s_waitcnt vmcnt(2)")
        c = chk(b, vT)
        slots(A, [mf32(RD, SEL, b, "0"), mf32(RD, SEL, b + 4, vr(RD, 4))], [c[:2], c[2:]])
    A.label(f"{pfx}_pollA_retry")
    for x in pollA(RAs[0]): I(x)
    I(f"s_add_u32 s{sSPA}, s{sSPA}, 1")
    red(RAs[1])
    I(f"s_cbranch_vccz {pfx}_goA")
    for x in pollA(RAs[1]): I(x)
    I(f"s_cmp_gt_u32 s{sSPA}, {SPIN_MAX}")
    I(f"s_cbranch_scc1 {pfx}_goA")
    A.label(f"{pfx}_waitA")
    red(RAs[0])
    I("s_nop 3")
    if not nohop: I(f"s_cbranch_vccnz {pfx}_pollA_retry")
    I(f"s_branch {pfx}_goA2") if False else None
    A.label(f"{pfx}_goA_n")
    for rot in (4, 8):
        I(f"v_add_f32_dpp v{RD}, v{RD}, v{RD} row_ror:{rot} row_mask:0xf bank_mask:0xf")
        I(f"v_add_f32_dpp v{RD+1}, v{RD+1}, v{RD+1} row_ror:{rot} row_mask:0xf bank_mask:0xf")
    I(cv(RD, RD))
    I(f"buffer_store_dword v{RD}, v{vBST}, {WS}, s{sHB} offen {st}")
    T(8)
    I(f"s_add_u32 s{sT2}, s{sB0}, 4096")
    I(f"s_cmp_lt_u32 s{sWV}, {NE}")
    I(f"s_cbranch_scc1 {pfx}_earlyB0")
    T(50)
    T(9)
    I("s_waitcnt vmcnt(0) lgkmcnt(0)")
    I(f"s_branch {pfx}_go")
    A.label(f"{pfx}_earlyB0")
    delay(A, opt.get("delB", 64))
    for x in pollB(BS[0]): I(x)
    delay(A, opt.get("gapB", 20))
    for x in pollB(BS[1]): I(x)
    T(9)
    I("s_waitcnt lgkmcnt(0)")
    I(f"s_branch {pfx}_earlyB")
    A.label(f"{pfx}_goA")
    I("s_nop 3")
    I(f"s_branch {pfx}_goA_n")
    A.label(f"{pfx}_done")
    I(f"s_add_u32 s{sKM}, s{sKM}, 4096")
    for x in publish: I(x)
    if mega:
        I(f"v_mov_b32 v{vT+1}, 100")
        I("s_waitcnt vmcnt(0)")
        I("s_barrier")
        I(f"buffer_store_dword v{vT+1}, v{vFL}, {WS}, 0 offen sc1")
```

```python
from work import *
NAME = "sequential_preLN__memory_aug_recurrent_mem_tr__mixer_gmlp__prompt_kernel"
def gen(opt={}):
    A = Asm(); I = A.I
    TRACE[0] = bool(opt.get('trace'))
    A.raw(f"; @launch grid=(256,1,1) block=(256,1,1) lds={LDS_BYTES}")
    A.raw(f'.amdgcn_target "amdgcn-amd-amdhsa--gfx950"\n.text\n.globl {NAME}\n.p2align 8\n.type {NAME},@function\n{NAME}:')
    prologue(A, opt.get("force"))
    I(f"s_cmp_eq_u32 s{sG}, 0"); I("s_cbranch_scc0 L_notchain")
    chain_role(A, dict(dict(delA=8, delB=40), **opt.get('chain', {})))
    I("s_endpgm")
    A.label("L_notchain")
    lanes(A)
    I(f"s_cmp_ge_u32 s{sG}, 6"); I("s_cbranch_scc1 L_post")
    h_phase1(A)
    if opt.get("stage", 9) >= 2:
        import work2; work2.h_phase2(A, opt)
    I("s_endpgm")
    A.label("L_post")
    p_init(A)
    if opt.get("stage", 9) >= 3:
        import work2; work2.p_main(A, opt)
    A.label("L_end"); I("s_endpgm")
    A.raw('.section .rodata,"a"\n.p2align 6'); A.raw(kd(NAME, 512, 100, 256))
    return A.text()
if __name__ == "__main__":
    import sys
    open("mega_test.s", "w").write(gen({"stage": int(sys.argv[1]) if len(sys.argv) > 1 else 9}))
```

```python
from chain import *

sG = 39
D_OVF, D_PINIT, D_CHAIN = 192, 196, 200
WSS = f"s[{sWS}:{sWS+3}]"
DBG = f"s[{sDBG}:{sDBG+3}]"
SW = f"s[{sW}:{sW+3}]"
OOB = 0x40000000

def srd(A, karg_off, nbytes):
    A.I(f"s_load_dwordx2 s[{sW}:{sW+1}], s[0:1], {karg_off}")
    A.I(f"s_mov_b32 s{sW+2}, {nbytes}")
    A.I(f"s_mov_b32 s{sW+3}, 0x20000")
    A.I("s_waitcnt lgkmcnt(0)")

def prologue(A, force=None):
    I = A.I
    I(f"s_load_dwordx2 s[{sWS}:{sWS+1}], s[0:1], 112")
    I(f"s_load_dwordx2 s[{sDBG}:{sDBG+1}], s[0:1], 104")
    I("s_cmp_ge_u32 s2, 256")
    I("s_cbranch_scc1 L_end")
    I(f"s_mov_b32 s{sWS+2}, {WS_BYTES}"); I(f"s_mov_b32 s{sWS+3}, 0x20000")
    I(f"s_mov_b32 s{sDBG+2}, 256"); I(f"s_mov_b32 s{sDBG+3}, 0x20000")
    I("v_lshrrev_b32 v1, 6, v0")
    I(f"v_mov_b32 v4, {LDS_BYTES - 16}")
    I(f"v_readfirstlane_b32 s{sWV}, v1")
    I("s_waitcnt lgkmcnt(0)")
    I(f"s_cmp_lg_u32 s{sWV}, 0")
    I("s_cbranch_scc1 L_elect_wait")
    I("s_getreg_b32 s24, hwreg(HW_REG_XCC_ID, 0, 4)")
    if force == "skew":
        I("s_lshr_b32 s24, s2, 4"); I("s_and_b32 s24, s24, 15")
    I("s_and_b32 s25, s24, 1"); I("s_lshl_b32 s25, s25, 6")
    I("s_lshr_b32 s26, s24, 1"); I("s_lshl_b32 s26, s26, 2")
    I("s_add_u32 s25, s25, s26")
    I("s_cmp_eq_u32 s24, 0")
    I("s_cselect_b32 s25, 128, s25")
    I("s_mov_b64 exec, 1")
    I("v_mov_b32 v1, 1"); I("v_mov_b32 v2, s25")
    I(f"buffer_atomic_add v1, v2, {DBG}, 0 offen sc0")
    I("s_waitcnt vmcnt(0)")
    I("v_readfirstlane_b32 s25, v1")
    I("s_mov_b64 exec, -1")
    I("s_mov_b32 s40, 0")
    I("s_cmp_ge_u32 s24, 8"); I("s_cbranch_scc1 L_ovf")
    I("s_cmp_lt_u32 s25, 32"); I("s_cbranch_scc1 L_elect_pub")
    A.label("L_ovf")
    I("s_mov_b64 exec, 1")
    I("v_mov_b32 v1, 1"); I(f"v_mov_b32 v2, {D_OVF}")
    I(f"buffer_atomic_add v1, v2, {DBG}, 0 offen sc0")
    I("s_waitcnt vmcnt(0)")
    I("v_readfirstlane_b32 s26, v1")
    I("s_mov_b64 exec, -1")
    I("v_lshlrev_b32 v2, 2, v0")
    I("s_mov_b32 s28, 0")
    def word(x): return 32 if x == 0 else (x & 1) * 16 + (x >> 1)
    A.label("L_ovf_poll")
    I(f"buffer_load_dword v1, v2, {DBG}, 0 offen sc1")
    I("s_add_u32 s28, s28, 1")
    I("s_waitcnt vmcnt(0)")
    I("s_mov_b32 s27, 0")
    for x in range(16):
        I(f"v_readlane_b32 s25, v1, {word(x)}"); I("s_add_u32 s27, s27, s25")
    I(f"s_cmp_gt_u32 s28, {SPIN_MAX}"); I("s_cbranch_scc1 L_ovf_go")
    I("s_cmp_lt_u32 s27, 256"); I("s_cbranch_scc1 L_ovf_poll")
    A.label("L_ovf_go")
    I("s_mov_b32 s40, 1")
    for x in range(8):
        I(f"v_readlane_b32 s25, v1, {word(x)}")
        I("s_min_u32 s25, s25, 32")
        I("s_add_u32 s25, s25, s26")
        I(f"s_mov_b32 s24, {x}")
        I("s_cmp_lt_u32 s25, 32"); I("s_cbranch_scc1 L_elect_pub")
        I("s_sub_u32 s26, s25, 32")
    I("s_mov_b32 s24, 8")
    A.label("L_elect_pub")
    I("s_lshl_b32 s24, s24, 8"); I("s_lshl_b32 s26, s40, 16"); I("s_add_u32 s24, s24, s25"); I("s_add_u32 s24, s24, s26")
    I("v_mov_b32 v1, s24")
    I("ds_write_b32 v4, v1")
    I("s_waitcnt lgkmcnt(0)")
    A.label("L_elect_wait")
    I("s_barrier")
    I("ds_read_b32 v1, v4")
    I("s_waitcnt lgkmcnt(0)")
    I("v_readfirstlane_b32 s24, v1")
    I(f"s_and_b32 s{sH}, s24, 31")
    I(f"s_bfe_u32 s{sG}, s24, {hex((8 << 16) | 8)}")
    I("s_lshr_b32 s40, s24, 16")
    I(f"s_cmp_ge_u32 s{sG}, 8"); I("s_cbranch_scc1 L_end")

def signal_add(A, srdname, off_sgpr_or_imm, val, t0, t1):
    I = A.I
    l = A.newlabel("sig")
    I(f"s_cmp_lg_u32 s{sWV}, 0"); I(f"s_cbranch_scc1 {l}")
    I(f"v_mov_b32 v{t0}, {val}"); I(f"v_mov_b32 v{t1}, {off_sgpr_or_imm}")
    I("s_mov_b64 exec, 1")
    I(f"buffer_atomic_add v{t0}, v{t1}, {srdname}, 0 offen")
    I("s_mov_b64 exec, -1")
    A.label(l)

def signal_store(A, off, val, t0, t1):
    I = A.I
    l = A.newlabel("sig")
    I(f"s_cmp_lg_u32 s{sWV}, 0"); I(f"s_cbranch_scc1 {l}")
    I(f"v_mov_b32 v{t0}, {val}"); I(f"v_mov_b32 v{t1}, {off}")
    I("s_mov_b64 exec, 1")
    I(f"buffer_store_dword v{t0}, v{t1}, {WSS}, 0 offen sc1")
    I("s_mov_b64 exec, -1")
    A.label(l)

def wait_ge(A, srdname, off, target, t0, t1, sres, sleep=2, mask=None, barrier=True, allwaves=False):
    I = A.I
    l = A.newlabel("wt"); e = A.newlabel("wte")
    if not allwaves:
        I(f"s_cmp_lg_u32 s{sWV}, 0"); I(f"s_cbranch_scc1 {e}")
    I(f"v_mov_b32 v{t1}, {off}")
    A.label(l)
    I(f"buffer_load_dword v{t0}, v{t1}, {srdname}, 0 offen sc1")
    I(f"s_add_u32 s{sSPIN}, s{sSPIN}, 1")
    I("s_waitcnt vmcnt(0)")
    I(f"v_readfirstlane_b32 s{sres}, v{t0}")
    I(f"s_cmp_gt_u32 s{sSPIN}, {SPIN_MAX}"); I(f"s_cbranch_scc1 {e}")
    if mask is not None:
        I(f"s_and_b32 s{sres+1}, s{sres}, {mask}"); I(f"s_cmp_ge_u32 s{sres+1}, {target}")
    else:
        I(f"s_cmp_ge_u32 s{sres}, {target}")
    I(f"s_cbranch_scc1 {e}")
    if sleep: I(f"s_sleep {sleep}")
    I(f"s_branch {l}")
    A.label(e)
    if barrier: I("s_barrier")

def allreduce(A, regs, tmp, op="add"):
    I = A.I
    for rot in (8, 4, 2, 1):
        for r in regs: I(f"v_{op}_f32_dpp v{r}, v{r}, v{r} row_ror:{rot} row_mask:0xf bank_mask:0xf")
    for sw in ("16", "32"):
        for r in regs:
            I(f"v_mov_b32 v{tmp}, v{r}")
            I(f"v_permlane{sw}_swap_b32 v{r}, v{tmp}")
            I(f"v_{op}_f32 v{r}, v{r}, v{tmp}")

def unpack(A, src, dst, n):
    for i in range(n):
        A.I(f"v_lshlrev_b32 v{dst+2*i}, 16, v{src+i}")
        A.I(f"v_and_b32 v{dst+2*i+1}, 0xffff0000, v{src+i}")

def rbf(A, r):
    A.I(f"v_cvt_pk_bf16_f32 v{r}, v{r}, v{r}")
    A.I(f"v_and_b32 v{r}, 0xffff0000, v{r}")

def ln_finish(A, mean, var):
    I = A.I
    rbf(A, mean); rbf(A, var)
    I(f"v_add_f32 v{var}, {hex(f2u(1e-5))}, v{var}")
    rbf(A, var)
    I(f"v_sqrt_f32 v{var}, v{var}")
    rbf(A, var)
    I(f"v_rcp_f32 v{var}, v{var}")

def ln_row(A, x, out, t):
    I = A.I
    m, v, tm, d = t, t + 1, t + 2, t + 4
    I(f"v_add_f32 v{m}, v{x}, v{x+1}")
    for i in range(2, 8): I(f"v_add_f32 v{m}, v{m}, v{x+i}")
    allreduce(A, [m], tm)
    I(f"v_mul_f32 v{m}, {hex(f2u(1/512))}, v{m}")
    for i in range(8): I(f"v_sub_f32 v{d+i}, v{x+i}, v{m}")
    I(f"v_mul_f32 v{v}, v{d}, v{d}")
    for i in range(1, 8): I(f"v_fmac_f32 v{v}, v{d+i}, v{d+i}")
    allreduce(A, [v], tm)
    I(f"v_mul_f32 v{v}, {hex(f2u(1/512))}, v{v}")
    ln_finish(A, m, v)
    for i in range(8): I(f"v_sub_f32 v{d+i}, v{x+i}, v{m}")
    for i in range(4): I(cv(out + i, d + 2*i))
    unpack(A, out, d, 4)
    for i in range(8): I(f"v_mul_f32 v{d+i}, v{d+i}, v{v}")
    for i in range(4): I(cv(out + i, d + 2*i))

wLN, wC, wG, wR, wCP, wL16 = 1, 2, 3, 4, 5, 6
def lanes(A):
    I = A.I
    I(f"v_and_b32 v{wLN}, 63, v0")
    I(f"v_and_b32 v{wC}, 15, v{wLN}")
    I(f"v_lshrrev_b32 v{wG}, 4, v{wLN}")
    I(f"v_lshrrev_b32 v{wR}, 2, v{wC}")
    I(f"v_and_b32 v{wCP}, 3, v{wC}")
    I(f"v_lshlrev_b32 v{wL16}, 4, v{wLN}")
    I(f"s_mov_b32 s{sSPIN}, 0")

def p_init(A):
    I = A.I
    sJ = 18
    I(f"s_sub_u32 s{sJ}, s{sG}, 6"); I(f"s_lshl_b32 s{sJ}, s{sJ}, 5"); I(f"s_add_u32 s{sJ}, s{sJ}, s{sH}")
    srd(A, 0, 2 << 20)
    I(f"s_lshl_b32 s24, s{sJ}, 15"); I(f"s_lshl_b32 s25, s{sWV}, 13"); I("s_add_u32 s24, s24, s25")
    I("s_add_u32 s25, s24, 4096")
    for i in range(8): I(f"buffer_load_dwordx4 {vr(32+4*i,4)}, v{wL16}, {SW}, s{24 if i < 4 else 25} offen offset:{(i&3)*1024}")
    I("v_lshlrev_b32 v10, 2, v0"); I("v_mov_b32 v11, 0"); I(f"s_lshl_b32 s26, s{sJ}, 10")
    I(f"buffer_store_dword v11, v10, {WSS}, s26 offen sc1")
    I(f"s_add_u32 s24, s24, {WS_XN}"); I(f"s_add_u32 s25, s25, {WS_XN}")
    for i in range(8):
        I(f"s_waitcnt vmcnt({8})")
        unpack(A, 32 + 4*i, 12, 4)
        ln_row(A, 12, 64 + 4*i, 20)
        I(f"buffer_store_dwordx4 {vr(64+4*i,4)}, v{wL16}, {WSS}, s{24 if i < 4 else 25} offen offset:{(i&3)*1024} sc1")
    I("s_waitcnt vmcnt(0)")
    I("s_barrier")
    signal_add(A, DBG, D_PINIT, 1, 10, 11)

def w256_addr(A, vd, vt):
    I = A.I
    I(f"s_lshl_b32 s24, s{sWV}, 2")
    I(f"v_add_u32 v{vd}, s24, v{wG}")
    I(f"v_lshlrev_b32 v{vd}, 13, v{vd}")
    I(f"s_lshr_b32 s24, s{sWV}, 1"); I("s_lshl_b32 s24, s24, 3")
    I(f"v_lshlrev_b32 v{vt}, 1, v{wG}")
    I(f"v_or_b32 v{vt}, s24, v{vt}")
    I(f"v_xor_b32 v{vt}, v{wC}, v{vt}")
    I(f"v_lshl_add_u32 v{vd}, v{vt}, 4, v{vd}")
    I(f"s_lshl_b32 s24, s{sH}, 8")
    I(f"v_add_u32 v{vd}, s24, v{vd}")
    I(f"v_and_b32 v{vt}, 1, v{wG}")
    I(f"v_lshl_add_u32 v{vt}, v{vt}, 2, v{wR}")
    I(f"s_lshl_b32 s24, s{sWV}, 1")
    I(f"v_xor_b32 v{vt}, s24, v{vt}")
    I(f"v_lshlrev_b32 v{vt}, 5, v{vt}")
    I(f"v_lshl_add_u32 v{vt}, v{wCP}, 3, v{vt}")
    I(f"v_lshl_add_u32 v{vt+1}, v{wG}, 3, v{wR}")
    I(f"v_lshl_add_u32 v{vt}, v{vt+1}, 8, v{vt}")
    I(f"v_xor_b32 v{vt+1}, 32, v{vt}")
def w256_dma(A, vd, half):
    I = A.I
    I(f"s_lshl_b32 s24, s{sWV}, 10")
    for i in range(16):
        I(f"s_add_u32 m0, s24, {half*65536 + i*4096}")
        I(f"s_mov_b32 s25, {(256*half + 16*i)*8192}")
        I(f"buffer_load_dwordx4 v{vd}, {SW}, s25 offen lds")
def w256_read(A, vt, half, abase):
    for eps in range(2):
        for k in range(8):
            for u in range(2):
                A.I(f"ds_read_b64_tr_b16 {ar(abase + (eps*16 + 8*half + k)*4 + 2*u, 2)}, v{vt+eps} offset:{(32*k + 4*u)*256}")
    A.I("s_waitcnt lgkmcnt(0)")
    A.I(f"v_xor_b32 v{vt}, 0x10000, v{vt}"); A.I(f"v_xor_b32 v{vt+1}, 0x10000, v{vt+1}")

def rows_addr(A, vd, va, perm=False):
    I = A.I
    if not perm:
        I(f"v_xor_b32 v{va}, v{wG}, v{wC}")
        I(f"v_lshlrev_b32 v{va}, 4, v{va}")
        I(f"v_lshl_add_u32 v{va}, v{wC}, 10, v{va}")
    for k in range(1, 4): I(f"v_xor_b32 v{va+k}, {k<<6}, v{va}")
def rows_dma(A, vtmp, sbase, lds, ld="sc1"):
    I = A.I
    I(f"s_lshl_b32 s24, s{sWV}, 13")
    I(f"s_add_u32 s25, s24, s{sbase}")
    I(f"s_and_b32 s26, s{sWV}, 1"); I("s_lshl_b32 s26, s26, 7")
    for i in range(8):
        I(f"s_add_u32 s27, s26, {i<<4}")
        I(f"v_xor_b32 v{vtmp}, s27, v{wL16}")
        if isinstance(lds, int): I(f"s_add_u32 m0, s24, {lds + i*1024}")
        else:
            I(f"s_add_u32 s27, s24, {i*1024}"); I(f"s_add_u32 m0, s27, {lds}")
        I(f"buffer_load_dwordx4 v{vtmp}, {WSS}, s25 offen {ld} lds")
        I("s_add_u32 s25, s25, 1024")

sSEG, sXB, sCNT, sA0, sA1 = 18, 19, 20, 21, 22
def h_phase1(A):
    I = A.I
    vD, vTt, vXA, vTm = 8, 10, 12, 16
    w256_addr(A, vD, vTt)
    srd(A, 24, 4 << 20)
    w256_dma(A, vD, 0); w256_dma(A, vD, 1)
    rows_addr(A, None, vXA)
    I(f"s_sub_u32 s{sSEG}, s{sG}, 1")
    for ci in range(4):
        I(f"s_waitcnt vmcnt({16 if ci < 3 else 0})")
        I("s_barrier")
        w256_read(A, vTt, ci & 1, 128 * (ci >> 1))
        I("s_barrier")
        if ci == 0: srd(A, 32, 4 << 20)
        if ci < 2: w256_dma(A, vD, ci)
    wait_ge(A, DBG, D_PINIT, 64, 20, 21, 24)
    I(f"s_lshl_b32 s{sA0}, s{sSEG}, 15"); I(f"s_add_u32 s{sA0}, s{sA0}, {WS_XN}")
    I(f"s_mov_b32 s{sXB}, 0"); I(f"s_mov_b32 s{sCNT}, 0")
    rows_dma(A, vTm, sA0, 0)
    A.label("H1_loop")
    I("s_waitcnt vmcnt(0)")
    I("s_barrier")
    I(f"s_lshl_b32 s28, s{sH}, 7"); I(f"s_lshl_b32 s29, s{sG}, 2"); I("s_add_u32 s28, s28, s29"); I(f"s_add_u32 s28, s28, {F_KV - 4}")
    signal_store(A, "s28", f"s{sCNT}", 20, 21)
    I(f"s_add_u32 s{sA0}, s{sA0}, {NG << 15}")
    I(f"s_xor_b32 s{sXB}, s{sXB}, 32768")
    I(f"s_cmp_ge_u32 s{sSEG}, {64 - NG}"); I("s_cbranch_scc1 H1_nopf")
    rows_dma(A, vTm, sA0, f"s{sXB}")
    A.label("H1_nopf")
    XF = 24; AC = 56
    def rd(ks): return [f"ds_read_b128 {vr(XF + 8*(ks&3) + 4*t,4)}, v{vXA + (ks&3)} offset:{(ks>>2)*256 + t*16384}" for t in range(2)]
    for ks in range(3):
        for x in rd(ks): I(x)
    for ks in range(16):
        I(f"s_waitcnt lgkmcnt({4 if ks < 14 else (2 if ks == 14 else 0)})")
        ms = []
        for eps in range(2):
            for t in range(2):
                xk = vr(XF + 8*(ks&3) + 4*t, 4)
                dk = AC + 8*t + 4*eps; dv = AC + 16 + 8*eps + 4*t
                ms.append(f"v_mfma_f32_16x16x32_bf16 {vr(dk,4)}, {ar((eps*16+ks)*4,4)}, {xk}, {'0' if ks == 0 else vr(dk,4)}")
                ms.append(f"v_mfma_f32_16x16x32_bf16 {vr(dv,4)}, {xk}, {ar(128+(eps*16+ks)*4,4)}, {'0' if ks == 0 else vr(dv,4)}")
        slots(A, ms, [[x] for x in rd(ks + 3)] if ks + 3 < 16 else [])
    for k in range(4): I(f"v_xor_b32 v{vXA+k}, 0x8000, v{vXA+k}")
    I(f"s_lshl_b32 s24, s{sSEG}, 19"); I(f"s_lshl_b32 s25, s{sH}, 14"); I("s_add_u32 s24, s24, s25"); I(f"s_add_u32 s24, s24, {WS_KV}")
    I(f"s_lshl_b32 s25, s{sWV}, 10"); I("s_add_u32 s26, s24, s25"); I("s_add_u32 s27, s26, 4096")
    I("s_add_u32 s25, s25, s26"); I("s_add_u32 s25, s25, 8192")
    for j in range(4):
        for i in range(4): I(cv(88 + 4*j + i, AC + 8*j + 2*i))
    I(f"buffer_store_dwordx4 v[88:91], v{wL16}, {WSS}, s26 offen sc1")
    I(f"buffer_store_dwordx4 v[92:95], v{wL16}, {WSS}, s27 offen sc1")
    I(f"buffer_store_dwordx4 v[96:99], v{wL16}, {WSS}, s25 offen sc1")
    I(f"buffer_store_dwordx4 v[100:103], v{wL16}, {WSS}, s25 offen offset:1024 sc1")
    I(f"s_add_u32 s{sCNT}, s{sCNT}, 1")
    I(f"s_add_u32 s{sSEG}, s{sSEG}, {NG}")
    I(f"s_cmp_lt_u32 s{sSEG}, 64"); I("s_cbranch_scc1 H1_loop")
    I("s_waitcnt vmcnt(0)")
    I("s_barrier")
    signal_store(A, "s28", 100, 20, 21)

def chain_role(A, opt):
    I = A.I
    I("v_lshlrev_b32 v10, 4, v0")
    for i in range(4): I(f"v_mov_b32 v{12+i}, -1")
    I(f"s_lshl_b32 s24, s{sH}, 13"); I(f"s_add_u32 s24, s24, {WS_HA}")
    for sl in range(2):
        for hf in range(2):
            I(f"s_add_u32 s25, s24, {sl*(256<<10) + hf*4096}")
            I(f"buffer_store_dwordx4 v[12:15], v10, {WSS}, s25 offen sc1")
    I("v_lshlrev_b32 v10, 2, v0")
    I(f"s_lshl_b32 s24, s{sH}, 10"); I(f"s_add_u32 s24, s24, {WS_HB}")
    I(f"buffer_store_dword v12, v10, {WSS}, s24 offen sc1")
    chain_setup(A, "")
    I("s_lshl_b32 s41, s40, 16"); I("s_add_u32 s41, s41, 1")
    signal_add(A, DBG, D_CHAIN, "s41", vT, vT + 1)
    wait_ge(A, DBG, D_PINIT, 64, vT, vT + 1, 42, barrier=False, allwaves=True, sleep=0)
    wait_ge(A, DBG, D_CHAIN, 32, vT, vT + 1, 42, mask=0xffff, barrier=False, allwaves=True, sleep=0)
    I("s_lshr_b32 s42, s42, 16")
    I("s_cmp_lg_u32 s42, 0")
    I("s_cbranch_scc1 L_chain_global")
    o = dict(opt); o["mega"] = 1
    chain_loop(A, "", "CL", None, "sc1", o)
    I("s_branch L_chain_end")
    A.label("L_chain_global")
    chain_loop(A, "sc1", "CG", None, "sc1", o)
    A.label("L_chain_end")
```

```python
from work import *

def w1k_addr(A, vd, vt, sbase_bytes):
    I = A.I
    I(f"s_lshl_b32 s24, s{sWV}, 6")
    I(f"v_xor_b32 v{vd}, s24, v{wL16}")
    I(f"s_lshl_b32 s24, s{sWV}, 10")
    if sbase_bytes: I(f"s_add_u32 s24, s24, {sbase_bytes}")
    I(f"v_add_u32 v{vd}, s24, v{vd}")
    I(f"v_lshl_add_u32 v{vt}, v{wG}, 2, v{wR}")
    I(f"v_lshlrev_b32 v{vt}, 10, v{vt}")
    I(f"v_lshl_add_u32 v{vt}, v{wR}, 6, v{vt}")
    I(f"v_lshl_add_u32 v{vt}, v{wCP}, 4, v{vt}")
    I(f"s_lshl_b32 s24, s{sWV}, 8")
    I(f"v_add_u32 v{vt}, s24, v{vt}")
    for p in range(1, 4): I(f"v_xor_b32 v{vt+p}, {p<<6}, v{vt}")
def w1k_dma(A, vd, row0, nrows, lds):
    I = A.I
    I(f"s_lshl_b32 s24, s{sWV}, 10")
    for i in range(nrows // 4):
        I(f"s_add_u32 m0, s24, {lds + i*4096}")
        I(f"s_mov_b32 s25, {(row0 + 4*i)*1024}")
        I(f"buffer_load_dwordx4 v{vd}, {SW}, s25 offen lds")
def w1k_rd(vt, t8, ksl, u, dst):
    return f"ds_read_b64_tr_b16 {dst}, v{vt + (t8>>1)} offset:{(32*ksl + 16*u)*1024 + (t8&1)*8}"

L_XB, L_HB, L_PT, L_QX, L_OX, L_KM, L_RED = 0, 32768, 65536, 102400, 110592, 118784, 122880
PSTR = 1040
sMK = 44
sTILE = 30
def h_phase2(A, opt):
    I = A.I
    vD, vTt, vXA, vHA, vTm = 8, 10, 12, 16, 24
    vKW, vTR2, vPW, vPR, vZ = 25, 26, 27, 28, 30
    WIN = 192
    w256_addr(A, vD, vTt)
    srd(A, 16, 4 << 20)
    w256_dma(A, vD, 0); w256_dma(A, vD, 1)
    I(f"s_lshl_b32 s28, s{sH}, 17")
    w1k_addr(A, 40, 44, "s28")
    for ci in range(4):
        I(f"s_waitcnt vmcnt({16 if ci < 3 else 0})")
        I("s_barrier")
        if ci < 2: w256_read(A, vTt, ci, 0)
        else:
            for t8 in range(8):
                for ksl in range(2):
                    for u in range(2): I(w1k_rd(44, t8, ksl, u, ar(128 + (t8*4 + 2*(ci-2) + ksl)*4 + 2*u, 2)))
            I("s_waitcnt lgkmcnt(0)")
            for p in range(4): I(f"v_xor_b32 v{44+p}, 0x10000, v{44+p}")
        I("s_barrier")
        if ci == 0: srd(A, 40, 4 << 20)
        if ci < 2: w1k_dma(A, 40, 64*ci, 64, 65536*ci)
    srd(A, 64, 512*1376*2)
    I(f"s_lshl_b32 s{sTILE}, s{sWV}, 5"); I(f"s_add_u32 s{sTILE}, s{sTILE}, s{sH}")
    I(f"s_cmp_ge_u32 s{sTILE}, 86"); I("s_cbranch_scc1 H2_nowin")
    I(f"v_lshrrev_b32 v40, 1, v{wLN}"); I("v_mul_u32_u24 v40, 2752, v40")
    I(f"v_and_b32 v41, 1, v{wLN}"); I("v_lshl_add_u32 v40, v41, 4, v40")
    I(f"s_lshl_b32 s25, s{sTILE}, 5"); I(f"s_lshl_b32 s24, s{sWV}, 14")
    for i in range(16):
        I(f"s_add_u32 m0, s24, {i*1024}")
        I("s_nop 0")
        I(f"buffer_load_dwordx4 v40, {SW}, s25 offen lds")
        I(f"s_add_u32 s25, s25, {32*2752}")
    I(f"v_lshl_add_u32 v41, v{wG}, 3, v{wR}"); I("v_lshlrev_b32 v41, 5, v41"); I(f"v_lshl_add_u32 v41, v{wCP}, 3, v41"); I("v_add_u32 v41, s24, v41")
    I("s_waitcnt vmcnt(0)")
    for ks in range(16):
        for u in range(2): I(f"ds_read_b64_tr_b16 {vr(WIN + 4*ks + 2*u, 2)}, v41 offset:{ks*1024 + u*128}")
    I("s_waitcnt lgkmcnt(0)")
    A.label("H2_nowin")
    srd(A, 0, 2 << 20)
    rows_addr(A, None, vXA)
    I(f"v_lshl_add_u32 v40, v{wR}, 3, v{wCP}")
    I(f"s_cmp_lt_u32 s{sTILE}, 43"); I("s_cselect_b64 vcc, -1, 0"); I("s_cselect_b32 s24, 16, 4")
    I(f"v_cndmask_b32 v40, v40, v{wC}, vcc")
    for t in range(2):
        if t: I("v_add_u32 v40, s24, v40")
        I("v_and_b32 v41, 15, v40"); I(f"v_xor_b32 v41, v41, v{wG}"); I("v_lshlrev_b32 v41, 4, v41")
        I("v_lshl_add_u32 v41, v40, 10, v41"); I(f"v_add_u32 v{vHA+4*t}, {L_HB}, v41")
        for k in range(1, 4): I(f"v_xor_b32 v{vHA+4*t+k}, {k<<6}, v{vHA+4*t}")
    I(f"v_lshlrev_b32 v{vKW}, 5, v{wC}"); I(f"v_lshl_add_u32 v{vKW}, v{wG}, 3, v{vKW}")
    I(f"s_lshl_b32 s24, s{sWV}, 10"); I(f"s_add_u32 s24, s24, {L_KM}"); I(f"v_add_u32 v{vKW}, s24, v{vKW}")
    I(f"v_lshlrev_b32 v{vTR2}, 3, v{wLN}"); I(f"v_add_u32 v{vTR2}, {L_KM}, v{vTR2}")
    I(f"v_mul_u32_u24 v{vPW}, {PSTR}, v{wC}"); I(f"v_lshl_add_u32 v{vPW}, v{wG}, 4, v{vPW}")
    I(f"s_lshl_b32 s24, s{sWV}, 8"); I(f"s_add_u32 s24, s24, {L_PT}"); I(f"v_add_u32 v{vPW}, s24, v{vPW}")
    I(f"s_mul_i32 s24, s{sWV}, {8*PSTR}"); I(f"s_add_u32 s24, s24, {L_PT}"); I(f"v_add_u32 v{vPR}, s24, v{wL16}")
    vQW, vQR, vOWr, vL64 = 34, 35, 36, 37
    I(f"v_add_u32 v{vL64}, 65536, v{wL16}")
    I(f"s_lshl_b32 s24, s{sWV}, 10"); I(f"v_add_u32 v{vQW}, s24, v{vL64}")
    I(f"s_and_b32 s24, s{sWV}, 1"); I("s_lshl_b32 s24, s24, 12"); I(f"v_add_u32 v{vQR}, s24, v{vL64}")
    I(f"s_lshr_b32 s25, s{sWV}, 1"); I("s_lshl_b32 s25, s25, 11"); I(f"v_add_u32 v{vOWr}, s25, v{vQR}")
    I(f"s_and_b32 s24, s{sWV}, 1"); I("s_lshl_b32 s24, s24, 4"); I(f"v_add_u32 v40, s24, v{wC}")
    I(f"v_lshlrev_b32 v41, 2, v{wG}"); I("v_sub_u32 v40, v40, v41")
    for j in range(8): I(f"v_cmp_le_i32 s[{sMK+2*j}:{sMK+2*j+1}], {16*(j>>2) + (j&3)}, v40")
    for i in range(4): I(f"v_mov_b32 v{vZ+i}, 0")
    I(f"s_sub_u32 s{sSEG}, s{sG}, 1")
    I("s_barrier")
    XF = 40; KF = 72; VF = 104; QF = 120; SS = 136; KMF = 148; T0 = 164; XR = 184
    A.label("H2_loop")
    I(f"s_lshl_b32 s{sA0}, s{sSEG}, 15"); I(f"s_add_u32 s{sA0}, s{sA0}, {WS_XN}")
    rows_dma(A, vTm, sA0, L_XB)
    I(f"s_lshl_b32 s24, s{sSEG}, 19"); I(f"s_lshl_b32 s25, s{sH}, 14"); I("s_add_u32 s24, s24, s25"); I(f"s_add_u32 s24, s24, {WS_KV}")
    I("s_add_u32 s25, s24, 4096"); I(f"s_lshr_b32 s26, s{sWV}, 1"); I("s_lshl_b32 s26, s26, 12"); I("s_add_u32 s26, s26, s24"); I("s_add_u32 s26, s26, 8192")
    for i in range(8): I(f"buffer_load_dwordx4 {vr(KF+4*i,4)}, v{wL16}, {WSS}, s{24 if i < 4 else 25} offen offset:{(i&3)*1024} sc1")
    for i in range(4): I(f"buffer_load_dwordx4 {vr(VF+4*i,4)}, v{wL16}, {WSS}, s26 offen offset:{i*1024} sc1")
    I(f"s_lshl_b32 s{sA1}, s{sSEG}, 5"); I(f"s_add_u32 s{sA1}, s{sA1}, s{sH}")
    I(f"s_lshl_b32 s24, s{sA1}, 10")
    I(f"buffer_load_dwordx4 {vr(XR,4)}, v{wL16}, {SW}, s24 offen")
    I("s_waitcnt vmcnt(13)")
    I("s_barrier")
    AC = T0
    def rd(ks): return [f"ds_read_b128 {vr(XF + 8*(ks&3) + 4*t,4)}, v{vXA + (ks&3)} offset:{L_XB + (ks>>2)*256 + t*16384}" for t in range(2)]
    for ks in range(3):
        for x in rd(ks): I(x)
    for ks in range(16):
        I(f"s_waitcnt lgkmcnt({4 if ks < 14 else (2 if ks == 14 else 0)})")
        ms = []
        for eps in range(2):
            for t in range(2):
                dk = AC + 8*t + 4*eps
                ms.append(f"v_mfma_f32_16x16x32_bf16 {vr(dk,4)}, {ar((eps*16+ks)*4,4)}, {vr(XF + 8*(ks&3) + 4*t, 4)}, {'0' if ks == 0 else vr(dk,4)}")
        slots(A, ms, [[x] for x in rd(ks + 3)] if ks + 3 < 16 else [])
    for t in range(2):
        for i in range(4): I(cv(XF + 4*t + i, AC + 8*t + 2*i))
        I(f"ds_write_b128 v{vQW}, {vr(XF+4*t,4)} offset:{L_QX - 65536 + t*4096}")
    I("s_waitcnt lgkmcnt(0)")
    I("s_barrier")
    for sg in range(4): I(f"ds_read_b128 {vr(QF+4*sg,4)}, v{vQR} offset:{L_QX - 65536 + sg*1024}")
    I("s_waitcnt vmcnt(0) lgkmcnt(0)")
    for tk in range(2):
        for sg in range(4): I(mf32(SS + 4 + 4*tk, KF + 16*tk + 4*sg, QF + 4*sg, "0" if sg == 0 else vr(SS + 4 + 4*tk, 4)))
    I(f"s_lshl_b32 s28, s{sH}, 7"); I(f"s_add_u32 s28, s28, {F_KM}"); I(f"s_add_u32 s29, s{sSEG}, 2")
    wait_ge(A, WSS, "s28", "s29", T0, T0 + 1, 24)
    I(f"s_mul_i32 s24, s{sH}, 65"); I(f"s_add_u32 s24, s24, s{sSEG}"); I("s_lshl_b32 s24, s24, 12"); I(f"s_add_u32 s24, s24, {WS_KM}")
    I(f"s_lshl_b32 s25, s{sWV}, 10"); I("s_add_u32 s25, s25, s24")
    I(f"s_lshr_b32 s26, s{sWV}, 1"); I("s_lshl_b32 s26, s26, 11"); I("s_add_u32 s26, s26, s24")
    VM = T0 + 4
    I(f"buffer_load_dwordx2 {vr(T0,2)}, v{wL16}, {WSS}, s25 offen sc1")
    I(f"buffer_load_dwordx2 {vr(VM,2)}, v{wL16}, {WSS}, s26 offen offset:8 sc1")
    I(f"buffer_load_dwordx2 {vr(VM+2,2)}, v{wL16}, {WSS}, s26 offen offset:1032 sc1")
    I("s_waitcnt vmcnt(2)")
    I(f"ds_write_b32 v{vKW}, v{T0}"); I(f"ds_write_b32 v{vKW}, v{T0+1} offset:512")
    I("s_waitcnt lgkmcnt(0)")
    I("s_barrier")
    for sg in range(4):
        for rho in range(2): I(f"ds_read_b64_tr_b16 {vr(KMF+4*sg+2*rho,2)}, v{vTR2} offset:{sg*1024 + rho*512}")
    I("s_waitcnt lgkmcnt(0)")
    for sg in range(4): I(mf32(SS, KMF + 4*sg, QF + 4*sg, "0" if sg == 0 else vr(SS, 4)))
    regs = [SS + 4 + j for j in range(8)] + [SS, SS + 1]
    tm = T0 + 8
    def rb2(a, b, t):
        I(f"v_cvt_pk_bf16_f32 v{t}, v{a}, v{b}"); I(f"v_lshlrev_b32 v{a}, 16, v{t}"); I(f"v_and_b32 v{b}, 0xffff0000, v{t}")
    I(f"s_mov_b32 s24, {hex(f2u(128 ** -0.5))}")
    I(f"v_mov_b32 v{tm+1}, {hex(f2u(-1e9))}")
    for i in range(0, 10, 2):
        a, b = regs[i], regs[i+1]
        rb2(a, b, tm)
        I(f"v_mul_f32 v{a}, s24, v{a}"); I(f"v_mul_f32 v{b}, s24, v{b}")
        rb2(a, b, tm)
    for j in range(8): I(f"v_cndmask_b32 v{regs[j]}, v{tm+1}, v{regs[j]}, s[{sMK+2*j}:{sMK+2*j+1}]")
    I(f"v_max3_f32 v{tm}, v{regs[0]}, v{regs[1]}, v{regs[2]}")
    for i in range(3, 9, 2): I(f"v_max3_f32 v{tm}, v{tm}, v{regs[i]}, v{regs[i+1]}")
    I(f"v_max_f32 v{tm}, v{tm}, v{regs[9]}")
    def xred(r, op):
        for sw in ("16", "32"):
            I(f"v_mov_b32 v{tm+2}, v{r}"); I(f"v_permlane{sw}_swap_b32 v{r}, v{tm+2}"); I(f"v_{op}_f32 v{r}, v{r}, v{tm+2}")
    xred(tm, "max")
    I(f"s_mov_b32 s24, {hex(f2u(1.4426950408889634))}")
    for r in regs:
        I(f"v_sub_f32 v{r}, v{r}, v{tm}"); I(f"v_mul_f32 v{r}, s24, v{r}")
    for r in regs: I(f"v_exp_f32 v{r}, v{r}")
    I(f"v_add_f32 v{tm}, v{regs[0]}, v{regs[1]}")
    for r in regs[2:]: I(f"v_add_f32 v{tm}, v{tm}, v{r}")
    xred(tm, "add")
    I(f"v_rcp_f32 v{tm}, v{tm}")
    for r in regs: I(f"v_mul_f32 v{r}, v{r}, v{tm}")
    for i in range(4): I(cv(SS + 4 + i, SS + 4 + 2*i))
    I(cv(vZ, SS)); I(cv(vZ + 3, SS))
    I("s_waitcnt vmcnt(0)")
    OA = XF
    for e in range(4): I(mf32(OA + 4*e, VF + 4*e, SS + 4, "0"))
    for e in range(4): I(mf16(OA + 4*e, VM + 2*(e>>1), vZ + 2*(e&1), vr(OA + 4*e, 4)))
    for i in range(2):
        for j in range(4): I(cv(QF + 4*i + j, OA + 8*i + 2*j))
        I(f"ds_write_b128 v{vOWr}, {vr(QF+4*i,4)} offset:{L_OX - 65536 + i*1024}")
    I("s_waitcnt lgkmcnt(0)")
    I("s_barrier")
    OF = XF
    for i in range(8): I(f"ds_read_b128 {vr(OF+4*i,4)}, v{vL64} offset:{L_OX - 65536 + i*1024}")
    I("s_waitcnt lgkmcnt(0)")
    PA = KF
    for p in range(4):
        for t in range(2):
            for par in range(2):
                d = PA + 16*p + 8*t + 4*par
                for ks in range(4):
                    I(f"v_mfma_f32_16x16x32_bf16 {vr(d,4)}, {ar(128 + ((2*p+par)*4 + ks)*4,4)}, {vr(OF + 16*t + 4*ks,4)}, {'0' if ks == 0 else vr(d,4)}")
    for p in range(4):
        for t in range(2):
            d = PA + 16*p + 8*t
            for i in range(4): I(cv(d + i, d + 2*i))
            I(f"ds_write_b128 v{vPW}, {vr(d,4)} offset:{t*16*PSTR + p*64}")
    I("s_waitcnt lgkmcnt(0)")
    I("s_barrier")
    for i in range(8): I(f"ds_read_b128 {vr(XF+4*i,4)}, v{vPR} offset:{i*PSTR}")
    I(f"s_lshl_b32 s24, s{sSEG}, 20"); I(f"s_lshl_b32 s25, s{sWV}, 18"); I("s_add_u32 s24, s24, s25")
    I(f"s_lshl_b32 s25, s{sH}, 10"); I("s_add_u32 s24, s24, s25"); I(f"s_add_u32 s24, s24, {WS_PART}")
    for i in range(8):
        I(f"s_waitcnt lgkmcnt({7-i})")
        I(f"buffer_store_dwordx4 {vr(XF+4*i,4)}, v{wL16}, {WSS}, s24 offen sc1")
        I("s_add_u32 s24, s24, 32768")
    I("s_waitcnt vmcnt(0)")
    I("s_barrier")
    I(f"s_lshl_b32 s29, s{sSEG}, 7"); I(f"s_add_u32 s28, s29, {F_PART}")
    signal_add(A, WSS, "s28", 1, T0, T0 + 1)
    wait_ge(A, WSS, "s28", 32, T0, T0 + 1, 24, sleep=1)
    I(f"s_lshl_b32 s24, s{sA1}, 15"); I(f"s_lshl_b32 s25, s{sWV}, 13"); I("s_add_u32 s24, s24, s25"); I(f"s_add_u32 s24, s24, {WS_PART}")
    I("s_add_u32 s25, s24, 4096")
    for i in range(8): I(f"buffer_load_dwordx4 {vr(XF+4*i,4)}, v{wL16}, {WSS}, s{24 if i < 4 else 25} offen offset:{(i&3)*1024} sc1")
    RS = KF; RT = KF + 8
    I("s_waitcnt vmcnt(7)")
    unpack(A, XF, RS, 4)
    for i in range(1, 8):
        I(f"s_waitcnt vmcnt({7-i})")
        unpack(A, XF + 4*i, RT, 4)
        for j in range(4): I(f"v_pk_add_f32 {vr(RS+2*j,2)}, {vr(RS+2*j,2)}, {vr(RT+2*j,2)}")
    I(f"ds_write_b128 v{vQW}, {vr(RS,4)} offset:{L_RED - 65536}")
    I(f"ds_write_b128 v{vQW}, {vr(RS+4,4)} offset:{L_RED - 65536 + 4096}")
    I("s_waitcnt lgkmcnt(0)")
    I("s_barrier")
    I(f"s_cmp_lg_u32 s{sWV}, 0"); I("s_cbranch_scc1 H2_skipln")
    for w in range(1, 4):
        I(f"ds_read_b128 {vr(RT+8*(w-1),4)}, v{vL64} offset:{L_RED - 65536 + w*1024}")
        I(f"ds_read_b128 {vr(RT+8*(w-1)+4,4)}, v{vL64} offset:{L_RED - 65536 + 4096 + w*1024}")
    I("s_waitcnt lgkmcnt(0)")
    for w in range(3):
        for j in range(4): I(f"v_pk_add_f32 {vr(RS+2*j,2)}, {vr(RS+2*j,2)}, {vr(RT+8*w+2*j,2)}")
    for i in range(4): I(cv(XF + i, RS + 2*i))
    unpack(A, XF, RS, 4); unpack(A, XR, RT, 4)
    for j in range(4): I(f"v_pk_add_f32 {vr(RS+2*j,2)}, {vr(RS+2*j,2)}, {vr(RT+2*j,2)}")
    for i in range(4): I(cv(XF + i, RS + 2*i))
    I(f"s_lshl_b32 s24, s{sA1}, 10"); I(f"s_add_u32 s25, s24, {WS_H}"); I(f"s_add_u32 s24, s24, {WS_HN}")
    I(f"buffer_store_dwordx4 {vr(XF,4)}, v{wL16}, {WSS}, s25 offen sc1")
    unpack(A, XF, RS, 4)
    ln_row(A, RS, XF + 4, RT)
    I(f"buffer_store_dwordx4 {vr(XF+4,4)}, v{wL16}, {WSS}, s24 offen sc1")
    I("s_waitcnt vmcnt(0)")
    A.label("H2_skipln")
    I(f"s_add_u32 s28, s29, {F_HN}")
    signal_add(A, WSS, "s28", 1, T0, T0 + 1)
    wait_ge(A, WSS, "s28", 32, T0, T0 + 1, 24, sleep=1)
    I(f"s_lshl_b32 s{sA0}, s{sSEG}, 15"); I(f"s_add_u32 s{sA0}, s{sA0}, {WS_HN}")
    rows_dma(A, vTm, sA0, L_HB)
    I("s_waitcnt vmcnt(0)")
    I("s_barrier")
    I(f"s_cmp_ge_u32 s{sTILE}, 86"); I("s_cbranch_scc1 H2_skipz")
    HF = XF
    for ks in range(16):
        for t in range(2): I(f"ds_read_b128 {vr(HF + 8*ks + 4*t,4)}, v{vHA + 4*t + (ks&3)} offset:{(ks>>2)*256}")
    ZA = 168
    I(f"s_cmp_lt_u32 s{sTILE}, 43"); I("s_cbranch_scc1 H2_z1")
    for var in range(2):
        if var == 1: A.label("H2_z1")
        for ks in range(16):
            if ks % 4 == 0: I(f"s_waitcnt lgkmcnt({min(15, 24 - 2*ks)})" if ks < 12 else "s_waitcnt lgkmcnt(0)")
            for t in range(2):
                a, b = (HF + 8*ks + 4*t, WIN + 4*ks) if var == 0 else (WIN + 4*ks, HF + 8*ks + 4*t)
                I(mf32(ZA + 4*t, a, b, "0" if ks == 0 else vr(ZA + 4*t, 4)))
        if var == 0: I("s_branch H2_zc")
    A.label("H2_zc")
    I("s_nop 7")
    tm = 176
    k1 = -2 * 0.7978845608028654 * 1.4426950408889634
    I(f"s_mov_b32 s24, {hex(f2u(k1 * 0.044715))}"); I(f"v_mov_b32 v{XF}, {hex(f2u(k1))}")
    for i in range(0, 8, 2):
        I(f"v_cvt_pk_bf16_f32 v{tm}, v{ZA+i}, v{ZA+i+1}"); I(f"v_lshlrev_b32 v{ZA+i}, 16, v{tm}"); I(f"v_and_b32 v{ZA+i+1}, 0xffff0000, v{tm}")
    for i in range(8):
        I(f"v_mul_f32 v{tm+i}, v{ZA+i}, v{ZA+i}")
        I(f"v_fma_f32 v{tm+i}, v{tm+i}, s24, v{XF}")
        I(f"v_mul_f32 v{tm+i}, v{tm+i}, v{ZA+i}")
    for i in range(8): I(f"v_exp_f32 v{tm+i}, v{tm+i}")
    for i in range(8): I(f"v_add_f32 v{tm+i}, 1.0, v{tm+i}")
    for i in range(8): I(f"v_rcp_f32 v{tm+i}, v{tm+i}")
    for i in range(8): I(f"v_mul_f32 v{ZA+i}, v{ZA+i}, v{tm+i}")
    for i in range(4): I(cv(tm + i, ZA + 2*i))
    I(f"s_mul_i32 s24, s{sSEG}, 86"); I(f"s_add_u32 s24, s24, s{sTILE}"); I("s_lshl_b32 s24, s24, 10"); I(f"s_add_u32 s24, s24, {WS_Z}")
    I(f"buffer_store_dwordx4 {vr(tm,4)}, v{wL16}, {WSS}, s24 offen sc1")
    I(f"s_cmp_lt_u32 s{sTILE}, 43"); I("s_cbranch_scc1 H2_nostat")
    ST = XF
    for i in range(4):
        I(f"v_lshlrev_b32 v{ST+4*i}, 16, v{tm+i}"); I(f"v_and_b32 v{ST+4*i+2}, 0xffff0000, v{tm+i}")
    for i in range(8): I(f"v_mul_f32 v{ST+2*i+1}, v{ST+2*i}, v{ST+2*i}")
    for rot in (8, 4, 2, 1):
        for r in range(16): I(f"v_add_f32_dpp v{ST+r}, v{ST+r}, v{ST+r} row_ror:{rot} row_mask:0xf bank_mask:0xf")
    for q in range(1, 4):
        I(f"v_cmp_eq_u32 vcc, {q}, v{wC}")
        for r in range(4): I(f"v_cndmask_b32 v{ST+r}, v{ST+r}, v{ST+4*q+r}, vcc")
    I(f"v_lshlrev_b32 v{ST+4}, 4, v{wC}"); I(f"v_lshl_add_u32 v{ST+4}, v{wG}, 6, v{ST+4}")
    I(f"v_mov_b32 v{ST+5}, {OOB}"); I(f"v_cmp_gt_u32 vcc, 4, v{wC}"); I(f"v_cndmask_b32 v{ST+4}, v{ST+5}, v{ST+4}, vcc")
    I(f"s_lshl_b32 s24, s{sSEG}, 6"); I(f"s_add_u32 s24, s24, s{sTILE}"); I("s_lshl_b32 s24, s24, 8"); I(f"s_add_u32 s24, s24, {WS_ZS - 43*256}")
    I(f"buffer_store_dwordx4 {vr(ST,4)}, v{ST+4}, {WSS}, s24 offen sc1")
    A.label("H2_nostat")
    I("s_waitcnt vmcnt(0)")
    A.label("H2_skipz")
    I("s_barrier")
    I(f"s_add_u32 s28, s29, {F_Z}")
    signal_add(A, WSS, "s28", 1, T0, T0 + 1)
    I(f"s_add_u32 s{sSEG}, s{sSEG}, {NG}")
    I(f"s_cmp_lt_u32 s{sSEG}, 64"); I("s_cbranch_scc1 H2_loop")


def p_main(A, opt):
    I = A.I
    sJ = 18; sS = 19; sZ = 20; sSP = 21
    L_U = 98304; L_ST = 147456; L_ST2 = L_ST + 1024
    vD, vTt, vO5, vSO, vWS, vU, vSW, vSR, vS2W, vS2R, vB = 8, 10, 14, 16, 19, 20, 21, 22, 23, 24, 26
    ACC = 32; RAW = 128; Z1 = 176; MU = 224; RS = 232; WF = 240; TM = 248
    SO = "s[44:47]"
    I("s_load_dwordx2 s[44:45], s[0:1], 88"); I(f"s_mov_b32 s46, {688*1024}"); I("s_mov_b32 s47, 0x20000")
    I(f"v_lshlrev_b32 v{vD}, 2, v{wG}"); I(f"v_xor_b32 v{vD}, v{vD}, v{wC}"); I(f"v_lshlrev_b32 v{vD}, 4, v{vD}")
    I(f"v_lshl_add_u32 v{vD}, v{wG}, 10, v{vD}"); I(f"s_lshl_b32 s24, s{sWV}, 8"); I(f"v_add_u32 v{vD}, s24, v{vD}")
    I(f"v_lshl_add_u32 v{vTt}, v{wG}, 2, v{wR}"); I(f"v_lshlrev_b32 v{vTt}, 8, v{vTt}")
    I(f"v_lshl_add_u32 v{vTt}, v{wR}, 6, v{vTt}"); I(f"v_lshl_add_u32 v{vTt}, v{wCP}, 4, v{vTt}")
    I(f"s_mul_i32 s30, s{sWV}, 24576"); I(f"v_add_u32 v{vTt}, s30, v{vTt}")
    for p in range(1, 4): I(f"v_xor_b32 v{vTt+p}, {p<<6}, v{vTt}")
    I("s_waitcnt lgkmcnt(0)")
    def wdma(ks, slot):
        out = []
        for i in range(8):
            out += [f"s_add_u32 m0, s30, {slot*8192 + i*1024}", f"s_mov_b32 s25, {(32*ks + 4*i)*1024}",
                    f"buffer_load_dwordx4 v{vD}, {SO}, s25 offen lds"]
        return out
    def wrd(slot, dstf):
        return [f"ds_read_b64_tr_b16 {dstf(t8*4 + 2*u)}, v{vTt + (t8>>1)} offset:{slot*8192 + u*4096 + (t8&1)*8}" for t8 in range(8) for u in range(2)]
    for ks in range(3):
        for x in wdma(ks, ks): I(x)
    for ks in range(8):
        I("s_waitcnt vmcnt(16)")
        for x in wrd(ks % 3, lambda o: ar(ks*32 + o, 2)): I(x)
        I("s_waitcnt lgkmcnt(0)")
        for x in wdma(ks + 3, ks % 3): I(x)
    I(f"v_mov_b32 v{TM}, {OOB}")
    for par in range(2):
        I(f"s_lshl_b32 s24, s{sWV}, 1"); I(f"s_add_u32 s24, s24, {40 + par}"); I("s_cmp_lt_u32 s24, 43"); I("s_cselect_b64 vcc, -1, 0")
        I(f"v_cndmask_b32 v{vO5+par}, v{TM}, v{wL16}, vcc")
    for n in range(3):
        I(f"s_mul_i32 s24, s{sWV}, 12"); I(f"s_add_u32 s24, s24, {4*n}")
        I(f"v_add_u32 v{TM+1}, s24, v{wG}"); I(f"v_cmp_gt_u32 vcc, 43, v{TM+1}")
        I("s_lshl_b32 s24, s24, 8"); I(f"v_add_u32 v{TM+1}, s24, v{wL16}")
        I(f"v_cndmask_b32 v{vSO+n}, v{TM}, v{TM+1}, vcc")
    I(f"v_lshlrev_b32 v{vWS}, 12, v{wC}"); I(f"v_lshl_add_u32 v{vWS}, v{wG}, 4, v{vWS}")
    I(f"v_add_u32 v{vU}, {L_U}, v{wL16}")
    I(f"v_lshlrev_b32 v{vSR}, 4, v{wC}"); I(f"v_add_u32 v{vSR}, {L_ST}, v{vSR}")
    I(f"s_lshl_b32 s24, s{sWV}, 8"); I(f"v_add_u32 v{vSW}, s24, v{vSR}")
    I(f"s_add_u32 s24, s24, {L_ST2}")
    I(f"v_lshlrev_b32 v{vS2W}, 3, v{wC}"); I(f"v_add_u32 v{vS2W}, s24, v{vS2W}")
    I(f"v_lshlrev_b32 v{vS2R}, 5, v{wG}"); I(f"v_add_u32 v{vS2R}, s24, v{vS2R}")
    srd(A, 80, 4096)
    I(f"v_lshlrev_b32 v{TM}, 1, v{wC}"); I(f"s_lshl_b32 s24, s{sJ}, 6")
    I(f"buffer_load_ushort v{vB}, v{TM}, {SW}, s24 offen"); I(f"buffer_load_ushort v{vB+1}, v{TM}, {SW}, s24 offen offset:32")
    I("s_waitcnt vmcnt(0)")
    I(f"v_lshlrev_b32 v{vB}, 16, v{vB}"); I(f"v_lshlrev_b32 v{vB+1}, 16, v{vB+1}")
    srd(A, 72, 8 << 20)
    for x in zero(ACC, 96): I(x)
    I(f"s_mov_b32 s{sS}, 0")
    I(f"s_lshl_b32 s{sSP}, s{sJ}, 17")
    I(f"s_lshl_b32 s{sZ}, s{sWV}, 11"); I(f"s_add_u32 s{sZ}, s{sZ}, {WS_Z + 43*1024}")
    wait_ge(A, DBG, D_PINIT, 64, TM, TM + 1, 24)
    def tiles(dst, sb):
        for i in range(6):
            for par in range(2):
                v = vO5 + par if i == 5 else wL16
                I(f"buffer_load_dwordx4 {vr(dst + 8*i + 4*par,4)}, v{v}, {WSS}, s{sb} offen offset:{par*1024} sc1")
            if i < 5: I(f"s_add_u32 s{sb}, s{sb}, 8192")
    A.label("P_loop")
    I(f"s_add_u32 s24, s{sSP}, 65536")
    I(f"buffer_load_dwordx4 {vr(WF,4)}, v{vWS}, {SW}, s{sSP} offen"); I(f"buffer_load_dwordx4 {vr(WF+4,4)}, v{vWS}, {SW}, s24 offen")
    I(f"s_lshl_b32 s28, s{sS}, 7"); I(f"s_add_u32 s28, s28, {F_Z}")
    wait_ge(A, WSS, "s28", 32, TM, TM + 1, 24, sleep=2)
    I(f"s_lshl_b32 s24, s{sS}, 14"); I(f"s_add_u32 s24, s24, {WS_ZS}")
    for n in range(3): I(f"buffer_load_dwordx4 {vr(MU+4*n,4)}, v{vSO+n}, {WSS}, s24 offen sc1")
    I(f"s_mov_b32 s26, s{sZ}")
    tiles(RAW, 26)
    I(f"s_cmp_eq_u32 s{sS}, 63"); I("s_cbranch_scc0 P_noz1")
    I(f"s_mul_i32 s26, s{sJ}, {86*1024}"); I(f"s_lshl_b32 s27, s{sWV}, 11"); I("s_add_u32 s26, s26, s27"); I(f"s_add_u32 s26, s26, {WS_Z}")
    tiles(Z1, 26)
    I("s_waitcnt vmcnt(12)")
    A.label("P_noz1")
    I("s_waitcnt vmcnt(12)")
    for n in (1, 2):
        for j in range(2): I(f"v_pk_add_f32 {vr(MU+2*j,2)}, {vr(MU+2*j,2)}, {vr(MU+4*n+2*j,2)}")
    for sw in ("16", "32"):
        for r in range(4): I(f"v_mov_b32 v{MU+4+r}, v{MU+r}")
        for r in range(4): I(f"v_permlane{sw}_swap_b32 v{MU+r}, v{MU+4+r}")
        for j in range(2): I(f"v_pk_add_f32 {vr(MU+2*j,2)}, {vr(MU+2*j,2)}, {vr(MU+4+2*j,2)}")
    I(f"ds_write_b128 v{vSW}, {vr(MU,4)}")
    I("s_waitcnt lgkmcnt(0)")
    I("s_barrier")
    for w in range(4): I(f"ds_read_b128 {vr(MU+4*w,4)}, v{vSR} offset:{w*256}")
    I("s_waitcnt lgkmcnt(0)")
    for w in range(1, 4):
        for j in range(2): I(f"v_pk_add_f32 {vr(MU+2*j,2)}, {vr(MU+2*j,2)}, {vr(MU+4*w+2*j,2)}")
    for r in range(4): I(f"v_mul_f32 v{MU+r}, {hex(f2u(1/688))}, v{MU+r}")
    for j in range(2):
        I(f"v_fma_f32 v{MU+2*j+1}, -v{MU+2*j}, v{MU+2*j}, v{MU+2*j+1}")
        I(f"v_max_f32 v{MU+2*j+1}, 0, v{MU+2*j+1}")
        ln_finish(A, MU + 2*j, MU + 2*j + 1)
    I(f"v_mul_f32 v{MU+4}, -v{MU}, v{MU+1}"); I(f"v_mul_f32 v{MU+5}, -v{MU+2}, v{MU+3}")
    I(f"v_mov_b32 v{MU+2}, v{MU+1}")
    I(f"ds_write_b64 v{vS2W}, {vr(MU+4,2)}"); I(f"ds_write_b64 v{vS2W}, {vr(MU+2,2)} offset:128")
    I("s_waitcnt lgkmcnt(0)")
    for i in range(2):
        I(f"ds_read_b128 {vr(MU+4*i,4)}, v{vS2R} offset:{16*i}"); I(f"ds_read_b128 {vr(RS+4*i,4)}, v{vS2R} offset:{128+16*i}")
    I("s_waitcnt vmcnt(0) lgkmcnt(0)")
    for n in range(12):
        unpack(A, RAW + 4*n, TM, 4)
        for j in range(4): I(f"v_pk_fma_f32 {vr(TM+2*j,2)}, {vr(TM+2*j,2)}, {vr(RS+2*j,2)}, {vr(MU+2*j,2)}")
        for j in range(4): I(cv(RAW + 4*n + j, TM + 2*j))
    for n in range(12):
        for t in range(2):
            d = ACC + 16*(n>>1) + 8*t + 4*(n&1)
            I(mf32(d, RAW + 4*n, WF + 4*t, vr(d, 4)))
    I(f"s_add_u32 s{sS}, s{sS}, 1"); I(f"s_add_u32 s{sSP}, s{sSP}, 64"); I(f"s_add_u32 s{sZ}, s{sZ}, {86*1024}")
    I(f"s_cmp_lt_u32 s{sS}, 64"); I("s_cbranch_scc1 P_loop")
    HR = RAW
    I(f"s_lshl_b32 s26, s{sJ}, 15"); I(f"s_lshl_b32 s27, s{sWV}, 13"); I("s_add_u32 s26, s26, s27"); I("s_add_u32 s27, s26, 4096")
    I(f"s_add_u32 s28, s26, {WS_H}"); I(f"s_add_u32 s29, s27, {WS_H}")
    for i in range(8): I(f"buffer_load_dwordx4 {vr(HR+4*i,4)}, v{wL16}, {WSS}, s{28 if i < 4 else 29} offen offset:{(i&3)*1024} sc1")
    I(f"s_lshl_b32 s24, s{sWV}, 11"); I(f"v_add_u32 v{vSW}, s24, v{vU}")
    for i in range(6):
        for t in range(2):
            d = ACC + 16*i + 8*t
            for j in range(4): I(cv(MU + j, d + 2*j))
            unpack(A, MU, d, 4)
            for j in range(8): I(f"v_add_f32 v{d+j}, v{d+j}, v{vB+t}")
            for j in range(4): I(cv(MU + j, d + 2*j))
            unpack(A, MU, d, 4)
            for par in range(2): unpack(A, Z1 + 8*i + 4*par + 2*t, TM + 4*par, 2)
            for j in range(4): I(f"v_pk_mul_f32 {vr(d+2*j,2)}, {vr(d+2*j,2)}, {vr(TM+2*j,2)}")
            for j in range(4): I(cv(d + j, d + 2*j))
            I(f"ds_write_b128 v{vSW}, {vr(d,4)} offset:{i*8192 + t*1024}")
    I("s_waitcnt lgkmcnt(0)")
    I("s_barrier")
    YA = ACC; WB_ = Z1; UF = 208
    first = [True]
    def step(ks, wf):
        for t in range(2): I(f"ds_read_b128 {vr(UF+4*t,4)}, v{vU} offset:{ks*2048 + t*1024}")
        I("s_waitcnt lgkmcnt(0)")
        return [f"v_mfma_f32_16x16x32_bf16 {vr(YA + 16*(t8>>1) + 8*t + 4*(t8&1),4)}, {wf(t8)}, {vr(UF+4*t,4)}, {'0' if first[0] else vr(YA + 16*(t8>>1) + 8*t + 4*(t8&1),4)}"
                for t8 in range(8) for t in range(2)]
    for n in range(14):
        slot = (8 + n) % 3
        if n >= 3: I(f"s_waitcnt vmcnt({8*min(2, 13 - n)})")
        for x in wrd(slot, lambda o: vr(WB_ + o, 2)): I(x)
        ms = step(8 + n, lambda t8: vr(WB_ + 4*t8, 4)); first[0] = False
        d = wdma(11 + n, slot) if 11 + n < 22 else []
        slots(A, ms, [d[3*i:3*i+3] for i in range(8)])
        if n < 8:
            for x in step(n, lambda t8: ar(n*32 + 4*t8, 4)): I(x)
    I("s_barrier")
    I(f"v_mul_u32_u24 v{vD}, {PSTR}, v{wC}"); I(f"v_lshl_add_u32 v{vD}, v{wG}, 4, v{vD}")
    I(f"s_lshl_b32 s24, s{sWV}, 8"); I(f"v_add_u32 v{vD}, s24, v{vD}")
    I(f"s_mul_i32 s24, s{sWV}, {8*PSTR}"); I(f"v_add_u32 v{vD+1}, s24, v{wL16}")
    for p in range(4):
        for t in range(2):
            d = YA + 16*p + 8*t
            for i in range(4): I(cv(d + i, d + 2*i))
            I(f"ds_write_b128 v{vD}, {vr(d,4)} offset:{t*16*PSTR + p*64}")
    srd(A, 96, 2 << 20)
    I("s_barrier")
    for i in range(8): I(f"ds_read_b128 {vr(Z1+4*i,4)}, v{vD+1} offset:{i*PSTR}")
    for i in range(8):
        I(f"s_waitcnt lgkmcnt({7-i})")
        unpack(A, Z1 + 4*i, MU, 4); unpack(A, HR + 4*i, TM, 4)
        for j in range(4): I(f"v_pk_add_f32 {vr(MU+2*j,2)}, {vr(MU+2*j,2)}, {vr(TM+2*j,2)}")
        for j in range(4): I(cv(ACC + 4*i + j, MU + 2*j))
        I(f"buffer_store_dwordx4 {vr(ACC+4*i,4)}, v{wL16}, {SW}, s{26 if i < 4 else 27} offen offset:{(i&3)*1024}")
```

```python
import mega, sys, json
opt = json.loads(sys.argv[2]) if len(sys.argv) > 2 else {}
dst = sys.argv[1] if len(sys.argv) > 1 else "sequential_preLN__memory_aug_recurrent_mem_tr__mixer_gmlp__prompt.s"
ref = open("sequential_preLN__memory_aug_recurrent_mem_tr__mixer_gmlp__prompt.s.ref").read().split("\n")
hdr = [l for l in ref if l.startswith(";") and "@launch" not in l][:17]
open(dst, "w").write("\n".join(hdr) + "\n" + mega.gen(opt))
```

```python
from asmlib import *
import struct

WS_KV = 2 << 20
WS_KM = (36 << 20) + 4096
WS_HA = 48 << 20
WS_HB = 49 << 20
WS_XN = 50 << 20
WS_H = 52 << 20
WS_HN = 54 << 20
WS_Z = 56 << 20
WS_ZS = 62 << 20
WS_PART = 64 << 20
F_KV = 0; F_PART = 4096; F_HN = 6144; F_ZL = 8192; F_Z = 16384
NG = 5
WS_BYTES = 256 << 20
LW = 128 << 10
L_MEM = 0; L_QK = 0; L_O = 4096; L_V = 8192; L_K = 16384
LDS_BYTES = 160 << 10
SCALE_LOG2E = (128 ** -0.5) * 1.4426950408889634

SPIN_MAX = 1 << 18
def f2u(x): return struct.unpack("<I", struct.pack("<f", x))[0]
def vr(b, n): return f"v[{b}:{b+n-1}]"
def ar(b, n): return f"a[{b}:{b+n-1}]"

vIDX, vL16, vT, vMW, vOR, vKR, vSEL = 0, 1, 2, 4, 5, 6, 7
vXW, vTR, vOW, vF0, vF1, vAST, vALD, vBST = 8, 9, 10, 11, 12, 13, 14, 15
PZ = 16
M = 20; AQ = 52; AK = 60; AV = 68; KX = 76; VX = 108; S = 116
sWS = 4
sW = 8
sDBG = 12
sH, sWV, sSTEP, sHA, sHB, sKV, sKM, sSPIN, sT0, sT1, sT2, sT3, sSC = 16, 17, 18, 19, 20, 21, 22, 23, 24, 25, 26, 27, 28
sM0A, sM0B, sRA, sRB, sRC, sPF, sSPA, sB0, sB1 = 29, 30, 31, 32, 33, 34, 35, 36, 37
sRDY = 38
vFL = 14
sMSK = 52

LRES = [(0, 0, 0), (0, 1, 0), (1, 0, 0), (1, 1, 0), (0, 0, 1), (0, 1, 1)]
LBUF = [VX, VX + 8, KX, KX + 8, KX + 16, KX + 24]
WOL = [(3, 0, 2), (3, 1, 1), (3, 1, 3), (3, 1, 2), (3, 2, 1), (3, 2, 3), (3, 2, 2), (3, 3, 1), (3, 3, 3), (3, 3, 2)]
WBUF = [M + 8, M + 16, M + 24, KX + 16, KX + 24, KX, KX + 8, M, S, M + 8]
NL = len(LRES); NW = len(WOL)
_slots = {}
def _assign():
    n = 0
    for mat in range(3):
        for tau in range(2):
            for p in range(8):
                if (mat, tau, p) in LRES: continue
                _slots[(mat, tau, p)] = n; n += 1
    for p in range(4):
        for j in range(4):
            if (3, p, j) in WOL: continue
            _slots[(3, p, j)] = n; n += 1
    assert n == 48
_assign()
def slot_reg(key, off, n):
    i = _slots[key] * 8 + off
    return ar(i, n) if i < 256 else vr(128 + i - 256, n)
def wfrag(*key):
    if key in LRES: return vr(LBUF[LRES.index(key)], 8)
    if key in WOL: return vr(WBUF[WOL.index(key)], 8)
    return slot_reg(key, 0, 8)

def smf(acc, a, b): return f"v_smfmac_f32_16x16x64_bf16 {vr(acc,4)}, {vr(a,4)}, {b}, v{vIDX}"
def mf32(d, a, b, c): return f"v_mfma_f32_16x16x32_bf16 {vr(d,4)}, {vr(a,4)}, {vr(b,4)}, {c}"
def mf16(d, a, b, c): return f"v_mfma_f32_16x16x16_bf16 {vr(d,4)}, {vr(a,2)}, {vr(b,2)}, {c}"

def chain_setup(A, st, hooks=None):
    I = A.I
    WS = f"s[{sWS}:{sWS+3}]"
    LN, C, G, R, R0, R1, G0, G1, CP, X, Y, Z = 40, 41, 42, 43, 44, 45, 46, 47, 48, 49, 50, 51
    I(f"v_lshrrev_b32 v{X}, 6, v0")
    I(f"v_and_b32 v{LN}, 63, v0")
    I(f"v_readfirstlane_b32 s{sWV}, v{X}")
    I(f"v_and_b32 v{C}, 15, v{LN}")
    I(f"v_lshrrev_b32 v{G}, 4, v{LN}")
    I(f"v_lshrrev_b32 v{R}, 2, v{C}")
    I(f"v_and_b32 v{R0}, 1, v{R}")
    I(f"v_lshrrev_b32 v{R1}, 1, v{R}")
    I(f"v_and_b32 v{G0}, 1, v{G}")
    I(f"v_lshrrev_b32 v{G1}, 1, v{G}")
    I(f"v_and_b32 v{CP}, 3, v{C}")
    I(f"s_and_b32 s{sT0}, s{sWV}, 1")
    I(f"s_lshl_b32 s{sT0}, s{sT0}, 2")
    I(f"s_lshr_b32 s{sT1}, s{sWV}, 1")
    I(f"s_lshl_b32 s{sT1}, s{sT1}, 4")
    I(f"s_add_u32 s{sT0}, s{sT0}, s{sT1}")
    I(f"v_add_u32 v20, s{sT0}, v{G}")
    I("v_lshlrev_b32 v20, 13, v20")
    I(f"s_lshl_b32 s{sT0}, s{sWV}, 2")
    I(f"v_lshlrev_b32 v{X}, 1, v{G1}")
    I(f"v_or_b32 v{X}, s{sT0}, v{X}")
    I(f"v_xor_b32 v{X}, v{C}, v{X}")
    I(f"v_lshl_add_u32 v20, v{X}, 4, v20")
    I(f"s_lshl_b32 s{sT1}, s{sH}, 8")
    I(f"v_add_u32 v20, s{sT1}, v20")

    chunks = [(1, 0), (1, 1), (2, 0), (2, 1), (0, 0), (0, 1), (3, 0), (3, 1)]
    HOLD = 32; HW = HOLD + 8*NL
    def srd_for(mat):
        I(f"s_load_dwordx2 s[{sW}:{sW+1}], s[0:1], {16 + 8*mat}")
        I(f"s_mov_b32 s{sW+2}, {4<<20}")
        I(f"s_mov_b32 s{sW+3}, 0x20000")
        I("s_waitcnt lgkmcnt(0)")
    def dma(ci):
        mat, half = chunks[ci]
        if half == 0: srd_for(mat)
        reg = half * 65536
        if mat < 3:
            I(f"s_lshl_b32 s{sT0}, s{sWV}, 10")
            for i in range(16):
                I(f"s_add_u32 m0, s{sT0}, {reg + i*4096}")
                I(f"s_mov_b32 s{sT1}, {(32*i + 8*half)*8192}")
                I(f"buffer_load_dwordx4 v20, s[{sW}:{sW+3}], s{sT1} offen lds")
        else:
            I(f"s_lshl_b32 s{sT0}, s{sWV}, 14")
            for i in range(16):
                I(f"s_add_u32 m0, s{sT0}, {reg + i*1024}")
                I(f"s_mov_b32 s{sT1}, {((i&7) + 64*(i>>3) + 8*half)*1024}")
                I(f"buffer_load_dwordx4 v{21 + (i&1)}, s[{sW}:{sW+3}], s{sT1} offen lds")
    I(f"s_load_dwordx2 s[{sW}:{sW+1}], s[0:1], 8")
    I(f"s_mov_b32 s{sW+2}, 8192"); I(f"s_mov_b32 s{sW+3}, 0x20000")
    I(f"v_and_b32 v{Y}, 1, v{C}")
    I(f"v_lshl_add_u32 v{X}, v{R}, 1, v{Y}")
    I(f"v_lshlrev_b32 v{X}, 10, v{X}")
    I(f"v_lshl_add_u32 v{X}, v{G}, 8, v{X}")
    I(f"v_and_b32 v{Y}, 2, v{C}")
    I(f"v_lshl_add_u32 v{vT}, v{Y}, 2, v{X}")
    I("s_waitcnt lgkmcnt(0)")
    for k in range(8):
        I(f"buffer_load_dwordx2 {vr(60+4*k,2)}, v{vT}, s[{sW}:{sW+3}], 0 offen offset:{64*(k>>1) + 16*(k&1)}")
        I(f"buffer_load_dwordx2 {vr(62+4*k,2)}, v{vT}, s[{sW}:{sW+3}], 0 offen offset:{64*(k>>1) + 16*(k&1) + 32}")
    dma(0); dma(1)
    I(f"s_and_b32 s{sT0}, s{sWV}, 1")
    I(f"s_lshl_b32 s{sT0}, s{sT0}, 3")
    I(f"v_xor_b32 v21, s{sT0}, v{LN}")
    I("v_xor_b32 v22, 4, v21")
    I(f"s_lshl_b32 s{sT1}, s{sH}, 17")
    I(f"s_lshl_b32 s{sT2}, s{sWV}, 14")
    I(f"s_add_u32 s{sT1}, s{sT1}, s{sT2}")
    I("v_lshlrev_b32 v21, 4, v21")
    I("v_lshlrev_b32 v22, 4, v22")
    I(f"v_add_u32 v21, s{sT1}, v21")
    I(f"v_add_u32 v22, s{sT1}, v22")
    I(f"v_lshl_add_u32 v{X}, v{R1}, 1, v{G0}")
    I(f"v_lshl_add_u32 v{X}, v{R0}, 2, v{X}")
    I(f"v_lshlrev_b32 v{Y}, 9, v{X}")
    I(f"v_lshl_add_u32 v{Y}, v{G1}, 14, v{Y}")
    I(f"v_lshl_add_u32 v{Y}, v{CP}, 3, v{Y}")
    I(f"s_lshl_b32 s{sT1}, s{sWV}, 1")
    I(f"v_xor_b32 v{X}, s{sT1}, v{X}")
    I(f"v_lshl_add_u32 v23, v{X}, 5, v{Y}")
    I("v_xor_b32 v24, 32, v23")
    I(f"v_lshl_add_u32 v{Y}, v{G1}, 2, v{R0}")
    I(f"v_lshl_add_u32 v{Y}, v{G0}, 4, v{Y}")
    I(f"v_lshlrev_b32 v{Y}, 10, v{Y}")
    I(f"v_lshl_add_u32 v{Y}, v{CP}, 3, v{Y}")
    I(f"v_lshl_add_u32 v{X}, v{R0}, 1, v{R1}")
    I(f"v_lshl_add_u32 v{X}, v{G0}, 2, v{X}")
    I(f"v_lshl_add_u32 v{Y}, v{X}, 5, v{Y}")
    I(f"s_lshl_b32 s{sT1}, s{sWV}, 8")
    I(f"v_add_u32 v25, s{sT1}, v{Y}")
    I(f"v_lshlrev_b32 v{vL16}, 4, v{LN}")
    I(f"s_lshl_b32 s{sT1}, s{sWV}, 14")
    I(f"v_add_u32 v{vF0}, s{sT1}, v{vL16}")
    I(f"v_add_u32 v{vF1}, 0x10000, v{vF0}")
    I(f"v_add_u32 v{vL16}, {LW}, v{vL16}")
    I(f"s_lshl_b32 s{sT1}, s{sWV}, 11")
    I(f"v_add_u32 v{vMW}, s{sT1}, v{vL16}")
    I(f"s_lshl_b32 s{sT1}, s{sWV}, 10")
    I(f"v_add_u32 v{vOW}, s{sT1}, v{vL16}")
    I(f"v_and_b32 v{vOR}, {hex(0xffffffff ^ 32)}, v{vOW}")
    I(f"v_lshlrev_b32 v{X}, 5, v{C}")
    I(f"v_lshl_add_u32 v{X}, v{G}, 3, v{X}")
    I(f"s_add_u32 s{sT1}, s{sT1}, {LW}")
    I(f"v_add_u32 v{vXW}, s{sT1}, v{X}")
    I(f"v_lshlrev_b32 v{X}, 3, v{LN}")
    I(f"v_add_u32 v{vTR}, {LW}, v{X}")
    I(f"v_lshl_add_u32 v{X}, v{R1}, 2, v{G}")
    I(f"v_lshlrev_b32 v{X}, 13, v{X}")
    I(f"v_and_b32 v{Y}, 7, v{C}")
    I(f"v_lshl_add_u32 v{X}, v{Y}, 3, v{X}")
    I(f"s_lshl_b32 s{sT1}, s{sWV}, 16")
    I(f"s_lshl_b32 s{sT2}, s{sH}, 6")
    I(f"s_add_u32 s{sT1}, s{sT1}, s{sT2}")
    I(f"v_add_u32 v{vAST}, s{sT1}, v{X}")
    I(f"s_lshl_b32 s{sT1}, s{sWV}, 11")
    I(f"s_and_b32 s{sT2}, s{sH}, 4")
    I(f"s_lshl_b32 s{sT2}, s{sT2}, 8")
    I(f"s_add_u32 s{sT1}, s{sT1}, s{sT2}")
    I(f"s_lshr_b32 s{sT2}, s{sH}, 3")
    I(f"s_lshl_b32 s{sT2}, s{sT2}, 8")
    I(f"s_add_u32 s{sT1}, s{sT1}, s{sT2}")
    I(f"s_and_b32 s{sT2}, s{sH}, 3")
    I(f"s_lshl_b32 s{sT2}, s{sT2}, 6")
    I(f"s_add_u32 s{sT1}, s{sT1}, s{sT2}")
    I(f"v_and_b32 v{Y}, 1, v{C}")
    I(f"v_and_b32 v{Z}, 2, v{C}")
    I(f"v_add_u32 v{X}, v{Z}, v{G0}")
    I(f"v_lshlrev_b32 v{X}, 4, v{X}")
    I(f"v_lshl_add_u32 v{X}, v{Y}, 3, v{X}")
    I(f"v_lshl_add_u32 v{X}, v{G1}, 2, v{X}")
    I(f"v_add_u32 v{X}, s{sT1}, v{X}")
    I(f"v_mov_b32 v{Z}, 0x40000000")
    I(f"v_cmp_gt_u32 vcc, 4, v{C}")
    I(f"v_cndmask_b32 v{vBST}, v{Z}, v{X}, vcc")
    for i in range(4):
        I(f"s_mov_b32 s{sMSK+2*i}, {hex(0x000f000f << (4*i))}")
        I(f"s_mov_b32 s{sMSK+2*i+1}, {hex(0x000f000f << (4*i))}")
    I(f"v_lshlrev_b32 v{Z}, 4, v{Y}")
    I(f"v_mov_b32 v{X}, 0x3f80")
    I(f"v_lshlrev_b32 v{vSEL}, v{Z}, v{X}")
    I(f"v_add_u32 v{vKR}, {L_K}, v{vL16}")
    I(f"v_and_b32 v{Y}, 2, v{C}")
    I(f"v_mov_b32 v{X}, 0x44444444")
    I(f"v_mov_b32 v{Z}, 0xeeeeeeee")
    I(f"v_cmp_eq_u32 vcc, 0, v{Y}")
    I(f"v_cndmask_b32 v{vIDX}, v{Z}, v{X}, vcc")
    for i in range(4): I(f"v_mov_b32 v{PZ+i}, 0")
    I(f"s_mov_b32 s{sT1}, 0x05040100")
    I(f"s_mov_b32 s{sT2}, 0x07060302")
    I("s_waitcnt vmcnt(32)")
    for k in range(8):
        for x in range(4):
            I(f"v_perm_b32 v{92+4*k+x}, v{62+4*k+(x>>1)}, v{60+4*k+(x>>1)}, s{sT2 if x&1 else sT1}")
            I(f"v_min_u32 v{92+4*k+x}, -2, v{92+4*k+x}")
    for k in range(8):
        I(f"ds_write_b128 v{vL16}, {vr(92+4*k,4)} offset:{L_MEM + k*1024}")
    I(f"s_mov_b32 s{sHB}, {WS_HB}")
    I(f"s_mov_b32 s{sB0}, {WS_HB - LW}")
    I(f"s_lshl_b32 s{sB1}, s{sWV}, 11")
    I(f"s_add_u32 s{sB1}, s{sB1}, {LW + L_MEM}")
    I(f"s_mov_b32 s{sSTEP}, 0")
    I(f"s_mov_b32 s{sHA}, {WS_HA}")
    I(f"s_lshl_b32 s{sRC}, s{sH}, 13")
    I(f"s_sub_u32 s{sRC}, s{sRC}, {LW}")
    I(f"s_add_u32 s{sRA}, s{sRC}, {WS_HA + (256<<10)}")
    I(f"s_mov_b32 s{sRB}, {WS_HB + 3*8192}")
    I(f"s_lshl_b32 s{sKV}, s{sH}, 14")
    I(f"s_add_u32 s{sKV}, s{sKV}, {WS_KV - LW}")
    I(f"s_mul_i32 s{sKM}, s{sH}, {65*4096}")
    I(f"s_add_u32 s{sKM}, s{sKM}, {WS_KM - LW - 4096}")
    I(f"s_mov_b32 s{sSPIN}, 0")
    I(f"s_mov_b32 s{sSPA}, 0")
    I(f"s_mov_b32 s{sSC}, {hex(f2u(SCALE_LOG2E))}")
    I(f"s_lshl_b32 s{sM0A}, s{sWV}, 11")
    I(f"s_add_u32 s{sM0B}, s{sM0A}, {LW + L_V}")
    I(f"s_add_u32 s{sM0A}, s{sM0A}, {LW + L_K}")
    I(f"s_lshl_b32 s{sPF}, s{sWV}, 10")
    I(f"s_add_u32 s{sPF}, s{sPF}, {LW + L_MEM + 4096}")
    I("s_waitcnt lgkmcnt(0)")

    for ci in range(8):
        mat, half = chunks[ci]
        I(f"s_waitcnt vmcnt({(17 if (hooks and ci == 5) else 16) if ci < 7 else 0})")
        I("s_barrier")
        if hooks: hooks(A, "landed", ci)
        if mat < 3:
            for pp in range(4):
                for tau in range(2):
                    key = (mat, tau, 2*pp + half)
                    for u in range(4):
                        off = (u >> 1) * 32768 + (u & 1) * 256 + pp * 4096
                        dst = vr(HOLD + 8*LRES.index(key) + 2*u, 2) if key in LRES else slot_reg(key, 2*u, 2)
                        I(f"ds_read_b64_tr_b16 {dst}, v{23+tau} offset:{off}")
            I("s_waitcnt lgkmcnt(0)")
            I("v_xor_b32 v23, 0x10000, v23"); I("v_xor_b32 v24, 0x10000, v24")
            I("s_barrier")
            if ci + 2 < 8: dma(ci + 2)
            if hooks: hooks(A, "issued", ci + 2)
        else:
            for j in range(4):
                I(f"s_xor_b32 s{sT1}, s{sWV}, {j}")
                I(f"s_lshr_b32 s{sT2}, s{sT1}, 1")
                I(f"s_lshl_b32 s{sT2}, s{sT2}, 13")
                I(f"s_and_b32 s{sT1}, s{sT1}, 1")
                I(f"s_lshl_b32 s{sT1}, s{sT1}, 15")
                I(f"s_add_u32 s{sT1}, s{sT1}, s{sT2}")
                I(f"s_add_u32 s{sT1}, s{sT1}, {half*65536}")
                I(f"v_add_u32 v26, s{sT1}, v25")
                for p in range(4):
                    I(f"v_xor_b32 v27, {p<<6}, v26")
                    key = (3, p, j)
                    for u1 in range(2):
                        dst = vr(HW + 4*WOL.index(key) + 2*u1, 2) if key in WOL else slot_reg(key, 4*half + 2*u1, 2)
                        I(f"ds_read_b64_tr_b16 {dst}, v27 offset:{u1*2048}")
            I("s_waitcnt lgkmcnt(0)")
            I("s_barrier")
            a = vF1 if half else vF0
            for i in range(NL): I(f"ds_write_b128 v{a}, {vr(HOLD+8*i+4*half,4)} offset:{i*1024}")
            for i in range(NW): I(f"ds_write_b128 v{a}, {vr(HW+4*i,4)} offset:{(NL+i)*1024}")
            I("s_waitcnt lgkmcnt(0)")

def kv_dma(A, ld=""):
    return [f"s_mov_b32 m0, s{sM0A}",
            f"s_add_u32 s{sT3}, s{sKV}, 8192",
            f"buffer_load_dwordx4 v{vMW}, s[{sWS}:{sWS+3}], s{sKV} offen {ld} lds",
            f"buffer_load_dwordx4 v{vMW}, s[{sWS}:{sWS+3}], s{sKV} offen offset:1024 {ld} lds",
            f"s_mov_b32 m0, s{sM0B}",
            f"s_xor_b32 s{sM0A}, s{sM0A}, 8192",
            f"buffer_load_dwordx4 v{vMW}, s[{sWS}:{sWS+3}], s{sT3} offen {ld} lds",
            f"buffer_load_dwordx4 v{vMW}, s[{sWS}:{sWS+3}], s{sT3} offen offset:1024 {ld} lds",
            f"s_add_u32 s{sKV}, s{sKV}, {32*16384}"]

def kv_flag_load(A):
    I = A.I
    I(f"v_lshrrev_b32 v{vT}, 2, v{vL16}")
    I(f"s_lshl_b32 s{sT3}, s{sH}, 7")
    I(f"v_subrev_u32 v{vT}, {LW//4}, v{vT}")
    I(f"s_add_u32 s{sT3}, s{sT3}, {F_KV}")
    I(f"buffer_load_dword v{vT+1}, v{vT}, s[{sWS}:{sWS+3}], s{sT3} offen sc1")

def kv_wait(A, pfx, need, preloaded=False):
    I = A.I
    if preloaded: I(f"s_branch {pfx}_kve")
    A.label(f"{pfx}_kvw")
    kv_flag_load(A)
    A.label(f"{pfx}_kve")
    I(f"s_add_u32 s{sSPIN}, s{sSPIN}, 1")
    I("s_waitcnt vmcnt(0)")
    I(f"v_readlane_b32 s{sRDY}, v{vT+1}, 0")
    I(f"s_mul_i32 s{sRDY}, s{sRDY}, {NG}")
    for g in range(1, NG):
        I(f"v_readlane_b32 s{sT3}, v{vT+1}, {g}")
        I(f"s_mul_i32 s{sT3}, s{sT3}, {NG}")
        I(f"s_add_u32 s{sT3}, s{sT3}, {g}")
        I(f"s_min_u32 s{sRDY}, s{sRDY}, s{sT3}")
    I(f"s_cmp_gt_u32 s{sSPIN}, {SPIN_MAX}")
    I(f"s_cbranch_scc1 {pfx}_kvw_done")
    I(f"s_add_u32 s{sT3}, s{sSTEP}, {need}")
    I(f"s_cmp_ge_u32 s{sT3}, s{sRDY}")
    I(f"s_cbranch_scc1 {pfx}_kvw")
    A.label(f"{pfx}_kvw_done")
    I(f"s_sub_u32 s{sRDY}, s{sRDY}, 1")

def hs(x): return f"v_pk_add_f32 {vr(x,2)}, {vr(x,2)}, {vr(x+2,2)}"
def hs2(x): return [f"v_add_f32 v{x}, v{x}, v{x+2}", f"v_add_f32 v{x+1}, v{x+1}, v{x+3}"]
def cv(d, x): return f"v_cvt_pk_bf16_f32 v{d}, v{x}, v{x+1}"
def zero(base, n): return [f"v_mov_b64 {vr(base+2*i,2)}, 0" for i in range(n // 2)]
def frag_rd(i, dst):
    return [f"ds_read_b128 {vr(dst,4)}, v{vF0} offset:{i*1024}", f"ds_read_b128 {vr(dst+4,4)}, v{vF1} offset:{i*1024}"]
def chk(base, tmp):
    return [f"v_max3_u32 v{tmp}, v{base}, v{base+1}, v{base+2}", f"v_max3_u32 v{tmp+1}, v{base+3}, v{base+4}, v{base+5}",
            f"v_max3_u32 v{tmp}, v{tmp}, v{base+6}, v{base+7}", f"v_max_u32 v{tmp}, v{tmp}, v{tmp+1}", f"v_cmp_eq_u32 vcc, -1, v{tmp}"]
def delay(A, n):
    while n > 0:
        k = min(n, 16); A.I(f"s_nop {k-1}"); n -= k
def slots(A, mfmas, fills):
    for i, m in enumerate(mfmas):
        A.I(m)
        if i < len(fills):
            for f in fills[i]: A.I(f)


def chain_loop(A, st, pfx, stamp=None, pub="sc1", opt={}):
    I = A.I
    WS = f"s[{sWS}:{sWS+3}]"
    nohop = opt.get("nohop")
    def T(i):
        if stamp: stamp(A, i)
    lres_rd = sum([frag_rd(i, LBUF[i]) for i in range(NL)], [])
    PB = S + 8
    NEG = S + 4
    mega = opt.get("mega")
    kld = "sc1" if mega else ""
    I("s_waitcnt lgkmcnt(0)")
    for x in ([] if mega else kv_dma(A, kld)) + lres_rd + zero(AQ, 24): I(x)
    I("s_waitcnt vmcnt(0) lgkmcnt(0)")
    I("s_barrier")
    I(f"s_branch {pfx}_go0")
    BS = [M + 16, M + 24]
    def pollB(b): return [f"buffer_load_dwordx4 {vr(b,4)}, v{vMW}, {WS}, s{sB0} offen sc1", f"buffer_load_dwordx4 {vr(b+4,4)}, v{vMW}, {WS}, s{sB0} offen offset:1024 sc1",
                          f"buffer_load_dwordx4 v{vMW}, {WS}, s{sB0} offen sc1 lds", f"buffer_load_dwordx4 v{vMW}, {WS}, s{sB0} offen offset:1024 sc1 lds"]
    NE = opt.get("NE", 2)
    mr = [f"ds_read_b128 {vr(M+4*k,4)}, v{vL16} offset:{L_MEM+1024*k}" for k in range(8)]
    def ckr(lo, hi):
        regs = list(range(M + 4*lo, M + 4*hi))
        out = [f"v_max3_u32 v{vT}, v{regs[0]}, v{regs[1]}, v{regs[2]}"]
        for i in range(3, len(regs) - 1, 2): out.append(f"v_max3_u32 v{vT}, v{vT}, v{regs[i]}, v{regs[i+1]}")
        out.append(f"v_max_u32 v{vT}, v{vT}, v{regs[-1]}")
        out.append(f"v_cmp_eq_u32 vcc, -1, v{vT}")
        return out
    assert NE == 2
    lateD = f"buffer_load_dwordx4 v{vOW}, {WS}, s{sT2} offen sc1 lds"
    if mega:
        kv_wait(A, pfx + "_l", 1)
        I(f"s_branch {pfx}_kv_ok")
    A.label(f"{pfx}_lateB")
    I(lateD)
    I(f"s_add_u32 s{sSPIN}, s{sSPIN}, 1")
    I(f"s_cmp_gt_u32 s{sSPIN}, {SPIN_MAX}")
    I("s_waitcnt vmcnt(1)")
    I(f"s_cbranch_scc1 {pfx}_lateB_ok")
    for x in mr[2*NE:]: I(x)
    I("s_waitcnt lgkmcnt(0)")
    for x in ckr(2*NE, 8): I(x)
    I(f"s_cbranch_vccnz {pfx}_lateB")
    A.label(f"{pfx}_lateB_ok")
    I("s_waitcnt vmcnt(0)")
    I(f"s_branch {pfx}_late_done")
    A.label(f"{pfx}_earlyB_retry")
    for x in pollB(BS[0]): I(x)
    I("s_waitcnt vmcnt(6)")
    c = chk(BS[1], vT)
    for x in c[:4]: I(x)
    I("s_waitcnt vmcnt(4)"); I(c[4])
    I(f"s_cbranch_vccz {pfx}_go")
    for x in pollB(BS[1]): I(x)
    I(f"s_add_u32 s{sSPIN}, s{sSPIN}, 1")
    I(f"s_cmp_gt_u32 s{sSPIN}, {SPIN_MAX}")
    I(f"s_cbranch_scc1 {pfx}_go")
    A.label(f"{pfx}_earlyB")
    I("s_waitcnt vmcnt(6)")
    c = chk(BS[0], vT)
    for x in c: I(x)
    I("s_waitcnt vmcnt(4)")
    if not nohop: I(f"s_cbranch_vccnz {pfx}_earlyB_retry")
    A.label(f"{pfx}_go")
    I(f"s_mov_b32 m0, s{sPF}")
    I("s_barrier")
    I(lateD)
    A.label(f"{pfx}_go0")
    T(0)
    acc = {0: AQ, 1: AK, 2: AV}
    def m1(mat, tau, p): return smf(acc[mat] + 4*tau, M + 4*p, wfrag(mat, tau, p))
    def mm(mat, p): return [m1(mat, 0, p), m1(mat, 1, p)]
    kx = [f"ds_read_b128 {vr(KX+4*i,4)}, v{vKR} offset:{1024*i}" for i in range(8)]
    vx = [f"ds_read_b128 {vr(VX+4*i,4)}, v{vMW} offset:{L_V+1024*i}" for i in range(2)]
    q0p = hs2(AQ) + [cv(AQ+2, AQ)]; q1p = hs2(AQ+4) + [cv(AQ+6, AQ+4)]
    k0p = hs2(AK) + [cv(AQ+3, AK)]; k1p = hs2(AK+4) + [cv(AQ+7, AK+4)]
    def ck(k):
        b = M + 4*k
        if k == 0: return [f"v_max3_u32 v{vT}, v{b}, v{b+1}, v{b+2}", f"v_max_u32 v{vT}, v{vT}, v{b+3}"]
        return [f"v_max3_u32 v{vT}, v{vT}, v{b}, v{b+1}", f"v_max3_u32 v{vT}, v{vT}, v{b+2}, v{b+3}"]
    cmpv = f"v_cmp_eq_u32 vcc, -1, v{vT}"
    dma = ["s_nop 0"]*9 if opt.get("nodma") else kv_dma(A, kld)
    resets = [f"buffer_store_dwordx4 {vr(NEG,4)}, v{vMW}, {WS}, s{sRA} offen {st}",
              f"buffer_store_dwordx4 {vr(NEG,4)}, v{vMW}, {WS}, s{sRA} offen offset:1024 {st}",
              f"buffer_store_dword v{NEG}, v{vBST}, {WS}, s{sRB} offen {st}"]
    publish = [] if opt.get("nopub") else [f"buffer_store_dwordx4 {vr(PB,4)}, v{vOW}, {WS}, s{sKM} offen {pub}"]
    for x in mr[:2*NE]: I(x)
    I(f"s_waitcnt lgkmcnt({2*NE-1})")
    T(10)
    vm = sum([mm(2, p) for p in range(8)], [])
    nvf = opt.get("nvf", 8)
    nb = opt.get("nb", 11)
    ph1 = sum([mm(0, k) + mm(1, k) for k in range(2*NE)], []) + vm[:nvf]
    vm = vm[nvf:]
    kvr = vx + kx
    fl = [[], ["s_waitcnt lgkmcnt(0)"]] + [[] for _ in range(nb - 2)]
    for i in range(5, nb - 1): fl[i].append(kvr.pop(0))
    slots(A, ph1[:nb], fl)
    I("s_waitcnt vmcnt(0)")
    T(11)
    I("s_barrier")
    T(12)
    rest = ph1[nb:]
    nl = 8 - 2*NE
    c = ckr(2*NE, 8)
    neg = [f"v_mov_b64 {vr(NEG,2)}, -1", f"v_mov_b64 {vr(NEG+2,2)}, -1"]
    fl = [[] for _ in rest]
    I(mr[4]); I(mr[5])
    fl[0] += [mr[6]]; fl[1] += [mr[7]]
    st0 = len(rest) - 1 - len(c)
    nk = len(kvr)
    fl[st0].append("s_waitcnt lgkmcnt(2)")
    fl[st0+3].append("s_waitcnt lgkmcnt(0)")
    for i, x in enumerate(c):
        if i >= 4 and kvr: fl[st0+i].append(kvr.pop(0))
        fl[st0+i].append(x)
    fl[2] = publish + fl[2]
    slots(A, rest, fl)
    if not nohop: I(f"s_cbranch_vccnz {pfx}_lateB")
    A.label(f"{pfx}_late_done")
    if mega:
        I(f"s_cmp_ge_u32 s{sSTEP}, s{sRDY}")
        I(f"s_cbranch_scc1 {pfx}_l_kvw")
        A.label(f"{pfx}_kv_ok")
    T(14)
    qs = sum([mm(0, k) + mm(1, k) for k in range(2*NE, 4)], []) + mm(0, 4) + mm(0, 5) + mm(0, 6) + mm(0, 7)
    fl = [[kvr.pop(0)] if kvr else [] for _ in qs]
    fl[0] += [dma[0]]; fl[1] += [dma[2]]; fl[2] += [dma[1]] + neg[:1]; fl[3] += neg[1:]; fl[5] += [dma[3], dma[4]]; fl[6] += [dma[5]]
    fl[7] += ["s_waitcnt lgkmcnt(8)"]
    slots(A, qs, fl)
    ks = [m1(1, 0, p) for p in range(4, 8)] + [m1(1, 1, p) for p in range(4, 8)]
    slots(A, ks, [["s_nop 2"], [dma[6], "s_nop 0", q0p[0]], [q0p[1]], [q0p[2]], [q1p[0]], [dma[7], dma[8], q1p[1]], [q1p[2]], [k0p[0]]])
    T(13)
    for x in k0p[1:]: I(x)
    I(f"ds_write_b64 v{vXW}, {vr(AQ+2,2)} offset:{L_QK}")
    for x in k1p: I(x)
    I(f"ds_write_b64 v{vXW}, {vr(AQ+6,2)} offset:{L_QK+512}")
    T(20)
    wo = sum([frag_rd(NL + i, WBUF[i]) for i in range(NW)], [])
    nv = opt.get("nv", 4)
    slots(A, vm[:nv], [resets[:1], [wo[0], cv(AK, AK)], [wo[1], cv(AK+1, AK+4)], resets[2:], []])
    I(f"s_waitcnt lgkmcnt(2)")
    T(22)
    I("s_barrier")
    T(2)
    F = [M, M + 4, AQ, AQ + 4]
    frd = [f"ds_read_b64_tr_b16 {vr(F[sg]+2*rho,2)}, v{vTR} offset:{L_QK + sg*1024 + rho*512}" for sg in range(4) for rho in range(2)]
    for x in frd[:2]: I(x)
    nrem = len(vm) - nv
    fl = [frd[2:4], frd[4:6], frd[6:8]] + [[] for _ in range(nrem - 3)]
    slots(A, vm[nv:], fl)
    ONES = AV; LA = AK + 4; OA = AQ; tmx = AK + 4
    def sx(tau, sg): return mf32(S + 4 + 4*tau, KX + 16*tau + 4*sg, F[sg], "0" if sg == 0 else vr(S + 4 + 4*tau, 4))
    def s0(sg): return mf32(S, F[sg], F[sg], "0" if sg == 0 else vr(S, 4))
    I("s_waitcnt lgkmcnt(4)")
    slots(A, [sx(1, sg) for sg in range(4)], [resets[1:2], ["s_waitcnt lgkmcnt(0)", wo[2]], [wo[3]], [wo[4], wo[5]]])
    slots(A, [sx(0, sg) for sg in range(4)], [[wo[6]] + hs2(AV)[:1], [wo[7]] + hs2(AV)[1:], [wo[8]] + hs2(AV+4)[:1], [wo[9]] + hs2(AV+4)[1:]])
    slots(A, [s0(sg) for sg in range(4)],
          [[wo[10], f"v_max3_f32 v{tmx}, v{S+8}, v{S+9}, v{S+10}"], [wo[11], cv(AK+2, AV)], [wo[12], cv(AK+3, AV+4)],
           [wo[13], f"v_max3_f32 v{tmx}, v{tmx}, v{S+11}, v{S+4}"]])
    T(3)
    I(f"v_max3_f32 v{tmx}, v{tmx}, v{S+5}, v{S+6}")
    I(f"v_max_f32 v{tmx}, v{tmx}, v{S+7}")
    I(f"v_mov_b32 v{tmx+2}, s{sSC}")
    I(f"v_xor_b32 v{vKR}, {0 if opt.get('nodma') else 8192}, v{vKR}")
    for x in zero(AV + 4, 4): I(x)
    I(f"v_max3_f32 v{tmx}, v{tmx}, v{S+2}, v{S+3}")
    I(f"v_mov_b32 v{tmx+1}, v{tmx}")
    I(f"v_mov_b32 v{ONES}, 0x3f803f80")
    I(f"v_mov_b32 v{ONES+1}, 0x3f803f80")
    I(f"v_permlane32_swap_b32 v{tmx}, v{tmx+1}")
    I(f"v_max_f32 v{tmx}, v{tmx}, v{tmx+1}")
    I(f"v_mov_b32 v{tmx+1}, v{tmx}")
    I(f"v_mov_b64 {vr(ONES+2,2)}, {vr(ONES,2)}")
    I(f"v_permlane16_swap_b32 v{tmx}, v{tmx+1}")
    I(f"v_max_f32 v{tmx}, v{tmx}, v{tmx+1}")
    I(f"v_mul_f32 v{tmx}, s{sSC}, v{tmx}")
    for i in range(1, 6):
        I(f"v_pk_fma_f32 {vr(S+2*i,2)}, {vr(S+2*i,2)}, {vr(tmx+2,2)}, {vr(tmx,2)} op_sel_hi:[1,0,0] neg_lo:[0,0,1] neg_hi:[0,0,1]")
    ex = [f"v_exp_f32 v{S+i}, v{S+i}" for i in range(12)]
    I(ex[2]); I(ex[3]); I(ex[4])
    I(cv(PZ, S+2)); I(cv(PZ+3, S+2))
    I(ex[5])
    T(4)
    pk = [cv(S+4+i, S+4+2*i) for i in range(4)]
    slots(A, [mf16(OA, AK+2, PZ, "0"), mf16(OA+4, AK+2, PZ+2, "0"), mf16(LA, ONES, PZ, "0")],
          [[ex[6], ex[7]], [ex[8], ex[9]], [ex[10], ex[11]]])
    for x in pk: I(x)
    I(f"v_mov_b64 {vr(PB,2)}, {vr(AK,2)}"); I(f"v_mov_b64 {vr(PB+2,2)}, {vr(AK+2,2)}")
    slots(A, [mf32(LA, ONES, S+4, vr(LA,4)), mf32(OA, VX, S+4, vr(OA,4)), mf32(OA+4, VX+4, S+4, vr(OA+4,4))],
          [[wo[14]] + zero(AK, 2), [wo[15]] + zero(AK+2, 2), zero(AV, 4)])
    wrest = wo[16:]
    I(f"s_cmp_ge_u32 s{sSTEP}, 62")
    I(f"s_cbranch_scc1 {pfx}_done")
    A.label(f"{pfx}_resume")
    T(40)
    I(f"v_rcp_f32 v{LA}, v{LA}")
    for i in range(4):
        I(f"v_pk_mul_f32 {vr(OA+2*i,2)}, {vr(OA+2*i,2)}, {vr(LA,2)} op_sel_hi:[1,0]")
    for i in range(4): I(cv(OA+i, OA+2*i))
    I(f"ds_write_b128 v{vOW}, {vr(OA,4)} offset:{L_O}")
    T(41)
    WA = [AV, AV + 4, AK, AK + 4]
    OF = [OA, OA + 4, VX, VX + 4]
    def wm(p, j): return smf(WA[p], OF[j], wfrag(3, p, j))
    for i in range(4): I(f"v_mov_b32_dpp v{OA+i}, v{OA+i} quad_perm:[0,1,0,1] row_mask:0xf bank_mask:0xf")
    z = zero(AK + 4, 4)
    oa = [vT, vT + 1, VX]
    xo = [f"v_xor_b32 v{oa[j-1]}, {j<<10}, v{vOR}" for j in (1, 2, 3)]
    I(z[0]); I(z[1])
    slots(A, [wm(0, 0), wm(1, 0), wm(2, 0)], [[xo[0]], [xo[1]], [xo[2]]])
    I("s_waitcnt lgkmcnt(0)")
    T(42)
    I("s_barrier")
    T(5)
    for j in (1, 3, 2): I(f"ds_read_b128 {vr(OF[j],4)}, v{oa[j-1]} offset:{L_O}")
    sal = [f"s_add_u32 s{sT1}, s{sHA}, 4096", f"s_mov_b32 s{sRB}, s{sHB}", f"s_add_u32 s{sHB}, s{sHB}, 8192",
           f"s_and_b32 s{sHB}, s{sHB}, {hex(0xffffffff ^ (1<<15))}", f"s_sub_u32 s{sB0}, s{sHB}, {LW}", f"s_add_u32 s{sRA}, s{sRC}, s{sHA}",
           f"s_add_u32 s{sKM}, s{sKM}, 4096", f"s_add_u32 s{sSTEP}, s{sSTEP}, 1"]
    slots(A, [wm(3, 0)], [sal[:3]])
    I("s_waitcnt lgkmcnt(2)")
    T(31)
    def post(p):
        x = WA[p]
        return [f"v_cvt_pk_bf16_f32 v{x}, v{x}, v{x+2}", f"v_cvt_pk_bf16_f32 v{x+1}, v{x+1}, v{x+3}",
                f"buffer_store_dwordx2 {vr(x,2)}, v{vAST}, {WS}, s{sHA if p < 2 else sT1} offen offset:{2048*(p&1)} {st}"]
    P = [post(p) for p in range(4)]
    ms = [wm(p, j) for p in range(4) for j in (1, 3, 2)]
    fl = [["s_waitcnt lgkmcnt(1)", wrest[0]], ["s_waitcnt lgkmcnt(1)", wrest[1]], [wrest[2], sal[3]],
          [wrest[3], sal[4]], sal[5:7] + [P[0][0]], sal[7:8] + ["s_nop 0", P[0][1]],
          [P[0][2]], ["s_nop 1", P[1][0]], ["s_waitcnt lgkmcnt(0)", "s_nop 0", P[1][1]],
          [P[1][2]], ["s_nop 1", P[2][0]], P[2][1:3]]
    slots(A, ms, fl)
    T(34)
    for x in P[3]: I(x)
    T(6)
    RAs = [M, M + 8]; SEL = M + 16; RD = M + 20
    def pollA(b): return [f"buffer_load_dwordx4 {vr(b,4)}, v{vMW}, {WS}, s{sRA} offen sc1", f"buffer_load_dwordx4 {vr(b+4,4)}, v{vMW}, {WS}, s{sRA} offen offset:1024 sc1"]
    npre = opt.get("npre", 8)
    if opt.get("bar6", 1): I("s_barrier")
    for x in lres_rd[:npre]: I(x)
    dw = opt.get("dw", 10)
    delay(A, opt.get("delA", 0))
    for wv in (1, 2, 3):
        I(f"s_cmp_lt_u32 s{sWV}, {wv}")
        I(f"s_cbranch_scc1 {pfx}_pollA0")
        delay(A, dw)
    A.label(f"{pfx}_pollA0")
    T(51)
    for x in pollA(RAs[0]): I(x)
    for x in zero(AQ, 24): I(x)
    for i in range(4): I(f"v_cndmask_b32 v{SEL+i}, 0, v{vSEL}, s[{sMSK+2*i}:{sMSK+2*i+1}]")
    delay(A, opt.get("gapA", 8))
    for x in pollA(RAs[1]): I(x)
    for x in lres_rd[npre:]: I(x)
    I(f"s_xor_b32 s{sHA}, s{sHA}, {256<<10}")
    I(f"s_mov_b32 m0, s{sB1}")
    I(f"s_branch {pfx}_waitA")
    def red(b):
        I(f"s_waitcnt vmcnt(2)")
        c = chk(b, vT)
        slots(A, [mf32(RD, SEL, b, "0"), mf32(RD, SEL, b + 4, vr(RD, 4))], [c[:2], c[2:]])
    A.label(f"{pfx}_pollA_retry")
    for x in pollA(RAs[0]): I(x)
    I(f"s_add_u32 s{sSPA}, s{sSPA}, 1")
    red(RAs[1])
    I(f"s_cbranch_vccz {pfx}_goA")
    for x in pollA(RAs[1]): I(x)
    I(f"s_cmp_gt_u32 s{sSPA}, {SPIN_MAX}")
    I(f"s_cbranch_scc1 {pfx}_goA")
    A.label(f"{pfx}_waitA")
    red(RAs[0])
    I("s_nop 3")
    if not nohop: I(f"s_cbranch_vccnz {pfx}_pollA_retry")
    I(f"s_branch {pfx}_goA2") if False else None
    A.label(f"{pfx}_goA_n")
    for rot in (4, 8):
        I(f"v_add_f32_dpp v{RD}, v{RD}, v{RD} row_ror:{rot} row_mask:0xf bank_mask:0xf")
        I(f"v_add_f32_dpp v{RD+1}, v{RD+1}, v{RD+1} row_ror:{rot} row_mask:0xf bank_mask:0xf")
    I(cv(RD, RD))
    I(f"buffer_store_dword v{RD}, v{vBST}, {WS}, s{sHB} offen {st}")
    T(8)
    I(f"s_add_u32 s{sT2}, s{sB0}, 4096")
    I(f"s_cmp_lt_u32 s{sWV}, {NE}")
    I(f"s_cbranch_scc1 {pfx}_earlyB0")
    T(50)
    T(9)
    I("s_waitcnt vmcnt(0) lgkmcnt(0)")
    I(f"s_branch {pfx}_go")
    A.label(f"{pfx}_earlyB0")
    delay(A, opt.get("delB", 64))
    for x in pollB(BS[0]): I(x)
    delay(A, opt.get("gapB", 20))
    for x in pollB(BS[1]): I(x)
    T(9)
    I("s_waitcnt lgkmcnt(0)")
    I(f"s_branch {pfx}_earlyB")
    A.label(f"{pfx}_goA")
    I("s_nop 3")
    I(f"s_branch {pfx}_goA_n")
    A.label(f"{pfx}_done")
    I(f"s_add_u32 s{sKM}, s{sKM}, 4096")
    for x in publish: I(x)
    I(f"s_sub_u32 s{sKM}, s{sKM}, 4096")
    I(f"s_cmp_eq_u32 s{sSTEP}, 62")
    I(f"s_cbranch_scc1 {pfx}_resume")
```

```python
from chain import *

sG = 39
D_OVF, D_PINIT, D_CHAIN = 192, 200, 204
WSS = f"s[{sWS}:{sWS+3}]"
DBG = f"s[{sDBG}:{sDBG+3}]"
SW = f"s[{sW}:{sW+3}]"
OOB = 0x40000000
wLN, wC, wG, wR, wCP, wL16 = 1, 2, 3, 4, 5, 6

TRACE = [False]
WS_TR = 1 << 20
def TS(A, vreg, lane):
    if not TRACE[0]: return
    A.I("s_memrealtime s[62:63]"); A.I("s_waitcnt lgkmcnt(0)")
    if isinstance(lane, int): A.I(f"v_writelane_b32 v{vreg}, s62, {lane}")
    else:
        A.I(f"s_mov_b32 m0, {lane}"); A.I("s_nop 0"); A.I(f"v_writelane_b32 v{vreg}, s62, m0")
def TDUMP(A, vregs, tmp):
    if not TRACE[0]: return
    I = A.I
    l = A.newlabel("td")
    I(f"s_cmp_lg_u32 s{sWV}, 0"); I(f"s_cbranch_scc1 {l}")
    I(f"s_lshl_b32 s62, s{sG}, 5"); I(f"s_add_u32 s62, s62, s{sH}"); I("s_lshl_b32 s62, s62, 10"); I(f"s_add_u32 s62, s62, {WS_TR}")
    I(f"v_mbcnt_lo_u32_b32 v{tmp}, -1, 0"); I(f"v_mbcnt_hi_u32_b32 v{tmp}, -1, v{tmp}"); I(f"v_lshlrev_b32 v{tmp}, 2, v{tmp}")
    for i, r in enumerate(vregs): I(f"buffer_store_dword v{r}, v{tmp}, {WSS}, s62 offen offset:{256*i}")
    I("s_waitcnt vmcnt(0)")
    A.label(l)

def srd(A, karg_off, nbytes):
    A.I(f"s_load_dwordx2 s[{sW}:{sW+1}], s[0:1], {karg_off}")
    A.I(f"s_mov_b32 s{sW+2}, {nbytes}")
    A.I(f"s_mov_b32 s{sW+3}, 0x20000")
    A.I("s_waitcnt lgkmcnt(0)")

def prologue(A, force=None):
    I = A.I
    if TRACE[0]: I("s_memrealtime s[64:65]")
    I(f"s_load_dwordx2 s[{sWS}:{sWS+1}], s[0:1], 112")
    I(f"s_load_dwordx2 s[{sDBG}:{sDBG+1}], s[0:1], 104")
    I("s_cmp_ge_u32 s2, 256")
    I("s_cbranch_scc1 L_end")
    I(f"s_mov_b32 s{sWS+2}, {WS_BYTES}"); I(f"s_mov_b32 s{sWS+3}, 0x20000")
    I(f"s_mov_b32 s{sDBG+2}, 256"); I(f"s_mov_b32 s{sDBG+3}, 0x20000")
    I("v_lshrrev_b32 v1, 6, v0")
    I(f"v_mov_b32 v4, {LDS_BYTES - 16}")
    I(f"v_readfirstlane_b32 s{sWV}, v1")
    I("s_waitcnt lgkmcnt(0)")
    I(f"s_cmp_lg_u32 s{sWV}, 0")
    I("s_cbranch_scc1 L_elect_wait")
    I("s_getreg_b32 s24, hwreg(HW_REG_XCC_ID, 0, 4)")
    if force == "skew":
        I("s_lshr_b32 s24, s2, 4"); I("s_and_b32 s24, s24, 15")
    I("s_and_b32 s25, s24, 1"); I("s_lshl_b32 s25, s25, 6")
    I("s_lshr_b32 s26, s24, 1"); I("s_lshl_b32 s26, s26, 2")
    I("s_add_u32 s25, s25, s26")
    I("s_cmp_eq_u32 s24, 0")
    I("s_cselect_b32 s25, 128, s25")
    I("s_mov_b64 exec, 1")
    I("v_mov_b32 v1, 1"); I("v_mov_b32 v2, s25")
    I(f"buffer_atomic_add v1, v2, {DBG}, 0 offen sc0")
    I("s_waitcnt vmcnt(0)")
    I("v_readfirstlane_b32 s25, v1")
    I("s_mov_b64 exec, -1")
    I("s_mov_b32 s40, 0")
    I("s_cmp_ge_u32 s24, 8"); I("s_cbranch_scc1 L_ovf")
    I("s_cmp_lt_u32 s25, 32"); I("s_cbranch_scc1 L_elect_pub")
    A.label("L_ovf")
    I("s_mov_b64 exec, 1")
    I("v_mov_b32 v1, 1"); I(f"v_mov_b32 v2, {D_OVF}")
    I(f"buffer_atomic_add v1, v2, {DBG}, 0 offen sc0")
    I("s_waitcnt vmcnt(0)")
    I("v_readfirstlane_b32 s26, v1")
    I("s_mov_b64 exec, -1")
    I("v_lshlrev_b32 v2, 2, v0")
    I("s_mov_b32 s28, 0")
    def word(x): return 32 if x == 0 else (x & 1) * 16 + (x >> 1)
    A.label("L_ovf_poll")
    I(f"buffer_load_dword v1, v2, {DBG}, 0 offen sc1")
    I("s_add_u32 s28, s28, 1")
    I("s_waitcnt vmcnt(0)")
    I("s_mov_b32 s27, 0")
    for x in range(16):
        I(f"v_readlane_b32 s25, v1, {word(x)}"); I("s_add_u32 s27, s27, s25")
    I(f"s_cmp_gt_u32 s28, {SPIN_MAX}"); I("s_cbranch_scc1 L_ovf_go")
    I("s_cmp_lt_u32 s27, 256"); I("s_cbranch_scc1 L_ovf_poll")
    A.label("L_ovf_go")
    I("s_mov_b32 s40, 1")
    for x in range(8):
        I(f"v_readlane_b32 s25, v1, {word(x)}")
        I("s_min_u32 s25, s25, 32")
        I("s_add_u32 s25, s25, s26")
        I(f"s_mov_b32 s24, {x}")
        I("s_cmp_lt_u32 s25, 32"); I("s_cbranch_scc1 L_elect_pub")
        I("s_sub_u32 s26, s25, 32")
    I("s_mov_b32 s24, 8")
    A.label("L_elect_pub")
    I("s_lshl_b32 s24, s24, 8"); I("s_lshl_b32 s26, s40, 16"); I("s_add_u32 s24, s24, s25"); I("s_add_u32 s24, s24, s26")
    I("v_mov_b32 v1, s24")
    I("ds_write_b32 v4, v1")
    I("s_waitcnt lgkmcnt(0)")
    A.label("L_elect_wait")
    I("s_barrier")
    I("ds_read_b32 v1, v4")
    I("s_waitcnt lgkmcnt(0)")
    I("v_readfirstlane_b32 s24, v1")
    I(f"s_and_b32 s{sH}, s24, 31")
    I(f"s_bfe_u32 s{sG}, s24, {hex((8 << 16) | 8)}")
    I("s_lshr_b32 s40, s24, 16")
    I(f"s_cmp_ge_u32 s{sG}, 8"); I("s_cbranch_scc1 L_end")

def signal_add(A, srdname, off_sgpr_or_imm, val, t0, t1):
    I = A.I
    l = A.newlabel("sig")
    I(f"s_cmp_lg_u32 s{sWV}, 0"); I(f"s_cbranch_scc1 {l}")
    I(f"v_mov_b32 v{t0}, {val}"); I(f"v_mov_b32 v{t1}, {off_sgpr_or_imm}")
    I("s_mov_b64 exec, 1")
    I(f"buffer_atomic_add v{t0}, v{t1}, {srdname}, 0 offen")
    I("s_mov_b64 exec, -1")
    A.label(l)

def signal_store(A, off, val, t0, t1):
    I = A.I
    l = A.newlabel("sig")
    I(f"s_cmp_lg_u32 s{sWV}, 0"); I(f"s_cbranch_scc1 {l}")
    I(f"v_mov_b32 v{t0}, {val}"); I(f"v_mov_b32 v{t1}, {off}")
    I("s_mov_b64 exec, 1")
    I(f"buffer_store_dword v{t0}, v{t1}, {WSS}, 0 offen sc1")
    I("s_mov_b64 exec, -1")
    A.label(l)

def wait_ge(A, srdname, off, target, t0, t1, sres, sleep=2, mask=None, barrier=True, allwaves=False):
    I = A.I
    l = A.newlabel("wt"); e = A.newlabel("wte")
    if not allwaves:
        I(f"s_cmp_lg_u32 s{sWV}, 0"); I(f"s_cbranch_scc1 {e}")
    I(f"v_mov_b32 v{t1}, {off}")
    A.label(l)
    I(f"buffer_load_dword v{t0}, v{t1}, {srdname}, 0 offen sc1")
    I(f"s_add_u32 s{sSPIN}, s{sSPIN}, 1")
    I("s_waitcnt vmcnt(0)")
    I(f"v_readfirstlane_b32 s{sres}, v{t0}")
    I(f"s_cmp_gt_u32 s{sSPIN}, {SPIN_MAX}"); I(f"s_cbranch_scc1 {e}")
    if mask is not None:
        I(f"s_and_b32 s{sres+1}, s{sres}, {mask}"); I(f"s_cmp_ge_u32 s{sres+1}, {target}")
    else:
        I(f"s_cmp_ge_u32 s{sres}, {target}")
    I(f"s_cbranch_scc1 {e}")
    if sleep: I(f"s_sleep {sleep}")
    I(f"s_branch {l}")
    A.label(e)
    if barrier: I("s_barrier")

sLOC = 31
sSEG, sXB, sCNT, sA0, sA1 = 18, 19, 20, 21, 22
sD0, sD1, sD2 = 34, 35, 36
def dual(A, fn):
    g = A.newlabel("dg"); e = A.newlabel("de")
    A.I(f"s_cmp_eq_u32 s{sLOC}, 0"); A.I(f"s_cbranch_scc1 {g}")
    fn(""); A.I(f"s_branch {e}")
    A.label(g); fn("sc1"); A.label(e)

def group_mode(A, t0, t1):
    I = A.I
    I(f"s_and_b32 s24, s{sG}, 1"); I("s_lshl_b32 s24, s24, 6"); I(f"s_lshr_b32 s25, s{sG}, 1"); I("s_lshl_b32 s25, s25, 2"); I("s_add_u32 s24, s24, s25")
    I(f"v_mov_b32 v{t1}, s24")
    I(f"buffer_load_dword v{t0}, v{t1}, {DBG}, 0 offen sc1")
    I("s_waitcnt vmcnt(0)")
    I(f"v_readfirstlane_b32 s24, v{t0}")
    I("s_cmp_ge_u32 s24, 32"); I(f"s_cselect_b32 s{sLOC}, 1, 0")

def gsignal(A, sline, t0, t1):
    I = A.I
    l = A.newlabel("gs")
    I(f"s_cmp_lg_u32 s{sWV}, 0"); I(f"s_cbranch_scc1 {l}")
    I(f"s_lshl_b32 s24, s{sH}, 2")
    I(f"s_add_u32 s25, s{sSEG}, 1"); I(f"v_mov_b32 v{t0}, s25"); I(f"v_mov_b32 v{t1}, s24")
    I("s_mov_b64 exec, 1")
    dual(A, lambda f: I(f"buffer_store_dword v{t0}, v{t1}, {WSS}, s{sline} offen {f}"))
    I("s_mov_b64 exec, -1")
    A.label(l)

def gwait(A, sline, t0, t1, sleep=0, barrier=True):
    I = A.I
    l = A.newlabel("gw"); e = A.newlabel("gwe")
    I(f"s_cmp_lg_u32 s{sWV}, 0"); I(f"s_cbranch_scc1 {e}")
    I(f"v_and_b32 v{t1}, 31, v{wLN}"); I(f"v_lshlrev_b32 v{t1}, 2, v{t1}")
    A.label(l)
    I(f"buffer_load_dword v{t0}, v{t1}, {WSS}, s{sline} offen sc1")
    I(f"s_add_u32 s{sSPIN}, s{sSPIN}, 1")
    I(f"s_cmp_gt_u32 s{sSPIN}, {SPIN_MAX}"); I(f"s_cbranch_scc1 {e}")
    I("s_waitcnt vmcnt(0)")
    I(f"v_cmp_ge_u32 vcc, s{sSEG}, v{t0}")
    if sleep: I(f"s_sleep {sleep}")
    I(f"s_cbranch_vccnz {l}")
    A.label(e)
    if barrier: I("s_barrier")

def allreduce(A, regs, tmp, op="add"):
    I = A.I
    for rot in (8, 4, 2, 1):
        for r in regs: I(f"v_{op}_f32_dpp v{r}, v{r}, v{r} row_ror:{rot} row_mask:0xf bank_mask:0xf")
    for sw in ("16", "32"):
        for r in regs:
            I(f"v_mov_b32 v{tmp}, v{r}")
            I(f"v_permlane{sw}_swap_b32 v{r}, v{tmp}")
            I(f"v_{op}_f32 v{r}, v{r}, v{tmp}")

def unpack(A, src, dst, n):
    for i in range(n):
        A.I(f"v_lshlrev_b32 v{dst+2*i}, 16, v{src+i}")
        A.I(f"v_and_b32 v{dst+2*i+1}, 0xffff0000, v{src+i}")

def rbf(A, r):
    A.I(f"v_cvt_pk_bf16_f32 v{r}, v{r}, v{r}")
    A.I(f"v_and_b32 v{r}, 0xffff0000, v{r}")

def ln_finish(A, mean, var):
    I = A.I
    rbf(A, mean); rbf(A, var)
    I(f"v_add_f32 v{var}, {hex(f2u(1e-5))}, v{var}")
    rbf(A, var)
    I(f"v_sqrt_f32 v{var}, v{var}")
    rbf(A, var)
    I(f"v_rcp_f32 v{var}, v{var}")

def ln_row(A, x, out, t):
    I = A.I
    m, v, tm, d = t, t + 1, t + 2, t + 4
    I(f"v_add_f32 v{m}, v{x}, v{x+1}")
    for i in range(2, 8): I(f"v_add_f32 v{m}, v{m}, v{x+i}")
    allreduce(A, [m], tm)
    I(f"v_mul_f32 v{m}, {hex(f2u(1/512))}, v{m}")
    for i in range(8): I(f"v_sub_f32 v{d+i}, v{x+i}, v{m}")
    I(f"v_mul_f32 v{v}, v{d}, v{d}")
    for i in range(1, 8): I(f"v_fmac_f32 v{v}, v{d+i}, v{d+i}")
    allreduce(A, [v], tm)
    I(f"v_mul_f32 v{v}, {hex(f2u(1/512))}, v{v}")
    ln_finish(A, m, v)
    for i in range(8): I(f"v_sub_f32 v{d+i}, v{x+i}, v{m}")
    for i in range(4): I(cv(out + i, d + 2*i))
    unpack(A, out, d, 4)
    for i in range(8): I(f"v_mul_f32 v{d+i}, v{d+i}, v{v}")
    for i in range(4): I(cv(out + i, d + 2*i))

def lanes(A):
    I = A.I
    I(f"v_and_b32 v{wLN}, 63, v0")
    I(f"v_and_b32 v{wC}, 15, v{wLN}")
    I(f"v_lshrrev_b32 v{wG}, 4, v{wLN}")
    I(f"v_lshrrev_b32 v{wR}, 2, v{wC}")
    I(f"v_and_b32 v{wCP}, 3, v{wC}")
    I(f"v_lshlrev_b32 v{wL16}, 4, v{wLN}")
    I(f"s_mov_b32 s{sSPIN}, 0")

def p_init(A):
    I = A.I
    sJ = 18
    I(f"s_sub_u32 s{sJ}, s{sG}, 6"); I(f"s_lshl_b32 s{sJ}, s{sJ}, 5"); I(f"s_add_u32 s{sJ}, s{sJ}, s{sH}")
    srd(A, 0, 2 << 20)
    I(f"s_lshl_b32 s24, s{sJ}, 15"); I(f"s_lshl_b32 s25, s{sWV}, 13"); I("s_add_u32 s24, s24, s25")
    I("s_add_u32 s25, s24, 4096")
    for i in range(8): I(f"buffer_load_dwordx4 {vr(32+4*i,4)}, v{wL16}, {SW}, s{24 if i < 4 else 25} offen offset:{(i&3)*1024}")
    I("v_lshlrev_b32 v10, 2, v0"); I("v_mov_b32 v11, 0"); I(f"s_lshl_b32 s26, s{sJ}, 10")
    I(f"buffer_store_dword v11, v10, {WSS}, s26 offen sc1")
    I(f"s_add_u32 s24, s24, {WS_XN}"); I(f"s_add_u32 s25, s25, {WS_XN}")
    for i in range(8):
        I(f"s_waitcnt vmcnt({8})")
        unpack(A, 32 + 4*i, 12, 4)
        ln_row(A, 12, 64 + 4*i, 20)
        I(f"buffer_store_dwordx4 {vr(64+4*i,4)}, v{wL16}, {WSS}, s{24 if i < 4 else 25} offen offset:{(i&3)*1024} sc1")
    I("s_waitcnt vmcnt(0)")
    I("s_barrier")
    signal_add(A, DBG, D_PINIT, 1, 10, 11)
    if TRACE[0]: I("v_writelane_b32 v28, s64, 0")
    TS(A, 28, 1)
    I("v_lshlrev_b32 v10, 4, v0")
    for mat in (16, 40):
        I(f"s_load_dwordx2 s[44:45], s[0:1], {mat}"); I(f"s_mov_b32 s46, {4<<20}"); I("s_mov_b32 s47, 0x20000")
        I(f"s_lshl_b32 s26, s{sJ}, 12")
        I("s_waitcnt lgkmcnt(0)")
        for i in range(16):
            I(f"buffer_load_dwordx4 v[{100+4*i}:{103+4*i}], v10, s[44:47], s26 offen")
            I(f"s_add_u32 s26, s26, {1<<18}")

def w256_addr(A, vd, vt):
    I = A.I
    I(f"s_lshl_b32 s24, s{sWV}, 2")
    I(f"v_add_u32 v{vd}, s24, v{wG}")
    I(f"v_lshlrev_b32 v{vd}, 13, v{vd}")
    I(f"s_lshr_b32 s24, s{sWV}, 1"); I("s_lshl_b32 s24, s24, 3")
    I(f"v_lshlrev_b32 v{vt}, 1, v{wG}")
    I(f"v_or_b32 v{vt}, s24, v{vt}")
    I(f"v_xor_b32 v{vt}, v{wC}, v{vt}")
    I(f"v_lshl_add_u32 v{vd}, v{vt}, 4, v{vd}")
    I(f"s_lshl_b32 s24, s{sH}, 8")
    I(f"v_add_u32 v{vd}, s24, v{vd}")
    I(f"v_and_b32 v{vt}, 1, v{wG}")
    I(f"v_lshl_add_u32 v{vt}, v{vt}, 2, v{wR}")
    I(f"s_lshl_b32 s24, s{sWV}, 1")
    I(f"v_xor_b32 v{vt}, s24, v{vt}")
    I(f"v_lshlrev_b32 v{vt}, 5, v{vt}")
    I(f"v_lshl_add_u32 v{vt}, v{wCP}, 3, v{vt}")
    I(f"v_lshl_add_u32 v{vt+1}, v{wG}, 3, v{wR}")
    I(f"v_lshl_add_u32 v{vt}, v{vt+1}, 8, v{vt}")
    I(f"v_xor_b32 v{vt+1}, 32, v{vt}")
def w256_dma(A, vd, half):
    I = A.I
    I(f"s_lshl_b32 s24, s{sWV}, 10")
    for i in range(16):
        I(f"s_add_u32 m0, s24, {half*65536 + i*4096}")
        I(f"s_mov_b32 s25, {(256*half + 16*i)*8192}")
        I(f"buffer_load_dwordx4 v{vd}, {SW}, s25 offen lds")
def w256_read(A, vt, half, abase):
    for eps in range(2):
        for k in range(8):
            for u in range(2):
                A.I(f"ds_read_b64_tr_b16 {ar(abase + (eps*16 + 8*half + k)*4 + 2*u, 2)}, v{vt+eps} offset:{(32*k + 4*u)*256}")
    A.I("s_waitcnt lgkmcnt(0)")
    A.I(f"v_xor_b32 v{vt}, 0x10000, v{vt}"); A.I(f"v_xor_b32 v{vt+1}, 0x10000, v{vt+1}")

def rows_addr(A, vd, va, perm=False):
    I = A.I
    if not perm:
        I(f"v_xor_b32 v{va}, v{wG}, v{wC}")
        I(f"v_lshlrev_b32 v{va}, 4, v{va}")
        I(f"v_lshl_add_u32 v{va}, v{wC}, 10, v{va}")
    for k in range(1, 4): I(f"v_xor_b32 v{va+k}, {k<<6}, v{va}")
def rows_dma(A, vtmp, sbase, lds, ld="sc1"):
    I = A.I
    I(f"s_lshl_b32 s24, s{sWV}, 13")
    I(f"s_add_u32 s25, s24, s{sbase}")
    I(f"s_and_b32 s26, s{sWV}, 1"); I("s_lshl_b32 s26, s26, 7")
    for i in range(8):
        I(f"s_add_u32 s27, s26, {i<<4}")
        I(f"v_xor_b32 v{vtmp}, s27, v{wL16}")
        if isinstance(lds, int): I(f"s_add_u32 m0, s24, {lds + i*1024}")
        else:
            I(f"s_add_u32 s27, s24, {i*1024}"); I(f"s_add_u32 m0, s27, {lds}")
        I(f"buffer_load_dwordx4 v{vtmp}, {WSS}, s25 offen {ld} lds")
        I("s_add_u32 s25, s25, 1024")

def rows_dma_prep(A, sbase, lds):
    I = A.I
    I(f"s_lshl_b32 s{sD0}, s{sWV}, 13")
    I(f"s_add_u32 s{sD1}, s{sD0}, s{sbase}")
    I(f"s_add_u32 s{sD0}, s{sD0}, {lds}")
    I(f"s_and_b32 s{sD2}, s{sWV}, 1"); I(f"s_lshl_b32 s{sD2}, s{sD2}, 7")
def rows_dma_items(vtmp):
    return [([f"s_mov_b32 m0, s{sD0}", f"s_add_u32 s{sD0}, s{sD0}, 1024", f"v_xor_b32 v{vtmp}, s{sD2}, v{wL16}"],
             [f"buffer_load_dwordx4 v{vtmp}, {WSS}, s{sD1} offen sc1 lds", f"s_add_u32 s{sD1}, s{sD1}, 1024", f"s_add_u32 s{sD2}, s{sD2}, 16"]) for i in range(8)]

def h_phase1(A):
    I = A.I
    vD, vTt, vXA, vTm = 8, 10, 12, 16
    if TRACE[0]: I("v_writelane_b32 v188, s64, 0")
    TS(A, 188, 1)
    w256_addr(A, vD, vTt)
    srd(A, 24, 4 << 20)
    w256_dma(A, vD, 0); w256_dma(A, vD, 1)
    rows_addr(A, None, vXA)
    I(f"s_sub_u32 s{sSEG}, s{sG}, 1")
    for ci in range(4):
        I(f"s_waitcnt vmcnt({16 if ci < 3 else 0})")
        I("s_barrier")
        w256_read(A, vTt, ci & 1, 128 * (ci >> 1))
        I("s_barrier")
        if ci == 0: srd(A, 32, 4 << 20)
        if ci < 2: w256_dma(A, vD, ci)
    TS(A, 188, 2)
    I("v_lshlrev_b32 v20, 4, v0")
    for i in range(4): I(f"v_mov_b32 v{24+i}, -1")
    I(f"s_mul_i32 s24, s{sH}, 65"); I(f"s_add_u32 s24, s24, s{sSEG}"); I("s_lshl_b32 s24, s24, 12"); I(f"s_add_u32 s24, s24, {WS_KM}")
    for i in range(13):
        I(f"buffer_store_dwordx4 v[24:27], v20, {WSS}, s24 offen sc1")
        I(f"s_add_u32 s24, s24, {NG*4096}")
    wait_ge(A, DBG, D_PINIT, 64, 20, 21, 24)
    TS(A, 188, 3)
    I(f"s_lshl_b32 s{sA0}, s{sSEG}, 15"); I(f"s_add_u32 s{sA0}, s{sA0}, {WS_XN}")
    I(f"s_mov_b32 s{sXB}, 0"); I(f"s_mov_b32 s{sCNT}, 0")
    rows_dma(A, vTm, sA0, 0)
    I("s_waitcnt vmcnt(0)")
    A.label("H1_loop")
    I("s_waitcnt vmcnt(4)")
    I("s_barrier")
    I(f"s_lshl_b32 s28, s{sH}, 7"); I(f"s_lshl_b32 s29, s{sG}, 2"); I("s_add_u32 s28, s28, s29"); I(f"s_add_u32 s28, s28, {F_KV - 4}")
    I(f"s_max_u32 s29, s{sCNT}, 1"); I("s_sub_u32 s29, s29, 1")
    signal_store(A, "s28", "s29", 20, 21)
    if TRACE[0]: I(f"s_add_u32 s61, s{sCNT}, 8")
    TS(A, 188, "s61")
    I(f"s_add_u32 s{sA0}, s{sA0}, {NG << 15}")
    I(f"s_xor_b32 s{sXB}, s{sXB}, 32768")
    I(f"s_cmp_ge_u32 s{sSEG}, {64 - NG}"); I(f"s_cselect_b32 s{sA0}, {OOB}, s{sA0}")
    rows_dma_prep(A, sA0, f"s{sXB}")
    items = rows_dma_items(vTm)
    XF = 24; AC = 56
    def rd(ks): return [f"ds_read_b128 {vr(XF + 8*(ks&3) + 4*t,4)}, v{vXA + (ks&3)} offset:{(ks>>2)*256 + t*16384}" for t in range(2)]
    for ks in range(3):
        for x in rd(ks): I(x)
    for ks in range(16):
        I(f"s_waitcnt lgkmcnt({4 if ks < 14 else (2 if ks == 14 else 0)})")
        ms = []
        for eps in range(2):
            for t in range(2):
                xk = vr(XF + 8*(ks&3) + 4*t, 4)
                dk = AC + 8*t + 4*eps; dv = AC + 16 + 8*eps + 4*t
                ms.append(f"v_mfma_f32_16x16x32_bf16 {vr(dk,4)}, {ar((eps*16+ks)*4,4)}, {xk}, {'0' if ks == 0 else vr(dk,4)}")
                ms.append(f"v_mfma_f32_16x16x32_bf16 {vr(dv,4)}, {xk}, {ar(128+(eps*16+ks)*4,4)}, {'0' if ks == 0 else vr(dv,4)}")
        fl = [[x] for x in rd(ks + 3)] if ks + 3 < 16 else [[], []]
        if ks < 8: fl += [[], items[ks][0], items[ks][1]]
        slots(A, ms, fl)
    for k in range(4): I(f"v_xor_b32 v{vXA+k}, 0x8000, v{vXA+k}")
    I(f"s_lshl_b32 s24, s{sSEG}, 19"); I(f"s_lshl_b32 s25, s{sH}, 14"); I("s_add_u32 s24, s24, s25"); I(f"s_add_u32 s24, s24, {WS_KV}")
    I(f"s_lshl_b32 s25, s{sWV}, 10"); I("s_add_u32 s26, s24, s25"); I("s_add_u32 s27, s26, 4096")
    I("s_add_u32 s25, s25, s26"); I("s_add_u32 s25, s25, 8192")
    for j in range(4):
        for i in range(4): I(cv(88 + 4*j + i, AC + 8*j + 2*i))
    I(f"buffer_store_dwordx4 v[88:91], v{wL16}, {WSS}, s26 offen sc1")
    I(f"buffer_store_dwordx4 v[92:95], v{wL16}, {WSS}, s27 offen sc1")
    I(f"buffer_store_dwordx4 v[96:99], v{wL16}, {WSS}, s25 offen sc1")
    I(f"buffer_store_dwordx4 v[100:103], v{wL16}, {WSS}, s25 offen offset:1024 sc1")
    I(f"s_add_u32 s{sCNT}, s{sCNT}, 1")
    I(f"s_add_u32 s{sSEG}, s{sSEG}, {NG}")
    I(f"s_cmp_lt_u32 s{sSEG}, 64"); I("s_cbranch_scc1 H1_loop")
    I("s_waitcnt vmcnt(0)")
    I("s_barrier")
    signal_store(A, "s28", 100, 20, 21)
    TS(A, 188, 4)

def chain_role(A, opt):
    I = A.I
    I("v_lshlrev_b32 v10, 4, v0")
    for i in range(4): I(f"v_mov_b32 v{12+i}, -1")
    I(f"s_lshl_b32 s24, s{sH}, 13"); I(f"s_add_u32 s24, s24, {WS_HA}")
    for sl in range(2):
        for hf in range(2):
            I(f"s_add_u32 s25, s24, {sl*(256<<10) + hf*4096}")
            I(f"buffer_store_dwordx4 v[12:15], v10, {WSS}, s25 offen sc1")
    I("v_lshlrev_b32 v10, 2, v0")
    I(f"s_lshl_b32 s24, s{sH}, 10"); I(f"s_add_u32 s24, s24, {WS_HB}")
    I(f"buffer_store_dword v12, v10, {WSS}, s24 offen sc1")
    if TRACE[0]: I("s_memrealtime s[66:67]")
    def hooks(A, what, ci):
        if what == "landed" and ci == 0:
            I("s_lshl_b32 s41, s40, 16"); I("s_add_u32 s41, s41, 1")
            signal_add(A, DBG, D_CHAIN, "s41", vT, vT + 1)
        if what == "issued" and ci == 6:
            I(f"v_mov_b32 v28, {D_PINIT}")
            I(f"buffer_load_dwordx2 {vr(vT,2)}, v28, {DBG}, 0 offen sc1")
        if what == "landed" and ci == 6:
            I(f"v_readfirstlane_b32 s43, v{vT}"); I(f"v_readfirstlane_b32 s42, v{vT+1}")
            I("s_cmp_lt_u32 s43, 64"); I("s_cbranch_scc1 L_ch_slow")
            I("s_and_b32 s43, s42, 0xffff"); I("s_cmp_ge_u32 s43, 32"); I("s_cbranch_scc1 L_ch_fast")
            A.label("L_ch_slow")
            wait_ge(A, DBG, D_PINIT, 64, vT, vT + 1, 42, barrier=False, allwaves=True, sleep=4)
            wait_ge(A, DBG, D_CHAIN, 32, vT, vT + 1, 42, mask=0xffff, barrier=False, allwaves=True, sleep=4)
            A.label("L_ch_fast")
            kv_flag_load(A)
        if what == "landed" and ci == 7:
            kv_wait(A, "CI", 0, preloaded=True)
            for x in kv_dma(A, "sc1"): I(x)
    chain_setup(A, "", hooks)
    if TRACE[0]: I("s_memrealtime s[68:69]"); I("s_waitcnt lgkmcnt(0)")
    if TRACE[0]: I("s_memrealtime s[70:71]"); I("s_memtime s[80:81]"); I("s_waitcnt lgkmcnt(0)")
    I("s_lshr_b32 s42, s42, 16")
    I("s_cmp_lg_u32 s42, 0")
    I("s_cbranch_scc1 L_chain_global")
    o = dict(opt); o["mega"] = 1
    def stamp(A, i):
        if i == 6:
            l = A.newlabel("st")
            A.I(f"s_and_b32 s60, s{sSTEP}, 7"); A.I("s_cmp_eq_u32 s60, 1"); A.I(f"s_cbranch_scc0 {l}")
            A.I("s_memrealtime s[62:63]"); A.I("s_memtime s[60:61]"); A.I("s_waitcnt lgkmcnt(0)")
            for k in range(8):
                A.I(f"s_cmp_eq_u32 s{sSTEP}, {8*k+1}"); A.I(f"s_cselect_b32 s{72+k}, s62, s{72+k}"); A.I(f"s_cselect_b32 s{84+k}, s60, s{84+k}")
            A.label(l)
    chain_loop(A, "", "CL", stamp if TRACE[0] else None, "sc1", o)
    I("s_branch L_chain_end")
    A.label("L_chain_global")
    chain_loop(A, "sc1", "CG", None, "sc1", o)
    A.label("L_chain_end")
    if TRACE[0]:
        for i, r in enumerate([64, 66, 68, 70]): I(f"v_writelane_b32 v20, s{r}, {i}")
        TS(A, 20, 4)
        I("s_memtime s[62:63]"); I("s_waitcnt lgkmcnt(0)"); I("s_sub_u32 s62, s62, s80"); I("v_writelane_b32 v20, s62, 7")
        I(f"v_writelane_b32 v20, s{sSPIN}, 5"); I(f"v_writelane_b32 v20, s{sSPA}, 6")
        for k in range(8): I(f"v_writelane_b32 v20, s{72+k}, {8+k}")
        for k in range(8): I(f"v_writelane_b32 v20, s{84+k}, {16+k}")
        TDUMP(A, [20], 21)
```

```python
from work import *

def w1k_addr(A, vd, vt, sbase_bytes):
    I = A.I
    I(f"s_lshl_b32 s24, s{sWV}, 6")
    I(f"v_xor_b32 v{vd}, s24, v{wL16}")
    I(f"s_lshl_b32 s24, s{sWV}, 10")
    if sbase_bytes: I(f"s_add_u32 s24, s24, {sbase_bytes}")
    I(f"v_add_u32 v{vd}, s24, v{vd}")
    I(f"v_lshl_add_u32 v{vt}, v{wG}, 2, v{wR}")
    I(f"v_lshlrev_b32 v{vt}, 10, v{vt}")
    I(f"v_lshl_add_u32 v{vt}, v{wR}, 6, v{vt}")
    I(f"v_lshl_add_u32 v{vt}, v{wCP}, 4, v{vt}")
    I(f"s_lshl_b32 s24, s{sWV}, 8")
    I(f"v_add_u32 v{vt}, s24, v{vt}")
    for p in range(1, 4): I(f"v_xor_b32 v{vt+p}, {p<<6}, v{vt}")
def w1k_dma(A, vd, row0, nrows, lds):
    I = A.I
    I(f"s_lshl_b32 s24, s{sWV}, 10")
    for i in range(nrows // 4):
        I(f"s_add_u32 m0, s24, {lds + i*4096}")
        I(f"s_mov_b32 s25, {(row0 + 4*i)*1024}")
        I(f"buffer_load_dwordx4 v{vd}, {SW}, s25 offen lds")
def w1k_rd(vt, t8, ksl, u, dst):
    return f"ds_read_b64_tr_b16 {dst}, v{vt + (t8>>1)} offset:{(32*ksl + 16*u)*1024 + (t8&1)*8}"

L_XB, L_HB, L_PT, L_QX, L_OX, L_KM, L_RED, L_KV2 = 0, 32768, 65536, 102400, 110592, 118784, 122880, 131072
PSTR = 1040
sMK = 44
sTILE = 30
def h_phase2(A, opt):
    I = A.I
    vD, vTt, vXA, vHA, vTm = 8, 10, 12, 16, 24
    vKW, vTR2, vPW, vPR, vZ = 25, 26, 27, 28, 30
    WIN = 192
    w256_addr(A, vD, vTt)
    srd(A, 16, 4 << 20)
    w256_dma(A, vD, 0); w256_dma(A, vD, 1)
    I(f"s_lshl_b32 s28, s{sH}, 17")
    w1k_addr(A, 40, 44, "s28")
    for ci in range(4):
        I(f"s_waitcnt vmcnt({16 if ci < 3 else 0})")
        I("s_barrier")
        if ci < 2: w256_read(A, vTt, ci, 0)
        else:
            for t8 in range(8):
                for ksl in range(2):
                    for u in range(2): I(w1k_rd(44, t8, ksl, u, ar(128 + (t8*4 + 2*(ci-2) + ksl)*4 + 2*u, 2)))
            I("s_waitcnt lgkmcnt(0)")
            for p in range(4): I(f"v_xor_b32 v{44+p}, 0x10000, v{44+p}")
        I("s_barrier")
        if ci == 0: srd(A, 40, 4 << 20)
        if ci < 2: w1k_dma(A, 40, 64*ci, 64, 65536*ci)
    srd(A, 64, 512*1376*2)
    I(f"s_lshl_b32 s{sTILE}, s{sWV}, 5"); I(f"s_add_u32 s{sTILE}, s{sTILE}, s{sH}")
    I(f"s_cmp_ge_u32 s{sTILE}, 86"); I("s_cbranch_scc1 H2_nowin")
    I(f"v_lshrrev_b32 v40, 1, v{wLN}"); I("v_mul_u32_u24 v40, 2752, v40")
    I(f"v_and_b32 v41, 1, v{wLN}"); I("v_lshl_add_u32 v40, v41, 4, v40")
    I(f"s_lshl_b32 s25, s{sTILE}, 5"); I(f"s_lshl_b32 s24, s{sWV}, 14")
    for i in range(16):
        I(f"s_add_u32 m0, s24, {i*1024}")
        I("s_nop 0")
        I(f"buffer_load_dwordx4 v40, {SW}, s25 offen lds")
        I(f"s_add_u32 s25, s25, {32*2752}")
    I(f"v_lshl_add_u32 v41, v{wG}, 3, v{wR}"); I("v_lshlrev_b32 v41, 5, v41"); I(f"v_lshl_add_u32 v41, v{wCP}, 3, v41"); I("v_add_u32 v41, s24, v41")
    I("s_waitcnt vmcnt(0)")
    for ks in range(16):
        for u in range(2): I(f"ds_read_b64_tr_b16 {vr(WIN + 4*ks + 2*u, 2)}, v41 offset:{ks*1024 + u*128}")
    I("s_waitcnt lgkmcnt(0)")
    A.label("H2_nowin")
    srd(A, 0, 2 << 20)
    group_mode(A, 40, 41)
    rows_addr(A, None, vXA)
    I(f"v_lshl_add_u32 v40, v{wR}, 3, v{wCP}")
    I(f"s_cmp_lt_u32 s{sTILE}, 43"); I("s_cselect_b64 vcc, -1, 0"); I("s_cselect_b32 s24, 16, 4")
    I(f"v_cndmask_b32 v40, v40, v{wC}, vcc")
    for t in range(2):
        if t: I("v_add_u32 v40, s24, v40")
        I("v_and_b32 v41, 15, v40"); I(f"v_xor_b32 v41, v41, v{wG}"); I("v_lshlrev_b32 v41, 4, v41")
        I("v_lshl_add_u32 v41, v40, 10, v41"); I(f"v_add_u32 v{vHA+4*t}, {L_HB}, v41")
        for k in range(1, 4): I(f"v_xor_b32 v{vHA+4*t+k}, {k<<6}, v{vHA+4*t}")
    I(f"v_lshlrev_b32 v{vKW}, 5, v{wC}"); I(f"v_lshl_add_u32 v{vKW}, v{wG}, 3, v{vKW}")
    I(f"s_lshl_b32 s24, s{sWV}, 10"); I(f"s_add_u32 s24, s24, {L_KM}"); I(f"v_add_u32 v{vKW}, s24, v{vKW}")
    I(f"v_lshlrev_b32 v{vTR2}, 3, v{wLN}"); I(f"v_add_u32 v{vTR2}, {L_KM}, v{vTR2}")
    QS = 272
    I(f"s_mul_i32 s24, s{sWV}, {32*QS}"); I(f"s_add_u32 s24, s24, {L_PT}")
    I(f"v_mul_u32_u24 v{vPW}, {QS}, v{wC}"); I(f"v_lshl_add_u32 v{vPW}, v{wG}, 4, v{vPW}"); I(f"v_add_u32 v{vPW}, s24, v{vPW}")
    I(f"v_mul_u32_u24 v{vPR}, {QS}, v{wG}"); I(f"v_lshl_add_u32 v{vPR}, v{wC}, 4, v{vPR}"); I(f"v_add_u32 v{vPR}, s24, v{vPR}")
    vPG, vRL, vRO, vKVR, vSEL4 = 29, 38, 39, 9, 184
    I(f"s_lshl_b32 s24, s{sWV}, 8")
    I(f"v_lshlrev_b32 v40, 4, v{wC}"); I("v_add_u32 v40, s24, v40")
    I(f"v_lshl_add_u32 v{vPG}, v{wG}, 15, v40")
    I(f"v_lshl_add_u32 v{vRL}, v{wG}, 10, v40")
    I(f"v_lshl_add_u32 v{vRO}, v{wG}, 2, v40")
    I(f"v_add_u32 v{vKVR}, {L_KV2}, v{wL16}")
    I(f"s_lshr_b32 s24, s{sWV}, 1"); I("s_lshl_b32 s24, s24, 12"); I(f"v_add_u32 v8, s24, v{vKVR}")
    I(f"v_and_b32 v40, 1, v{wC}"); I("v_lshlrev_b32 v40, 4, v40"); I("v_mov_b32 v41, 0x3f80"); I("v_lshlrev_b32 v41, v40, v41")
    for i in range(4):
        I(f"v_cmp_eq_u32 vcc, {i}, v{wR}"); I(f"v_cndmask_b32 v{vSEL4+i}, 0, v41, vcc")
    vQW, vQR, vOWr, vL64 = 34, 35, 36, 37
    I(f"v_add_u32 v{vL64}, 65536, v{wL16}")
    I(f"s_lshl_b32 s24, s{sWV}, 10"); I(f"v_add_u32 v{vQW}, s24, v{vL64}")
    I(f"s_and_b32 s24, s{sWV}, 1"); I("s_lshl_b32 s24, s24, 12"); I(f"v_add_u32 v{vQR}, s24, v{vL64}")
    I(f"s_lshr_b32 s25, s{sWV}, 1"); I("s_lshl_b32 s25, s25, 11"); I(f"v_add_u32 v{vOWr}, s25, v{vQR}")
    I(f"s_and_b32 s24, s{sWV}, 1"); I("s_lshl_b32 s24, s24, 4"); I(f"v_add_u32 v40, s24, v{wC}")
    I(f"v_lshlrev_b32 v41, 2, v{wG}"); I("v_sub_u32 v40, v40, v41")
    for j in range(8): I(f"v_cmp_le_i32 s[{sMK+2*j}:{sMK+2*j+1}], {16*(j>>2) + (j&3)}, v40")
    for i in range(4): I(f"v_mov_b32 v{vZ+i}, 0")
    I(f"s_sub_u32 s{sSEG}, s{sG}, 1")
    sGR = 33
    I(f"s_lshl_b32 s{sGR}, s{sG}, 5"); I(f"s_add_u32 s{sGR}, s{sGR}, s{sH}")
    I("s_barrier")
    XF = 40; KF = 72; VF = 104; QF = 120; SS = 136; KMF = 148; T0 = 164; XR = 10
    TS(A, 188, 5)
    if TRACE[0]: I("s_mov_b32 s60, 0")
    def TH(k):
        if not TRACE[0]: return
        I(f"s_add_u32 s61, s60, {k & 3}"); TS(A, 189 + (k >> 2), "s61")
    def issue(tag, segoff):
        I(f"s_add_u32 s26, s{sSEG}, {segoff}")
        I("s_lshl_b32 s25, s26, 15"); I(f"s_add_u32 s25, s25, {WS_XN}")
        I("s_mov_b32 s24, 0")
        A.label(f"H2_is{tag}")
        I("s_and_b32 s27, s24, 15"); I("s_lshl_b32 s27, s27, 4")
        I(f"v_xor_b32 v{vTm}, s27, v{wL16}")
        I("s_lshl_b32 m0, s24, 10")
        I("s_add_u32 s24, s24, 1")
        I(f"buffer_load_dwordx4 v{vTm}, {WSS}, s25 offen sc1 lds")
        I("s_add_u32 s25, s25, 1024")
        I("s_cmp_lt_u32 s24, 32"); I(f"s_cbranch_scc1 H2_is{tag}")
        I("s_lshl_b32 s25, s26, 19"); I(f"s_lshl_b32 s27, s{sH}, 14"); I("s_add_u32 s25, s25, s27"); I(f"s_add_u32 s25, s25, {WS_KV}")
        for q in range(4):
            I(f"s_mov_b32 m0, {L_KV2 + q*4096}")
            I("s_nop 0")
            for i in range(4): I(f"buffer_load_dwordx4 v{wL16}, {WSS}, s25 offen offset:{i*1024} sc1 lds")
            I("s_add_u32 s25, s25, 4096")
    I(f"s_cmp_lg_u32 s{sWV}, 3"); I("s_cbranch_scc1 H2_loop")
    issue("a", 0)
    I("s_waitcnt vmcnt(0)")
    A.label("H2_loop")
    TH(0)
    I(f"s_lshl_b32 s{sA1}, s{sSEG}, 5"); I(f"s_add_u32 s{sA1}, s{sA1}, s{sH}")
    I(f"s_lshl_b32 s24, s{sA1}, 10")
    I(f"buffer_load_dword v{XR}, v{vRO}, {SW}, s24 offen")
    I("s_barrier")
    AC = T0
    def rd(ks): return [f"ds_read_b128 {vr(XF + 8*(ks&3) + 4*t,4)}, v{vXA + (ks&3)} offset:{L_XB + (ks>>2)*256 + t*16384}" for t in range(2)]
    for ks in range(3):
        for x in rd(ks): I(x)
    for ks in range(16):
        I(f"s_waitcnt lgkmcnt({4 if ks < 14 else (2 if ks == 14 else 0)})")
        ms = []
        for eps in range(2):
            for t in range(2):
                dk = AC + 8*t + 4*eps
                ms.append(f"v_mfma_f32_16x16x32_bf16 {vr(dk,4)}, {ar((eps*16+ks)*4,4)}, {vr(XF + 8*(ks&3) + 4*t, 4)}, {'0' if ks == 0 else vr(dk,4)}")
        slots(A, ms, [[x] for x in rd(ks + 3)] if ks + 3 < 16 else [])
    for i in range(8): I(f"ds_read_b128 {vr(KF+4*i,4)}, v{vKVR} offset:{i*1024}")
    for i in range(4): I(f"ds_read_b128 {vr(VF+4*i,4)}, v8 offset:{8192 + i*1024}")
    for t in range(2):
        for i in range(4): I(cv(XF + 4*t + i, AC + 8*t + 2*i))
        I(f"ds_write_b128 v{vQW}, {vr(XF+4*t,4)} offset:{L_QX - 65536 + t*4096}")
    I("s_waitcnt lgkmcnt(0)")
    I("s_barrier")
    for sg in range(4): I(f"ds_read_b128 {vr(QF+4*sg,4)}, v{vQR} offset:{L_QX - 65536 + sg*1024}")
    I("s_waitcnt lgkmcnt(0)")
    for tk in range(2):
        for sg in range(4): I(mf32(SS + 4 + 4*tk, KF + 16*tk + 4*sg, QF + 4*sg, "0" if sg == 0 else vr(SS + 4 + 4*tk, 4)))
    regs = [SS + 4 + j for j in range(8)] + [SS, SS + 1]
    tm = T0 + 8
    def rb2(a, b, t):
        I(f"v_cvt_pk_bf16_f32 v{t}, v{a}, v{b}"); I(f"v_lshlrev_b32 v{a}, 16, v{t}"); I(f"v_and_b32 v{b}, 0xffff0000, v{t}")
    def scal(i):
        a, b = regs[i], regs[i+1]
        rb2(a, b, tm + 2)
        I(f"v_mul_f32 v{a}, {hex(f2u(128 ** -0.5))}, v{a}"); I(f"v_mul_f32 v{b}, {hex(f2u(128 ** -0.5))}, v{b}")
        rb2(a, b, tm + 2)
    I(f"v_mov_b32 v{tm+1}, {hex(f2u(-1e9))}")
    for i in range(0, 8, 2): scal(i)
    for j in range(8): I(f"v_cndmask_b32 v{regs[j]}, v{tm+1}, v{regs[j]}, s[{sMK+2*j}:{sMK+2*j+1}]")
    I(f"v_max3_f32 v{tm}, v{regs[0]}, v{regs[1]}, v{regs[2]}")
    for i in range(3, 7, 2): I(f"v_max3_f32 v{tm}, v{tm}, v{regs[i]}, v{regs[i+1]}")
    I(f"v_max_f32 v{tm}, v{tm}, v{regs[7]}")
    I(f"s_mul_i32 s26, s{sH}, 65"); I(f"s_add_u32 s26, s26, s{sSEG}"); I("s_lshl_b32 s26, s26, 12"); I(f"s_add_u32 s26, s26, {WS_KM}")
    I(f"s_lshl_b32 s27, s{sWV}, 10"); I("s_add_u32 s27, s27, s26")
    I(f"s_lshr_b32 s24, s{sWV}, 1"); I("s_lshl_b32 s24, s24, 11"); I("s_add_u32 s26, s26, s24")
    TH(1)
    VM = T0 + 4
    I("s_branch H2_kmp")
    A.label("H2_kmr")
    I("s_sleep 2")
    A.label("H2_kmp")
    I(f"buffer_load_dwordx2 {vr(T0,2)}, v{wL16}, {WSS}, s27 offen sc1")
    I(f"buffer_load_dwordx2 {vr(VM,2)}, v{wL16}, {WSS}, s26 offen offset:8 sc1")
    I(f"buffer_load_dwordx2 {vr(VM+2,2)}, v{wL16}, {WSS}, s26 offen offset:1032 sc1")
    I(f"s_add_u32 s{sSPIN}, s{sSPIN}, 1")
    I(f"s_cmp_gt_u32 s{sSPIN}, {SPIN_MAX}")
    I("s_waitcnt vmcnt(0)")
    I("s_cbranch_scc1 H2_kmd")
    I(f"v_max3_u32 v{T0+2}, v{T0}, v{T0+1}, v{VM}"); I(f"v_max3_u32 v{T0+2}, v{T0+2}, v{VM+1}, v{VM+2}"); I(f"v_max_u32 v{T0+2}, v{T0+2}, v{VM+3}")
    I(f"v_cmp_eq_u32 vcc, -1, v{T0+2}")
    I("s_cbranch_vccnz H2_kmr")
    A.label("H2_kmd")
    TH(2)
    I(f"ds_write2st64_b32 v{vKW}, v{T0}, v{T0+1} offset0:0 offset1:2")
    I("s_waitcnt lgkmcnt(0)")
    I("s_barrier")
    for sg in range(4):
        for rho in range(2): I(f"ds_read_b64_tr_b16 {vr(KMF+4*sg+2*rho,2)}, v{vTR2} offset:{sg*1024 + rho*512}")
    I(f"s_add_u32 s26, s{sSEG}, {NG}")
    I(f"s_lshl_b32 s{sA0}, s26, 15"); I(f"s_add_u32 s{sA0}, s{sA0}, {WS_XN}")
    I("s_lshl_b32 s27, s26, 19"); I(f"s_lshl_b32 s25, s{sH}, 14"); I("s_add_u32 s27, s27, s25"); I(f"s_lshl_b32 s25, s{sWV}, 12"); I("s_add_u32 s27, s27, s25"); I(f"s_add_u32 s27, s27, {WS_KV}")
    I(f"s_add_u32 m0, s25, {L_KV2}")
    I("s_cmp_ge_u32 s26, 64"); I(f"s_cselect_b32 s{sA0}, {OOB}, s{sA0}"); I(f"s_cselect_b32 s27, {OOB}, s27")
    kvd = [f"buffer_load_dwordx4 v{wL16}, {WSS}, s27 offen offset:{i*1024} sc1 lds" for i in range(4)]
    for sg in range(4):
        I(f"s_waitcnt lgkmcnt({6-2*sg})")
        I(mf32(SS, KMF + 4*sg, QF + 4*sg, "0" if sg == 0 else vr(SS, 4)))
    I(kvd[0])
    scal(8)
    I(f"v_max3_f32 v{tm}, v{tm}, v{regs[8]}, v{regs[9]}")
    def xred(r, op):
        for sw in ("16", "32"):
            I(f"v_mov_b32 v{tm+2}, v{r}"); I(f"v_permlane{sw}_swap_b32 v{r}, v{tm+2}"); I(f"v_{op}_f32 v{r}, v{r}, v{tm+2}")
    xred(tm, "max")
    I(f"v_mov_b32 v{tm+2}, {hex(f2u(1.4426950408889634))}")
    prs = [SS + 4, SS + 6, SS + 8, SS + 10, SS]
    for r in prs: I(f"v_pk_add_f32 {vr(r,2)}, {vr(r,2)}, {vr(tm,2)} op_sel_hi:[1,0] neg_lo:[0,1] neg_hi:[0,1]")
    for r in prs: I(f"v_pk_mul_f32 {vr(r,2)}, {vr(r,2)}, {vr(tm+2,2)} op_sel_hi:[1,0]")
    for r in regs: I(f"v_exp_f32 v{r}, v{r}")
    I(f"v_pk_add_f32 {vr(tm,2)}, {vr(prs[0],2)}, {vr(prs[1],2)}")
    for r in prs[2:]: I(f"v_pk_add_f32 {vr(tm,2)}, {vr(tm,2)}, {vr(r,2)}")
    I(f"v_add_f32 v{tm}, v{tm}, v{tm+1}")
    xred(tm, "add")
    I(f"v_rcp_f32 v{tm}, v{tm}")
    for r in prs: I(f"v_pk_mul_f32 {vr(r,2)}, {vr(r,2)}, {vr(tm,2)} op_sel_hi:[1,0]")
    for i in range(4): I(cv(SS + 4 + i, SS + 4 + 2*i))
    I(cv(vZ, SS)); I(cv(vZ + 3, SS))
    OA = XF
    slots(A, [mf32(OA + 4*e, VF + 4*e, SS + 4, "0") for e in range(4)], [[kvd[1]]])
    slots(A, [mf16(OA + 4*e, VM + 2*(e>>1), vZ + 2*(e&1), vr(OA + 4*e, 4)) for e in range(4)], [[], [], [], [kvd[2]]])
    for i in range(2):
        for j in range(4): I(cv(QF + 4*i + j, OA + 8*i + 2*j))
        I(f"ds_write_b128 v{vOWr}, {vr(QF+4*i,4)} offset:{L_OX - 65536 + i*1024}")
    I(f"s_lshl_b32 s24, s{sG}, 20"); I(f"s_lshl_b32 s25, s{sH}, 10"); I("s_add_u32 s24, s24, s25"); I(f"s_add_u32 s24, s24, {WS_PART}")
    I("s_waitcnt lgkmcnt(0)")
    I("s_barrier")
    OF = XF
    for i in range(8): I(f"ds_read_b128 {vr(OF+4*i,4)}, v{vL64} offset:{L_OX - 65536 + i*1024}")
    I(kvd[3])
    rows_dma_prep(A, sA0, L_XB)
    items = rows_dma_items(vTm)
    PA = KF
    PB_ = SS
    def wo(t): return [f"v_mfma_f32_16x16x32_bf16 {vr(PA + 32*t + 4*t8,4)}, {ar(128 + (t8*4 + ks)*4,4)}, {vr(OF + 16*t + 4*ks,4)}, {'0' if ks == 0 else vr(PA + 32*t + 4*t8,4)}"
                       for t8 in range(8) for ks in range(4)]
    def pkw(t, p):
        d = PA + 32*t + 8*p
        return [cv(d + i, d + 2*i) for i in range(4)] + [f"ds_write_b128 v{vPW}, {vr(d,4)} offset:{t*16*QS + p*64}"]
    def rdb(t): return [f"ds_read_b128 {vr(PB_+4*i,4)}, v{vPR} offset:{(t*16 + 4*i)*QS}" for i in range(4)]
    def body(f):
        def st(i): return [f"buffer_store_dwordx4 {vr(PB_+4*i,4)}, v{vPG}, {WSS}, s24 offen {f}", "s_add_u32 s24, s24, 131072"]
        fl = [[] for _ in range(64)]
        for t in range(2):
            for p in range(4):
                q = pkw(t, p); at = 32*t + 8*p + 11
                if at + 2 < 64:
                    fl[at] += q[:2]; fl[at+1] += q[2:4]; fl[at+2] += q[4:]
        fl[40] += ["s_waitcnt lgkmcnt(0)"] + rdb(0)[:2]; fl[41] += rdb(0)[2:]
        fl[47] += ["s_waitcnt lgkmcnt(1)"] + st(0); fl[51] = st(1) + fl[51]; fl[55] += st(2); fl[59] = st(3) + fl[59]
        I("s_waitcnt lgkmcnt(4)")
        ms = wo(0) + wo(1)
        fl[30] += ["s_waitcnt lgkmcnt(3)"]
        for i, at in enumerate([1, 5, 9, 15, 17+5, 25, 31, 33+5]):
            fl[at] += items[i][0]; fl[at+1] = items[i][1] + fl[at+1]
        slots(A, ms, fl)
        for x in pkw(1, 3): I(x)
        I("s_waitcnt lgkmcnt(0)")
        for x in rdb(1): I(x)
        for i in range(4):
            I(f"s_waitcnt lgkmcnt({3-i})")
            for x in st(i): I(x)
    dual(A, body)
    TH(3)
    I("s_waitcnt vmcnt(0)")
    I("s_barrier")
    TH(4)
    I(f"s_lshl_b32 s29, s{sG}, 7"); I(f"s_add_u32 s28, s29, {F_PART}")
    gsignal(A, 28, T0, T0 + 1)
    I(f"s_lshl_b32 s26, s{sGR}, 15"); I(f"s_add_u32 s26, s26, {WS_PART}")
    gwait(A, 28, T0, T0 + 1)
    TH(5)
    for i in range(8):
        I(f"buffer_load_dwordx4 {vr(XF+4*i,4)}, v{vRL}, {WSS}, s26 offen sc1")
        I("s_add_u32 s26, s26, 4096")
    RS = KF; RT = KF + 4
    unpack(A, XR, RT, 1)
    for i in range(8):
        I(f"s_waitcnt vmcnt({7-i})")
        I(mf32(RS, vSEL4, XF + 4*i, "0" if i == 0 else vr(RS, 4)))
    I(cv(RS + 2, RS)); unpack(A, RS + 2, RS, 1)
    I(f"v_add_f32 v{RS}, v{RS}, v{RT}"); I(f"v_add_f32 v{RS+1}, v{RS+1}, v{RT+1}")
    I(cv(XR, RS)); unpack(A, XR, RS, 1)
    I(f"v_add_f32 v{RT}, v{RS}, v{RS+1}")
    I(f"v_mul_f32 v{RT+1}, v{RS}, v{RS}"); I(f"v_fmac_f32 v{RT+1}, v{RS+1}, v{RS+1}")
    allreduce(A, [RT, RT + 1], RT + 2)
    I(f"s_lshl_b32 s24, s{sWV}, 3"); I(f"s_add_u32 s24, s24, {L_RED}"); I(f"v_mov_b32 v{RT+2}, s24"); I(f"v_mov_b32 v{RT+3}, {L_RED}")
    I(f"ds_write_b64 v{RT+2}, {vr(RT,2)}")
    I(f"s_lshl_b32 s24, s{sGR}, 10"); I(f"s_add_u32 s26, s24, {WS_HN}")
    I("s_waitcnt lgkmcnt(0)")
    I("s_barrier")
    I(f"ds_read_b128 {vr(RT+4,4)}, v{RT+3}"); I(f"ds_read_b128 {vr(RT+8,4)}, v{RT+3} offset:16")
    I("s_waitcnt lgkmcnt(0)")
    I(f"v_pk_add_f32 {vr(RT+4,2)}, {vr(RT+4,2)}, {vr(RT+6,2)}"); I(f"v_pk_add_f32 {vr(RT+8,2)}, {vr(RT+8,2)}, {vr(RT+10,2)}")
    I(f"v_pk_add_f32 {vr(RT,2)}, {vr(RT+4,2)}, {vr(RT+8,2)}")
    I(f"v_mul_f32 v{RT}, {hex(f2u(1/512))}, v{RT}"); I(f"v_mul_f32 v{RT+1}, {hex(f2u(1/512))}, v{RT+1}")
    I(f"v_fma_f32 v{RT+1}, -v{RT}, v{RT}, v{RT+1}"); I(f"v_max_f32 v{RT+1}, 0, v{RT+1}")
    ln_finish(A, RT, RT + 1)
    I(f"v_sub_f32 v{RS}, v{RS}, v{RT}"); I(f"v_sub_f32 v{RS+1}, v{RS+1}, v{RT}")
    I(cv(RS + 2, RS)); unpack(A, RS + 2, RS, 1)
    I(f"v_mul_f32 v{RS}, v{RS}, v{RT+1}"); I(f"v_mul_f32 v{RS+1}, v{RS+1}, v{RT+1}")
    I(cv(RS + 2, RS))
    dual(A, lambda f: I(f"buffer_store_dword v{RS+2}, v{vRO}, {WSS}, s26 offen {f}"))
    I("s_waitcnt vmcnt(0)")
    I("s_barrier")
    I(f"s_add_u32 s28, s29, {F_HN}")
    gsignal(A, 28, T0, T0 + 1)
    TH(6)
    gwait(A, 28, T0, T0 + 1)
    TH(7)
    I(f"s_lshl_b32 s{sA0}, s{sG}, 15"); I(f"s_add_u32 s{sA0}, s{sA0}, {WS_HN}")
    rows_dma(A, vTm, sA0, L_HB)
    I(f"s_lshl_b32 s25, s{sA1}, 10"); I(f"s_add_u32 s25, s25, {WS_H}")
    I(f"buffer_store_dword v{XR}, v{vRO}, {WSS}, s25 offen sc1")
    I("s_waitcnt vmcnt(1)")
    I("s_barrier")
    TH(8)
    I(f"s_cmp_ge_u32 s{sTILE}, 86"); I("s_cbranch_scc1 H2_skipz")
    HF = XF
    for ks in range(16):
        for t in range(2): I(f"ds_read_b128 {vr(HF + 8*ks + 4*t,4)}, v{vHA + 4*t + (ks&3)} offset:{(ks>>2)*256}") if ks < 4 else None
    ZA = 168
    I(f"s_cmp_lt_u32 s{sTILE}, 43"); I("s_cbranch_scc1 H2_z1")
    for var in range(2):
        if var == 1: A.label("H2_z1")
        for ks in range(16):
            I(f"s_waitcnt lgkmcnt({6 if ks < 13 else 2*(15-ks)})")
            for t in range(2):
                a, b = (HF + 8*ks + 4*t, WIN + 4*ks) if var == 0 else (WIN + 4*ks, HF + 8*ks + 4*t)
                I(mf32(ZA + 4*t, a, b, "0" if ks == 0 else vr(ZA + 4*t, 4)))
                k2 = ks + 4
                if k2 < 16: I(f"ds_read_b128 {vr(HF + 8*k2 + 4*t,4)}, v{vHA + 4*t + (k2&3)} offset:{(k2>>2)*256}")
        if var == 0: I("s_branch H2_zc")
    A.label("H2_zc")
    I("s_nop 7")
    tm = 176
    k1 = -2 * 0.7978845608028654 * 1.4426950408889634
    I(f"v_mov_b32 v{XF}, {hex(f2u(k1 * 0.044715))}"); I(f"v_mov_b32 v{XF+2}, {hex(f2u(k1))}")
    for i in range(0, 8, 2):
        I(f"v_cvt_pk_bf16_f32 v{tm}, v{ZA+i}, v{ZA+i+1}"); I(f"v_lshlrev_b32 v{ZA+i}, 16, v{tm}"); I(f"v_and_b32 v{ZA+i+1}, 0xffff0000, v{tm}")
    for i in range(0, 8, 2):
        I(f"v_pk_mul_f32 {vr(tm+i,2)}, {vr(ZA+i,2)}, {vr(ZA+i,2)}")
        I(f"v_pk_fma_f32 {vr(tm+i,2)}, {vr(tm+i,2)}, {vr(XF,2)}, {vr(XF+2,2)} op_sel_hi:[1,0,0]")
        I(f"v_pk_mul_f32 {vr(tm+i,2)}, {vr(tm+i,2)}, {vr(ZA+i,2)}")
    for i in range(8): I(f"v_exp_f32 v{tm+i}, v{tm+i}")
    for i in range(0, 8, 2): I(f"v_pk_add_f32 {vr(tm+i,2)}, {vr(tm+i,2)}, 1.0 op_sel_hi:[1,0]")
    for i in range(8): I(f"v_rcp_f32 v{tm+i}, v{tm+i}")
    for i in range(0, 8, 2): I(f"v_pk_mul_f32 {vr(ZA+i,2)}, {vr(ZA+i,2)}, {vr(tm+i,2)}")
    for i in range(4): I(cv(tm + i, ZA + 2*i))
    I(f"s_mul_i32 s24, s{sSEG}, 86"); I(f"s_add_u32 s24, s24, s{sTILE}"); I("s_lshl_b32 s24, s24, 10"); I(f"s_add_u32 s24, s24, {WS_Z}")
    I(f"buffer_store_dwordx4 {vr(tm,4)}, v{wL16}, {WSS}, s24 offen sc1")
    I(f"s_cmp_lt_u32 s{sTILE}, 43"); I("s_cbranch_scc1 H2_nostat")
    ST = XF
    for i in range(4):
        I(f"v_lshlrev_b32 v{ST+4*i}, 16, v{tm+i}"); I(f"v_and_b32 v{ST+4*i+2}, 0xffff0000, v{tm+i}")
    for i in range(8): I(f"v_mul_f32 v{ST+2*i+1}, v{ST+2*i}, v{ST+2*i}")
    for r in range(16): I(f"v_add_f32_dpp v{ST+r}, v{ST+r}, v{ST+r} row_ror:8 row_mask:0xf bank_mask:0xf")
    for r in range(8): I(f"v_mov_b32_dpp v{ST+r}, v{ST+8+r} quad_perm:[0,1,2,3] row_mask:0xf bank_mask:0xc")
    for r in range(8): I(f"v_add_f32_dpp v{ST+r}, v{ST+r}, v{ST+r} row_half_mirror row_mask:0xf bank_mask:0xf")
    for r in range(4): I(f"v_mov_b32_dpp v{ST+r}, v{ST+4+r} quad_perm:[0,1,2,3] row_mask:0xf bank_mask:0xa")
    for r in range(4): I(f"v_add_f32_dpp v{ST+r}, v{ST+r}, v{ST+r} quad_perm:[1,0,3,2] row_mask:0xf bank_mask:0xf")
    for r in range(4): I(f"v_add_f32_dpp v{ST+r}, v{ST+r}, v{ST+r} quad_perm:[2,3,0,1] row_mask:0xf bank_mask:0xf")
    I(f"v_lshlrev_b32 v{ST+4}, 2, v{wLN}")
    I(f"v_mov_b32 v{ST+5}, {OOB}"); I(f"v_cmp_eq_u32 vcc, 0, v{wCP}"); I(f"v_cndmask_b32 v{ST+4}, v{ST+5}, v{ST+4}, vcc")
    I(f"s_lshl_b32 s24, s{sSEG}, 6"); I(f"s_add_u32 s24, s24, s{sTILE}"); I("s_lshl_b32 s24, s24, 8"); I(f"s_add_u32 s24, s24, {WS_ZS - 43*256}")
    I(f"buffer_store_dwordx4 {vr(ST,4)}, v{ST+4}, {WSS}, s24 offen sc1")
    A.label("H2_nostat")
    I("s_waitcnt vmcnt(0)")
    A.label("H2_skipz")
    I("s_waitcnt vmcnt(0)")
    A.label("H2_zend")
    I("s_barrier")
    I(f"s_add_u32 s28, s29, {F_ZL}")
    gsignal(A, 28, T0, T0 + 1)
    I(f"s_cmp_lg_u32 s{sH}, 31"); I("s_cbranch_scc1 H2_nosig")
    gwait(A, 28, T0, T0 + 1, barrier=False)
    I(f"s_lshl_b32 s28, s{sSEG}, 7"); I(f"s_add_u32 s28, s28, {F_Z}")
    signal_store(A, "s28", 1, T0, T0 + 1)
    A.label("H2_nosig")
    TH(9)
    if TRACE[0]: I("s_add_u32 s60, s60, 4")
    I(f"s_add_u32 s{sSEG}, s{sSEG}, {NG}")
    I(f"s_cmp_lt_u32 s{sSEG}, 64"); I("s_cbranch_scc1 H2_loop")
    TDUMP(A, [188, 189, 190, 191], 40, (4, 9, 3, 3))


def p_main(A, opt):
    I = A.I
    sJ = 18; sS = 19; sZ = 20; sSP = 21; sRD = 22; sISS = 32
    L_U = 98304; L_ST = 147456; L_ST2 = L_ST + 2048
    vO5, vSO, vWS, vSW, vSR, vS2W, vS2R, vFA, vFD = 7, 9, 12, 13, 14, 15, 16, 4, 5
    TRC = 17
    COR = 0
    ACC = 20; BUF = [116, 164]; SB = 212; MU = 224; RS = 232; WF = 240; TM = 248
    vD, vTt, vU, vB = SB, SB + 2, SB + 6, SB + 8
    SO = "s[44:47]"
    if TRACE[0]: I(f"v_mov_b32 v{TRC}, v28")
    I("s_load_dwordx2 s[44:45], s[0:1], 88"); I(f"s_mov_b32 s46, {688*1024}"); I("s_mov_b32 s47, 0x20000")
    I(f"s_mul_i32 s30, s{sWV}, 24576")
    def waddr():
        I(f"v_lshlrev_b32 v{vD}, 2, v{wG}"); I(f"v_xor_b32 v{vD}, v{vD}, v{wC}"); I(f"v_lshlrev_b32 v{vD}, 4, v{vD}")
        I(f"v_lshl_add_u32 v{vD}, v{wG}, 10, v{vD}"); I(f"s_lshl_b32 s24, s{sWV}, 8"); I(f"v_add_u32 v{vD}, s24, v{vD}")
        I(f"v_lshrrev_b32 v{vTt+1}, 2, v{wC}"); I(f"v_and_b32 v{vTt+2}, 3, v{wC}")
        I(f"v_lshl_add_u32 v{vTt}, v{wG}, 2, v{vTt+1}"); I(f"v_lshlrev_b32 v{vTt}, 8, v{vTt}")
        I(f"v_lshl_add_u32 v{vTt}, v{vTt+1}, 6, v{vTt}"); I(f"v_lshl_add_u32 v{vTt}, v{vTt+2}, 4, v{vTt}")
        I(f"v_add_u32 v{vTt}, s30, v{vTt}")
        for p in range(1, 4): I(f"v_xor_b32 v{vTt+p}, {p<<6}, v{vTt}")
    waddr()
    I("s_waitcnt lgkmcnt(0)")
    wait_ge(A, DBG, D_PINIT, 64, TM, TM + 1, 24, sleep=16)
    I(f"s_lshl_b32 s28, s{sH}, 7"); I(f"s_add_u32 s28, s28, {F_KV}")
    wait_ge(A, WSS, "s28", 8, TM, TM + 1, 24, sleep=32)
    def wdma(ks, slot):
        out = []
        for i in range(8):
            out += [f"s_add_u32 m0, s30, {slot*8192 + i*1024}", f"s_mov_b32 s25, {(32*ks + 4*i)*1024}",
                    f"buffer_load_dwordx4 v{vD}, {SO}, s25 offen lds"]
        return out
    def wrd(slot, dstf):
        return [f"ds_read_b64_tr_b16 {dstf(t8*4 + 2*u)}, v{vTt + (t8>>1)} offset:{slot*8192 + u*4096 + (t8&1)*8}" for t8 in range(8) for u in range(2)]
    sDRY = 31
    if opt.get("dry", 1):
        I(f"s_mov_b32 s{sDRY}, 1")
        I("s_branch P_tail")
        A.label("P_init2")
        I("s_barrier")
        waddr()
    I(f"s_mov_b32 s{sDRY}, 0")
    for ks in range(3):
        for x in wdma(ks, ks): I(x)
    for ks in range(8):
        I("s_waitcnt vmcnt(16)")
        for x in wrd(ks % 3, lambda o: ar(ks*32 + o, 2)): I(x)
        I("s_waitcnt lgkmcnt(0)")
        for x in wdma(ks + 3, ks % 3): I(x)
    srd(A, 72, 8 << 20)
    I(f"s_lshl_b32 s{sSP}, s{sJ}, 17")
    I(f"s_lshl_b32 s24, s{sWV}, 15"); I(f"s_add_u32 s24, s24, s{sSP}")
    for i in range(32):
        I(f"buffer_load_dwordx4 {vr(ACC + 4*(i&15),4)}, v{wL16}, {SW}, s24 offen offset:{(i&3)*1024}")
        if (i & 3) == 3: I("s_add_u32 s24, s24, 4096")
    I(f"v_mov_b32 v{TM}, {OOB}")
    for par in range(2):
        I(f"s_lshl_b32 s24, s{sWV}, 1"); I(f"s_add_u32 s24, s24, {40 + par}"); I("s_cmp_lt_u32 s24, 43"); I("s_cselect_b64 vcc, -1, 0")
        I(f"v_cndmask_b32 v{vO5+par}, v{TM}, v{wL16}, vcc")
    for n in range(3):
        I(f"s_mul_i32 s24, s{sWV}, 12"); I(f"s_add_u32 s24, s24, {4*n}")
        I(f"v_add_u32 v{TM+1}, s24, v{wG}"); I(f"v_cmp_gt_u32 vcc, 43, v{TM+1}")
        I("s_lshl_b32 s24, s24, 8"); I(f"v_add_u32 v{TM+1}, s24, v{wL16}")
        I(f"v_cndmask_b32 v{vSO+n}, v{TM}, v{TM+1}, vcc")
    I(f"v_lshlrev_b32 v{vWS}, 12, v{wC}"); I(f"v_lshl_add_u32 v{vWS}, v{wG}, 4, v{vWS}")
    I(f"v_lshlrev_b32 v{vSR}, 4, v{wC}"); I(f"v_add_u32 v{vSR}, {L_ST}, v{vSR}")
    I(f"s_lshl_b32 s24, s{sWV}, 8"); I(f"v_add_u32 v{vSW}, s24, v{vSR}")
    I(f"s_add_u32 s24, s24, {L_ST2}")
    I(f"v_lshlrev_b32 v{vS2W}, 3, v{wC}"); I(f"v_add_u32 v{vS2W}, s24, v{vS2W}")
    I(f"v_lshlrev_b32 v{vS2R}, 5, v{wG}"); I(f"v_add_u32 v{vS2R}, s24, v{vS2R}")
    I(f"v_lshlrev_b32 v{vFA}, 3, v{wL16}"); I(f"v_cmp_gt_u32 vcc, 64, v{wL16}"); I(f"v_cndmask_b32 v{vFA}, v{TM}, v{vFA}, vcc")
    I("s_load_dwordx2 s[48:49], s[0:1], 80"); I("s_mov_b32 s50, 4096"); I("s_mov_b32 s51, 0x20000")
    I(f"v_lshlrev_b32 v{TM}, 1, v{wC}"); I(f"s_lshl_b32 s24, s{sJ}, 6")
    I("s_waitcnt lgkmcnt(0)")
    I(f"buffer_load_ushort v{COR}, v{TM}, s[48:51], s24 offen"); I(f"buffer_load_ushort v{COR+1}, v{TM}, s[48:51], s24 offen offset:32")
    I("s_waitcnt vmcnt(0)")
    I(f"v_cmp_eq_u32 vcc, 0, v{wG}")
    for t in range(2):
        I(f"v_lshlrev_b32 v{COR+t}, 16, v{COR+t}"); I(f"v_xor_b32 v{COR+t}, 0x80000000, v{COR+t}"); I(f"v_cndmask_b32 v{COR+t}, 0, v{COR+t}, vcc")
    for x in zero(ACC, 96): I(x)
    I(f"s_mov_b32 s{sS}, 0"); I(f"s_mov_b32 s{sRD}, 0"); I(f"s_mov_b32 s{sISS}, 0")
    I(f"s_lshl_b32 s{sZ}, s{sWV}, 11"); I(f"s_add_u32 s{sZ}, s{sZ}, {WS_Z + 43*1024}")
    TS(A, TRC, 2)
    CR = TM + 4 - 4 + 0
    def tiles(dst, sb):
        out = []
        for i in range(6):
            for par in range(2):
                v = vO5 + par if i == 5 else wL16
                x = [f"buffer_load_dwordx4 {vr(dst + 8*i + 4*par,4)}, v{v}, {WSS}, s{sb} offen offset:{par*1024} sc1"]
                if par == 1 and i < 5: x.append(f"s_add_u32 s{sb}, s{sb}, 8192")
                out.append(x)
        return out
    def wf_load():
        I(f"s_add_u32 s24, s{sSP}, 65536")
        I(f"buffer_load_dwordx4 {vr(WF,4)}, v{vWS}, {SW}, s{sSP} offen"); I(f"buffer_load_dwordx4 {vr(WF+4,4)}, v{vWS}, {SW}, s24 offen")
        I(f"s_add_u32 s{sSP}, s{sSP}, 64")
    def stat_loads(): return [[f"buffer_load_dwordx4 {vr(SB+4*n,4)}, v{vSO+n}, {WSS}, s27 offen sc1"] for n in range(3)]
    def flag_load():
        I(f"s_lshl_b32 s28, s{sRD}, 7"); I(f"s_add_u32 s28, s28, {F_Z}")
        I(f"buffer_load_dword v{vFD}, v{vFA}, {WSS}, s28 offen sc1")
    def flag_use():
        I(f"v_cmp_eq_u32 vcc, 1, v{vFD}")
        I("s_nop 0")
        I("s_ff0_i32_b32 s24, vcc_lo")
        I(f"s_add_u32 s{sRD}, s{sRD}, s24")
    I(f"s_mul_i32 s33, s{sJ}, {86*1024}"); I(f"s_lshl_b32 s27, s{sWV}, 11"); I("s_add_u32 s33, s33, s27"); I(f"s_add_u32 s33, s33, {WS_Z}")
    wf_load()
    A.label("P_loop")
    for b in range(2):
        RAW = BUF[b]
        I(f"s_cmp_lg_u32 s{sISS}, 0"); I(f"s_cbranch_scc1 P_have{b}")
        A.label(f"P_poll{b}")
        I(f"s_cmp_gt_u32 s{sRD}, s{sS}"); I(f"s_cbranch_scc1 P_rdy{b}")
        flag_load()
        I(f"s_add_u32 s{sSPIN}, s{sSPIN}, 1")
        I("s_waitcnt vmcnt(0)")
        flag_use()
        I(f"s_cmp_gt_u32 s{sRD}, s{sS}"); I(f"s_cbranch_scc1 P_rdy{b}")
        I("s_sleep 1")
        I(f"s_cmp_gt_u32 s{sSPIN}, {SPIN_MAX}"); I(f"s_cbranch_scc0 P_poll{b}")
        A.label(f"P_rdy{b}")
        TS(A, TRC + 1, f"s{sS}")
        I(f"s_lshl_b32 s27, s{sS}, 14"); I(f"s_add_u32 s27, s27, {WS_ZS}"); I(f"s_mov_b32 s26, s{sZ}")
        for x in sum(stat_loads() + tiles(RAW, 26), []): I(x)
        I("s_waitcnt vmcnt(12)")
        A.label(f"P_have{b}")
        I("s_waitcnt vmcnt(14)")
        if b == 0:
            I(f"s_cmp_eq_u32 s{sS}, 52"); I("s_cbranch_scc0 P_notouch")
            I(f"s_lshl_b32 s24, s{sH}, 2"); I(f"s_add_u32 s24, s24, s{sWV}"); I("s_mul_i32 s24, s24, 3072"); I(f"s_add_u32 s24, s24, {352*1024}")
            I(f"s_mov_b32 m0, {L_ST + 4096}")
            I("s_nop 0")
            for i in range(3): I(f"buffer_load_dwordx4 v{wL16}, {SO}, s24 offen offset:{i*1024} lds")
            A.label("P_notouch")
        I(f"s_cmp_eq_u32 s{sS}, s{sJ}"); I(f"s_cbranch_scc0 P_noz1{b}")
        I(f"s_lshl_b32 s24, s{sWV}, 11"); I(f"s_add_u32 s24, s24, {L_U}")
        for i in range(6):
            I(f"s_add_u32 m0, s24, {i*8192}")
            I("s_nop 0")
            for par in range(2): I(f"buffer_load_dwordx4 v{vO5 + par if i == 5 else wL16}, {WSS}, s33 offen offset:{par*1024} sc1 lds")
            I("s_add_u32 s33, s33, 8192")
        A.label(f"P_noz1{b}")
        flag_load()
        for n in (1, 2):
            for j in range(2): I(f"v_pk_add_f32 {vr(MU+2*j,2)}, {vr((SB if n == 1 else MU)+2*j,2)}, {vr(SB+4*n+2*j,2)}")
        for sw in ("16", "32"):
            for r in range(4): I(f"v_mov_b32 v{MU+4+r}, v{MU+r}")
            for r in range(4): I(f"v_permlane{sw}_swap_b32 v{MU+r}, v{MU+4+r}")
            for j in range(2): I(f"v_pk_add_f32 {vr(MU+2*j,2)}, {vr(MU+2*j,2)}, {vr(MU+4+2*j,2)}")
        I(f"ds_write_b128 v{vSW}, {vr(MU,4)} offset:{b*1024}")
        I("s_waitcnt lgkmcnt(0)")
        I("s_barrier")
        for w in range(4): I(f"ds_read_b128 {vr(MU+4*w,4)}, v{vSR} offset:{b*1024 + w*256}")
        I("s_waitcnt lgkmcnt(0)")
        for w in range(1, 4):
            for j in range(2): I(f"v_pk_add_f32 {vr(MU+2*j,2)}, {vr(MU+2*j,2)}, {vr(MU+4*w+2*j,2)}")
        for r in range(4): I(f"v_mul_f32 v{MU+r}, {hex(f2u(1/688))}, v{MU+r}")
        for j in range(2):
            I(f"v_fma_f32 v{MU+2*j+1}, -v{MU+2*j}, v{MU+2*j}, v{MU+2*j+1}")
            I(f"v_max_f32 v{MU+2*j+1}, 0, v{MU+2*j+1}")
            ln_finish(A, MU + 2*j, MU + 2*j + 1)
        I(f"ds_write2_b32 v{vS2W}, v{MU}, v{MU+2} offset0:0 offset1:1"); I(f"ds_write2_b32 v{vS2W}, v{MU+1}, v{MU+3} offset0:32 offset1:33")
        I("s_waitcnt lgkmcnt(0)")
        for i in range(2):
            I(f"ds_read_b128 {vr(RS+4*i,4)}, v{vS2R} offset:{128+16*i}"); I(f"ds_read_b128 {vr(MU+4*i,4)}, v{vS2R} offset:{16*i}")
        I("s_waitcnt vmcnt(0) lgkmcnt(0)")
        flag_use()
        for t in range(2):
            unpack(A, WF + 4*t, TM, 4)
            for j in range(4): I(f"v_pk_mul_f32 {vr(TM+2*j,2)}, {vr(TM+2*j,2)}, {vr(RS+2*j,2)}")
            for j in range(4): I(cv(WF + 4*t + j, TM + 2*j))
        cor = []
        for t in range(2):
            for j in range(4):
                cor += [f"v_lshlrev_b32 v{TM}, 16, v{WF+4*t+j}", f"v_fmac_f32 v{COR+t}, v{TM}, v{MU+2*j}",
                        f"v_and_b32 v{TM+1}, 0xffff0000, v{WF+4*t+j}", f"v_fmac_f32 v{COR+t}, v{TM+1}, v{MU+2*j+1}"]
        ms = [mf32(ACC + 16*(n>>1) + 8*t + 4*(n&1), RAW + 4*n, WF + 4*t, vr(ACC + 16*(n>>1) + 8*t + 4*(n&1), 4)) for n in range(12) for t in range(2)]
        I(f"s_add_u32 s{sZ}, s{sZ}, {86*1024}")
        I(f"s_add_u32 s24, s{sS}, 1"); I("s_lshl_b32 s27, s24, 14"); I(f"s_add_u32 s27, s27, {WS_ZS}"); I(f"s_mov_b32 s26, s{sZ}")
        I(f"s_cmp_gt_u32 s{sRD}, s24"); I(f"s_cselect_b32 s{sISS}, 1, 0"); I(f"s_cbranch_scc0 P_nopf{b}")
        ld = stat_loads() + tiles(BUF[1 - b], 26)
        fl = [cor[2*i:2*i+2] for i in range(24)]
        for i in range(6): fl[4*i] = ld[i] + fl[4*i]
        slots(A, ms, fl)
        for x in sum(ld[6:], []): I(x)
        I(f"s_branch P_done{b}")
        A.label(f"P_nopf{b}")
        slots(A, ms, [cor[2*i:2*i+2] for i in range(24)])
        A.label(f"P_done{b}")
        wf_load()
        TS(A, TRC + 2, f"s{sS}")
        I(f"s_add_u32 s{sS}, s{sS}, 1")
    I(f"s_cmp_lt_u32 s{sS}, 64"); I("s_cbranch_scc1 P_loop")
    A.label("P_tail")
    waddr()
    I(f"v_add_u32 v{vU}, {L_U}, v{wL16}")
    I(f"s_lshl_b32 s24, s{sWV}, 11"); I(f"v_add_u32 v{vSW}, s24, v{vU}")
    WR = [BUF[0], BUF[0] + 32, BUF[0] + 64, ACC + 64]
    ZB = [MU, RS]
    def zrd(i): return [f"ds_read_b128 {vr(ZB[i&1]+4*par,4)}, v{vSW} offset:{i*8192 + par*1024}" for par in range(2)]
    for x in zrd(0): I(x)
    for k in range(3):
        for x in wrd((8 + k) % 3, lambda o: vr(WR[k] + o, 2)): I(x)
    for sw in ("16", "32"):
        for t in range(2):
            I(f"v_mov_b32 v{TM}, v{COR+t}"); I(f"v_permlane{sw}_swap_b32 v{COR+t}, v{TM}"); I(f"v_add_f32 v{COR+t}, v{COR+t}, v{TM}")
    I("s_waitcnt vmcnt(0) lgkmcnt(0)")
    dq = wdma(11, 2) + wdma(12, 0) + wdma(13, 1)
    for i in range(6):
        if i < 5:
            for x in zrd(i + 1): I(x)
        for t in range(2):
            d = ACC + 16*i + 8*t
            for x in dq[:3]: I(x)
            for j in range(4): I(f"v_pk_add_f32 {vr(d+2*j,2)}, {vr(d+2*j,2)}, {vr(COR,2)} op_sel:[0,{t}] op_sel_hi:[1,{t}] neg_lo:[0,1] neg_hi:[0,1]")
            for j in range(4): I(cv(WF + j, d + 2*j))
            unpack(A, WF, d, 4)
            for x in dq[3:6]: I(x)
            dq = dq[6:]
            for par in range(2): unpack(A, ZB[i&1] + 4*par + 2*t, TM + 4*par, 2)
            for j in range(4): I(f"v_pk_mul_f32 {vr(d+2*j,2)}, {vr(d+2*j,2)}, {vr(TM+2*j,2)}")
            for j in range(4): I(cv(d + j, d + 2*j))
            I(f"ds_write_b128 v{vSW}, {vr(d,4)} offset:{i*8192 + t*1024}")
        I("s_waitcnt lgkmcnt(2)" if i < 5 else "s_waitcnt lgkmcnt(0)")
    I("s_barrier")
    TS(A, TRC, 3)
    YA = ACC; UFs = [MU, RS]
    order = []
    pre = [("R", 8), ("R", 9), ("R", 10)] + [("A", n) for n in range(8)]
    for n in range(11): order += [pre[n], ("L", 11 + n)]
    lbuf = lambda ks: WR[3] if (ks & 1) else WR[0]
    HR = WR[1]
    I(f"s_lshl_b32 s26, s{sJ}, 15"); I(f"s_lshl_b32 s27, s{sWV}, 13"); I("s_add_u32 s26, s26, s27"); I("s_add_u32 s27, s26, 4096")
    I(f"s_add_u32 s28, s26, {WS_H}"); I(f"s_add_u32 s29, s27, {WS_H}")
    hld = [f"buffer_load_dwordx4 {vr(HR+4*i,4)}, v{wL16}, {WSS}, s{28 if i < 4 else 29} offen offset:{(i&3)*1024} sc1" for i in range(8)]
    def ufr(idx): return [f"ds_read_b128 {vr(UFs[idx&1]+4*t,4)}, v{vU} offset:{order[idx][1]*2048 + t*1024}" for t in range(2)]
    for x in ufr(0): I(x)
    vm = [(11 + i//8) for i in range(24)]
    pend = []
    for idx, (kind, ks) in enumerate(order):
        I("s_waitcnt lgkmcnt(0)")
        if kind == "L": wf = lambda t8: vr(lbuf(ks) + 4*t8, 4)
        elif kind == "R": wf = lambda t8: vr(WR[ks - 8] + 4*t8, 4)
        else: wf = lambda t8: ar(ks*32 + 4*t8, 4)
        ms = [f"v_mfma_f32_16x16x32_bf16 {vr(YA + 16*(t8>>1) + 8*t + 4*(t8&1),4)}, {wf(t8)}, {vr(UFs[idx&1]+4*t,4)}, {'0' if idx == 0 else vr(YA + 16*(t8>>1) + 8*t + 4*(t8&1),4)}"
              for t8 in range(8) for t in range(2)]
        fl = [[] for _ in range(16)]
        if kind == "L":
            if ks + 3 < 22:
                d = wdma(ks + 3, ks % 3); pend = [(d[3*i:3*i+3], ks + 3) for i in range(8)]
            elif ks == 19: pend = [([x], 99) for x in hld]
        f = []
        if idx + 1 < len(order):
            k2, ks2 = order[idx + 1]
            if k2 == "L":
                last = max(i for i, tg in enumerate(vm) if tg == ks2)
                f = [f"s_waitcnt vmcnt({len(vm) - 1 - last})"] + wrd(ks2 % 3, lambda o: vr(lbuf(ks2) + o, 2))
            f += ufr(idx + 1)
        free = [i for i in range(14) if i % 4 != 3]
        per = -(-len(f) // len(free))
        for i in range(0, len(f), max(per, 1)): fl[free[i // per]] += f[i:i+per]
        for i in (3, 7, 11, 15):
            if pend:
                x, tg = pend.pop(0); fl[i] += x; vm.append(tg)
        slots(A, ms, fl)
    Z1 = WR[2]
    I("s_barrier")
    TS(A, TRC, 4)
    I(f"v_mul_u32_u24 v{vD}, {PSTR}, v{wC}"); I(f"v_lshl_add_u32 v{vD}, v{wG}, 4, v{vD}")
    I(f"s_lshl_b32 s24, s{sWV}, 8"); I(f"v_add_u32 v{vD}, s24, v{vD}")
    I(f"s_mul_i32 s24, s{sWV}, {8*PSTR}"); I(f"v_add_u32 v{vD+1}, s24, v{wL16}")
    for p in range(4):
        for t in range(2):
            d = YA + 16*p + 8*t
            for i in range(4): I(cv(d + i, d + 2*i))
            I(f"ds_write_b128 v{vD}, {vr(d,4)} offset:{t*16*PSTR + p*64}")
    srd(A, 96, 2 << 20)
    I(f"s_cmp_eq_u32 s{sDRY}, 1"); I(f"s_cselect_b32 s{sW+2}, 0, s{sW+2}")
    I("s_barrier")
    for i in range(8): I(f"ds_read_b128 {vr(Z1+4*i,4)}, v{vD+1} offset:{i*PSTR}")
    I("s_waitcnt vmcnt(0)")
    for i in range(8):
        I(f"s_waitcnt lgkmcnt({7-i})")
        unpack(A, Z1 + 4*i, MU, 4); unpack(A, HR + 4*i, TM, 4)
        for j in range(4): I(f"v_pk_add_f32 {vr(MU+2*j,2)}, {vr(MU+2*j,2)}, {vr(TM+2*j,2)}")
        for j in range(4): I(cv(ACC + 4*i + j, MU + 2*j))
        I(f"buffer_store_dwordx4 {vr(ACC+4*i,4)}, v{wL16}, {SW}, s{26 if i < 4 else 27} offen offset:{(i&3)*1024}")
    if opt.get("dry", 1):
        I(f"s_cmp_eq_u32 s{sDRY}, 1"); I("s_cbranch_scc1 P_init2")
    if TRACE[0]: I("s_waitcnt vmcnt(0)")
    TS(A, TRC, 5)
    TDUMP(A, [TRC, TRC + 1, TRC + 2], TM, (6, 12, 2, 4))
```

```python
from chain import *

sG = 39
D_OVF, D_PINIT, D_CHAIN = 192, 200, 204
WSS = f"s[{sWS}:{sWS+3}]"
DBG = f"s[{sDBG}:{sDBG+3}]"
SW = f"s[{sW}:{sW+3}]"
OOB = 0x40000000
wLN, wC, wG, wR, wCP, wL16 = 1, 2, 3, 4, 5, 6

TRACE = [False]
WS_TR = 1 << 20
def TS(A, vreg, lane):
    if not TRACE[0]: return
    A.I("s_memrealtime s[62:63]"); A.I("s_waitcnt lgkmcnt(0)")
    if isinstance(lane, int): A.I(f"v_writelane_b32 v{vreg}, s62, {lane}")
    else:
        A.I(f"s_mov_b32 m0, {lane}"); A.I("s_nop 0"); A.I(f"v_writelane_b32 v{vreg}, s62, m0")
def TDUMP(A, vregs, tmp, dbgw=None):
    if not TRACE[0]: return
    I = A.I
    l = A.newlabel("td")
    I(f"s_cmp_lg_u32 s{sWV}, 0"); I(f"s_cbranch_scc1 {l}")
    I(f"s_lshl_b32 s62, s{sG}, 5"); I(f"s_add_u32 s62, s62, s{sH}"); I("s_lshl_b32 s62, s62, 10"); I(f"s_add_u32 s62, s62, {WS_TR}")
    I(f"v_mbcnt_lo_u32_b32 v{tmp}, -1, 0"); I(f"v_mbcnt_hi_u32_b32 v{tmp}, -1, v{tmp}"); I(f"v_lshlrev_b32 v{tmp}, 2, v{tmp}")
    for i, r in enumerate(vregs): I(f"buffer_store_dword v{r}, v{tmp}, {WSS}, s62 offen offset:{256*i}")
    if dbgw:
        g, w0, lo, n = dbgw
        e = A.newlabel("te")
        I(f"s_cmp_lg_u32 s{sG}, {g}"); I(f"s_cbranch_scc1 {e}"); I(f"s_cmp_lg_u32 s{sH}, 0"); I(f"s_cbranch_scc1 {e}")
        I(f"s_mov_b64 exec, {hex(((1 << n) - 1) << lo)}")
        I(f"buffer_store_dword v{vregs[0]}, v{tmp}, {DBG}, 0 offen offset:{4*(w0 - lo)}")
        I("s_mov_b64 exec, -1")
        A.label(e)
    I("s_waitcnt vmcnt(0)")
    A.label(l)

def srd(A, karg_off, nbytes):
    A.I(f"s_load_dwordx2 s[{sW}:{sW+1}], s[0:1], {karg_off}")
    A.I(f"s_mov_b32 s{sW+2}, {nbytes}")
    A.I(f"s_mov_b32 s{sW+3}, 0x20000")
    A.I("s_waitcnt lgkmcnt(0)")

def prologue(A, force=None):
    I = A.I
    if TRACE[0]: I("s_memrealtime s[64:65]")
    I(f"s_load_dwordx2 s[{sWS}:{sWS+1}], s[0:1], 112")
    I(f"s_load_dwordx2 s[{sDBG}:{sDBG+1}], s[0:1], 104")
    I("s_cmp_ge_u32 s2, 256")
    I("s_cbranch_scc1 L_end")
    I(f"s_mov_b32 s{sWS+2}, {WS_BYTES}"); I(f"s_mov_b32 s{sWS+3}, 0x20000")
    I(f"s_mov_b32 s{sDBG+2}, 256"); I(f"s_mov_b32 s{sDBG+3}, 0x20000")
    I("v_lshrrev_b32 v1, 6, v0")
    I(f"v_mov_b32 v4, {LDS_BYTES - 16}")
    I(f"v_readfirstlane_b32 s{sWV}, v1")
    I("s_waitcnt lgkmcnt(0)")
    I(f"s_cmp_lg_u32 s{sWV}, 0")
    I("s_cbranch_scc1 L_elect_wait")
    I("s_getreg_b32 s24, hwreg(HW_REG_XCC_ID, 0, 4)")
    if force == "skew":
        I("s_lshr_b32 s24, s2, 4"); I("s_and_b32 s24, s24, 15")
    I("s_and_b32 s25, s24, 1"); I("s_lshl_b32 s25, s25, 6")
    I("s_lshr_b32 s26, s24, 1"); I("s_lshl_b32 s26, s26, 2")
    I("s_add_u32 s25, s25, s26")
    I("s_cmp_eq_u32 s24, 0")
    I("s_cselect_b32 s25, 128, s25")
    I("s_mov_b64 exec, 1")
    I("v_mov_b32 v1, 1"); I("v_mov_b32 v2, s25")
    I(f"buffer_atomic_add v1, v2, {DBG}, 0 offen sc0")
    I("s_waitcnt vmcnt(0)")
    I("v_readfirstlane_b32 s25, v1")
    I("s_mov_b64 exec, -1")
    I("s_mov_b32 s40, 0")
    I("s_cmp_ge_u32 s24, 8"); I("s_cbranch_scc1 L_ovf")
    I("s_cmp_lt_u32 s25, 32"); I("s_cbranch_scc1 L_elect_pub")
    A.label("L_ovf")
    I("s_mov_b64 exec, 1")
    I("v_mov_b32 v1, 1"); I(f"v_mov_b32 v2, {D_OVF}")
    I(f"buffer_atomic_add v1, v2, {DBG}, 0 offen sc0")
    I("s_waitcnt vmcnt(0)")
    I("v_readfirstlane_b32 s26, v1")
    I("s_mov_b64 exec, -1")
    I("v_lshlrev_b32 v2, 2, v0")
    I("s_mov_b32 s28, 0")
    def word(x): return 32 if x == 0 else (x & 1) * 16 + (x >> 1)
    A.label("L_ovf_poll")
    I(f"buffer_load_dword v1, v2, {DBG}, 0 offen sc1")
    I("s_add_u32 s28, s28, 1")
    I("s_waitcnt vmcnt(0)")
    I("s_mov_b32 s27, 0")
    for x in range(16):
        I(f"v_readlane_b32 s25, v1, {word(x)}"); I("s_add_u32 s27, s27, s25")
    I(f"s_cmp_gt_u32 s28, {SPIN_MAX}"); I("s_cbranch_scc1 L_ovf_go")
    I("s_cmp_lt_u32 s27, 256"); I("s_cbranch_scc1 L_ovf_poll")
    A.label("L_ovf_go")
    I("s_mov_b32 s40, 1")
    for x in range(8):
        I(f"v_readlane_b32 s25, v1, {word(x)}")
        I("s_min_u32 s25, s25, 32")
        I("s_add_u32 s25, s25, s26")
        I(f"s_mov_b32 s24, {x}")
        I("s_cmp_lt_u32 s25, 32"); I("s_cbranch_scc1 L_elect_pub")
        I("s_sub_u32 s26, s25, 32")
    I("s_mov_b32 s24, 8")
    A.label("L_elect_pub")
    I("s_lshl_b32 s24, s24, 8"); I("s_lshl_b32 s26, s40, 16"); I("s_add_u32 s24, s24, s25"); I("s_add_u32 s24, s24, s26")
    I("v_mov_b32 v1, s24")
    I("ds_write_b32 v4, v1")
    I("s_waitcnt lgkmcnt(0)")
    A.label("L_elect_wait")
    I("s_barrier")
    I("ds_read_b32 v1, v4")
    I("s_waitcnt lgkmcnt(0)")
    I("v_readfirstlane_b32 s24, v1")
    I(f"s_and_b32 s{sH}, s24, 31")
    I(f"s_bfe_u32 s{sG}, s24, {hex((8 << 16) | 8)}")
    I("s_lshr_b32 s40, s24, 16")
    I(f"s_cmp_ge_u32 s{sG}, 8"); I("s_cbranch_scc1 L_end")

def signal_add(A, srdname, off_sgpr_or_imm, val, t0, t1):
    I = A.I
    l = A.newlabel("sig")
    I(f"s_cmp_lg_u32 s{sWV}, 0"); I(f"s_cbranch_scc1 {l}")
    I(f"v_mov_b32 v{t0}, {val}"); I(f"v_mov_b32 v{t1}, {off_sgpr_or_imm}")
    I("s_mov_b64 exec, 1")
    I(f"buffer_atomic_add v{t0}, v{t1}, {srdname}, 0 offen")
    I("s_mov_b64 exec, -1")
    A.label(l)

def signal_store(A, off, val, t0, t1):
    I = A.I
    l = A.newlabel("sig")
    I(f"s_cmp_lg_u32 s{sWV}, 0"); I(f"s_cbranch_scc1 {l}")
    I(f"v_mov_b32 v{t0}, {val}"); I(f"v_mov_b32 v{t1}, {off}")
    I("s_mov_b64 exec, 1")
    I(f"buffer_store_dword v{t0}, v{t1}, {WSS}, 0 offen sc1")
    I("s_mov_b64 exec, -1")
    A.label(l)

def wait_ge(A, srdname, off, target, t0, t1, sres, sleep=2, mask=None, barrier=True, allwaves=False):
    I = A.I
    l = A.newlabel("wt"); e = A.newlabel("wte")
    if not allwaves:
        I(f"s_cmp_lg_u32 s{sWV}, 0"); I(f"s_cbranch_scc1 {e}")
    I(f"v_mov_b32 v{t1}, {off}")
    A.label(l)
    I(f"buffer_load_dword v{t0}, v{t1}, {srdname}, 0 offen sc1")
    I(f"s_add_u32 s{sSPIN}, s{sSPIN}, 1")
    I("s_waitcnt vmcnt(0)")
    I(f"v_readfirstlane_b32 s{sres}, v{t0}")
    I(f"s_cmp_gt_u32 s{sSPIN}, {SPIN_MAX}"); I(f"s_cbranch_scc1 {e}")
    if mask is not None:
        I(f"s_and_b32 s{sres+1}, s{sres}, {mask}"); I(f"s_cmp_ge_u32 s{sres+1}, {target}")
    else:
        I(f"s_cmp_ge_u32 s{sres}, {target}")
    I(f"s_cbranch_scc1 {e}")
    if sleep: I(f"s_sleep {sleep}")
    I(f"s_branch {l}")
    A.label(e)
    if barrier: I("s_barrier")

sLOC = 31
sSEG, sXB, sCNT, sA0, sA1 = 18, 19, 20, 21, 22
sD0, sD1, sD2 = 34, 35, 36
def dual(A, fn):
    g = A.newlabel("dg"); e = A.newlabel("de")
    A.I(f"s_cmp_eq_u32 s{sLOC}, 0"); A.I(f"s_cbranch_scc1 {g}")
    fn(""); A.I(f"s_branch {e}")
    A.label(g); fn("sc1"); A.label(e)

def group_mode(A, t0, t1):
    I = A.I
    I(f"s_and_b32 s24, s{sG}, 1"); I("s_lshl_b32 s24, s24, 6"); I(f"s_lshr_b32 s25, s{sG}, 1"); I("s_lshl_b32 s25, s25, 2"); I("s_add_u32 s24, s24, s25")
    I(f"v_mov_b32 v{t1}, s24")
    I(f"buffer_load_dword v{t0}, v{t1}, {DBG}, 0 offen sc1")
    I("s_waitcnt vmcnt(0)")
    I(f"v_readfirstlane_b32 s24, v{t0}")
    I("s_cmp_ge_u32 s24, 32"); I(f"s_cselect_b32 s{sLOC}, 1, 0")

def gsignal(A, sline, t0, t1):
    I = A.I
    l = A.newlabel("gs")
    I(f"s_cmp_lg_u32 s{sWV}, 0"); I(f"s_cbranch_scc1 {l}")
    I(f"s_lshl_b32 s24, s{sH}, 2")
    I(f"s_add_u32 s25, s{sSEG}, 1"); I(f"v_mov_b32 v{t0}, s25"); I(f"v_mov_b32 v{t1}, s24")
    I("s_mov_b64 exec, 1")
    dual(A, lambda f: I(f"buffer_store_dword v{t0}, v{t1}, {WSS}, s{sline} offen {f}"))
    I("s_mov_b64 exec, -1")
    A.label(l)

def gwait(A, sline, t0, t1, sleep=0, barrier=True):
    I = A.I
    l = A.newlabel("gw"); e = A.newlabel("gwe")
    I(f"s_cmp_lg_u32 s{sWV}, 0"); I(f"s_cbranch_scc1 {e}")
    I(f"v_and_b32 v{t1}, 31, v{wLN}"); I(f"v_lshlrev_b32 v{t1}, 2, v{t1}")
    A.label(l)
    I(f"buffer_load_dword v{t0}, v{t1}, {WSS}, s{sline} offen sc1")
    I(f"s_add_u32 s{sSPIN}, s{sSPIN}, 1")
    I(f"s_cmp_gt_u32 s{sSPIN}, {SPIN_MAX}"); I(f"s_cbranch_scc1 {e}")
    I("s_waitcnt vmcnt(0)")
    I(f"v_cmp_ge_u32 vcc, s{sSEG}, v{t0}")
    if sleep: I(f"s_sleep {sleep}")
    I(f"s_cbranch_vccnz {l}")
    A.label(e)
    if barrier: I("s_barrier")

def allreduce(A, regs, tmp, op="add"):
    I = A.I
    for rot in (8, 4, 2, 1):
        for r in regs: I(f"v_{op}_f32_dpp v{r}, v{r}, v{r} row_ror:{rot} row_mask:0xf bank_mask:0xf")
    for sw in ("16", "32"):
        for r in regs:
            I(f"v_mov_b32 v{tmp}, v{r}")
            I(f"v_permlane{sw}_swap_b32 v{r}, v{tmp}")
            I(f"v_{op}_f32 v{r}, v{r}, v{tmp}")

def unpack(A, src, dst, n):
    for i in range(n):
        A.I(f"v_lshlrev_b32 v{dst+2*i}, 16, v{src+i}")
        A.I(f"v_and_b32 v{dst+2*i+1}, 0xffff0000, v{src+i}")

def rbf(A, r):
    A.I(f"v_cvt_pk_bf16_f32 v{r}, v{r}, v{r}")
    A.I(f"v_and_b32 v{r}, 0xffff0000, v{r}")

def ln_finish(A, mean, var):
    I = A.I
    rbf(A, mean); rbf(A, var)
    I(f"v_add_f32 v{var}, {hex(f2u(1e-5))}, v{var}")
    rbf(A, var)
    I(f"v_sqrt_f32 v{var}, v{var}")
    rbf(A, var)
    I(f"v_rcp_f32 v{var}, v{var}")

def ln_row(A, x, out, t):
    I = A.I
    m, v, tm, d = t, t + 1, t + 2, t + 4
    I(f"v_add_f32 v{m}, v{x}, v{x+1}")
    for i in range(2, 8): I(f"v_add_f32 v{m}, v{m}, v{x+i}")
    allreduce(A, [m], tm)
    I(f"v_mul_f32 v{m}, {hex(f2u(1/512))}, v{m}")
    for i in range(8): I(f"v_sub_f32 v{d+i}, v{x+i}, v{m}")
    I(f"v_mul_f32 v{v}, v{d}, v{d}")
    for i in range(1, 8): I(f"v_fmac_f32 v{v}, v{d+i}, v{d+i}")
    allreduce(A, [v], tm)
    I(f"v_mul_f32 v{v}, {hex(f2u(1/512))}, v{v}")
    ln_finish(A, m, v)
    for i in range(8): I(f"v_sub_f32 v{d+i}, v{x+i}, v{m}")
    for i in range(4): I(cv(out + i, d + 2*i))
    unpack(A, out, d, 4)
    for i in range(8): I(f"v_mul_f32 v{d+i}, v{d+i}, v{v}")
    for i in range(4): I(cv(out + i, d + 2*i))

def lanes(A):
    I = A.I
    I(f"v_and_b32 v{wLN}, 63, v0")
    I(f"v_and_b32 v{wC}, 15, v{wLN}")
    I(f"v_lshrrev_b32 v{wG}, 4, v{wLN}")
    I(f"v_lshrrev_b32 v{wR}, 2, v{wC}")
    I(f"v_and_b32 v{wCP}, 3, v{wC}")
    I(f"v_lshlrev_b32 v{wL16}, 4, v{wLN}")
    I(f"s_mov_b32 s{sSPIN}, 0")

def p_init(A):
    I = A.I
    sJ = 18
    I(f"s_sub_u32 s{sJ}, s{sG}, 6"); I(f"s_lshl_b32 s{sJ}, s{sJ}, 5"); I(f"s_add_u32 s{sJ}, s{sJ}, s{sH}")
    srd(A, 0, 2 << 20)
    I(f"s_lshl_b32 s24, s{sJ}, 15"); I(f"s_lshl_b32 s25, s{sWV}, 13"); I("s_add_u32 s24, s24, s25")
    I("s_add_u32 s25, s24, 4096")
    for i in range(8): I(f"buffer_load_dwordx4 {vr(32+4*i,4)}, v{wL16}, {SW}, s{24 if i < 4 else 25} offen offset:{(i&3)*1024}")
    I("v_lshlrev_b32 v10, 2, v0"); I("v_mov_b32 v11, 0"); I(f"s_lshl_b32 s26, s{sJ}, 10")
    I(f"buffer_store_dword v11, v10, {WSS}, s26 offen sc1")
    I(f"s_add_u32 s24, s24, {WS_XN}"); I(f"s_add_u32 s25, s25, {WS_XN}")
    for i in range(8):
        I(f"s_waitcnt vmcnt({8})")
        unpack(A, 32 + 4*i, 12, 4)
        ln_row(A, 12, 64 + 4*i, 20)
        I(f"buffer_store_dwordx4 {vr(64+4*i,4)}, v{wL16}, {WSS}, s{24 if i < 4 else 25} offen offset:{(i&3)*1024} sc1")
    I("s_waitcnt vmcnt(0)")
    I("s_barrier")
    signal_add(A, DBG, D_PINIT, 1, 10, 11)
    if TRACE[0]: I("v_writelane_b32 v28, s64, 0")
    TS(A, 28, 1)
    I("v_lshlrev_b32 v10, 4, v0")
    for mat in (16, 40):
        I(f"s_load_dwordx2 s[44:45], s[0:1], {mat}"); I(f"s_mov_b32 s46, {4<<20}"); I("s_mov_b32 s47, 0x20000")
        I(f"s_lshl_b32 s26, s{sJ}, 12")
        I("s_waitcnt lgkmcnt(0)")
        for i in range(16):
            I(f"buffer_load_dwordx4 v[{100+4*i}:{103+4*i}], v10, s[44:47], s26 offen")
            I(f"s_add_u32 s26, s26, {1<<18}")

def w256_addr(A, vd, vt):
    I = A.I
    I(f"s_lshl_b32 s24, s{sWV}, 2")
    I(f"v_add_u32 v{vd}, s24, v{wG}")
    I(f"v_lshlrev_b32 v{vd}, 13, v{vd}")
    I(f"s_lshr_b32 s24, s{sWV}, 1"); I("s_lshl_b32 s24, s24, 3")
    I(f"v_lshlrev_b32 v{vt}, 1, v{wG}")
    I(f"v_or_b32 v{vt}, s24, v{vt}")
    I(f"v_xor_b32 v{vt}, v{wC}, v{vt}")
    I(f"v_lshl_add_u32 v{vd}, v{vt}, 4, v{vd}")
    I(f"s_lshl_b32 s24, s{sH}, 8")
    I(f"v_add_u32 v{vd}, s24, v{vd}")
    I(f"v_and_b32 v{vt}, 1, v{wG}")
    I(f"v_lshl_add_u32 v{vt}, v{vt}, 2, v{wR}")
    I(f"s_lshl_b32 s24, s{sWV}, 1")
    I(f"v_xor_b32 v{vt}, s24, v{vt}")
    I(f"v_lshlrev_b32 v{vt}, 5, v{vt}")
    I(f"v_lshl_add_u32 v{vt}, v{wCP}, 3, v{vt}")
    I(f"v_lshl_add_u32 v{vt+1}, v{wG}, 3, v{wR}")
    I(f"v_lshl_add_u32 v{vt}, v{vt+1}, 8, v{vt}")
    I(f"v_xor_b32 v{vt+1}, 32, v{vt}")
def w256_dma(A, vd, half):
    I = A.I
    I(f"s_lshl_b32 s24, s{sWV}, 10")
    for i in range(16):
        I(f"s_add_u32 m0, s24, {half*65536 + i*4096}")
        I(f"s_mov_b32 s25, {(256*half + 16*i)*8192}")
        I(f"buffer_load_dwordx4 v{vd}, {SW}, s25 offen lds")
def w256_read(A, vt, half, abase):
    for eps in range(2):
        for k in range(8):
            for u in range(2):
                A.I(f"ds_read_b64_tr_b16 {ar(abase + (eps*16 + 8*half + k)*4 + 2*u, 2)}, v{vt+eps} offset:{(32*k + 4*u)*256}")
    A.I("s_waitcnt lgkmcnt(0)")
    A.I(f"v_xor_b32 v{vt}, 0x10000, v{vt}"); A.I(f"v_xor_b32 v{vt+1}, 0x10000, v{vt+1}")

def rows_addr(A, vd, va, perm=False):
    I = A.I
    if not perm:
        I(f"v_xor_b32 v{va}, v{wG}, v{wC}")
        I(f"v_lshlrev_b32 v{va}, 4, v{va}")
        I(f"v_lshl_add_u32 v{va}, v{wC}, 10, v{va}")
    for k in range(1, 4): I(f"v_xor_b32 v{va+k}, {k<<6}, v{va}")
def rows_dma(A, vtmp, sbase, lds, ld="sc1"):
    I = A.I
    I(f"s_lshl_b32 s24, s{sWV}, 13")
    I(f"s_add_u32 s25, s24, s{sbase}")
    I(f"s_and_b32 s26, s{sWV}, 1"); I("s_lshl_b32 s26, s26, 7")
    for i in range(8):
        I(f"s_add_u32 s27, s26, {i<<4}")
        I(f"v_xor_b32 v{vtmp}, s27, v{wL16}")
        if isinstance(lds, int): I(f"s_add_u32 m0, s24, {lds + i*1024}")
        else:
            I(f"s_add_u32 s27, s24, {i*1024}"); I(f"s_add_u32 m0, s27, {lds}")
        I(f"buffer_load_dwordx4 v{vtmp}, {WSS}, s25 offen {ld} lds")
        I("s_add_u32 s25, s25, 1024")

def rows_dma_prep(A, sbase, lds):
    I = A.I
    I(f"s_lshl_b32 s{sD0}, s{sWV}, 13")
    I(f"s_add_u32 s{sD1}, s{sD0}, s{sbase}")
    I(f"s_add_u32 s{sD0}, s{sD0}, {lds}")
    I(f"s_and_b32 s{sD2}, s{sWV}, 1"); I(f"s_lshl_b32 s{sD2}, s{sD2}, 7")
def rows_dma_items(vtmp):
    return [([f"s_mov_b32 m0, s{sD0}", f"s_add_u32 s{sD0}, s{sD0}, 1024", f"v_xor_b32 v{vtmp}, s{sD2}, v{wL16}"],
             [f"buffer_load_dwordx4 v{vtmp}, {WSS}, s{sD1} offen sc1 lds", f"s_add_u32 s{sD1}, s{sD1}, 1024", f"s_add_u32 s{sD2}, s{sD2}, 16"]) for i in range(8)]

def h_phase1(A):
    I = A.I
    vD, vTt, vXA, vTm = 8, 10, 12, 16
    if TRACE[0]: I("v_writelane_b32 v188, s64, 0")
    TS(A, 188, 1)
    w256_addr(A, vD, vTt)
    srd(A, 24, 4 << 20)
    w256_dma(A, vD, 0); w256_dma(A, vD, 1)
    rows_addr(A, None, vXA)
    I(f"s_sub_u32 s{sSEG}, s{sG}, 1")
    for ci in range(4):
        I(f"s_waitcnt vmcnt({16 if ci < 3 else 0})")
        I("s_barrier")
        w256_read(A, vTt, ci & 1, 128 * (ci >> 1))
        I("s_barrier")
        if ci == 0: srd(A, 32, 4 << 20)
        if ci < 2: w256_dma(A, vD, ci)
    TS(A, 188, 2)
    I("v_lshlrev_b32 v20, 4, v0")
    for i in range(4): I(f"v_mov_b32 v{24+i}, -1")
    I(f"s_mul_i32 s24, s{sH}, 65"); I(f"s_add_u32 s24, s24, s{sSEG}"); I("s_lshl_b32 s24, s24, 12"); I(f"s_add_u32 s24, s24, {WS_KM}")
    for i in range(13):
        I(f"buffer_store_dwordx4 v[24:27], v20, {WSS}, s24 offen sc1")
        I(f"s_add_u32 s24, s24, {NG*4096}")
    wait_ge(A, DBG, D_PINIT, 64, 20, 21, 24)
    TS(A, 188, 3)
    I(f"s_lshl_b32 s{sA0}, s{sSEG}, 15"); I(f"s_add_u32 s{sA0}, s{sA0}, {WS_XN}")
    I(f"s_mov_b32 s{sXB}, 0"); I(f"s_mov_b32 s{sCNT}, 0")
    rows_dma(A, vTm, sA0, 0)
    I("s_waitcnt vmcnt(0)")
    A.label("H1_loop")
    I("s_waitcnt vmcnt(4)")
    I("s_barrier")
    I(f"s_lshl_b32 s28, s{sH}, 7"); I(f"s_lshl_b32 s29, s{sG}, 2"); I("s_add_u32 s28, s28, s29"); I(f"s_add_u32 s28, s28, {F_KV - 4}")
    I(f"s_max_u32 s29, s{sCNT}, 1"); I("s_sub_u32 s29, s29, 1")
    signal_store(A, "s28", "s29", 20, 21)
    if TRACE[0]: I(f"s_add_u32 s61, s{sCNT}, 8")
    TS(A, 188, "s61")
    I(f"s_add_u32 s{sA0}, s{sA0}, {NG << 15}")
    I(f"s_xor_b32 s{sXB}, s{sXB}, 32768")
    I(f"s_cmp_ge_u32 s{sSEG}, {64 - NG}"); I(f"s_cselect_b32 s{sA0}, {OOB}, s{sA0}")
    rows_dma_prep(A, sA0, f"s{sXB}")
    items = rows_dma_items(vTm)
    XF = 24; AC = 56
    def rd(ks): return [f"ds_read_b128 {vr(XF + 8*(ks&3) + 4*t,4)}, v{vXA + (ks&3)} offset:{(ks>>2)*256 + t*16384}" for t in range(2)]
    for ks in range(3):
        for x in rd(ks): I(x)
    for ks in range(16):
        I(f"s_waitcnt lgkmcnt({4 if ks < 14 else (2 if ks == 14 else 0)})")
        ms = []
        for eps in range(2):
            for t in range(2):
                xk = vr(XF + 8*(ks&3) + 4*t, 4)
                dk = AC + 8*t + 4*eps; dv = AC + 16 + 8*eps + 4*t
                ms.append(f"v_mfma_f32_16x16x32_bf16 {vr(dk,4)}, {ar((eps*16+ks)*4,4)}, {xk}, {'0' if ks == 0 else vr(dk,4)}")
                ms.append(f"v_mfma_f32_16x16x32_bf16 {vr(dv,4)}, {xk}, {ar(128+(eps*16+ks)*4,4)}, {'0' if ks == 0 else vr(dv,4)}")
        fl = [[x] for x in rd(ks + 3)] if ks + 3 < 16 else [[], []]
        if ks < 8: fl += [[], items[ks][0], items[ks][1]]
        slots(A, ms, fl)
    for k in range(4): I(f"v_xor_b32 v{vXA+k}, 0x8000, v{vXA+k}")
    I(f"s_lshl_b32 s24, s{sSEG}, 19"); I(f"s_lshl_b32 s25, s{sH}, 14"); I("s_add_u32 s24, s24, s25"); I(f"s_add_u32 s24, s24, {WS_KV}")
    I(f"s_lshl_b32 s25, s{sWV}, 10"); I("s_add_u32 s26, s24, s25"); I("s_add_u32 s27, s26, 4096")
    I("s_add_u32 s25, s25, s26"); I("s_add_u32 s25, s25, 8192")
    for j in range(4):
        for i in range(4): I(cv(88 + 4*j + i, AC + 8*j + 2*i))
    I(f"buffer_store_dwordx4 v[88:91], v{wL16}, {WSS}, s26 offen sc1")
    I(f"buffer_store_dwordx4 v[92:95], v{wL16}, {WSS}, s27 offen sc1")
    I(f"buffer_store_dwordx4 v[96:99], v{wL16}, {WSS}, s25 offen sc1")
    I(f"buffer_store_dwordx4 v[100:103], v{wL16}, {WSS}, s25 offen offset:1024 sc1")
    I(f"s_add_u32 s{sCNT}, s{sCNT}, 1")
    I(f"s_add_u32 s{sSEG}, s{sSEG}, {NG}")
    I(f"s_cmp_lt_u32 s{sSEG}, 64"); I("s_cbranch_scc1 H1_loop")
    I("s_waitcnt vmcnt(0)")
    I("s_barrier")
    signal_store(A, "s28", 100, 20, 21)
    TS(A, 188, 4)

def chain_role(A, opt):
    I = A.I
    I("v_lshlrev_b32 v10, 4, v0")
    for i in range(4): I(f"v_mov_b32 v{12+i}, -1")
    I(f"s_lshl_b32 s24, s{sH}, 13"); I(f"s_add_u32 s24, s24, {WS_HA}")
    for sl in range(2):
        for hf in range(2):
            I(f"s_add_u32 s25, s24, {sl*(256<<10) + hf*4096}")
            I(f"buffer_store_dwordx4 v[12:15], v10, {WSS}, s25 offen sc1")
    I("v_lshlrev_b32 v10, 2, v0")
    I(f"s_lshl_b32 s24, s{sH}, 10"); I(f"s_add_u32 s24, s24, {WS_HB}")
    I(f"buffer_store_dword v12, v10, {WSS}, s24 offen sc1")
    if TRACE[0]: I("s_memrealtime s[66:67]")
    def hooks(A, what, ci):
        if what == "landed" and ci == 0:
            I("s_lshl_b32 s41, s40, 16"); I("s_add_u32 s41, s41, 1")
            signal_add(A, DBG, D_CHAIN, "s41", vT, vT + 1)
        if what == "issued" and ci == 6:
            I(f"v_mov_b32 v28, {D_PINIT}")
            I(f"buffer_load_dwordx2 {vr(vT,2)}, v28, {DBG}, 0 offen sc1")
        if what == "landed" and ci == 6:
            I(f"v_readfirstlane_b32 s43, v{vT}"); I(f"v_readfirstlane_b32 s42, v{vT+1}")
            I("s_cmp_lt_u32 s43, 64"); I("s_cbranch_scc1 L_ch_slow")
            I("s_and_b32 s43, s42, 0xffff"); I("s_cmp_ge_u32 s43, 32"); I("s_cbranch_scc1 L_ch_fast")
            A.label("L_ch_slow")
            wait_ge(A, DBG, D_PINIT, 64, vT, vT + 1, 42, barrier=False, allwaves=True, sleep=4)
            wait_ge(A, DBG, D_CHAIN, 32, vT, vT + 1, 42, mask=0xffff, barrier=False, allwaves=True, sleep=4)
            A.label("L_ch_fast")
            kv_flag_load(A)
        if what == "landed" and ci == 7:
            kv_wait(A, "CI", 0, preloaded=True)
            for x in kv_dma(A, "sc1"): I(x)
    chain_setup(A, "", hooks)
    if TRACE[0]: I("s_memrealtime s[68:69]"); I("s_waitcnt lgkmcnt(0)")
    if TRACE[0]: I("s_memrealtime s[70:71]"); I("s_memtime s[80:81]"); I("s_waitcnt lgkmcnt(0)")
    I("s_lshr_b32 s42, s42, 16")
    I("s_cmp_lg_u32 s42, 0")
    I("s_cbranch_scc1 L_chain_global")
    o = dict(opt); o["mega"] = 1
    def stamp(A, i):
        if i == 6:
            l = A.newlabel("st")
            A.I(f"s_and_b32 s60, s{sSTEP}, 7"); A.I("s_cmp_eq_u32 s60, 1"); A.I(f"s_cbranch_scc0 {l}")
            A.I("s_memrealtime s[62:63]"); A.I("s_memtime s[60:61]"); A.I("s_waitcnt lgkmcnt(0)")
            for k in range(8):
                A.I(f"s_cmp_eq_u32 s{sSTEP}, {8*k+1}"); A.I(f"s_cselect_b32 s{72+k}, s62, s{72+k}"); A.I(f"s_cselect_b32 s{84+k}, s60, s{84+k}")
            A.label(l)
    chain_loop(A, "", "CL", stamp if TRACE[0] else None, "sc1", o)
    I("s_branch L_chain_end")
    A.label("L_chain_global")
    chain_loop(A, "sc1", "CG", None, "sc1", o)
    A.label("L_chain_end")
    if TRACE[0]:
        for i, r in enumerate([64, 66, 68, 70]): I(f"v_writelane_b32 v20, s{r}, {i}")
        TS(A, 20, 4)
        I("s_memtime s[62:63]"); I("s_waitcnt lgkmcnt(0)"); I("s_sub_u32 s62, s62, s80"); I("v_writelane_b32 v20, s62, 7")
        I(f"v_writelane_b32 v20, s{sSPIN}, 5"); I(f"v_writelane_b32 v20, s{sSPA}, 6")
        for k in range(8): I(f"v_writelane_b32 v20, s{72+k}, {8+k}")
        for k in range(8): I(f"v_writelane_b32 v20, s{84+k}, {16+k}")
        TDUMP(A, [20], 21, (0, 4, 0, 5))
```

```python
from asmlib import *
import struct

WS_KV = 2 << 20
WS_KM = (36 << 20) + 4096
WS_HA = 48 << 20
WS_HB = 49 << 20
WS_XN = 50 << 20
WS_H = 52 << 20
WS_HN = 54 << 20
WS_Z = 56 << 20
WS_ZS = 62 << 20
WS_U = 72 << 20
WS_PART = 64 << 20
F_KV = 0; F_PART = 4096; F_HN = 6144; F_ZL = 8192; F_Z = 16384
NG = 5
NG1 = 7
WS_BYTES = 256 << 20
LW = 128 << 10
L_MEM = 0; L_QK = 0; L_O = 4096; L_V = 8192; L_K = 16384
LDS_BYTES = 160 << 10
SCALE_LOG2E = (128 ** -0.5) * 1.4426950408889634

SPIN_MAX = 1 << 18
def f2u(x): return struct.unpack("<I", struct.pack("<f", x))[0]
def vr(b, n): return f"v[{b}:{b+n-1}]"
def ar(b, n): return f"a[{b}:{b+n-1}]"

vIDX, vL16, vT, vMW, vOR, vKR, vSEL = 0, 1, 2, 4, 5, 6, 7
vXW, vTR, vOW, vF0, vF1, vAST, vALD, vBST = 8, 9, 10, 11, 12, 13, 14, 15
PZ = 16
M = 20; AQ = 52; AK = 60; AV = 68; KX = 76; VX = 108; S = 116
sWS = 4
sW = 8
sDBG = 12
sH, sWV, sSTEP, sHA, sHB, sKV, sKM, sSPIN, sT0, sT1, sT2, sT3, sSC = 16, 17, 18, 19, 20, 21, 22, 23, 24, 25, 26, 27, 28
sM0A, sM0B, sRA, sRB, sRC, sPF, sSPA, sB0, sB1 = 29, 30, 31, 32, 33, 34, 35, 36, 37
sRDY = 38
vFL = 14
sMSK = 52

LRES = [(0, 0, 0), (0, 1, 0), (1, 0, 0), (1, 1, 0), (0, 0, 1), (0, 1, 1)]
LBUF = [VX, VX + 8, KX, KX + 8, KX + 16, KX + 24]
WOL = [(3, 0, 2), (3, 1, 1), (3, 1, 3), (3, 1, 2), (3, 2, 1), (3, 2, 3), (3, 2, 2), (3, 3, 1), (3, 3, 3), (3, 3, 2)]
WBUF = [M + 8, M + 16, M + 24, KX + 16, KX + 24, KX, KX + 8, M, S, M + 8]
NL = len(LRES); NW = len(WOL)
_slots = {}
def _assign():
    n = 0
    for mat in range(3):
        for tau in range(2):
            for p in range(8):
                if (mat, tau, p) in LRES: continue
                _slots[(mat, tau, p)] = n; n += 1
    for p in range(4):
        for j in range(4):
            if (3, p, j) in WOL: continue
            _slots[(3, p, j)] = n; n += 1
    assert n == 48
_assign()
def slot_reg(key, off, n):
    i = _slots[key] * 8 + off
    return ar(i, n) if i < 256 else vr(128 + i - 256, n)
def wfrag(*key):
    if key in LRES: return vr(LBUF[LRES.index(key)], 8)
    if key in WOL: return vr(WBUF[WOL.index(key)], 8)
    return slot_reg(key, 0, 8)

def smf(acc, a, b): return f"v_smfmac_f32_16x16x64_bf16 {vr(acc,4)}, {vr(a,4)}, {b}, v{vIDX}"
def mf32(d, a, b, c): return f"v_mfma_f32_16x16x32_bf16 {vr(d,4)}, {vr(a,4)}, {vr(b,4)}, {c}"
def mf16(d, a, b, c): return f"v_mfma_f32_16x16x16_bf16 {vr(d,4)}, {vr(a,2)}, {vr(b,2)}, {c}"

def chain_setup(A, st, hooks=None):
    I = A.I
    WS = f"s[{sWS}:{sWS+3}]"
    LN, C, G, R, R0, R1, G0, G1, CP, X, Y, Z = 40, 41, 42, 43, 44, 45, 46, 47, 48, 49, 50, 51
    I(f"v_lshrrev_b32 v{X}, 6, v0")
    I(f"v_and_b32 v{LN}, 63, v0")
    I(f"v_readfirstlane_b32 s{sWV}, v{X}")
    I(f"v_and_b32 v{C}, 15, v{LN}")
    I(f"v_lshrrev_b32 v{G}, 4, v{LN}")
    I(f"v_lshrrev_b32 v{R}, 2, v{C}")
    I(f"v_and_b32 v{R0}, 1, v{R}")
    I(f"v_lshrrev_b32 v{R1}, 1, v{R}")
    I(f"v_and_b32 v{G0}, 1, v{G}")
    I(f"v_lshrrev_b32 v{G1}, 1, v{G}")
    I(f"v_and_b32 v{CP}, 3, v{C}")
    I(f"s_and_b32 s{sT0}, s{sWV}, 1")
    I(f"s_lshl_b32 s{sT0}, s{sT0}, 2")
    I(f"s_lshr_b32 s{sT1}, s{sWV}, 1")
    I(f"s_lshl_b32 s{sT1}, s{sT1}, 4")
    I(f"s_add_u32 s{sT0}, s{sT0}, s{sT1}")
    I(f"v_add_u32 v20, s{sT0}, v{G}")
    I("v_lshlrev_b32 v20, 13, v20")
    I(f"s_lshl_b32 s{sT0}, s{sWV}, 2")
    I(f"v_lshlrev_b32 v{X}, 1, v{G1}")
    I(f"v_or_b32 v{X}, s{sT0}, v{X}")
    I(f"v_xor_b32 v{X}, v{C}, v{X}")
    I(f"v_lshl_add_u32 v20, v{X}, 4, v20")
    I(f"s_lshl_b32 s{sT1}, s{sH}, 8")
    I(f"v_add_u32 v20, s{sT1}, v20")

    chunks = [(1, 0), (1, 1), (2, 0), (2, 1), (0, 0), (0, 1), (3, 0), (3, 1)]
    HOLD = 32; HW = HOLD + 8*NL
    def srd_for(mat):
        I(f"s_load_dwordx2 s[{sW}:{sW+1}], s[0:1], {16 + 8*mat}")
        I(f"s_mov_b32 s{sW+2}, {4<<20}")
        I(f"s_mov_b32 s{sW+3}, 0x20000")
        I("s_waitcnt lgkmcnt(0)")
    def dma(ci):
        mat, half = chunks[ci]
        if half == 0: srd_for(mat)
        reg = half * 65536
        if mat < 3:
            I(f"s_lshl_b32 s{sT0}, s{sWV}, 10")
            for i in range(16):
                I(f"s_add_u32 m0, s{sT0}, {reg + i*4096}")
                I(f"s_mov_b32 s{sT1}, {(32*i + 8*half)*8192}")
                I(f"buffer_load_dwordx4 v20, s[{sW}:{sW+3}], s{sT1} offen lds")
        else:
            I(f"s_lshl_b32 s{sT0}, s{sWV}, 14")
            for i in range(16):
                I(f"s_add_u32 m0, s{sT0}, {reg + i*1024}")
                I(f"s_mov_b32 s{sT1}, {((i&7) + 64*(i>>3) + 8*half)*1024}")
                I(f"buffer_load_dwordx4 v{21 + (i&1)}, s[{sW}:{sW+3}], s{sT1} offen lds")
    I(f"s_load_dwordx2 s[{sW}:{sW+1}], s[0:1], 8")
    I(f"s_mov_b32 s{sW+2}, 8192"); I(f"s_mov_b32 s{sW+3}, 0x20000")
    I(f"v_and_b32 v{Y}, 1, v{C}")
    I(f"v_lshl_add_u32 v{X}, v{R}, 1, v{Y}")
    I(f"v_lshlrev_b32 v{X}, 10, v{X}")
    I(f"v_lshl_add_u32 v{X}, v{G}, 8, v{X}")
    I(f"v_and_b32 v{Y}, 2, v{C}")
    I(f"v_lshl_add_u32 v{vT}, v{Y}, 2, v{X}")
    I("s_waitcnt lgkmcnt(0)")
    for k in range(8):
        I(f"buffer_load_dwordx2 {vr(60+4*k,2)}, v{vT}, s[{sW}:{sW+3}], 0 offen offset:{64*(k>>1) + 16*(k&1)}")
        I(f"buffer_load_dwordx2 {vr(62+4*k,2)}, v{vT}, s[{sW}:{sW+3}], 0 offen offset:{64*(k>>1) + 16*(k&1) + 32}")
    dma(0); dma(1)
    I(f"s_and_b32 s{sT0}, s{sWV}, 1")
    I(f"s_lshl_b32 s{sT0}, s{sT0}, 3")
    I(f"v_xor_b32 v21, s{sT0}, v{LN}")
    I("v_xor_b32 v22, 4, v21")
    I(f"s_lshl_b32 s{sT1}, s{sH}, 17")
    I(f"s_lshl_b32 s{sT2}, s{sWV}, 14")
    I(f"s_add_u32 s{sT1}, s{sT1}, s{sT2}")
    I("v_lshlrev_b32 v21, 4, v21")
    I("v_lshlrev_b32 v22, 4, v22")
    I(f"v_add_u32 v21, s{sT1}, v21")
    I(f"v_add_u32 v22, s{sT1}, v22")
    I(f"v_lshl_add_u32 v{X}, v{R1}, 1, v{G0}")
    I(f"v_lshl_add_u32 v{X}, v{R0}, 2, v{X}")
    I(f"v_lshlrev_b32 v{Y}, 9, v{X}")
    I(f"v_lshl_add_u32 v{Y}, v{G1}, 14, v{Y}")
    I(f"v_lshl_add_u32 v{Y}, v{CP}, 3, v{Y}")
    I(f"s_lshl_b32 s{sT1}, s{sWV}, 1")
    I(f"v_xor_b32 v{X}, s{sT1}, v{X}")
    I(f"v_lshl_add_u32 v23, v{X}, 5, v{Y}")
    I("v_xor_b32 v24, 32, v23")
    I(f"v_lshl_add_u32 v{Y}, v{G1}, 2, v{R0}")
    I(f"v_lshl_add_u32 v{Y}, v{G0}, 4, v{Y}")
    I(f"v_lshlrev_b32 v{Y}, 10, v{Y}")
    I(f"v_lshl_add_u32 v{Y}, v{CP}, 3, v{Y}")
    I(f"v_lshl_add_u32 v{X}, v{R0}, 1, v{R1}")
    I(f"v_lshl_add_u32 v{X}, v{G0}, 2, v{X}")
    I(f"v_lshl_add_u32 v{Y}, v{X}, 5, v{Y}")
    I(f"s_lshl_b32 s{sT1}, s{sWV}, 8")
    I(f"v_add_u32 v25, s{sT1}, v{Y}")
    I(f"v_lshlrev_b32 v{vL16}, 4, v{LN}")
    I(f"s_lshl_b32 s{sT1}, s{sWV}, 14")
    I(f"v_add_u32 v{vF0}, s{sT1}, v{vL16}")
    I(f"v_add_u32 v{vF1}, 0x10000, v{vF0}")
    I(f"v_add_u32 v{vL16}, {LW}, v{vL16}")
    I(f"s_lshl_b32 s{sT1}, s{sWV}, 11")
    I(f"v_add_u32 v{vMW}, s{sT1}, v{vL16}")
    I(f"s_lshl_b32 s{sT1}, s{sWV}, 10")
    I(f"v_add_u32 v{vOW}, s{sT1}, v{vL16}")
    I(f"v_and_b32 v{vOR}, {hex(0xffffffff ^ 32)}, v{vOW}")
    I(f"v_lshlrev_b32 v{X}, 5, v{C}")
    I(f"v_lshl_add_u32 v{X}, v{G}, 3, v{X}")
    I(f"s_add_u32 s{sT1}, s{sT1}, {LW}")
    I(f"v_add_u32 v{vXW}, s{sT1}, v{X}")
    I(f"v_lshlrev_b32 v{X}, 3, v{LN}")
    I(f"v_add_u32 v{vTR}, {LW}, v{X}")
    I(f"v_lshl_add_u32 v{X}, v{R1}, 2, v{G}")
    I(f"v_lshlrev_b32 v{X}, 13, v{X}")
    I(f"v_and_b32 v{Y}, 7, v{C}")
    I(f"v_lshl_add_u32 v{X}, v{Y}, 3, v{X}")
    I(f"s_lshl_b32 s{sT1}, s{sWV}, 16")
    I(f"s_lshl_b32 s{sT2}, s{sH}, 6")
    I(f"s_add_u32 s{sT1}, s{sT1}, s{sT2}")
    I(f"v_add_u32 v{vAST}, s{sT1}, v{X}")
    I(f"s_lshl_b32 s{sT1}, s{sWV}, 11")
    I(f"s_and_b32 s{sT2}, s{sH}, 4")
    I(f"s_lshl_b32 s{sT2}, s{sT2}, 8")
    I(f"s_add_u32 s{sT1}, s{sT1}, s{sT2}")
    I(f"s_lshr_b32 s{sT2}, s{sH}, 3")
    I(f"s_lshl_b32 s{sT2}, s{sT2}, 8")
    I(f"s_add_u32 s{sT1}, s{sT1}, s{sT2}")
    I(f"s_and_b32 s{sT2}, s{sH}, 3")
    I(f"s_lshl_b32 s{sT2}, s{sT2}, 6")
    I(f"s_add_u32 s{sT1}, s{sT1}, s{sT2}")
    I(f"v_and_b32 v{Y}, 1, v{C}")
    I(f"v_and_b32 v{Z}, 2, v{C}")
    I(f"v_add_u32 v{X}, v{Z}, v{G0}")
    I(f"v_lshlrev_b32 v{X}, 4, v{X}")
    I(f"v_lshl_add_u32 v{X}, v{Y}, 3, v{X}")
    I(f"v_lshl_add_u32 v{X}, v{G1}, 2, v{X}")
    I(f"v_add_u32 v{X}, s{sT1}, v{X}")
    I(f"v_mov_b32 v{Z}, 0x40000000")
    I(f"v_cmp_gt_u32 vcc, 4, v{C}")
    I(f"v_cndmask_b32 v{vBST}, v{Z}, v{X}, vcc")
    for i in range(4):
        I(f"s_mov_b32 s{sMSK+2*i}, {hex(0x000f000f << (4*i))}")
        I(f"s_mov_b32 s{sMSK+2*i+1}, {hex(0x000f000f << (4*i))}")
    I(f"v_lshlrev_b32 v{Z}, 4, v{Y}")
    I(f"v_mov_b32 v{X}, 0x3f80")
    I(f"v_lshlrev_b32 v{vSEL}, v{Z}, v{X}")
    I(f"v_add_u32 v{vKR}, {L_K}, v{vL16}")
    I(f"v_and_b32 v{Y}, 2, v{C}")
    I(f"v_mov_b32 v{X}, 0x44444444")
    I(f"v_mov_b32 v{Z}, 0xeeeeeeee")
    I(f"v_cmp_eq_u32 vcc, 0, v{Y}")
    I(f"v_cndmask_b32 v{vIDX}, v{Z}, v{X}, vcc")
    for i in range(4): I(f"v_mov_b32 v{PZ+i}, 0")
    I(f"s_mov_b32 s{sT1}, 0x05040100")
    I(f"s_mov_b32 s{sT2}, 0x07060302")
    I("s_waitcnt vmcnt(32)")
    for k in range(8):
        for x in range(4):
            I(f"v_perm_b32 v{92+4*k+x}, v{62+4*k+(x>>1)}, v{60+4*k+(x>>1)}, s{sT2 if x&1 else sT1}")
            I(f"v_min_u32 v{92+4*k+x}, -2, v{92+4*k+x}")
    for k in range(8):
        I(f"ds_write_b128 v{vL16}, {vr(92+4*k,4)} offset:{L_MEM + k*1024}")
    I(f"s_mov_b32 s{sHB}, {WS_HB}")
    I(f"s_mov_b32 s{sB0}, {WS_HB - LW}")
    I(f"s_lshl_b32 s{sB1}, s{sWV}, 11")
    I(f"s_add_u32 s{sB1}, s{sB1}, {LW + L_MEM}")
    I(f"s_mov_b32 s{sSTEP}, 0")
    I(f"s_mov_b32 s{sHA}, {WS_HA}")
    I(f"s_lshl_b32 s{sRC}, s{sH}, 13")
    I(f"s_sub_u32 s{sRC}, s{sRC}, {LW}")
    I(f"s_add_u32 s{sRA}, s{sRC}, {WS_HA + (256<<10)}")
    I(f"s_mov_b32 s{sRB}, {WS_HB + 3*8192}")
    I(f"s_lshl_b32 s{sKV}, s{sH}, 14")
    I(f"s_add_u32 s{sKV}, s{sKV}, {WS_KV - LW}")
    I(f"s_mul_i32 s{sKM}, s{sH}, {65*4096}")
    I(f"s_add_u32 s{sKM}, s{sKM}, {WS_KM - LW - 4096}")
    I(f"s_mov_b32 s{sSPIN}, 0")
    I(f"s_mov_b32 s{sSPA}, 0")
    I(f"s_mov_b32 s{sSC}, {hex(f2u(SCALE_LOG2E))}")
    I(f"s_lshl_b32 s{sM0A}, s{sWV}, 11")
    I(f"s_add_u32 s{sM0B}, s{sM0A}, {LW + L_V}")
    I(f"s_add_u32 s{sM0A}, s{sM0A}, {LW + L_K}")
    I(f"s_lshl_b32 s{sPF}, s{sWV}, 10")
    I(f"s_add_u32 s{sPF}, s{sPF}, {LW + L_MEM + 4096}")
    I("s_waitcnt lgkmcnt(0)")

    for ci in range(8):
        mat, half = chunks[ci]
        I(f"s_waitcnt vmcnt({(17 if (hooks and ci == 5) else 16) if ci < 7 else 0})")
        I("s_barrier")
        if hooks: hooks(A, "landed", ci)
        if mat < 3:
            for pp in range(4):
                for tau in range(2):
                    key = (mat, tau, 2*pp + half)
                    for u in range(4):
                        off = (u >> 1) * 32768 + (u & 1) * 256 + pp * 4096
                        dst = vr(HOLD + 8*LRES.index(key) + 2*u, 2) if key in LRES else slot_reg(key, 2*u, 2)
                        I(f"ds_read_b64_tr_b16 {dst}, v{23+tau} offset:{off}")
            I("s_waitcnt lgkmcnt(0)")
            I("v_xor_b32 v23, 0x10000, v23"); I("v_xor_b32 v24, 0x10000, v24")
            I("s_barrier")
            if ci + 2 < 8: dma(ci + 2)
            if hooks: hooks(A, "issued", ci + 2)
        else:
            for j in range(4):
                I(f"s_xor_b32 s{sT1}, s{sWV}, {j}")
                I(f"s_lshr_b32 s{sT2}, s{sT1}, 1")
                I(f"s_lshl_b32 s{sT2}, s{sT2}, 13")
                I(f"s_and_b32 s{sT1}, s{sT1}, 1")
                I(f"s_lshl_b32 s{sT1}, s{sT1}, 15")
                I(f"s_add_u32 s{sT1}, s{sT1}, s{sT2}")
                I(f"s_add_u32 s{sT1}, s{sT1}, {half*65536}")
                I(f"v_add_u32 v26, s{sT1}, v25")
                for p in range(4):
                    I(f"v_xor_b32 v27, {p<<6}, v26")
                    key = (3, p, j)
                    for u1 in range(2):
                        dst = vr(HW + 4*WOL.index(key) + 2*u1, 2) if key in WOL else slot_reg(key, 4*half + 2*u1, 2)
                        I(f"ds_read_b64_tr_b16 {dst}, v27 offset:{u1*2048}")
            I("s_waitcnt lgkmcnt(0)")
            I("s_barrier")
            a = vF1 if half else vF0
            for i in range(NL): I(f"ds_write_b128 v{a}, {vr(HOLD+8*i+4*half,4)} offset:{i*1024}")
            for i in range(NW): I(f"ds_write_b128 v{a}, {vr(HW+4*i,4)} offset:{(NL+i)*1024}")
            I("s_waitcnt lgkmcnt(0)")

def kv_dma(A, ld=""):
    return [f"s_mov_b32 m0, s{sM0A}",
            f"s_add_u32 s{sT3}, s{sKV}, 8192",
            f"buffer_load_dwordx4 v{vMW}, s[{sWS}:{sWS+3}], s{sKV} offen {ld} lds",
            f"buffer_load_dwordx4 v{vMW}, s[{sWS}:{sWS+3}], s{sKV} offen offset:1024 {ld} lds",
            f"s_mov_b32 m0, s{sM0B}",
            f"s_xor_b32 s{sM0A}, s{sM0A}, 8192",
            f"buffer_load_dwordx4 v{vMW}, s[{sWS}:{sWS+3}], s{sT3} offen {ld} lds",
            f"buffer_load_dwordx4 v{vMW}, s[{sWS}:{sWS+3}], s{sT3} offen offset:1024 {ld} lds",
            f"s_add_u32 s{sKV}, s{sKV}, {32*16384}"]

def kv_flag_load(A):
    I = A.I
    I(f"v_lshrrev_b32 v{vT}, 2, v{vL16}")
    I(f"s_lshl_b32 s{sT3}, s{sH}, 7")
    I(f"v_subrev_u32 v{vT}, {LW//4}, v{vT}")
    I(f"s_add_u32 s{sT3}, s{sT3}, {F_KV}")
    I(f"buffer_load_dword v{vFL}, v{vT}, s[{sWS}:{sWS+3}], s{sT3} offen sc1")

def kv_wait(A, pfx, need, preloaded=False):
    I = A.I
    I(f"s_branch {pfx}_kve")
    A.label(f"{pfx}_kvw")
    kv_flag_load(A)
    I(f"s_add_u32 s{sSPIN}, s{sSPIN}, 1")
    I("s_waitcnt vmcnt(0)")
    A.label(f"{pfx}_kve")
    I(f"v_readlane_b32 s{sRDY}, v{vFL}, 0")
    I(f"s_mul_i32 s{sRDY}, s{sRDY}, {NG1}")
    for g in range(1, NG1):
        I(f"v_readlane_b32 s{sT3}, v{vFL}, {g}")
        I(f"s_mul_i32 s{sT3}, s{sT3}, {NG1}")
        I(f"s_add_u32 s{sT3}, s{sT3}, {g}")
        I(f"s_min_u32 s{sRDY}, s{sRDY}, s{sT3}")
    I(f"s_cmp_gt_u32 s{sSPIN}, {SPIN_MAX}")
    I(f"s_cbranch_scc1 {pfx}_kvw_done")
    I(f"s_add_u32 s{sT3}, s{sSTEP}, {need}")
    I(f"s_cmp_ge_u32 s{sT3}, s{sRDY}")
    I(f"s_cbranch_scc1 {pfx}_kvw")
    A.label(f"{pfx}_kvw_done")
    kv_flag_load(A)

def hs(x): return f"v_pk_add_f32 {vr(x,2)}, {vr(x,2)}, {vr(x+2,2)}"
def hs2(x): return [f"v_add_f32 v{x}, v{x}, v{x+2}", f"v_add_f32 v{x+1}, v{x+1}, v{x+3}"]
def cv(d, x): return f"v_cvt_pk_bf16_f32 v{d}, v{x}, v{x+1}"
def zero(base, n): return [f"v_mov_b64 {vr(base+2*i,2)}, 0" for i in range(n // 2)]
def frag_rd(i, dst):
    return [f"ds_read_b128 {vr(dst,4)}, v{vF0} offset:{i*1024}", f"ds_read_b128 {vr(dst+4,4)}, v{vF1} offset:{i*1024}"]
def chk(base, tmp):
    return [f"v_max3_u32 v{tmp}, v{base}, v{base+1}, v{base+2}", f"v_max3_u32 v{tmp+1}, v{base+3}, v{base+4}, v{base+5}",
            f"v_max3_u32 v{tmp}, v{tmp}, v{base+6}, v{base+7}", f"v_max_u32 v{tmp}, v{tmp}, v{tmp+1}", f"v_cmp_eq_u32 vcc, -1, v{tmp}"]
def delay(A, n):
    while n > 0:
        k = min(n, 16); A.I(f"s_nop {k-1}"); n -= k
def slots(A, mfmas, fills):
    for i, m in enumerate(mfmas):
        A.I(m)
        if i < len(fills):
            for f in fills[i]: A.I(f)


def chain_loop(A, st, pfx, stamp=None, pub="sc1", opt={}):
    I = A.I
    WS = f"s[{sWS}:{sWS+3}]"
    nohop = opt.get("nohop")
    def T(i):
        if stamp: stamp(A, i)
    lres_rd = sum([frag_rd(i, LBUF[i]) for i in range(NL)], [])
    PB = S + 8
    NEG = S + 4
    mega = opt.get("mega")
    kld = "sc1" if mega else ""
    I("s_waitcnt lgkmcnt(0)")
    for x in ([] if mega else kv_dma(A, kld)) + lres_rd + zero(AQ, 24): I(x)
    I("s_waitcnt vmcnt(0) lgkmcnt(0)")
    I("s_barrier")
    I(f"s_branch {pfx}_go0")
    BS = [M + 16, M + 24]
    def pollB(b): return [f"buffer_load_dwordx4 {vr(b,4)}, v{vMW}, {WS}, s{sB0} offen sc1", f"buffer_load_dwordx4 {vr(b+4,4)}, v{vMW}, {WS}, s{sB0} offen offset:1024 sc1",
                          f"buffer_load_dwordx4 v{vMW}, {WS}, s{sB0} offen sc1 lds", f"buffer_load_dwordx4 v{vMW}, {WS}, s{sB0} offen offset:1024 sc1 lds"]
    NE = opt.get("NE", 2)
    mr = [f"ds_read_b128 {vr(M+4*k,4)}, v{vL16} offset:{L_MEM+1024*k}" for k in range(8)]
    def ckr(lo, hi):
        regs = list(range(M + 4*lo, M + 4*hi))
        out = [f"v_max3_u32 v{vT}, v{regs[0]}, v{regs[1]}, v{regs[2]}"]
        for i in range(3, len(regs) - 1, 2): out.append(f"v_max3_u32 v{vT}, v{vT}, v{regs[i]}, v{regs[i+1]}")
        out.append(f"v_max_u32 v{vT}, v{vT}, v{regs[-1]}")
        out.append(f"v_cmp_eq_u32 vcc, -1, v{vT}")
        return out
    assert NE == 2
    lateD = f"buffer_load_dwordx4 v{vOW}, {WS}, s{sT2} offen sc1 lds"
    if mega:
        kv_wait(A, pfx + "_l", 1)
        I(f"s_branch {pfx}_kv_ok")
    A.label(f"{pfx}_lateB")
    I(lateD)
    I(f"s_add_u32 s{sSPIN}, s{sSPIN}, 1")
    I(f"s_cmp_gt_u32 s{sSPIN}, {SPIN_MAX}")
    I("s_waitcnt vmcnt(1)")
    I(f"s_cbranch_scc1 {pfx}_lateB_ok")
    for x in mr[2*NE:]: I(x)
    I("s_waitcnt lgkmcnt(0)")
    for x in ckr(2*NE, 8): I(x)
    I(f"s_cbranch_vccnz {pfx}_lateB")
    A.label(f"{pfx}_lateB_ok")
    I("s_waitcnt vmcnt(0)")
    I(f"s_branch {pfx}_late_done")
    A.label(f"{pfx}_earlyB_retry")
    for x in pollB(BS[0]): I(x)
    I("s_waitcnt vmcnt(6)")
    c = chk(BS[1], vT)
    for x in c[:4]: I(x)
    I("s_waitcnt vmcnt(4)"); I(c[4])
    I(f"s_cbranch_vccz {pfx}_go")
    for x in pollB(BS[1]): I(x)
    I(f"s_add_u32 s{sSPIN}, s{sSPIN}, 1")
    I(f"s_cmp_gt_u32 s{sSPIN}, {SPIN_MAX}")
    I(f"s_cbranch_scc1 {pfx}_go")
    A.label(f"{pfx}_earlyB")
    I("s_waitcnt vmcnt(6)")
    c = chk(BS[0], vT)
    for x in c: I(x)
    I("s_waitcnt vmcnt(4)")
    if not nohop: I(f"s_cbranch_vccnz {pfx}_earlyB_retry")
    A.label(f"{pfx}_go")
    I(f"s_mov_b32 m0, s{sPF}")
    I("s_barrier")
    I(lateD)
    A.label(f"{pfx}_go0")
    T(0)
    acc = {0: AQ, 1: AK, 2: AV}
    def m1(mat, tau, p): return smf(acc[mat] + 4*tau, M + 4*p, wfrag(mat, tau, p))
    def mm(mat, p): return [m1(mat, 0, p), m1(mat, 1, p)]
    kx = [f"ds_read_b128 {vr(KX+4*i,4)}, v{vKR} offset:{1024*i}" for i in range(8)]
    vx = [f"ds_read_b128 {vr(VX+4*i,4)}, v{vMW} offset:{L_V+1024*i}" for i in range(2)]
    q0p = hs2(AQ) + [cv(AQ+2, AQ)]; q1p = hs2(AQ+4) + [cv(AQ+6, AQ+4)]
    k0p = hs2(AK) + [cv(AQ+3, AK)]; k1p = hs2(AK+4) + [cv(AQ+7, AK+4)]
    def ck(k):
        b = M + 4*k
        if k == 0: return [f"v_max3_u32 v{vT}, v{b}, v{b+1}, v{b+2}", f"v_max_u32 v{vT}, v{vT}, v{b+3}"]
        return [f"v_max3_u32 v{vT}, v{vT}, v{b}, v{b+1}", f"v_max3_u32 v{vT}, v{vT}, v{b+2}, v{b+3}"]
    cmpv = f"v_cmp_eq_u32 vcc, -1, v{vT}"
    dma = ["s_nop 0"]*9 if opt.get("nodma") else kv_dma(A, kld)
    resets = [f"buffer_store_dwordx4 {vr(NEG,4)}, v{vMW}, {WS}, s{sRA} offen {st}",
              f"buffer_store_dwordx4 {vr(NEG,4)}, v{vMW}, {WS}, s{sRA} offen offset:1024 {st}",
              f"buffer_store_dword v{NEG}, v{vBST}, {WS}, s{sRB} offen {st}"]
    publish = [] if opt.get("nopub") else [f"buffer_store_dwordx4 {vr(PB,4)}, v{vOW}, {WS}, s{sKM} offen {pub}"]
    for x in mr[:2*NE]: I(x)
    I(f"s_waitcnt lgkmcnt({2*NE-1})")
    T(10)
    vm = sum([mm(2, p) for p in range(8)], [])
    nvf = opt.get("nvf", 8)
    nb = opt.get("nb", 11)
    ph1 = sum([mm(0, k) + mm(1, k) for k in range(2*NE)], []) + vm[:nvf]
    vm = vm[nvf:]
    kvr = vx + kx
    fl = [[], ["s_waitcnt lgkmcnt(0)"]] + [[] for _ in range(nb - 2)]
    for i in range(5, nb - 1): fl[i].append(kvr.pop(0))
    slots(A, ph1[:nb], fl)
    I("s_waitcnt vmcnt(0)")
    T(11)
    I("s_barrier")
    T(12)
    rest = ph1[nb:]
    nl = 8 - 2*NE
    c = ckr(2*NE, 8)
    neg = [f"v_mov_b64 {vr(NEG,2)}, -1", f"v_mov_b64 {vr(NEG+2,2)}, -1"]
    fl = [[] for _ in rest]
    I(mr[4]); I(mr[5])
    fl[0] += [mr[6]]; fl[1] += [mr[7]]
    st0 = len(rest) - 1 - len(c)
    nk = len(kvr)
    fl[st0].append("s_waitcnt lgkmcnt(2)")
    fl[st0+3].append("s_waitcnt lgkmcnt(0)")
    for i, x in enumerate(c):
        if i >= 4 and kvr: fl[st0+i].append(kvr.pop(0))
        fl[st0+i].append(x)
    fl[2] = publish + fl[2]
    slots(A, rest, fl)
    if not nohop: I(f"s_cbranch_vccnz {pfx}_lateB")
    A.label(f"{pfx}_late_done")
    if mega:
        I(f"s_cmp_le_u32 s{sRDY}, 64")
        I(f"s_cbranch_scc1 {pfx}_l_kve")
        A.label(f"{pfx}_kv_ok")
    T(14)
    qs = sum([mm(0, k) + mm(1, k) for k in range(2*NE, 4)], []) + mm(0, 4) + mm(0, 5) + mm(0, 6) + mm(0, 7)
    fl = [[kvr.pop(0)] if kvr else [] for _ in qs]
    fl[0] += [dma[0]]; fl[1] += [dma[2]]; fl[2] += [dma[1]] + neg[:1]; fl[3] += neg[1:]; fl[5] += [dma[3], dma[4]]; fl[6] += [dma[5]]
    fl[7] += ["s_waitcnt lgkmcnt(8)"]
    slots(A, qs, fl)
    ks = [m1(1, 0, p) for p in range(4, 8)] + [m1(1, 1, p) for p in range(4, 8)]
    slots(A, ks, [["s_nop 2"], [dma[6], "s_nop 0", q0p[0]], [q0p[1]], [q0p[2]], [q1p[0]], [dma[7], dma[8], q1p[1]], [q1p[2]], [k0p[0]]])
    T(13)
    for x in k0p[1:]: I(x)
    I(f"ds_write_b64 v{vXW}, {vr(AQ+2,2)} offset:{L_QK}")
    for x in k1p: I(x)
    I(f"ds_write_b64 v{vXW}, {vr(AQ+6,2)} offset:{L_QK+512}")
    T(20)
    wo = sum([frag_rd(NL + i, WBUF[i]) for i in range(NW)], [])
    nv = opt.get("nv", 4)
    slots(A, vm[:nv], [resets[:1], [wo[0], cv(AK, AK)], [wo[1], cv(AK+1, AK+4)], resets[2:], []])
    I(f"s_waitcnt lgkmcnt(2)")
    T(22)
    I("s_barrier")
    T(2)
    F = [M, M + 4, AQ, AQ + 4]
    frd = [f"ds_read_b64_tr_b16 {vr(F[sg]+2*rho,2)}, v{vTR} offset:{L_QK + sg*1024 + rho*512}" for sg in range(4) for rho in range(2)]
    for x in frd[:2]: I(x)
    nrem = len(vm) - nv
    fl = [frd[2:4], frd[4:6], frd[6:8]] + [[] for _ in range(nrem - 3)]
    slots(A, vm[nv:], fl)
    ONES = AV; LA = AK + 4; OA = AQ; tmx = AK + 4
    def sx(tau, sg): return mf32(S + 4 + 4*tau, KX + 16*tau + 4*sg, F[sg], "0" if sg == 0 else vr(S + 4 + 4*tau, 4))
    def s0(sg): return mf32(S, F[sg], F[sg], "0" if sg == 0 else vr(S, 4))
    I("s_waitcnt lgkmcnt(4)")
    slots(A, [sx(1, sg) for sg in range(4)], [resets[1:2], ["s_waitcnt lgkmcnt(0)", wo[2]], [wo[3]], [wo[4], wo[5]]])
    slots(A, [sx(0, sg) for sg in range(4)], [[wo[6]] + hs2(AV)[:1], [wo[7]] + hs2(AV)[1:], [wo[8]] + hs2(AV+4)[:1], [wo[9]] + hs2(AV+4)[1:]])
    slots(A, [s0(sg) for sg in range(4)],
          [[wo[10], f"v_max3_f32 v{tmx}, v{S+8}, v{S+9}, v{S+10}"], [wo[11], cv(AK+2, AV)], [wo[12], cv(AK+3, AV+4)],
           [wo[13], f"v_max3_f32 v{tmx}, v{tmx}, v{S+11}, v{S+4}"]])
    T(3)
    I(f"v_max3_f32 v{tmx}, v{tmx}, v{S+5}, v{S+6}")
    I(f"v_max_f32 v{tmx}, v{tmx}, v{S+7}")
    I(f"v_mov_b32 v{tmx+2}, s{sSC}")
    I(f"v_xor_b32 v{vKR}, {0 if opt.get('nodma') else 8192}, v{vKR}")
    for x in zero(AV + 4, 4): I(x)
    I(f"v_max3_f32 v{tmx}, v{tmx}, v{S+2}, v{S+3}")
    I(f"v_mov_b32 v{tmx+1}, v{tmx}")
    I(f"v_mov_b32 v{ONES}, 0x3f803f80")
    I(f"v_mov_b32 v{ONES+1}, 0x3f803f80")
    I(f"v_permlane32_swap_b32 v{tmx}, v{tmx+1}")
    I(f"v_max_f32 v{tmx}, v{tmx}, v{tmx+1}")
    I(f"v_mov_b32 v{tmx+1}, v{tmx}")
    I(f"v_mov_b64 {vr(ONES+2,2)}, {vr(ONES,2)}")
    I(f"v_permlane16_swap_b32 v{tmx}, v{tmx+1}")
    I(f"v_max_f32 v{tmx}, v{tmx}, v{tmx+1}")
    I(f"v_mul_f32 v{tmx}, s{sSC}, v{tmx}")
    for i in range(1, 6):
        I(f"v_pk_fma_f32 {vr(S+2*i,2)}, {vr(S+2*i,2)}, {vr(tmx+2,2)}, {vr(tmx,2)} op_sel_hi:[1,0,0] neg_lo:[0,0,1] neg_hi:[0,0,1]")
    ex = [f"v_exp_f32 v{S+i}, v{S+i}" for i in range(12)]
    I(ex[2]); I(ex[3]); I(ex[4])
    I(cv(PZ, S+2)); I(cv(PZ+3, S+2))
    I(ex[5])
    T(4)
    pk = [cv(S+4+i, S+4+2*i) for i in range(4)]
    slots(A, [mf16(OA, AK+2, PZ, "0"), mf16(OA+4, AK+2, PZ+2, "0"), mf16(LA, ONES, PZ, "0")],
          [[ex[6], ex[7]], [ex[8], ex[9]], [ex[10], ex[11]]])
    for x in pk: I(x)
    I(f"v_mov_b64 {vr(PB,2)}, {vr(AK,2)}"); I(f"v_mov_b64 {vr(PB+2,2)}, {vr(AK+2,2)}")
    slots(A, [mf32(LA, ONES, S+4, vr(LA,4)), mf32(OA, VX, S+4, vr(OA,4)), mf32(OA+4, VX+4, S+4, vr(OA+4,4))],
          [[wo[14]] + zero(AK, 2), [wo[15]] + zero(AK+2, 2), zero(AV, 4)])
    wrest = wo[16:]
    I(f"s_cmp_ge_u32 s{sSTEP}, 62")
    I(f"s_cbranch_scc1 {pfx}_done")
    A.label(f"{pfx}_resume")
    T(40)
    I(f"v_rcp_f32 v{LA}, v{LA}")
    for i in range(4):
        I(f"v_pk_mul_f32 {vr(OA+2*i,2)}, {vr(OA+2*i,2)}, {vr(LA,2)} op_sel_hi:[1,0]")
    for i in range(4): I(cv(OA+i, OA+2*i))
    I(f"ds_write_b128 v{vOW}, {vr(OA,4)} offset:{L_O}")
    T(41)
    WA = [AV, AV + 4, AK, AK + 4]
    OF = [OA, OA + 4, VX, VX + 4]
    def wm(p, j): return smf(WA[p], OF[j], wfrag(3, p, j))
    for i in range(4): I(f"v_mov_b32_dpp v{OA+i}, v{OA+i} quad_perm:[0,1,0,1] row_mask:0xf bank_mask:0xf")
    z = zero(AK + 4, 4)
    oa = [vT, vT + 1, VX]
    xo = [f"v_xor_b32 v{oa[j-1]}, {j<<10}, v{vOR}" for j in (1, 2, 3)]
    I(z[0]); I(z[1])
    slots(A, [wm(0, 0), wm(1, 0), wm(2, 0)], [[xo[0]], [xo[1]], [xo[2]]])
    I("s_waitcnt lgkmcnt(0)")
    T(42)
    I("s_barrier")
    T(5)
    for j in (1, 3, 2): I(f"ds_read_b128 {vr(OF[j],4)}, v{oa[j-1]} offset:{L_O}")
    sal = [f"s_add_u32 s{sT1}, s{sHA}, 4096", f"s_mov_b32 s{sRB}, s{sHB}", f"s_add_u32 s{sHB}, s{sHB}, 8192",
           f"s_and_b32 s{sHB}, s{sHB}, {hex(0xffffffff ^ (1<<15))}", f"s_sub_u32 s{sB0}, s{sHB}, {LW}", f"s_add_u32 s{sRA}, s{sRC}, s{sHA}",
           f"s_add_u32 s{sKM}, s{sKM}, 4096", f"s_add_u32 s{sSTEP}, s{sSTEP}, 1"]
    slots(A, [wm(3, 0)], [sal[:3]])
    I("s_waitcnt lgkmcnt(2)")
    T(31)
    def post(p):
        x = WA[p]
        return [f"v_cvt_pk_bf16_f32 v{x}, v{x}, v{x+2}", f"v_cvt_pk_bf16_f32 v{x+1}, v{x+1}, v{x+3}",
                f"buffer_store_dwordx2 {vr(x,2)}, v{vAST}, {WS}, s{sHA if p < 2 else sT1} offen offset:{2048*(p&1)} {st}"]
    P = [post(p) for p in range(4)]
    ms = [wm(p, j) for p in range(4) for j in (1, 3, 2)]
    fl = [["s_waitcnt lgkmcnt(1)", wrest[0]], ["s_waitcnt lgkmcnt(1)", wrest[1]], [wrest[2], sal[3]],
          [wrest[3], sal[4]], sal[5:7] + [P[0][0]], sal[7:8] + ["s_nop 0", P[0][1]],
          [P[0][2]], ["s_nop 1", P[1][0]], ["s_waitcnt lgkmcnt(0)", "s_nop 0", P[1][1]],
          [P[1][2]], ["s_nop 1", P[2][0]], P[2][1:3]]
    slots(A, ms, fl)
    T(34)
    for x in P[3]: I(x)
    T(6)
    RAs = [M, M + 8]; SEL = M + 16; RD = M + 20
    def pollA(b): return [f"buffer_load_dwordx4 {vr(b,4)}, v{vMW}, {WS}, s{sRA} offen sc1", f"buffer_load_dwordx4 {vr(b+4,4)}, v{vMW}, {WS}, s{sRA} offen offset:1024 sc1"]
    npre = opt.get("npre", 8)
    if opt.get("bar6", 1): I("s_barrier")
    for x in lres_rd[:npre]: I(x)
    dw = opt.get("dw", 10)
    delay(A, opt.get("delA", 0))
    for wv in (1, 2, 3):
        I(f"s_cmp_lt_u32 s{sWV}, {wv}")
        I(f"s_cbranch_scc1 {pfx}_pollA0")
        delay(A, dw)
    A.label(f"{pfx}_pollA0")
    T(51)
    for x in pollA(RAs[0]): I(x)
    for x in zero(AQ, 24): I(x)
    for i in range(4): I(f"v_cndmask_b32 v{SEL+i}, 0, v{vSEL}, s[{sMSK+2*i}:{sMSK+2*i+1}]")
    delay(A, opt.get("gapA", 8))
    for x in pollA(RAs[1]): I(x)
    for x in lres_rd[npre:]: I(x)
    I(f"s_xor_b32 s{sHA}, s{sHA}, {256<<10}")
    I(f"s_mov_b32 m0, s{sB1}")
    I(f"s_branch {pfx}_waitA")
    def red(b):
        I(f"s_waitcnt vmcnt(2)")
        c = chk(b, vT)
        slots(A, [mf32(RD, SEL, b, "0"), mf32(RD, SEL, b + 4, vr(RD, 4))], [c[:2], c[2:]])
    A.label(f"{pfx}_pollA_retry")
    for x in pollA(RAs[0]): I(x)
    I(f"s_add_u32 s{sSPA}, s{sSPA}, 1")
    red(RAs[1])
    I(f"s_cbranch_vccz {pfx}_goA")
    for x in pollA(RAs[1]): I(x)
    I(f"s_cmp_gt_u32 s{sSPA}, {SPIN_MAX}")
    I(f"s_cbranch_scc1 {pfx}_goA")
    A.label(f"{pfx}_waitA")
    red(RAs[0])
    I("s_nop 3")
    if not nohop: I(f"s_cbranch_vccnz {pfx}_pollA_retry")
    I(f"s_branch {pfx}_goA2") if False else None
    A.label(f"{pfx}_goA_n")
    for rot in (4, 8):
        I(f"v_add_f32_dpp v{RD}, v{RD}, v{RD} row_ror:{rot} row_mask:0xf bank_mask:0xf")
        I(f"v_add_f32_dpp v{RD+1}, v{RD+1}, v{RD+1} row_ror:{rot} row_mask:0xf bank_mask:0xf")
    I(cv(RD, RD))
    I(f"buffer_store_dword v{RD}, v{vBST}, {WS}, s{sHB} offen {st}")
    T(8)
    I(f"s_add_u32 s{sT2}, s{sB0}, 4096")
    I(f"s_cmp_lt_u32 s{sWV}, {NE}")
    I(f"s_cbranch_scc1 {pfx}_earlyB0")
    T(50)
    T(9)
    I("s_waitcnt vmcnt(0) lgkmcnt(0)")
    I(f"s_branch {pfx}_go")
    A.label(f"{pfx}_earlyB0")
    delay(A, opt.get("delB", 64))
    for x in pollB(BS[0]): I(x)
    delay(A, opt.get("gapB", 20))
    for x in pollB(BS[1]): I(x)
    T(9)
    I("s_waitcnt lgkmcnt(0)")
    I(f"s_branch {pfx}_earlyB")
    A.label(f"{pfx}_goA")
    I("s_nop 3")
    I(f"s_branch {pfx}_goA_n")
    A.label(f"{pfx}_done")
    I(f"s_add_u32 s{sKM}, s{sKM}, 4096")
    for x in publish: I(x)
    I(f"s_sub_u32 s{sKM}, s{sKM}, 4096")
    I(f"s_cmp_eq_u32 s{sSTEP}, 62")
    I(f"s_cbranch_scc1 {pfx}_resume")
```

```python
from work import *
NAME = "sequential_preLN__memory_aug_recurrent_mem_tr__mixer_gmlp__prompt_kernel"
def gen(opt={}):
    A = Asm(); I = A.I
    TRACE[0] = bool(opt.get('trace'))
    A.raw(f"; @launch grid=(256,1,1) block=(256,1,1) lds={LDS_BYTES}")
    A.raw(f'.amdgcn_target "amdgcn-amd-amdhsa--gfx950"\n.text\n.globl {NAME}\n.p2align 8\n.type {NAME},@function\n{NAME}:')
    prologue(A, opt.get("force"), opt.get("early", 0), opt.get("rot", 1))
    I(f"s_cmp_eq_u32 s{sG}, 0"); I("s_cbranch_scc0 L_notchain")
    chain_role(A, dict(dict(dA=[28,40,56,68], dB=[24,24,0,0], gapA=8, gapB=16, nb=10, hold=opt.get('hold')), **opt.get('chain', {})))
    I("s_branch L_helper" if opt.get("stage", 9) >= 3 else "s_endpgm")
    A.label("L_notchain")
    lanes(A)
    I(f"s_cmp_ge_u32 s{sG}, 6"); I("s_cbranch_scc1 L_post")
    h_phase1(A, opt)
    I(f"s_cmp_ge_u32 s{sG}, 6"); I("s_cbranch_scc1 L_post2")
    if opt.get("stage", 9) >= 2:
        import work2; work2.h_phase2(A, opt)
    if opt.get("stage", 9) >= 3:
        A.label("L_helper")
        work2.helper_t6(A, opt)
        if TRACE[0]:
            I("s_waitcnt vmcnt(0)"); TS(A, 15, 63)
            I(f"s_cmp_lg_u32 s{sWV}, 0"); I("s_cbranch_scc1 L_end")
            I(f"s_lshl_b32 s62, s{sG}, 5"); I(f"s_add_u32 s62, s62, s{sH}"); I("s_lshl_b32 s62, s62, 10"); I(f"s_add_u32 s62, s62, {WS_TR}")
            I("v_lshlrev_b32 v21, 2, v0"); I("s_mov_b32 exec_lo, 0"); I("s_mov_b32 exec_hi, 0xffff8000"); I(f"buffer_store_dword v15, v21, {WSS}, s62 offen")
    I("s_endpgm")
    A.label("L_post")
    p_init(A, opt)
    I("s_branch L_h1")
    A.label("L_post2")
    if opt.get("stage", 9) >= 3:
        import work2; work2.p_main(A, opt)
    A.label("L_end"); I("s_endpgm")
    A.raw('.section .rodata,"a"\n.p2align 6'); A.raw(kd(NAME, 512, 100, 256))
    return A.text()
if __name__ == "__main__":
    import sys
    open("mega_test.s", "w").write(gen({"stage": int(sys.argv[1]) if len(sys.argv) > 1 else 9}))
```

```python
from chain import *

sG = 39
D_OVF, D_PINIT, D_CHAIN, D_PROG, D_P2 = 192, 200, 204, 136, 208
WSS = f"s[{sWS}:{sWS+3}]"
DBG = f"s[{sDBG}:{sDBG+3}]"
SW = f"s[{sW}:{sW+3}]"
OOB = 0x40000000
wLN, wC, wG, wR, wCP, wL16 = 1, 2, 3, 4, 5, 6

TRACE = [False]
WS_TR = 1 << 20
def TS(A, vreg, lane):
    if not TRACE[0]: return
    A.I("s_memrealtime s[62:63]"); A.I("s_waitcnt lgkmcnt(0)")
    if isinstance(lane, int): A.I(f"v_writelane_b32 v{vreg}, s62, {lane}")
    else:
        A.I(f"s_mov_b32 m0, {lane}"); A.I("s_nop 0"); A.I(f"v_writelane_b32 v{vreg}, s62, m0")
def TDUMP(A, vregs, tmp, dbgw=None):
    if not TRACE[0]: return
    I = A.I
    l = A.newlabel("td")
    I(f"s_cmp_lg_u32 s{sWV}, 0"); I(f"s_cbranch_scc1 {l}")
    I(f"s_lshl_b32 s62, s{sG}, 5"); I(f"s_add_u32 s62, s62, s{sH}"); I("s_lshl_b32 s62, s62, 10"); I(f"s_add_u32 s62, s62, {WS_TR}")
    I(f"v_mbcnt_lo_u32_b32 v{tmp}, -1, 0"); I(f"v_mbcnt_hi_u32_b32 v{tmp}, -1, v{tmp}"); I(f"v_lshlrev_b32 v{tmp}, 2, v{tmp}")
    for i, r in enumerate(vregs): I(f"buffer_store_dword v{r}, v{tmp}, {WSS}, s62 offen offset:{256*i}")
    if dbgw:
        g, w0, lo, n = dbgw
        e = A.newlabel("te")
        I(f"s_cmp_lg_u32 s{sG}, {g}"); I(f"s_cbranch_scc1 {e}"); I(f"s_cmp_lg_u32 s{sH}, 0"); I(f"s_cbranch_scc1 {e}")
        I(f"s_mov_b64 exec, {hex(((1 << n) - 1) << lo)}")
        I(f"buffer_store_dword v{vregs[0]}, v{tmp}, {DBG}, 0 offen offset:{4*(w0 - lo)}")
        I("s_mov_b64 exec, -1")
        A.label(e)
    I("s_waitcnt vmcnt(0)")
    A.label(l)

def srd(A, karg_off, nbytes):
    A.I(f"s_load_dwordx2 s[{sW}:{sW+1}], s[0:1], {karg_off}")
    A.I(f"s_mov_b32 s{sW+2}, {nbytes}")
    A.I(f"s_mov_b32 s{sW+3}, 0x20000")
    A.I("s_waitcnt lgkmcnt(0)")

def prologue(A, force=None):
    I = A.I
    if TRACE[0]: I("s_memrealtime s[64:65]")
    I(f"s_load_dwordx2 s[{sWS}:{sWS+1}], s[0:1], 112")
    I(f"s_load_dwordx2 s[{sDBG}:{sDBG+1}], s[0:1], 104")
    I("s_cmp_ge_u32 s2, 256")
    I("s_cbranch_scc1 L_end")
    I(f"s_mov_b32 s{sWS+2}, {WS_BYTES}"); I(f"s_mov_b32 s{sWS+3}, 0x20000")
    I(f"s_mov_b32 s{sDBG+2}, 256"); I(f"s_mov_b32 s{sDBG+3}, 0x20000")
    I("v_lshrrev_b32 v1, 6, v0")
    I(f"v_mov_b32 v4, {LDS_BYTES - 16}")
    I(f"v_readfirstlane_b32 s{sWV}, v1")
    I("s_waitcnt lgkmcnt(0)")
    I(f"s_cmp_lg_u32 s{sWV}, 0")
    I("s_cbranch_scc1 L_elect_wait")
    I("s_getreg_b32 s24, hwreg(HW_REG_XCC_ID, 0, 4)")
    if force == "skew":
        I("s_lshr_b32 s24, s2, 4"); I("s_and_b32 s24, s24, 15")
    I("s_and_b32 s25, s24, 1"); I("s_lshl_b32 s25, s25, 6")
    I("s_lshr_b32 s26, s24, 1"); I("s_lshl_b32 s26, s26, 2")
    I("s_add_u32 s25, s25, s26")
    I("s_cmp_eq_u32 s24, 0")
    I("s_cselect_b32 s25, 128, s25")
    I("s_mov_b64 exec, 1")
    I("v_mov_b32 v1, 1"); I("v_mov_b32 v2, s25")
    I(f"buffer_atomic_add v1, v2, {DBG}, 0 offen sc0")
    I("s_waitcnt vmcnt(0)")
    I("v_readfirstlane_b32 s25, v1")
    I("s_mov_b64 exec, -1")
    I("s_mov_b32 s40, 0")
    I("s_cmp_ge_u32 s24, 8"); I("s_cbranch_scc1 L_ovf")
    I("s_cmp_lt_u32 s25, 32"); I("s_cbranch_scc1 L_elect_pub")
    A.label("L_ovf")
    I("s_mov_b64 exec, 1")
    I("v_mov_b32 v1, 1"); I(f"v_mov_b32 v2, {D_OVF}")
    I(f"buffer_atomic_add v1, v2, {DBG}, 0 offen sc0")
    I("s_waitcnt vmcnt(0)")
    I("v_readfirstlane_b32 s26, v1")
    I("s_mov_b64 exec, -1")
    I("v_lshlrev_b32 v2, 2, v0")
    I("s_mov_b32 s28, 0")
    def word(x): return 32 if x == 0 else (x & 1) * 16 + (x >> 1)
    A.label("L_ovf_poll")
    I(f"buffer_load_dword v1, v2, {DBG}, 0 offen sc1")
    I("s_add_u32 s28, s28, 1")
    I("s_waitcnt vmcnt(0)")
    I("s_mov_b32 s27, 0")
    for x in range(16):
        I(f"v_readlane_b32 s25, v1, {word(x)}"); I("s_add_u32 s27, s27, s25")
    I(f"s_cmp_gt_u32 s28, {SPIN_MAX}"); I("s_cbranch_scc1 L_ovf_go")
    I("s_cmp_lt_u32 s27, 256"); I("s_cbranch_scc1 L_ovf_poll")
    A.label("L_ovf_go")
    I("s_mov_b32 s40, 1")
    for x in range(8):
        I(f"v_readlane_b32 s25, v1, {word(x)}")
        I("s_min_u32 s25, s25, 32")
        I("s_add_u32 s25, s25, s26")
        I(f"s_mov_b32 s24, {x}")
        I("s_cmp_lt_u32 s25, 32"); I("s_cbranch_scc1 L_elect_pub")
        I("s_sub_u32 s26, s25, 32")
    I("s_mov_b32 s24, 8")
    A.label("L_elect_pub")
    I("s_lshl_b32 s24, s24, 8"); I("s_lshl_b32 s26, s40, 16"); I("s_add_u32 s24, s24, s25"); I("s_add_u32 s24, s24, s26")
    I("v_mov_b32 v1, s24")
    I("ds_write_b32 v4, v1")
    I("s_waitcnt lgkmcnt(0)")
    A.label("L_elect_wait")
    I("s_barrier")
    I("ds_read_b32 v1, v4")
    I("s_waitcnt lgkmcnt(0)")
    I("v_readfirstlane_b32 s24, v1")
    I(f"s_and_b32 s{sH}, s24, 31")
    I(f"s_bfe_u32 s{sG}, s24, {hex((8 << 16) | 8)}")
    I("s_lshr_b32 s40, s24, 16")
    I(f"s_cmp_ge_u32 s{sG}, 8"); I("s_cbranch_scc1 L_end")

def signal_add(A, srdname, off_sgpr_or_imm, val, t0, t1):
    I = A.I
    l = A.newlabel("sig")
    I(f"s_cmp_lg_u32 s{sWV}, 0"); I(f"s_cbranch_scc1 {l}")
    I(f"v_mov_b32 v{t0}, {val}"); I(f"v_mov_b32 v{t1}, {off_sgpr_or_imm}")
    I("s_mov_b64 exec, 1")
    I(f"buffer_atomic_add v{t0}, v{t1}, {srdname}, 0 offen")
    I("s_mov_b64 exec, -1")
    A.label(l)

def signal_store(A, off, val, t0, t1):
    I = A.I
    l = A.newlabel("sig")
    I(f"s_cmp_lg_u32 s{sWV}, 0"); I(f"s_cbranch_scc1 {l}")
    I(f"v_mov_b32 v{t0}, {val}"); I(f"v_mov_b32 v{t1}, {off}")
    I("s_mov_b64 exec, 1")
    I(f"buffer_store_dword v{t0}, v{t1}, {WSS}, 0 offen sc1")
    I("s_mov_b64 exec, -1")
    A.label(l)

def wait_ge(A, srdname, off, target, t0, t1, sres, sleep=2, mask=None, barrier=True, allwaves=False):
    I = A.I
    l = A.newlabel("wt"); e = A.newlabel("wte")
    if not allwaves:
        I(f"s_cmp_lg_u32 s{sWV}, 0"); I(f"s_cbranch_scc1 {e}")
    I(f"v_mov_b32 v{t1}, {off}")
    A.label(l)
    I(f"buffer_load_dword v{t0}, v{t1}, {srdname}, 0 offen sc1")
    I(f"s_add_u32 s{sSPIN}, s{sSPIN}, 1")
    I("s_waitcnt vmcnt(0)")
    I(f"v_readfirstlane_b32 s{sres}, v{t0}")
    I(f"s_cmp_gt_u32 s{sSPIN}, {SPIN_MAX}"); I(f"s_cbranch_scc1 {e}")
    if mask is not None:
        I(f"s_and_b32 s{sres+1}, s{sres}, {mask}"); I(f"s_cmp_ge_u32 s{sres+1}, {target}")
    else:
        I(f"s_cmp_ge_u32 s{sres}, {target}")
    I(f"s_cbranch_scc1 {e}")
    if sleep: I(f"s_sleep {sleep}")
    I(f"s_branch {l}")
    A.label(e)
    if barrier: I("s_barrier")

sLOC = 31
sSEG, sXB, sCNT, sA0, sA1 = 18, 19, 20, 21, 22
sD0, sD1, sD2 = 34, 35, 36
def dual(A, fn):
    g = A.newlabel("dg"); e = A.newlabel("de")
    A.I(f"s_cmp_eq_u32 s{sLOC}, 0"); A.I(f"s_cbranch_scc1 {g}")
    fn(""); A.I(f"s_branch {e}")
    A.label(g); fn("sc1"); A.label(e)

def group_mode(A, t0, t1):
    I = A.I
    I(f"s_and_b32 s24, s{sG}, 1"); I("s_lshl_b32 s24, s24, 6"); I(f"s_lshr_b32 s25, s{sG}, 1"); I("s_lshl_b32 s25, s25, 2"); I("s_add_u32 s24, s24, s25")
    I(f"v_mov_b32 v{t1}, s24")
    I(f"buffer_load_dword v{t0}, v{t1}, {DBG}, 0 offen sc1")
    I("s_waitcnt vmcnt(0)")
    I(f"v_readfirstlane_b32 s24, v{t0}")
    I("s_cmp_ge_u32 s24, 32"); I(f"s_cselect_b32 s{sLOC}, 1, 0")

def gsignal(A, sline, t0, t1):
    I = A.I
    l = A.newlabel("gs")
    I(f"s_cmp_lg_u32 s{sWV}, 0"); I(f"s_cbranch_scc1 {l}")
    I(f"s_lshl_b32 s24, s{sH}, 2")
    I(f"s_add_u32 s25, s{sSEG}, 1"); I(f"v_mov_b32 v{t0}, s25"); I(f"v_mov_b32 v{t1}, s24")
    I("s_mov_b64 exec, 1")
    dual(A, lambda f: I(f"buffer_store_dword v{t0}, v{t1}, {WSS}, s{sline} offen {f}"))
    I("s_mov_b64 exec, -1")
    A.label(l)

def gwait(A, sline, t0, t1, sleep=0, barrier=True):
    I = A.I
    l = A.newlabel("gw"); e = A.newlabel("gwe")
    I(f"s_cmp_lg_u32 s{sWV}, 0"); I(f"s_cbranch_scc1 {e}")
    I(f"v_and_b32 v{t1}, 31, v{wLN}"); I(f"v_lshlrev_b32 v{t1}, 2, v{t1}")
    A.label(l)
    I(f"buffer_load_dword v{t0}, v{t1}, {WSS}, s{sline} offen sc1")
    I(f"s_add_u32 s{sSPIN}, s{sSPIN}, 1")
    I(f"s_cmp_gt_u32 s{sSPIN}, {SPIN_MAX}"); I(f"s_cbranch_scc1 {e}")
    I("s_waitcnt vmcnt(0)")
    I(f"v_cmp_ge_u32 vcc, s{sSEG}, v{t0}")
    if sleep: I(f"s_sleep {sleep}")
    I(f"s_cbranch_vccnz {l}")
    A.label(e)
    if barrier: I("s_barrier")

def allreduce(A, regs, tmp, op="add"):
    I = A.I
    for rot in (8, 4, 2, 1):
        for r in regs: I(f"v_{op}_f32_dpp v{r}, v{r}, v{r} row_ror:{rot} row_mask:0xf bank_mask:0xf")
    for sw in ("16", "32"):
        for r in regs:
            I(f"v_mov_b32 v{tmp}, v{r}")
            I(f"v_permlane{sw}_swap_b32 v{r}, v{tmp}")
            I(f"v_{op}_f32 v{r}, v{r}, v{tmp}")

def unpack(A, src, dst, n):
    for i in range(n):
        A.I(f"v_lshlrev_b32 v{dst+2*i}, 16, v{src+i}")
        A.I(f"v_and_b32 v{dst+2*i+1}, 0xffff0000, v{src+i}")

def rbf(A, r):
    A.I(f"v_cvt_pk_bf16_f32 v{r}, v{r}, v{r}")
    A.I(f"v_and_b32 v{r}, 0xffff0000, v{r}")

def ln_finish(A, mean, var):
    I = A.I
    rbf(A, mean); rbf(A, var)
    I(f"v_add_f32 v{var}, {hex(f2u(1e-5))}, v{var}")
    rbf(A, var)
    I(f"v_sqrt_f32 v{var}, v{var}")
    rbf(A, var)
    I(f"v_rcp_f32 v{var}, v{var}")

def ln_row(A, x, out, t):
    I = A.I
    m, v, tm, d = t, t + 1, t + 2, t + 4
    I(f"v_add_f32 v{m}, v{x}, v{x+1}")
    for i in range(2, 8): I(f"v_add_f32 v{m}, v{m}, v{x+i}")
    allreduce(A, [m], tm)
    I(f"v_mul_f32 v{m}, {hex(f2u(1/512))}, v{m}")
    for i in range(8): I(f"v_sub_f32 v{d+i}, v{x+i}, v{m}")
    I(f"v_mul_f32 v{v}, v{d}, v{d}")
    for i in range(1, 8): I(f"v_fmac_f32 v{v}, v{d+i}, v{d+i}")
    allreduce(A, [v], tm)
    I(f"v_mul_f32 v{v}, {hex(f2u(1/512))}, v{v}")
    ln_finish(A, m, v)
    for i in range(8): I(f"v_sub_f32 v{d+i}, v{x+i}, v{m}")
    for i in range(4): I(cv(out + i, d + 2*i))
    unpack(A, out, d, 4)
    for i in range(8): I(f"v_mul_f32 v{d+i}, v{d+i}, v{v}")
    for i in range(4): I(cv(out + i, d + 2*i))

def lanes(A):
    I = A.I
    I(f"v_and_b32 v{wLN}, 63, v0")
    I(f"v_and_b32 v{wC}, 15, v{wLN}")
    I(f"v_lshrrev_b32 v{wG}, 4, v{wLN}")
    I(f"v_lshrrev_b32 v{wR}, 2, v{wC}")
    I(f"v_and_b32 v{wCP}, 3, v{wC}")
    I(f"v_lshlrev_b32 v{wL16}, 4, v{wLN}")
    I(f"s_mov_b32 s{sSPIN}, 0")

def touch_weights(A, dst):
    I = A.I
    I("s_load_dwordx4 s[48:51], s[0:1], 16"); I("s_load_dwordx4 s[52:55], s[0:1], 32")
    I(f"s_lshl_b32 s26, s{sG}, 5"); I(f"s_add_u32 s26, s26, s{sH}"); I("s_sub_u32 s26, s26, 32"); I("s_mul_i32 s26, s26, 18944")
    I("v_lshlrev_b32 v7, 4, v0")
    I(f"s_mov_b32 s46, {4<<20}"); I("s_mov_b32 s47, 0x20000")
    I("s_waitcnt lgkmcnt(0)")
    n = 0
    for r in (50, 52, 48, 54):
        I(f"s_mov_b32 s44, s{r}"); I(f"s_mov_b32 s45, s{r+1}"); I("s_mov_b32 s27, s26")
        for i in range(5):
            I(f"buffer_load_dwordx4 v[{dst+4*n}:{dst+3+4*n}], v7, s[44:47], s27 offen"); n += 1
            I("s_add_u32 s27, s27, 4096")

def p_init(A, opt={}):
    I = A.I
    sJ = 18
    I(f"s_sub_u32 s{sJ}, s{sG}, 6"); I(f"s_lshl_b32 s{sJ}, s{sJ}, 5"); I(f"s_add_u32 s{sJ}, s{sJ}, s{sH}")
    srd(A, 0, 2 << 20)
    I(f"s_lshl_b32 s24, s{sJ}, 15"); I(f"s_lshl_b32 s25, s{sWV}, 13"); I("s_add_u32 s24, s24, s25")
    I("s_add_u32 s25, s24, 4096")
    for i in range(8): I(f"buffer_load_dwordx4 {vr(32+4*i,4)}, v{wL16}, {SW}, s{24 if i < 4 else 25} offen offset:{(i&3)*1024}")
    if opt.get("touch", 1): touch_weights(A, 100)
    I("v_lshlrev_b32 v10, 2, v0"); I("v_mov_b32 v11, 0"); I(f"s_lshl_b32 s26, s{sJ}, 10")
    I(f"buffer_store_dword v11, v10, {WSS}, s26 offen sc1")
    I(f"s_add_u32 s24, s24, {WS_XN}"); I(f"s_add_u32 s25, s25, {WS_XN}")
    for i in range(8):
        I(f"s_waitcnt vmcnt({28 if opt.get('touch', 1) else 8})")
        unpack(A, 32 + 4*i, 12, 4)
        ln_row(A, 12, 64 + 4*i, 20)
        I(f"buffer_store_dwordx4 {vr(64+4*i,4)}, v{wL16}, {WSS}, s{24 if i < 4 else 25} offen offset:{(i&3)*1024} sc1")
    I("s_waitcnt vmcnt(0)")
    I("s_barrier")
    signal_add(A, DBG, D_PINIT, 1, 10, 11)
    if TRACE[0]: I("v_writelane_b32 v187, s64, 0")
    TS(A, 187, 1)

def w256_addr(A, vd, vt):
    I = A.I
    I(f"s_lshl_b32 s24, s{sWV}, 2")
    I(f"v_add_u32 v{vd}, s24, v{wG}")
    I(f"v_lshlrev_b32 v{vd}, 13, v{vd}")
    I(f"s_lshr_b32 s24, s{sWV}, 1"); I("s_lshl_b32 s24, s24, 3")
    I(f"v_lshlrev_b32 v{vt}, 1, v{wG}")
    I(f"v_or_b32 v{vt}, s24, v{vt}")
    I(f"v_xor_b32 v{vt}, v{wC}, v{vt}")
    I(f"v_lshl_add_u32 v{vd}, v{vt}, 4, v{vd}")
    I(f"s_lshl_b32 s24, s{sH}, 8")
    I(f"v_add_u32 v{vd}, s24, v{vd}")
    I(f"v_and_b32 v{vt}, 1, v{wG}")
    I(f"v_lshl_add_u32 v{vt}, v{vt}, 2, v{wR}")
    I(f"s_lshl_b32 s24, s{sWV}, 1")
    I(f"v_xor_b32 v{vt}, s24, v{vt}")
    I(f"v_lshlrev_b32 v{vt}, 5, v{vt}")
    I(f"v_lshl_add_u32 v{vt}, v{wCP}, 3, v{vt}")
    I(f"v_lshl_add_u32 v{vt+1}, v{wG}, 3, v{wR}")
    I(f"v_lshl_add_u32 v{vt}, v{vt+1}, 8, v{vt}")
    I(f"v_xor_b32 v{vt+1}, 32, v{vt}")
def w256_dma(A, vd, half):
    I = A.I
    I(f"s_lshl_b32 s24, s{sWV}, 10")
    for i in range(16):
        I(f"s_add_u32 m0, s24, {half*65536 + i*4096}")
        I(f"s_mov_b32 s25, {(256*half + 16*i)*8192}")
        I(f"buffer_load_dwordx4 v{vd}, {SW}, s25 offen lds")
def w256_read(A, vt, half, abase):
    for eps in range(2):
        for k in range(8):
            for u in range(2):
                A.I(f"ds_read_b64_tr_b16 {ar(abase + (eps*16 + 8*half + k)*4 + 2*u, 2)}, v{vt+eps} offset:{(32*k + 4*u)*256}")
    A.I("s_waitcnt lgkmcnt(0)")
    A.I(f"v_xor_b32 v{vt}, 0x10000, v{vt}"); A.I(f"v_xor_b32 v{vt+1}, 0x10000, v{vt+1}")

def rows_addr(A, vd, va, perm=False):
    I = A.I
    if not perm:
        I(f"v_xor_b32 v{va}, v{wG}, v{wC}")
        I(f"v_lshlrev_b32 v{va}, 4, v{va}")
        I(f"v_lshl_add_u32 v{va}, v{wC}, 10, v{va}")
    for k in range(1, 4): I(f"v_xor_b32 v{va+k}, {k<<6}, v{va}")
def rows_dma(A, vtmp, sbase, lds, ld="sc1"):
    I = A.I
    I(f"s_lshl_b32 s24, s{sWV}, 13")
    I(f"s_add_u32 s25, s24, s{sbase}")
    I(f"s_and_b32 s26, s{sWV}, 1"); I("s_lshl_b32 s26, s26, 7")
    for i in range(8):
        I(f"s_add_u32 s27, s26, {i<<4}")
        I(f"v_xor_b32 v{vtmp}, s27, v{wL16}")
        if isinstance(lds, int): I(f"s_add_u32 m0, s24, {lds + i*1024}")
        else:
            I(f"s_add_u32 s27, s24, {i*1024}"); I(f"s_add_u32 m0, s27, {lds}")
        I(f"buffer_load_dwordx4 v{vtmp}, {WSS}, s25 offen {ld} lds")
        I("s_add_u32 s25, s25, 1024")

def rows_dma_prep(A, sbase, lds):
    I = A.I
    I(f"s_lshl_b32 s{sD0}, s{sWV}, 13")
    I(f"s_add_u32 s{sD1}, s{sD0}, s{sbase}")
    I(f"s_add_u32 s{sD0}, s{sD0}, {lds}")
    I(f"s_and_b32 s{sD2}, s{sWV}, 1"); I(f"s_lshl_b32 s{sD2}, s{sD2}, 7")
def rows_dma_items(vtmp):
    return [([f"s_mov_b32 m0, s{sD0}", f"s_add_u32 s{sD0}, s{sD0}, 1024", f"v_xor_b32 v{vtmp}, s{sD2}, v{wL16}"],
             [f"buffer_load_dwordx4 v{vtmp}, {WSS}, s{sD1} offen sc1 lds", f"s_add_u32 s{sD1}, s{sD1}, 1024", f"s_add_u32 s{sD2}, s{sD2}, 16"]) for i in range(8)]

def h_phase1(A, opt={}):
    I = A.I
    vD, vTt, vXA, vTm = 8, 10, 12, 16
    if TRACE[0]: I("v_writelane_b32 v188, s64, 0")
    TS(A, 188, 1)
    if opt.get("touch", 1): touch_weights(A, 100)
    A.label("L_h1")
    w256_addr(A, vD, vTt)
    if opt.get("hold"):
        I(f"s_cmp_lt_u32 s{sG}, {opt['hold'][0]}"); I("s_cbranch_scc1 H1_nohold")
        wait_ge(A, DBG, D_PROG, 32, 20, 21, 24, sleep=16)
        A.label("H1_nohold")
    srd(A, 24, 4 << 20)
    w256_dma(A, vD, 0); w256_dma(A, vD, 1)
    rows_addr(A, None, vXA)
    I(f"s_sub_u32 s{sSEG}, s{sG}, 1")
    for ci in range(4):
        I(f"s_waitcnt vmcnt({16 if ci < 3 else 0})")
        I("s_barrier")
        w256_read(A, vTt, ci & 1, 128 * (ci >> 1))
        I("s_barrier")
        if ci == 0: srd(A, 32, 4 << 20)
        if ci < 2: w256_dma(A, vD, ci)
        if ci == 2:
            wait_ge(A, DBG, D_PINIT, 64, 20, 21, 24)
            I(f"s_lshl_b32 s{sA0}, s{sSEG}, 15"); I(f"s_add_u32 s{sA0}, s{sA0}, {WS_XN}")
            I(f"s_mov_b32 s{sXB}, 0")
            rows_dma(A, vTm, sA0, 0)
    TS(A, 188, 2)
    TS(A, 188, 3)
    I(f"s_mov_b32 s{sCNT}, 0")
    for i in range(4): I(f"v_mov_b32 v{104+i}, -1")
    I(f"s_mul_i32 s37, s{sH}, 65"); I(f"s_add_u32 s37, s37, s{sSEG}"); I("s_lshl_b32 s37, s37, 12"); I(f"s_lshl_b32 s24, s{sWV}, 10")
    I("s_add_u32 s37, s37, s24"); I(f"s_add_u32 s37, s37, {WS_KM}")
    A.label("H1_loop")
    I(f"s_cmp_gt_u32 s{sCNT}, 1"); I("s_cbranch_scc1 H1_lag")
    I("s_waitcnt vmcnt(0)")
    A.label("H1_lag")
    I("s_waitcnt vmcnt(5)")
    I("s_barrier")
    I(f"s_lshl_b32 s28, s{sH}, 7"); I(f"s_lshl_b32 s29, s{sG}, 2"); I("s_add_u32 s28, s28, s29"); I(f"s_add_u32 s28, s28, {F_KV - 4}")
    I(f"s_sub_u32 s29, s{sCNT}, 1"); I(f"s_cmp_gt_u32 s{sCNT}, 1"); I(f"s_cselect_b32 s29, s29, s{sCNT}")
    signal_store(A, "s28", "s29", 20, 21)
    if TRACE[0]: I(f"s_add_u32 s61, s{sCNT}, 8")
    TS(A, 188, "s61")
    I(f"s_add_u32 s{sA0}, s{sA0}, {NG1 << 15}")
    I(f"s_xor_b32 s{sXB}, s{sXB}, 32768")
    I(f"s_cmp_ge_u32 s{sSEG}, {64 - NG1}"); I(f"s_cselect_b32 s{sA0}, {OOB}, s{sA0}")
    rows_dma_prep(A, sA0, f"s{sXB}")
    items = rows_dma_items(vTm)
    XF = 24; AC = 56
    def rd(ks): return [f"ds_read_b128 {vr(XF + 8*(ks&3) + 4*t,4)}, v{vXA + (ks&3)} offset:{(ks>>2)*256 + t*16384}" for t in range(2)]
    for ks in range(3):
        for x in rd(ks): I(x)
    for ks in range(16):
        I(f"s_waitcnt lgkmcnt({4 if ks < 14 else (2 if ks == 14 else 0)})")
        ms = []
        for eps in range(2):
            for t in range(2):
                xk = vr(XF + 8*(ks&3) + 4*t, 4)
                dk = AC + 8*t + 4*eps; dv = AC + 16 + 8*eps + 4*t
                ms.append(f"v_mfma_f32_16x16x32_bf16 {vr(dk,4)}, {ar((eps*16+ks)*4,4)}, {xk}, {'0' if ks == 0 else vr(dk,4)}")
                ms.append(f"v_mfma_f32_16x16x32_bf16 {vr(dv,4)}, {xk}, {ar(128+(eps*16+ks)*4,4)}, {'0' if ks == 0 else vr(dv,4)}")
        fl = [[x] for x in rd(ks + 3)] if ks + 3 < 16 else [[], []]
        if ks < 8: fl += [[], items[ks][0], items[ks][1]]
        slots(A, ms, fl)
    for k in range(4): I(f"v_xor_b32 v{vXA+k}, 0x8000, v{vXA+k}")
    I(f"s_lshl_b32 s24, s{sSEG}, 19"); I(f"s_lshl_b32 s25, s{sH}, 14"); I("s_add_u32 s24, s24, s25"); I(f"s_add_u32 s24, s24, {WS_KV}")
    I(f"s_lshl_b32 s25, s{sWV}, 10"); I("s_add_u32 s26, s24, s25"); I("s_add_u32 s27, s26, 4096")
    I("s_add_u32 s25, s25, s26"); I("s_add_u32 s25, s25, 8192")
    for j in range(4):
        for i in range(4): I(cv(88 + 4*j + i, AC + 8*j + 2*i))
    I(f"buffer_store_dwordx4 v[88:91], v{wL16}, {WSS}, s26 offen sc1")
    I(f"buffer_store_dwordx4 v[92:95], v{wL16}, {WSS}, s27 offen sc1")
    I(f"buffer_store_dwordx4 v[96:99], v{wL16}, {WSS}, s25 offen sc1")
    I(f"buffer_store_dwordx4 v[100:103], v{wL16}, {WSS}, s25 offen offset:1024 sc1")
    I(f"buffer_store_dwordx4 v[104:107], v{wL16}, {WSS}, s37 offen sc1")
    I(f"s_add_u32 s37, s37, {NG1*4096}")
    I(f"s_add_u32 s{sCNT}, s{sCNT}, 1")
    I(f"s_add_u32 s{sSEG}, s{sSEG}, {NG1}")
    I(f"s_cmp_lt_u32 s{sSEG}, 64"); I("s_cbranch_scc1 H1_loop")
    I("s_waitcnt vmcnt(0)")
    I("s_barrier")
    signal_store(A, "s28", 100, 20, 21)
    TS(A, 188, 4)

def chain_role(A, opt):
    I = A.I
    I("v_lshlrev_b32 v10, 4, v0")
    for i in range(4): I(f"v_mov_b32 v{12+i}, -1")
    I(f"s_lshl_b32 s24, s{sH}, 13"); I(f"s_add_u32 s24, s24, {WS_HA}")
    for sl in range(2):
        for hf in range(2):
            I(f"s_add_u32 s25, s24, {sl*(256<<10) + hf*4096}")
            I(f"buffer_store_dwordx4 v[12:15], v10, {WSS}, s25 offen sc1")
    I("v_lshlrev_b32 v10, 2, v0")
    I(f"s_lshl_b32 s24, s{sH}, 10"); I(f"s_add_u32 s24, s24, {WS_HB}")
    I(f"buffer_store_dword v12, v10, {WSS}, s24 offen sc1")
    if TRACE[0]: I("s_memrealtime s[66:67]")
    def hooks(A, what, ci):
        if what == "landed" and ci == 0:
            I("s_lshl_b32 s41, s40, 16"); I("s_add_u32 s41, s41, 1")
            signal_add(A, DBG, D_CHAIN, "s41", vT, vT + 1)
        if what == "landed" and ci == 1 and opt.get("tlb", 0):
            I(f"v_subrev_u32 v28, {LW}, v{vL16}"); I("v_lshlrev_b32 v28, 15, v28")
            I(f"s_add_u32 s43, s{sKV}, {LW}")
            I(f"buffer_load_dword v29, v28, {WSS}, s43 offen sc1")
        if what == "landed" and opt.get("hold") and ci == opt["hold"][1]:
            signal_add(A, DBG, D_PROG, 1, vT, vT + 1)
        if what == "issued" and ci == 6:
            I(f"v_mov_b32 v28, {D_PINIT}")
            I(f"buffer_load_dwordx2 {vr(vT,2)}, v28, {DBG}, 0 offen sc1")
        if what == "landed" and ci == 6:
            I(f"v_readfirstlane_b32 s43, v{vT}"); I(f"v_readfirstlane_b32 s42, v{vT+1}")
            I("s_cmp_lt_u32 s43, 64"); I("s_cbranch_scc1 L_ch_slow")
            I("s_and_b32 s43, s42, 0xffff"); I("s_cmp_ge_u32 s43, 32"); I("s_cbranch_scc1 L_ch_fast")
            A.label("L_ch_slow")
            wait_ge(A, DBG, D_PINIT, 64, vT, vT + 1, 42, barrier=False, allwaves=True, sleep=4)
            wait_ge(A, DBG, D_CHAIN, 32, vT, vT + 1, 42, mask=0xffff, barrier=False, allwaves=True, sleep=4)
            A.label("L_ch_fast")
            I(f"s_add_u32 m0, s{sM0A}, 8192")
            for sl in range(2):
                I(f"s_add_u32 s43, s{sRC}, {WS_HA + sl*(256<<10)}")
                for i in range(2): I(f"buffer_load_dwordx4 v{vMW}, {WSS}, s43 offen offset:{i*1024} sc1 lds")
            I(f"s_lshl_b32 s43, s{sH}, 10"); I(f"s_add_u32 s43, s43, {WS_HB - LW}")
            I(f"buffer_load_dwordx4 v{vL16}, {WSS}, s43 offen sc1 lds")
            kv_flag_load(A)
        if what == "landed" and ci == 7:
            if TRACE[0]: I("s_memrealtime s[66:67]"); I("s_waitcnt lgkmcnt(0)")
            kv_wait(A, "CI", 0, preloaded=True)
            for x in kv_dma(A, "sc1"): I(x)
    chain_setup(A, "", hooks)
    if TRACE[0]: I("s_memrealtime s[68:69]"); I("s_waitcnt lgkmcnt(0)")
    if TRACE[0]: I("s_memrealtime s[70:71]"); I("s_memtime s[80:81]"); I("s_waitcnt lgkmcnt(0)")
    I("s_lshr_b32 s42, s42, 16")
    I("s_cmp_lg_u32 s42, 0")
    I("s_cbranch_scc1 L_chain_global")
    o = dict(opt); o["mega"] = 1
    def stamp(A, i):
        if i == 6:
            l = A.newlabel("st")
            A.I(f"s_and_b32 s60, s{sSTEP}, 7"); A.I("s_cmp_eq_u32 s60, 1"); A.I(f"s_cbranch_scc0 {l}")
            A.I("s_memrealtime s[62:63]"); A.I("s_memtime s[60:61]"); A.I("s_waitcnt lgkmcnt(0)")
            for k in range(8):
                A.I(f"s_cmp_eq_u32 s{sSTEP}, {8*k+1}"); A.I(f"s_cselect_b32 s{72+k}, s62, s{72+k}"); A.I(f"s_cselect_b32 s{84+k}, s60, s{84+k}")
            A.label(l)
    chain_loop(A, "", "CL", stamp if TRACE[0] else None, "sc1", o)
    I("s_branch L_chain_end")
    A.label("L_chain_global")
    chain_loop(A, "sc1", "CG", None, "sc1", o)
    A.label("L_chain_end")
    if TRACE[0]:
        for i, r in enumerate([64, 66, 68, 70]): I(f"v_writelane_b32 v20, s{r}, {i}")
        TS(A, 20, 4)
        I("s_memtime s[62:63]"); I("s_waitcnt lgkmcnt(0)"); I("s_sub_u32 s62, s62, s80"); I("v_writelane_b32 v20, s62, 7")
        I(f"v_writelane_b32 v20, s{sSPIN}, 5"); I(f"v_writelane_b32 v20, s{sSPA}, 6")
        for k in range(8): I(f"v_writelane_b32 v20, s{72+k}, {8+k}")
        for k in range(8): I(f"v_writelane_b32 v20, s{84+k}, {16+k}")
        TDUMP(A, [20], 21, (0, 4, 0, 5))
```

```python
from work import *

def w1k_addr(A, vd, vt, sbase_bytes):
    I = A.I
    I(f"s_lshl_b32 s24, s{sWV}, 6")
    I(f"v_xor_b32 v{vd}, s24, v{wL16}")
    I(f"s_lshl_b32 s24, s{sWV}, 10")
    if sbase_bytes: I(f"s_add_u32 s24, s24, {sbase_bytes}")
    I(f"v_add_u32 v{vd}, s24, v{vd}")
    I(f"v_lshl_add_u32 v{vt}, v{wG}, 2, v{wR}")
    I(f"v_lshlrev_b32 v{vt}, 10, v{vt}")
    I(f"v_lshl_add_u32 v{vt}, v{wR}, 6, v{vt}")
    I(f"v_lshl_add_u32 v{vt}, v{wCP}, 4, v{vt}")
    I(f"s_lshl_b32 s24, s{sWV}, 8")
    I(f"v_add_u32 v{vt}, s24, v{vt}")
    for p in range(1, 4): I(f"v_xor_b32 v{vt+p}, {p<<6}, v{vt}")
def w1k_dma(A, vd, row0, nrows, lds):
    I = A.I
    I(f"s_lshl_b32 s24, s{sWV}, 10")
    for i in range(nrows // 4):
        I(f"s_add_u32 m0, s24, {lds + i*4096}")
        I(f"s_mov_b32 s25, {(row0 + 4*i)*1024}")
        I(f"buffer_load_dwordx4 v{vd}, {SW}, s25 offen lds")
def w1k_rd(vt, t8, ksl, u, dst):
    return f"ds_read_b64_tr_b16 {dst}, v{vt + (t8>>1)} offset:{(32*ksl + 16*u)*1024 + (t8&1)*8}"

L_XB, L_HB, L_PT, L_QX, L_OX, L_KM, L_RED, L_KV2 = 0, 32768, 65536, 102400, 110592, 118784, 122880, 131072
PSTR = 1040
sMK = 44
sTILE = 30
def h_phase2(A, opt):
    I = A.I
    vD, vTt, vXA, vHA, vTm = 8, 10, 12, 16, 24
    vKW, vTR2, vPW, vPR, vZ = 25, 26, 27, 28, 30
    WIN = 192
    w256_addr(A, vD, vTt)
    srd(A, 16, 4 << 20)
    w256_dma(A, vD, 0); w256_dma(A, vD, 1)
    I(f"s_lshl_b32 s28, s{sH}, 17")
    w1k_addr(A, 40, 44, "s28")
    for ci in range(4):
        I(f"s_waitcnt vmcnt({16 if ci < 3 else 0})")
        I("s_barrier")
        if ci < 2: w256_read(A, vTt, ci, 0)
        else:
            for t8 in range(8):
                for ksl in range(2):
                    for u in range(2): I(w1k_rd(44, t8, ksl, u, ar(128 + (t8*4 + 2*(ci-2) + ksl)*4 + 2*u, 2)))
            I("s_waitcnt lgkmcnt(0)")
            for p in range(4): I(f"v_xor_b32 v{44+p}, 0x10000, v{44+p}")
        I("s_barrier")
        if ci == 0: srd(A, 40, 4 << 20)
        if ci < 2: w1k_dma(A, 40, 64*ci, 64, 65536*ci)
    srd(A, 64, 512*1376*2)
    I(f"s_lshl_b32 s{sTILE}, s{sWV}, 5"); I(f"s_add_u32 s{sTILE}, s{sTILE}, s{sH}")
    I(f"s_cmp_ge_u32 s{sTILE}, 86"); I("s_cbranch_scc1 H2_nowin")
    I(f"v_lshrrev_b32 v40, 1, v{wLN}"); I("v_mul_u32_u24 v40, 2752, v40")
    I(f"v_and_b32 v41, 1, v{wLN}"); I("v_lshl_add_u32 v40, v41, 4, v40")
    I(f"s_lshl_b32 s25, s{sTILE}, 5"); I(f"s_lshl_b32 s24, s{sWV}, 14")
    for i in range(16):
        I(f"s_add_u32 m0, s24, {i*1024}")
        I("s_nop 0")
        I(f"buffer_load_dwordx4 v40, {SW}, s25 offen lds")
        I(f"s_add_u32 s25, s25, {32*2752}")
    I(f"v_lshl_add_u32 v41, v{wG}, 3, v{wR}"); I("v_lshlrev_b32 v41, 5, v41"); I(f"v_lshl_add_u32 v41, v{wCP}, 3, v41"); I("v_add_u32 v41, s24, v41")
    I("s_waitcnt vmcnt(0)")
    for ks in range(16):
        for u in range(2): I(f"ds_read_b64_tr_b16 {vr(WIN + 4*ks + 2*u, 2)}, v41 offset:{ks*1024 + u*128}")
    I("s_waitcnt lgkmcnt(0)")
    A.label("H2_nowin")
    srd(A, 0, 2 << 20)
    group_mode(A, 40, 41)
    I(f"v_lshlrev_b32 v41, 2, v{wLN}"); I(f"s_lshl_b32 s28, s{sH}, 7"); I(f"s_add_u32 s28, s28, {F_KV}")
    A.label("H2_kvw")
    I(f"buffer_load_dword v40, v41, {WSS}, s28 offen sc1")
    I(f"s_add_u32 s{sSPIN}, s{sSPIN}, 1"); I(f"s_cmp_gt_u32 s{sSPIN}, {SPIN_MAX}")
    I("s_waitcnt vmcnt(0)")
    I("s_cbranch_scc1 H2_kvd")
    I("v_cmp_gt_u32 vcc, 64, v40"); I("s_nop 0"); I(f"s_and_b32 s24, vcc_lo, {(1 << NG1) - 1}")
    I("s_cbranch_scc1 H2_kvw")
    A.label("H2_kvd")
    rows_addr(A, None, vXA)
    I(f"v_lshl_add_u32 v40, v{wR}, 3, v{wCP}")
    I(f"s_cmp_lt_u32 s{sTILE}, 43"); I("s_cselect_b64 vcc, -1, 0"); I("s_cselect_b32 s24, 16, 4")
    I(f"v_cndmask_b32 v40, v40, v{wC}, vcc")
    for t in range(2):
        if t: I("v_add_u32 v40, s24, v40")
        I("v_and_b32 v41, 15, v40"); I(f"v_xor_b32 v41, v41, v{wG}"); I("v_lshlrev_b32 v41, 4, v41")
        I("v_lshl_add_u32 v41, v40, 10, v41"); I(f"v_add_u32 v{vHA+4*t}, {L_HB}, v41")
        for k in range(1, 4): I(f"v_xor_b32 v{vHA+4*t+k}, {k<<6}, v{vHA+4*t}")
    I(f"v_lshlrev_b32 v{vKW}, 5, v{wC}"); I(f"v_lshl_add_u32 v{vKW}, v{wG}, 3, v{vKW}")
    I(f"s_lshl_b32 s24, s{sWV}, 10"); I(f"s_add_u32 s24, s24, {L_KM}"); I(f"v_add_u32 v{vKW}, s24, v{vKW}")
    I(f"v_lshlrev_b32 v{vTR2}, 3, v{wLN}"); I(f"v_add_u32 v{vTR2}, {L_KM}, v{vTR2}")
    QS = 272
    I(f"s_mul_i32 s24, s{sWV}, {32*QS}"); I(f"s_add_u32 s24, s24, {L_PT}")
    I(f"v_mul_u32_u24 v{vPW}, {QS}, v{wC}"); I(f"v_lshl_add_u32 v{vPW}, v{wG}, 4, v{vPW}"); I(f"v_add_u32 v{vPW}, s24, v{vPW}")
    I(f"v_mul_u32_u24 v{vPR}, {QS}, v{wG}"); I(f"v_lshl_add_u32 v{vPR}, v{wC}, 4, v{vPR}"); I(f"v_add_u32 v{vPR}, s24, v{vPR}")
    vPG, vRL, vRO, vKVR, vSEL4 = 29, 38, 39, 9, 184
    I(f"s_lshl_b32 s24, s{sWV}, 8")
    I(f"v_lshlrev_b32 v40, 4, v{wC}"); I("v_add_u32 v40, s24, v40")
    I(f"v_lshl_add_u32 v{vPG}, v{wG}, 15, v40")
    I(f"v_lshl_add_u32 v{vRL}, v{wG}, 10, v40")
    I(f"v_lshl_add_u32 v{vRO}, v{wG}, 2, v40")
    I(f"v_add_u32 v{vKVR}, {L_KV2}, v{wL16}")
    I(f"s_lshr_b32 s24, s{sWV}, 1"); I("s_lshl_b32 s24, s24, 12"); I(f"v_add_u32 v8, s24, v{vKVR}")
    I(f"v_and_b32 v40, 1, v{wC}"); I("v_lshlrev_b32 v40, 4, v40"); I("v_mov_b32 v41, 0x3f80"); I("v_lshlrev_b32 v41, v40, v41")
    for i in range(4):
        I(f"v_cmp_eq_u32 vcc, {i}, v{wR}"); I(f"v_cndmask_b32 v{vSEL4+i}, 0, v41, vcc")
    vQW, vQR, vOWr, vL64 = 34, 35, 36, 37
    I(f"v_add_u32 v{vL64}, 65536, v{wL16}")
    I(f"s_lshl_b32 s24, s{sWV}, 10"); I(f"v_add_u32 v{vQW}, s24, v{vL64}")
    I(f"s_and_b32 s24, s{sWV}, 1"); I("s_lshl_b32 s24, s24, 12"); I(f"v_add_u32 v{vQR}, s24, v{vL64}")
    I(f"s_lshr_b32 s25, s{sWV}, 1"); I("s_lshl_b32 s25, s25, 11"); I(f"v_add_u32 v{vOWr}, s25, v{vQR}")
    I(f"s_and_b32 s24, s{sWV}, 1"); I("s_lshl_b32 s24, s24, 4"); I(f"v_add_u32 v40, s24, v{wC}")
    I(f"v_lshlrev_b32 v41, 2, v{wG}"); I("v_sub_u32 v40, v40, v41")
    for j in range(8): I(f"v_cmp_le_i32 s[{sMK+2*j}:{sMK+2*j+1}], {16*(j>>2) + (j&3)}, v40")
    for i in range(4): I(f"v_mov_b32 v{vZ+i}, 0")
    I(f"s_sub_u32 s{sSEG}, s{sG}, 1")
    sGR = 33
    I(f"s_lshl_b32 s{sGR}, s{sG}, 5"); I(f"s_add_u32 s{sGR}, s{sGR}, s{sH}")
    I("s_barrier")
    XF = 40; KF = 72; VF = 104; QF = 120; SS = 136; KMF = 148; T0 = 164; XR = 10
    TS(A, 188, 5)
    if TRACE[0]: I("s_mov_b32 s60, 0")
    def TH(k):
        if not TRACE[0]: return
        I(f"s_add_u32 s61, s60, {k & 3}"); TS(A, 189 + (k >> 2), "s61")
    def issue(tag, segoff):
        I(f"s_add_u32 s26, s{sSEG}, {segoff}")
        I("s_lshl_b32 s25, s26, 15"); I(f"s_add_u32 s25, s25, {WS_XN}")
        I("s_mov_b32 s24, 0")
        A.label(f"H2_is{tag}")
        I("s_and_b32 s27, s24, 15"); I("s_lshl_b32 s27, s27, 4")
        I(f"v_xor_b32 v{vTm}, s27, v{wL16}")
        I("s_lshl_b32 m0, s24, 10")
        I("s_add_u32 s24, s24, 1")
        I(f"buffer_load_dwordx4 v{vTm}, {WSS}, s25 offen sc1 lds")
        I("s_add_u32 s25, s25, 1024")
        I("s_cmp_lt_u32 s24, 32"); I(f"s_cbranch_scc1 H2_is{tag}")
        I("s_lshl_b32 s25, s26, 19"); I(f"s_lshl_b32 s27, s{sH}, 14"); I("s_add_u32 s25, s25, s27"); I(f"s_add_u32 s25, s25, {WS_KV}")
        for q in range(4):
            I(f"s_mov_b32 m0, {L_KV2 + q*4096}")
            I("s_nop 0")
            for i in range(4): I(f"buffer_load_dwordx4 v{wL16}, {WSS}, s25 offen offset:{i*1024} sc1 lds")
            I("s_add_u32 s25, s25, 4096")
    I(f"s_cmp_lg_u32 s{sWV}, 3"); I("s_cbranch_scc1 H2_loop")
    issue("a", 0)
    I("s_waitcnt vmcnt(0)")
    A.label("H2_loop")
    TH(0)
    I(f"s_lshl_b32 s{sA1}, s{sSEG}, 5"); I(f"s_add_u32 s{sA1}, s{sA1}, s{sH}")
    I(f"s_lshl_b32 s24, s{sA1}, 10")
    I(f"buffer_load_dword v{XR}, v{vRO}, {SW}, s24 offen")
    I("s_barrier")
    AC = T0
    def rd(ks): return [f"ds_read_b128 {vr(XF + 8*(ks&3) + 4*t,4)}, v{vXA + (ks&3)} offset:{L_XB + (ks>>2)*256 + t*16384}" for t in range(2)]
    for ks in range(3):
        for x in rd(ks): I(x)
    for ks in range(16):
        I(f"s_waitcnt lgkmcnt({4 if ks < 14 else (2 if ks == 14 else 0)})")
        ms = []
        for eps in range(2):
            for t in range(2):
                dk = AC + 8*t + 4*eps
                ms.append(f"v_mfma_f32_16x16x32_bf16 {vr(dk,4)}, {ar((eps*16+ks)*4,4)}, {vr(XF + 8*(ks&3) + 4*t, 4)}, {'0' if ks == 0 else vr(dk,4)}")
        slots(A, ms, [[x] for x in rd(ks + 3)] if ks + 3 < 16 else [])
    for i in range(8): I(f"ds_read_b128 {vr(KF+4*i,4)}, v{vKVR} offset:{i*1024}")
    for i in range(4): I(f"ds_read_b128 {vr(VF+4*i,4)}, v8 offset:{8192 + i*1024}")
    for t in range(2):
        for i in range(4): I(cv(XF + 4*t + i, AC + 8*t + 2*i))
        I(f"ds_write_b128 v{vQW}, {vr(XF+4*t,4)} offset:{L_QX - 65536 + t*4096}")
    I("s_waitcnt lgkmcnt(0)")
    I("s_barrier")
    for sg in range(4): I(f"ds_read_b128 {vr(QF+4*sg,4)}, v{vQR} offset:{L_QX - 65536 + sg*1024}")
    I("s_waitcnt lgkmcnt(0)")
    for tk in range(2):
        for sg in range(4): I(mf32(SS + 4 + 4*tk, KF + 16*tk + 4*sg, QF + 4*sg, "0" if sg == 0 else vr(SS + 4 + 4*tk, 4)))
    regs = [SS + 4 + j for j in range(8)] + [SS, SS + 1]
    tm = T0 + 8
    def rb2(a, b, t):
        I(f"v_cvt_pk_bf16_f32 v{t}, v{a}, v{b}"); I(f"v_lshlrev_b32 v{a}, 16, v{t}"); I(f"v_and_b32 v{b}, 0xffff0000, v{t}")
    def scal(i):
        a, b = regs[i], regs[i+1]
        rb2(a, b, tm + 2)
        I(f"v_mul_f32 v{a}, {hex(f2u(128 ** -0.5))}, v{a}"); I(f"v_mul_f32 v{b}, {hex(f2u(128 ** -0.5))}, v{b}")
        rb2(a, b, tm + 2)
    I(f"v_mov_b32 v{tm+1}, {hex(f2u(-1e9))}")
    for i in range(0, 8, 2): scal(i)
    for j in range(8): I(f"v_cndmask_b32 v{regs[j]}, v{tm+1}, v{regs[j]}, s[{sMK+2*j}:{sMK+2*j+1}]")
    I(f"v_max3_f32 v{tm}, v{regs[0]}, v{regs[1]}, v{regs[2]}")
    for i in range(3, 7, 2): I(f"v_max3_f32 v{tm}, v{tm}, v{regs[i]}, v{regs[i+1]}")
    I(f"v_max_f32 v{tm}, v{tm}, v{regs[7]}")
    I(f"s_mul_i32 s26, s{sH}, 65"); I(f"s_add_u32 s26, s26, s{sSEG}"); I("s_lshl_b32 s26, s26, 12"); I(f"s_add_u32 s26, s26, {WS_KM}")
    I(f"s_lshl_b32 s27, s{sWV}, 10"); I("s_add_u32 s27, s27, s26")
    I(f"s_lshr_b32 s24, s{sWV}, 1"); I("s_lshl_b32 s24, s24, 11"); I("s_add_u32 s26, s26, s24")
    TH(1)
    VM = T0 + 4
    I("s_branch H2_kmp")
    A.label("H2_kmr")
    I("s_sleep 2")
    A.label("H2_kmp")
    I(f"buffer_load_dwordx2 {vr(T0,2)}, v{wL16}, {WSS}, s27 offen sc1")
    I(f"buffer_load_dwordx2 {vr(VM,2)}, v{wL16}, {WSS}, s26 offen offset:8 sc1")
    I(f"buffer_load_dwordx2 {vr(VM+2,2)}, v{wL16}, {WSS}, s26 offen offset:1032 sc1")
    I(f"s_add_u32 s{sSPIN}, s{sSPIN}, 1")
    I(f"s_cmp_gt_u32 s{sSPIN}, {SPIN_MAX}")
    I("s_waitcnt vmcnt(0)")
    I("s_cbranch_scc1 H2_kmd")
    I(f"v_max3_u32 v{T0+2}, v{T0}, v{T0+1}, v{VM}"); I(f"v_max3_u32 v{T0+2}, v{T0+2}, v{VM+1}, v{VM+2}"); I(f"v_max_u32 v{T0+2}, v{T0+2}, v{VM+3}")
    I(f"v_cmp_eq_u32 vcc, -1, v{T0+2}")
    I("s_cbranch_vccnz H2_kmr")
    A.label("H2_kmd")
    TH(2)
    I(f"ds_write2st64_b32 v{vKW}, v{T0}, v{T0+1} offset0:0 offset1:2")
    I("s_waitcnt lgkmcnt(0)")
    I("s_barrier")
    for sg in range(4):
        for rho in range(2): I(f"ds_read_b64_tr_b16 {vr(KMF+4*sg+2*rho,2)}, v{vTR2} offset:{sg*1024 + rho*512}")
    I(f"s_add_u32 s26, s{sSEG}, {NG}")
    I(f"s_lshl_b32 s{sA0}, s26, 15"); I(f"s_add_u32 s{sA0}, s{sA0}, {WS_XN}")
    I("s_lshl_b32 s27, s26, 19"); I(f"s_lshl_b32 s25, s{sH}, 14"); I("s_add_u32 s27, s27, s25"); I(f"s_lshl_b32 s25, s{sWV}, 12"); I("s_add_u32 s27, s27, s25"); I(f"s_add_u32 s27, s27, {WS_KV}")
    I(f"s_add_u32 m0, s25, {L_KV2}")
    I("s_cmp_ge_u32 s26, 64"); I(f"s_cselect_b32 s{sA0}, {OOB}, s{sA0}"); I(f"s_cselect_b32 s27, {OOB}, s27")
    kvd = [f"buffer_load_dwordx4 v{wL16}, {WSS}, s27 offen offset:{i*1024} sc1 lds" for i in range(4)]
    for sg in range(4):
        I(f"s_waitcnt lgkmcnt({6-2*sg})")
        I(mf32(SS, KMF + 4*sg, QF + 4*sg, "0" if sg == 0 else vr(SS, 4)))
    I(kvd[0])
    scal(8)
    I(f"v_max3_f32 v{tm}, v{tm}, v{regs[8]}, v{regs[9]}")
    def xred(r, op):
        for sw in ("16", "32"):
            I(f"v_mov_b32 v{tm+2}, v{r}"); I(f"v_permlane{sw}_swap_b32 v{r}, v{tm+2}"); I(f"v_{op}_f32 v{r}, v{r}, v{tm+2}")
    xred(tm, "max")
    I(f"v_mov_b32 v{tm+2}, {hex(f2u(1.4426950408889634))}")
    prs = [SS + 4, SS + 6, SS + 8, SS + 10, SS]
    for r in prs: I(f"v_pk_add_f32 {vr(r,2)}, {vr(r,2)}, {vr(tm,2)} op_sel_hi:[1,0] neg_lo:[0,1] neg_hi:[0,1]")
    for r in prs: I(f"v_pk_mul_f32 {vr(r,2)}, {vr(r,2)}, {vr(tm+2,2)} op_sel_hi:[1,0]")
    for r in regs: I(f"v_exp_f32 v{r}, v{r}")
    I(f"v_pk_add_f32 {vr(tm,2)}, {vr(prs[0],2)}, {vr(prs[1],2)}")
    for r in prs[2:]: I(f"v_pk_add_f32 {vr(tm,2)}, {vr(tm,2)}, {vr(r,2)}")
    I(f"v_add_f32 v{tm}, v{tm}, v{tm+1}")
    xred(tm, "add")
    I(f"v_rcp_f32 v{tm}, v{tm}")
    for r in prs: I(f"v_pk_mul_f32 {vr(r,2)}, {vr(r,2)}, {vr(tm,2)} op_sel_hi:[1,0]")
    for i in range(4): I(cv(SS + 4 + i, SS + 4 + 2*i))
    I(cv(vZ, SS)); I(cv(vZ + 3, SS))
    OA = XF
    slots(A, [mf32(OA + 4*e, VF + 4*e, SS + 4, "0") for e in range(4)], [[kvd[1]]])
    slots(A, [mf16(OA + 4*e, VM + 2*(e>>1), vZ + 2*(e&1), vr(OA + 4*e, 4)) for e in range(4)], [[], [], [], [kvd[2]]])
    for i in range(2):
        for j in range(4): I(cv(QF + 4*i + j, OA + 8*i + 2*j))
        I(f"ds_write_b128 v{vOWr}, {vr(QF+4*i,4)} offset:{L_OX - 65536 + i*1024}")
    I(f"s_lshl_b32 s24, s{sG}, 20"); I(f"s_lshl_b32 s25, s{sH}, 10"); I("s_add_u32 s24, s24, s25"); I(f"s_add_u32 s24, s24, {WS_PART}")
    I("s_waitcnt lgkmcnt(0)")
    I("s_barrier")
    OF = XF
    for i in range(8): I(f"ds_read_b128 {vr(OF+4*i,4)}, v{vL64} offset:{L_OX - 65536 + i*1024}")
    I(kvd[3])
    rows_dma_prep(A, sA0, L_XB)
    items = rows_dma_items(vTm)
    PA = KF
    PB_ = SS
    def wo(t): return [f"v_mfma_f32_16x16x32_bf16 {vr(PA + 32*t + 4*t8,4)}, {ar(128 + (t8*4 + ks)*4,4)}, {vr(OF + 16*t + 4*ks,4)}, {'0' if ks == 0 else vr(PA + 32*t + 4*t8,4)}"
                       for t8 in range(8) for ks in range(4)]
    def pkw(t, p):
        d = PA + 32*t + 8*p
        return [cv(d + i, d + 2*i) for i in range(4)] + [f"ds_write_b128 v{vPW}, {vr(d,4)} offset:{t*16*QS + p*64}"]
    def rdb(t): return [f"ds_read_b128 {vr(PB_+4*i,4)}, v{vPR} offset:{(t*16 + 4*i)*QS}" for i in range(4)]
    def body(f):
        def st(i): return [f"buffer_store_dwordx4 {vr(PB_+4*i,4)}, v{vPG}, {WSS}, s24 offen {f}", "s_add_u32 s24, s24, 131072"]
        fl = [[] for _ in range(64)]
        for t in range(2):
            for p in range(4):
                q = pkw(t, p); at = 32*t + 8*p + 11
                if at + 2 < 64:
                    fl[at] += q[:2]; fl[at+1] += q[2:4]; fl[at+2] += q[4:]
        fl[40] += ["s_waitcnt lgkmcnt(0)"] + rdb(0)[:2]; fl[41] += rdb(0)[2:]
        fl[47] += ["s_waitcnt lgkmcnt(1)"] + st(0); fl[51] = st(1) + fl[51]; fl[55] += st(2); fl[59] = st(3) + fl[59]
        I("s_waitcnt lgkmcnt(4)")
        ms = wo(0) + wo(1)
        fl[30] += ["s_waitcnt lgkmcnt(3)"]
        for i, at in enumerate([1, 5, 9, 15, 17+5, 25, 31, 33+5]):
            fl[at] += items[i][0]; fl[at+1] = items[i][1] + fl[at+1]
        slots(A, ms, fl)
        for x in pkw(1, 3): I(x)
        I("s_waitcnt lgkmcnt(0)")
        for x in rdb(1): I(x)
        for i in range(4):
            I(f"s_waitcnt lgkmcnt({3-i})")
            for x in st(i): I(x)
    dual(A, body)
    TH(3)
    I("s_waitcnt vmcnt(0)")
    I("s_barrier")
    TH(4)
    I(f"s_lshl_b32 s29, s{sG}, 7"); I(f"s_add_u32 s28, s29, {F_PART}")
    gsignal(A, 28, T0, T0 + 1)
    I(f"s_lshl_b32 s26, s{sGR}, 15"); I(f"s_add_u32 s26, s26, {WS_PART}")
    gwait(A, 28, T0, T0 + 1)
    TH(5)
    for i in range(8):
        I(f"buffer_load_dwordx4 {vr(XF+4*i,4)}, v{vRL}, {WSS}, s26 offen sc1")
        I("s_add_u32 s26, s26, 4096")
    RS = KF; RT = KF + 4
    unpack(A, XR, RT, 1)
    for i in range(8):
        I(f"s_waitcnt vmcnt({7-i})")
        I(mf32(RS, vSEL4, XF + 4*i, "0" if i == 0 else vr(RS, 4)))
    I(cv(RS + 2, RS)); unpack(A, RS + 2, RS, 1)
    I(f"v_add_f32 v{RS}, v{RS}, v{RT}"); I(f"v_add_f32 v{RS+1}, v{RS+1}, v{RT+1}")
    I(cv(XR, RS)); unpack(A, XR, RS, 1)
    I(f"v_add_f32 v{RT}, v{RS}, v{RS+1}")
    I(f"v_mul_f32 v{RT+1}, v{RS}, v{RS}"); I(f"v_fmac_f32 v{RT+1}, v{RS+1}, v{RS+1}")
    allreduce(A, [RT, RT + 1], RT + 2)
    I(f"s_lshl_b32 s24, s{sWV}, 3"); I(f"s_add_u32 s24, s24, {L_RED}"); I(f"v_mov_b32 v{RT+2}, s24"); I(f"v_mov_b32 v{RT+3}, {L_RED}")
    I(f"ds_write_b64 v{RT+2}, {vr(RT,2)}")
    I(f"s_lshl_b32 s24, s{sGR}, 10"); I(f"s_add_u32 s26, s24, {WS_HN}")
    I("s_waitcnt lgkmcnt(0)")
    I("s_barrier")
    I(f"ds_read_b128 {vr(RT+4,4)}, v{RT+3}"); I(f"ds_read_b128 {vr(RT+8,4)}, v{RT+3} offset:16")
    I("s_waitcnt lgkmcnt(0)")
    I(f"v_pk_add_f32 {vr(RT+4,2)}, {vr(RT+4,2)}, {vr(RT+6,2)}"); I(f"v_pk_add_f32 {vr(RT+8,2)}, {vr(RT+8,2)}, {vr(RT+10,2)}")
    I(f"v_pk_add_f32 {vr(RT,2)}, {vr(RT+4,2)}, {vr(RT+8,2)}")
    I(f"v_mul_f32 v{RT}, {hex(f2u(1/512))}, v{RT}"); I(f"v_mul_f32 v{RT+1}, {hex(f2u(1/512))}, v{RT+1}")
    I(f"v_fma_f32 v{RT+1}, -v{RT}, v{RT}, v{RT+1}"); I(f"v_max_f32 v{RT+1}, 0, v{RT+1}")
    ln_finish(A, RT, RT + 1)
    I(f"v_sub_f32 v{RS}, v{RS}, v{RT}"); I(f"v_sub_f32 v{RS+1}, v{RS+1}, v{RT}")
    I(cv(RS + 2, RS)); unpack(A, RS + 2, RS, 1)
    I(f"v_mul_f32 v{RS}, v{RS}, v{RT+1}"); I(f"v_mul_f32 v{RS+1}, v{RS+1}, v{RT+1}")
    I(cv(RS + 2, RS))
    dual(A, lambda f: I(f"buffer_store_dword v{RS+2}, v{vRO}, {WSS}, s26 offen {f}"))
    I("s_waitcnt vmcnt(0)")
    I("s_barrier")
    I(f"s_add_u32 s28, s29, {F_HN}")
    gsignal(A, 28, T0, T0 + 1)
    TH(6)
    gwait(A, 28, T0, T0 + 1)
    TH(7)
    I(f"s_lshl_b32 s{sA0}, s{sG}, 15"); I(f"s_add_u32 s{sA0}, s{sA0}, {WS_HN}")
    rows_dma(A, vTm, sA0, L_HB)
    I(f"s_lshl_b32 s25, s{sA1}, 10"); I(f"s_add_u32 s25, s25, {WS_H}")
    I(f"buffer_store_dword v{XR}, v{vRO}, {WSS}, s25 offen sc1")
    I("s_waitcnt vmcnt(1)")
    I("s_barrier")
    TH(8)
    I(f"s_cmp_ge_u32 s{sTILE}, 86"); I("s_cbranch_scc1 H2_skipz")
    HF = XF
    for ks in range(16):
        for t in range(2): I(f"ds_read_b128 {vr(HF + 8*ks + 4*t,4)}, v{vHA + 4*t + (ks&3)} offset:{(ks>>2)*256}") if ks < 4 else None
    ZA = 168
    I(f"s_cmp_lt_u32 s{sTILE}, 43"); I("s_cbranch_scc1 H2_z1")
    for var in range(2):
        if var == 1: A.label("H2_z1")
        for ks in range(16):
            I(f"s_waitcnt lgkmcnt({6 if ks < 13 else 2*(15-ks)})")
            for t in range(2):
                a, b = (HF + 8*ks + 4*t, WIN + 4*ks) if var == 0 else (WIN + 4*ks, HF + 8*ks + 4*t)
                I(mf32(ZA + 4*t, a, b, "0" if ks == 0 else vr(ZA + 4*t, 4)))
                k2 = ks + 4
                if k2 < 16: I(f"ds_read_b128 {vr(HF + 8*k2 + 4*t,4)}, v{vHA + 4*t + (k2&3)} offset:{(k2>>2)*256}")
        if var == 0: I("s_branch H2_zc")
    A.label("H2_zc")
    I("s_nop 7")
    tm = 176
    k1 = -2 * 0.7978845608028654 * 1.4426950408889634
    I(f"v_mov_b32 v{XF}, {hex(f2u(k1 * 0.044715))}"); I(f"v_mov_b32 v{XF+2}, {hex(f2u(k1))}")
    for i in range(0, 8, 2):
        I(f"v_cvt_pk_bf16_f32 v{tm}, v{ZA+i}, v{ZA+i+1}"); I(f"v_lshlrev_b32 v{ZA+i}, 16, v{tm}"); I(f"v_and_b32 v{ZA+i+1}, 0xffff0000, v{tm}")
    for i in range(0, 8, 2):
        I(f"v_pk_mul_f32 {vr(tm+i,2)}, {vr(ZA+i,2)}, {vr(ZA+i,2)}")
        I(f"v_pk_fma_f32 {vr(tm+i,2)}, {vr(tm+i,2)}, {vr(XF,2)}, {vr(XF+2,2)} op_sel_hi:[1,0,0]")
        I(f"v_pk_mul_f32 {vr(tm+i,2)}, {vr(tm+i,2)}, {vr(ZA+i,2)}")
    for i in range(8): I(f"v_exp_f32 v{tm+i}, v{tm+i}")
    for i in range(0, 8, 2): I(f"v_pk_add_f32 {vr(tm+i,2)}, {vr(tm+i,2)}, 1.0 op_sel_hi:[1,0]")
    for i in range(8): I(f"v_rcp_f32 v{tm+i}, v{tm+i}")
    for i in range(0, 8, 2): I(f"v_pk_mul_f32 {vr(ZA+i,2)}, {vr(ZA+i,2)}, {vr(tm+i,2)}")
    for i in range(4): I(cv(tm + i, ZA + 2*i))
    I(f"s_mul_i32 s24, s{sSEG}, 86"); I(f"s_add_u32 s24, s24, s{sTILE}"); I("s_lshl_b32 s24, s24, 10"); I(f"s_add_u32 s24, s24, {WS_Z}")
    I(f"buffer_store_dwordx4 {vr(tm,4)}, v{wL16}, {WSS}, s24 offen sc1")
    I(f"s_cmp_lt_u32 s{sTILE}, 43"); I("s_cbranch_scc1 H2_nostat")
    ST = XF
    for i in range(4):
        I(f"v_lshlrev_b32 v{ST+4*i}, 16, v{tm+i}"); I(f"v_and_b32 v{ST+4*i+2}, 0xffff0000, v{tm+i}")
    for i in range(8): I(f"v_mul_f32 v{ST+2*i+1}, v{ST+2*i}, v{ST+2*i}")
    for r in range(16): I(f"v_add_f32_dpp v{ST+r}, v{ST+r}, v{ST+r} row_ror:8 row_mask:0xf bank_mask:0xf")
    for r in range(8): I(f"v_mov_b32_dpp v{ST+r}, v{ST+8+r} quad_perm:[0,1,2,3] row_mask:0xf bank_mask:0xc")
    for r in range(8): I(f"v_add_f32_dpp v{ST+r}, v{ST+r}, v{ST+r} row_half_mirror row_mask:0xf bank_mask:0xf")
    for r in range(4): I(f"v_mov_b32_dpp v{ST+r}, v{ST+4+r} quad_perm:[0,1,2,3] row_mask:0xf bank_mask:0xa")
    for r in range(4): I(f"v_add_f32_dpp v{ST+r}, v{ST+r}, v{ST+r} quad_perm:[1,0,3,2] row_mask:0xf bank_mask:0xf")
    for r in range(4): I(f"v_add_f32_dpp v{ST+r}, v{ST+r}, v{ST+r} quad_perm:[2,3,0,1] row_mask:0xf bank_mask:0xf")
    I(f"v_lshlrev_b32 v{ST+4}, 2, v{wLN}")
    I(f"v_mov_b32 v{ST+5}, {OOB}"); I(f"v_cmp_eq_u32 vcc, 0, v{wCP}"); I(f"v_cndmask_b32 v{ST+4}, v{ST+5}, v{ST+4}, vcc")
    I(f"s_lshl_b32 s24, s{sSEG}, 6"); I(f"s_add_u32 s24, s24, s{sTILE}"); I("s_lshl_b32 s24, s24, 8"); I(f"s_add_u32 s24, s24, {WS_ZS - 43*256}")
    I(f"buffer_store_dwordx4 {vr(ST,4)}, v{ST+4}, {WSS}, s24 offen sc1")
    A.label("H2_nostat")
    I("s_waitcnt vmcnt(0)")
    A.label("H2_skipz")
    I("s_waitcnt vmcnt(0)")
    A.label("H2_zend")
    I("s_barrier")
    I(f"s_add_u32 s28, s29, {F_ZL}")
    gsignal(A, 28, T0, T0 + 1)
    I(f"s_cmp_lg_u32 s{sH}, 31"); I("s_cbranch_scc1 H2_nosig")
    gwait(A, 28, T0, T0 + 1, barrier=False)
    I(f"s_lshl_b32 s28, s{sSEG}, 7"); I(f"s_add_u32 s28, s28, {F_Z}")
    signal_store(A, "s28", 1, T0, T0 + 1)
    A.label("H2_nosig")
    TH(9)
    if TRACE[0]: I("s_add_u32 s60, s60, 4")
    I(f"s_add_u32 s{sSEG}, s{sSEG}, {NG}")
    I(f"s_cmp_lt_u32 s{sSEG}, 64"); I("s_cbranch_scc1 H2_loop")
    TDUMP(A, [188, 189, 190, 191], 40, (4, 9, 3, 3))


L_U = 98304
sJ6, sQ6 = 18, 19
def wout_preload(A, t):
    I = A.I
    I("s_load_dwordx2 s[44:45], s[0:1], 88"); I(f"s_mov_b32 s46, {688*1024}"); I("s_mov_b32 s47, 0x20000")
    I(f"s_mul_i32 s30, s{sWV}, 22528")
    I(f"v_lshrrev_b32 v{t}, 6, v{wL16}"); I(f"v_lshlrev_b32 v{t}, 10, v{t}")
    I(f"v_and_b32 v{t+1}, 48, v{wL16}"); I(f"v_add_u32 v{t}, v{t}, v{t+1}")
    I(f"s_lshl_b32 s24, s{sQ6}, 8"); I(f"s_lshl_b32 s25, s{sWV}, 6"); I("s_add_u32 s25, s25, s24")
    I(f"v_add_u32 v{t+1}, s30, v{wL16}")
    I("s_waitcnt lgkmcnt(0)")
    for rnd in range(2):
        for i in range(22):
            I(f"s_add_u32 m0, s30, {i*1024}")
            I("s_nop 0")
            I(f"buffer_load_dwordx4 v{t}, s[44:47], s25 offen lds")
            I("s_add_u32 s25, s25, 16384")
        for k in range(11):
            I(f"s_waitcnt vmcnt({20 - 2*k})")
            for par in range(2):
                for u in range(2):
                    I(f"ds_read_b64_tr_b16 {ar(((11*rnd + k)*2 + par)*4 + 2*u, 2)}, v{t+1} offset:{k*2048 + u*1024 + par*8}")
        I("s_waitcnt lgkmcnt(0)")

def t6_mm(A, kss, first, YA, UF, vU, extra=()):
    I = A.I
    extra = list(extra)
    def rd(n): return [f"ds_read_b128 {vr(UF + 8*(n%3) + 4*t,4)}, v{vU} offset:{kss[n]*2048 + t*1024}" for t in range(2)]
    for n in range(2):
        for x in rd(n): I(x)
    for n, ks in enumerate(kss):
        I(f"s_waitcnt lgkmcnt({2 if n + 1 < len(kss) else 0})")
        ms = [f"v_mfma_f32_16x16x32_bf16 {vr(YA + 8*t + 4*par,4)}, {ar((ks*2+par)*4,4)}, {vr(UF + 8*(n%3) + 4*t,4)}, {'0' if (first and n == 0) else vr(YA + 8*t + 4*par,4)}"
              for t in range(2) for par in range(2)]
        fl = [[x] for x in rd(n + 2)] if n + 2 < len(kss) else [[], []]
        fl += [[extra.pop(0)] if extra else []]
        slots(A, ms, fl)

def t6_addr(A, vO):
    I = A.I
    I(f"v_lshlrev_b32 v{vO}, 10, v{wC}"); I(f"v_lshl_add_u32 v{vO}, v{wG}, 4, v{vO}")
    I(f"s_lshl_b32 s26, s{sJ6}, 15"); I(f"s_lshl_b32 s24, s{sQ6}, 8"); I("s_add_u32 s26, s26, s24"); I(f"s_lshl_b32 s24, s{sWV}, 6"); I("s_add_u32 s26, s26, s24")
    I("s_add_u32 s27, s26, 16384"); I(f"s_add_u32 s28, s26, {WS_H}"); I(f"s_add_u32 s29, s27, {WS_H}")
def t6_hload(HR, vO): return [f"buffer_load_dwordx4 {vr(HR+4*t,4)}, v{vO}, {WSS}, s{28+t} offen sc1" for t in range(2)]
def t6_out(A, YA, HR, T, vO):
    I = A.I
    I("s_waitcnt vmcnt(0)")
    for t in range(2):
        d = YA + 8*t
        unpack(A, HR + 4*t, T, 4)
        for i in range(4): I(cv(T + 8 + i, d + 2*i))
        unpack(A, T + 8, d, 4)
        for j in range(4): I(f"v_pk_add_f32 {vr(d+2*j,2)}, {vr(d+2*j,2)}, {vr(T+2*j,2)}")
        for j in range(4): I(cv(d + j, d + 2*j))
        I(f"buffer_store_dwordx4 {vr(d,4)}, v{vO}, {SW}, s{26+t} offen")

def helper_t6(A, opt):
    I = A.I
    I("v_mbcnt_lo_u32_b32 v0, -1, 0"); I("v_mbcnt_hi_u32_b32 v0, -1, v0")
    lanes(A)
    I(f"s_lshl_b32 s24, s{sG}, 5"); I(f"s_add_u32 s24, s24, s{sH}"); I(f"s_mul_i32 s{sJ6}, s24, 171"); I(f"s_lshr_b32 s{sJ6}, s{sJ6}, 9"); I(f"s_mul_i32 s25, s{sJ6}, 3"); I(f"s_sub_u32 s{sQ6}, s24, s25"); I(f"s_add_u32 s{sQ6}, s{sQ6}, 1")
    I("s_waitcnt vmcnt(0) lgkmcnt(0)")
    I("s_barrier")
    TS(A, 15, 47)
    wout_preload(A, 8)
    TS(A, 15, 48)
    vU, vW, vO, vX, YA, UF, HR, LB, T = 8, 9, 10, 11, 16, 32, 56, 64, 112
    srd(A, 96, 2 << 20)
    t6_addr(A, vO)
    I(f"v_add_u32 v{vU}, {L_U}, v{wL16}"); I(f"s_lshl_b32 s24, s{sWV}, 11"); I(f"v_add_u32 v{vW}, s24, v{vU}")
    I(f"s_mul_i32 s31, s{sJ6}, 49152"); I("s_add_u32 s31, s31, s24"); I(f"s_add_u32 s31, s31, {WS_U}")
    for i in range(1, 6): I(f"s_add_u32 s{31+i}, s31, {i*8192}")
    wait_ge(A, DBG, D_P2, 64, 12, 13, 24, sleep=4, barrier=False)
    wait_ge(A, WSS, F_Z + 63*128, 1, 12, 13, 24, sleep=4)
    def lds(bt): return [f"buffer_load_dwordx4 {vr(LB + 24*bt + 8*i + 4*t,4)}, v{wL16}, {WSS}, s{31 + 3*bt + i} offen offset:{t*1024} sc1" for i in range(3) for t in range(2)]
    I("v_mov_b32 v12, 0")
    TS(A, 15, 49)
    mode = opt.get("t6mode", "adapt")
    def canload(bt): return f"buffer_load_dword v13, v12, {WSS}, s{33 + 3*bt} offen offset:{opt.get('cano', 1024)} sc1"
    def canary(bt, tag):
        A.label(f"T6_c{tag}")
        I(canload(bt))
        I(f"s_add_u32 s{sSPIN}, s{sSPIN}, 1"); I(f"s_cmp_gt_u32 s{sSPIN}, {SPIN_MAX}")
        I("s_waitcnt vmcnt(0)")
        I(f"s_cbranch_scc1 T6_ce{tag}")
        I("v_cmp_eq_u32 vcc, -1, v13")
        if opt.get("csleep"): I(f"s_sleep {opt['csleep']}")
        I(f"s_cbranch_vccnz T6_c{tag}")
        A.label(f"T6_ce{tag}")
    def check(bt, keep):
        A.label(f"T6_w{bt}")
        I(f"s_add_u32 s{sSPIN}, s{sSPIN}, 1"); I(f"s_cmp_gt_u32 s{sSPIN}, {SPIN_MAX}")
        I(f"s_cbranch_scc1 T6_d{bt}")
        b = LB + 24*bt
        I(f"v_max3_u32 v{vX}, v{b}, v{b+1}, v{b+2}")
        for r in range(3, 23, 2): I(f"v_max3_u32 v{vX}, v{vX}, v{b+r}, v{b+r+1}")
        I(f"v_max_u32 v{vX}, v{vX}, v{b+23}")
        I(f"v_cmp_eq_u32 vcc, -1, v{vX}")
        I(f"s_cbranch_vccz T6_d{bt}")
        for x in lds(bt): I(x)
        I("s_waitcnt vmcnt(0)")
        I(f"s_branch T6_w{bt}")
        A.label(f"T6_d{bt}")
    def share(bt):
        b = LB + 24*bt
        for i in range(3):
            for t in range(2): I(f"ds_write_b128 v{vW}, {vr(b + 8*i + 4*t,4)} offset:{(3*bt + i)*8192 + t*1024}")
        I("s_waitcnt lgkmcnt(0)")
        I("s_barrier")
    if mode == "last":
        canary(1, "a"); TS(A, 15, 50)
        for x in lds(0) + lds(1): I(x)
        I("s_waitcnt vmcnt(6)")
        check(0, 6); TS(A, 15, 51); share(0); TS(A, 15, 52)
        t6_mm(A, list(range(12)), True, YA, UF, vU, t6_hload(HR, vO)); TS(A, 15, 53)
        I("s_waitcnt vmcnt(2)")
    else:
        canary(0, "a"); TS(A, 15, 50)
        for x in lds(0): I(x)
        I("s_waitcnt vmcnt(0)")
        I(canload(1))
        check(0, 0); TS(A, 15, 51); share(0); TS(A, 15, 52)
        I("s_waitcnt vmcnt(0)")
        I("v_cmp_eq_u32 vcc, -1, v13")
        I("s_cbranch_vccnz T6_late")
        t6_mm(A, list(range(12)), True, YA, UF, vU, lds(1) + t6_hload(HR, vO))
        I("s_branch T6_join")
        A.label("T6_late")
        t6_mm(A, list(range(12)), True, YA, UF, vU, t6_hload(HR, vO))
        canary(1, "b")
        for x in lds(1): I(x)
        A.label("T6_join")
        TS(A, 15, 53)
        I("s_waitcnt vmcnt(0)")
    check(1, 0); TS(A, 15, 55); share(1); TS(A, 15, 56)
    t6_mm(A, list(range(12, 22)), False, YA, UF, vU); TS(A, 15, 57)
    t6_out(A, YA, HR, T, vO)

def p_main(A, opt):
    I = A.I
    sJ = 18; sS = 36; sZ = 20; sSP = 21; sRD = 22; sISS = 32
    L_ST = 147456; L_ST2 = L_ST + 2048
    vO5, vSO, vWS, vSW, vSR, vS2W, vS2R, vFA, vFD = 7, 9, 12, 13, 14, 15, 16, 4, 5
    TRC = 17
    COR = 0
    ACC = 20; BUF = [116, 164]; SB = 212; MU = 224; RS = 232; WF = 240; TM = 248
    if TRACE[0]: I(f"v_mov_b32 v{TRC}, v187")
    I(f"s_sub_u32 s{sJ}, s{sG}, 6"); I(f"s_lshl_b32 s{sJ}, s{sJ}, 5"); I(f"s_add_u32 s{sJ}, s{sJ}, s{sH}")
    I(f"s_mov_b32 s{sQ6}, 0")
    wout_preload(A, TM)
    for i in range(4): I(f"v_mov_b32 v{TM+i}, -1")
    I(f"s_mul_i32 s37, s{sJ}, 49152"); I(f"s_lshl_b32 s24, s{sWV}, 11"); I("s_add_u32 s37, s37, s24"); I(f"s_add_u32 s37, s37, {WS_U}")
    I("s_mov_b32 s24, s37")
    for i in range(6):
        for t in range(2): I(f"buffer_store_dwordx4 {vr(TM,4)}, v{wL16}, {WSS}, s24 offen offset:{t*1024} sc1")
        I("s_add_u32 s24, s24, 8192")
    srd(A, 72, 8 << 20)
    I(f"s_lshl_b32 s{sSP}, s{sJ}, 17")
    I(f"s_lshl_b32 s24, s{sWV}, 15"); I(f"s_add_u32 s24, s24, s{sSP}")
    for i in range(32):
        I(f"buffer_load_dwordx4 {vr(ACC + 4*(i&15),4)}, v{wL16}, {SW}, s24 offen offset:{(i&3)*1024}")
        if (i & 3) == 3: I("s_add_u32 s24, s24, 4096")
    I(f"v_mov_b32 v{TM}, {OOB}")
    for par in range(2):
        I(f"s_lshl_b32 s24, s{sWV}, 1"); I(f"s_add_u32 s24, s24, {40 + par}"); I("s_cmp_lt_u32 s24, 43"); I("s_cselect_b64 vcc, -1, 0")
        I(f"v_cndmask_b32 v{vO5+par}, v{TM}, v{wL16}, vcc")
    for n in range(3):
        I(f"s_mul_i32 s24, s{sWV}, 12"); I(f"s_add_u32 s24, s24, {4*n}")
        I(f"v_add_u32 v{TM+1}, s24, v{wG}"); I(f"v_cmp_gt_u32 vcc, 43, v{TM+1}")
        I("s_lshl_b32 s24, s24, 8"); I(f"v_add_u32 v{TM+1}, s24, v{wL16}")
        I(f"v_cndmask_b32 v{vSO+n}, v{TM}, v{TM+1}, vcc")
    I(f"v_lshlrev_b32 v{vWS}, 12, v{wC}"); I(f"v_lshl_add_u32 v{vWS}, v{wG}, 4, v{vWS}")
    I(f"v_lshlrev_b32 v{vSR}, 4, v{wC}"); I(f"v_add_u32 v{vSR}, {L_ST}, v{vSR}")
    I(f"s_lshl_b32 s24, s{sWV}, 8"); I(f"v_add_u32 v{vSW}, s24, v{vSR}")
    I(f"s_add_u32 s24, s24, {L_ST2}")
    I(f"v_lshlrev_b32 v{vS2W}, 3, v{wC}"); I(f"v_add_u32 v{vS2W}, s24, v{vS2W}")
    I(f"v_lshlrev_b32 v{vS2R}, 5, v{wG}"); I(f"v_add_u32 v{vS2R}, s24, v{vS2R}")
    I(f"v_lshlrev_b32 v{vFA}, 3, v{wL16}"); I(f"v_cmp_gt_u32 vcc, 64, v{wL16}"); I(f"v_cndmask_b32 v{vFA}, v{TM}, v{vFA}, vcc")
    I("s_load_dwordx2 s[48:49], s[0:1], 80"); I("s_mov_b32 s50, 4096"); I("s_mov_b32 s51, 0x20000")
    I(f"v_lshlrev_b32 v{TM}, 1, v{wC}"); I(f"s_lshl_b32 s24, s{sJ}, 6")
    I("s_waitcnt lgkmcnt(0)")
    I(f"buffer_load_ushort v{COR}, v{TM}, s[48:51], s24 offen"); I(f"buffer_load_ushort v{COR+1}, v{TM}, s[48:51], s24 offen offset:32")
    I("s_waitcnt vmcnt(0)")
    I("s_barrier")
    signal_add(A, DBG, D_P2, 1, TM, TM + 1)
    I(f"v_cmp_eq_u32 vcc, 0, v{wG}")
    for t in range(2):
        I(f"v_lshlrev_b32 v{COR+t}, 16, v{COR+t}"); I(f"v_xor_b32 v{COR+t}, 0x80000000, v{COR+t}"); I(f"v_cndmask_b32 v{COR+t}, 0, v{COR+t}, vcc")
    for x in zero(ACC, 96): I(x)
    I(f"s_mov_b32 s{sS}, 0"); I(f"s_mov_b32 s{sRD}, 0"); I(f"s_mov_b32 s{sISS}, 0")
    I(f"s_lshl_b32 s{sZ}, s{sWV}, 11"); I(f"s_add_u32 s{sZ}, s{sZ}, {WS_Z + 43*1024}")
    TS(A, TRC, 2)
    CR = TM + 4 - 4 + 0
    def tiles(dst, sb):
        out = []
        for i in range(6):
            for par in range(2):
                v = vO5 + par if i == 5 else wL16
                x = [f"buffer_load_dwordx4 {vr(dst + 8*i + 4*par,4)}, v{v}, {WSS}, s{sb} offen offset:{par*1024} sc1"]
                if par == 1 and i < 5: x.append(f"s_add_u32 s{sb}, s{sb}, 8192")
                out.append(x)
        return out
    def wf_load():
        I(f"s_add_u32 s24, s{sSP}, 65536")
        I(f"buffer_load_dwordx4 {vr(WF,4)}, v{vWS}, {SW}, s{sSP} offen"); I(f"buffer_load_dwordx4 {vr(WF+4,4)}, v{vWS}, {SW}, s24 offen")
        I(f"s_add_u32 s{sSP}, s{sSP}, 64")
    def stat_loads(): return [[f"buffer_load_dwordx4 {vr(SB+4*n,4)}, v{vSO+n}, {WSS}, s27 offen sc1"] for n in range(3)]
    def flag_load():
        I(f"s_lshl_b32 s28, s{sRD}, 7"); I(f"s_add_u32 s28, s28, {F_Z}")
        I(f"buffer_load_dword v{vFD}, v{vFA}, {WSS}, s28 offen sc1")
    def flag_use():
        I(f"v_cmp_eq_u32 vcc, 1, v{vFD}")
        I("s_nop 0")
        I("s_ff0_i32_b32 s24, vcc_lo")
        I(f"s_add_u32 s{sRD}, s{sRD}, s24")
    I(f"s_mul_i32 s33, s{sJ}, {86*1024}"); I(f"s_lshl_b32 s27, s{sWV}, 11"); I("s_add_u32 s33, s33, s27"); I(f"s_add_u32 s33, s33, {WS_Z}")
    wf_load()
    A.label("P_loop")
    for b in range(2):
        RAW = BUF[b]
        I(f"s_cmp_lg_u32 s{sISS}, 0"); I(f"s_cbranch_scc1 P_have{b}")
        A.label(f"P_poll{b}")
        I(f"s_cmp_gt_u32 s{sRD}, s{sS}"); I(f"s_cbranch_scc1 P_rdy{b}")
        flag_load()
        I(f"s_add_u32 s{sSPIN}, s{sSPIN}, 1")
        I("s_waitcnt vmcnt(0)")
        flag_use()
        I(f"s_cmp_gt_u32 s{sRD}, s{sS}"); I(f"s_cbranch_scc1 P_rdy{b}")
        I("s_sleep 1")
        I(f"s_cmp_gt_u32 s{sSPIN}, {SPIN_MAX}"); I(f"s_cbranch_scc0 P_poll{b}")
        A.label(f"P_rdy{b}")
        TS(A, TRC + 1, f"s{sS}")
        I(f"s_lshl_b32 s27, s{sS}, 14"); I(f"s_add_u32 s27, s27, {WS_ZS}"); I(f"s_mov_b32 s26, s{sZ}")
        for x in sum(stat_loads() + tiles(RAW, 26), []): I(x)
        I("s_waitcnt vmcnt(12)")
        A.label(f"P_have{b}")
        I("s_waitcnt vmcnt(14)")
        I(f"s_cmp_eq_u32 s{sS}, s{sJ}"); I(f"s_cbranch_scc0 P_noz1{b}")
        I(f"s_lshl_b32 s24, s{sWV}, 11"); I(f"s_add_u32 s24, s24, {L_U}")
        for i in range(6):
            I(f"s_add_u32 m0, s24, {i*8192}")
            I("s_nop 0")
            for par in range(2): I(f"buffer_load_dwordx4 v{vO5 + par if i == 5 else wL16}, {WSS}, s33 offen offset:{par*1024} sc1 lds")
            I("s_add_u32 s33, s33, 8192")
        A.label(f"P_noz1{b}")
        flag_load()
        for n in (1, 2):
            for j in range(2): I(f"v_pk_add_f32 {vr(MU+2*j,2)}, {vr((SB if n == 1 else MU)+2*j,2)}, {vr(SB+4*n+2*j,2)}")
        for sw in ("16", "32"):
            for r in range(4): I(f"v_mov_b32 v{MU+4+r}, v{MU+r}")
            for r in range(4): I(f"v_permlane{sw}_swap_b32 v{MU+r}, v{MU+4+r}")
            for j in range(2): I(f"v_pk_add_f32 {vr(MU+2*j,2)}, {vr(MU+2*j,2)}, {vr(MU+4+2*j,2)}")
        I(f"ds_write_b128 v{vSW}, {vr(MU,4)} offset:{b*1024}")
        I("s_waitcnt lgkmcnt(0)")
        I("s_barrier")
        for w in range(4): I(f"ds_read_b128 {vr(MU+4*w,4)}, v{vSR} offset:{b*1024 + w*256}")
        I("s_waitcnt lgkmcnt(0)")
        for w in range(1, 4):
            for j in range(2): I(f"v_pk_add_f32 {vr(MU+2*j,2)}, {vr(MU+2*j,2)}, {vr(MU+4*w+2*j,2)}")
        for r in range(4): I(f"v_mul_f32 v{MU+r}, {hex(f2u(1/688))}, v{MU+r}")
        for j in range(2):
            I(f"v_fma_f32 v{MU+2*j+1}, -v{MU+2*j}, v{MU+2*j}, v{MU+2*j+1}")
            I(f"v_max_f32 v{MU+2*j+1}, 0, v{MU+2*j+1}")
            ln_finish(A, MU + 2*j, MU + 2*j + 1)
        I(f"ds_write2_b32 v{vS2W}, v{MU}, v{MU+2} offset0:0 offset1:1"); I(f"ds_write2_b32 v{vS2W}, v{MU+1}, v{MU+3} offset0:32 offset1:33")
        I("s_waitcnt lgkmcnt(0)")
        for i in range(2):
            I(f"ds_read_b128 {vr(RS+4*i,4)}, v{vS2R} offset:{128+16*i}"); I(f"ds_read_b128 {vr(MU+4*i,4)}, v{vS2R} offset:{16*i}")
        I("s_waitcnt vmcnt(0) lgkmcnt(0)")
        flag_use()
        for t in range(2):
            unpack(A, WF + 4*t, TM, 4)
            for j in range(4): I(f"v_pk_mul_f32 {vr(TM+2*j,2)}, {vr(TM+2*j,2)}, {vr(RS+2*j,2)}")
            for j in range(4): I(cv(WF + 4*t + j, TM + 2*j))
        cor = []
        for t in range(2):
            for j in range(4):
                cor += [f"v_lshlrev_b32 v{TM}, 16, v{WF+4*t+j}", f"v_fmac_f32 v{COR+t}, v{TM}, v{MU+2*j}",
                        f"v_and_b32 v{TM+1}, 0xffff0000, v{WF+4*t+j}", f"v_fmac_f32 v{COR+t}, v{TM+1}, v{MU+2*j+1}"]
        ms = [mf32(ACC + 16*(n>>1) + 8*t + 4*(n&1), RAW + 4*n, WF + 4*t, vr(ACC + 16*(n>>1) + 8*t + 4*(n&1), 4)) for n in range(12) for t in range(2)]
        I(f"s_add_u32 s{sZ}, s{sZ}, {86*1024}")
        I(f"s_add_u32 s24, s{sS}, 1"); I("s_lshl_b32 s27, s24, 14"); I(f"s_add_u32 s27, s27, {WS_ZS}"); I(f"s_mov_b32 s26, s{sZ}")
        I(f"s_cmp_gt_u32 s{sRD}, s24"); I(f"s_cselect_b32 s{sISS}, 1, 0"); I(f"s_cbranch_scc0 P_nopf{b}")
        ld = stat_loads() + tiles(BUF[1 - b], 26)
        fl = [cor[2*i:2*i+2] for i in range(24)]
        for i in range(6): fl[4*i] = ld[i] + fl[4*i]
        slots(A, ms, fl)
        for x in sum(ld[6:], []): I(x)
        I(f"s_branch P_done{b}")
        A.label(f"P_nopf{b}")
        slots(A, ms, [cor[2*i:2*i+2] for i in range(24)])
        A.label(f"P_done{b}")
        wf_load()
        TS(A, TRC + 2, f"s{sS}")
        I(f"s_add_u32 s{sS}, s{sS}, 1")
    I(f"s_cmp_lt_u32 s{sS}, 64"); I("s_cbranch_scc1 P_loop")
    vU, vO = SB, SB + 1
    I(f"v_add_u32 v{vU}, {L_U}, v{wL16}")
    I(f"s_lshl_b32 s24, s{sWV}, 11"); I(f"v_add_u32 v{vSW}, s24, v{vU}")
    ZB = BUF[0]; HR = BUF[1]; UF = BUF[1] + 8; YA = BUF[1] + 32
    for i in range(6):
        for par in range(2): I(f"ds_read_b128 {vr(ZB+8*i+4*par,4)}, v{vSW} offset:{i*8192 + par*1024}")
    for sw in ("16", "32"):
        for t in range(2):
            I(f"v_mov_b32 v{TM}, v{COR+t}"); I(f"v_permlane{sw}_swap_b32 v{COR+t}, v{TM}"); I(f"v_add_f32 v{COR+t}, v{COR+t}, v{TM}")
    I("s_waitcnt lgkmcnt(0)")
    for i in range(6):
        for t in range(2):
            d = ACC + 16*i + 8*t
            for j in range(4): I(f"v_pk_add_f32 {vr(d+2*j,2)}, {vr(d+2*j,2)}, {vr(COR,2)} op_sel:[0,{t}] op_sel_hi:[1,{t}] neg_lo:[0,1] neg_hi:[0,1]")
            for j in range(4): I(cv(MU + j, d + 2*j))
            unpack(A, MU, d, 4)
            for par in range(2): unpack(A, ZB + 8*i + 4*par + 2*t, TM + 4*par, 2)
            for j in range(4): I(f"v_pk_mul_f32 {vr(d+2*j,2)}, {vr(d+2*j,2)}, {vr(TM+2*j,2)}")
            for j in range(4): I(cv(d + j, d + 2*j))
            I(f"buffer_store_dwordx4 {vr(d,4)}, v{wL16}, {WSS}, s37 offen offset:{t*1024} sc1")
        I("s_add_u32 s37, s37, 8192")
    for i in range(6):
        for t in range(2): I(f"ds_write_b128 v{vSW}, {vr(ACC + 16*i + 8*t,4)} offset:{i*8192 + t*1024}")
    t6_addr(A, vO)
    for x in t6_hload(HR, vO): I(x)
    srd(A, 96, 2 << 20)
    I("s_barrier")
    TS(A, TRC, 3)
    t6_mm(A, list(range(22)), True, YA, UF, vU)
    TS(A, TRC, 4)
    t6_out(A, YA, HR, MU, vO)
    if TRACE[0]: I("s_waitcnt vmcnt(0)")
    TS(A, TRC, 5)
    TDUMP(A, [TRC, TRC + 1, TRC + 2], TM, (6, 12, 2, 4))
```

```python
from asmlib import *
import struct

WS_KV = 2 << 20
WS_KM = (36 << 20) + 4096
WS_HA = 48 << 20
WS_HB = 49 << 20
WS_XN = 50 << 20
WS_H = 52 << 20
WS_HN = 54 << 20
WS_Z = 56 << 20
WS_ZS = 62 << 20
WS_U = 72 << 20
WS_PART = 64 << 20
F_KV = 0; F_PART = 4096; F_HN = 6144; F_ZL = 8192; F_Z = 16384
NG = 5
NG1 = 7
WS_BYTES = 256 << 20
LW = 128 << 10
L_MEM = 0; L_QK = 0; L_O = 4096; L_V = 8192; L_K = 16384
LDS_BYTES = 160 << 10
SCALE_LOG2E = (128 ** -0.5) * 1.4426950408889634

SPIN_MAX = 1 << 18
def f2u(x): return struct.unpack("<I", struct.pack("<f", x))[0]
def vr(b, n): return f"v[{b}:{b+n-1}]"
def ar(b, n): return f"a[{b}:{b+n-1}]"

vIDX, vL16, vT, vMW, vOR, vKR, vSEL = 0, 1, 2, 4, 5, 6, 7
vXW, vTR, vOW, vF0, vF1, vAST, vALD, vBST = 8, 9, 10, 11, 12, 13, 14, 15
PZ = 16
M = 20; AQ = 52; AK = 60; AV = 68; KX = 76; VX = 108; S = 116
sWS = 4
sW = 8
sDBG = 12
sH, sWV, sSTEP, sHA, sHB, sKV, sKM, sSPIN, sT0, sT1, sT2, sT3, sSC = 16, 17, 18, 19, 20, 21, 22, 23, 24, 25, 26, 27, 28
sM0A, sM0B, sRA, sRB, sRC, sPF, sSPA, sB0, sB1 = 29, 30, 31, 32, 33, 34, 35, 36, 37
sRDY = 38
sKVM = 50
vFL = 14
sMSK = 52

LRES = [(0, 0, 0), (0, 1, 0), (1, 0, 0), (1, 1, 0), (0, 0, 1), (0, 1, 1)]
LBUF = [VX, VX + 8, KX, KX + 8, KX + 16, KX + 24]
WOL = [(3, 0, 2), (3, 1, 1), (3, 1, 3), (3, 1, 2), (3, 2, 1), (3, 2, 3), (3, 2, 2), (3, 3, 1), (3, 3, 3), (3, 3, 2)]
WBUF = [M + 8, M + 16, M + 24, KX + 16, KX + 24, KX, KX + 8, M, S, M + 8]
NL = len(LRES); NW = len(WOL)
_slots = {}
def _assign():
    n = 0
    for mat in range(3):
        for tau in range(2):
            for p in range(8):
                if (mat, tau, p) in LRES: continue
                _slots[(mat, tau, p)] = n; n += 1
    for p in range(4):
        for j in range(4):
            if (3, p, j) in WOL: continue
            _slots[(3, p, j)] = n; n += 1
    assert n == 48
_assign()
def slot_reg(key, off, n):
    i = _slots[key] * 8 + off
    return ar(i, n) if i < 256 else vr(128 + i - 256, n)
def wfrag(*key):
    if key in LRES: return vr(LBUF[LRES.index(key)], 8)
    if key in WOL: return vr(WBUF[WOL.index(key)], 8)
    return slot_reg(key, 0, 8)

def smf(acc, a, b): return f"v_smfmac_f32_16x16x64_bf16 {vr(acc,4)}, {vr(a,4)}, {b}, v{vIDX}"
def mf32(d, a, b, c): return f"v_mfma_f32_16x16x32_bf16 {vr(d,4)}, {vr(a,4)}, {vr(b,4)}, {c}"
def mf16(d, a, b, c): return f"v_mfma_f32_16x16x16_bf16 {vr(d,4)}, {vr(a,2)}, {vr(b,2)}, {c}"

def chain_setup(A, st, hooks=None):
    I = A.I
    WS = f"s[{sWS}:{sWS+3}]"
    LN, C, G, R, R0, R1, G0, G1, CP, X, Y, Z = 40, 41, 42, 43, 44, 45, 46, 47, 48, 49, 50, 51
    I(f"v_lshrrev_b32 v{X}, 6, v0")
    I(f"v_and_b32 v{LN}, 63, v0")
    I(f"v_readfirstlane_b32 s{sWV}, v{X}")
    I(f"v_and_b32 v{C}, 15, v{LN}")
    I(f"v_lshrrev_b32 v{G}, 4, v{LN}")
    I(f"v_lshrrev_b32 v{R}, 2, v{C}")
    I(f"v_and_b32 v{R0}, 1, v{R}")
    I(f"v_lshrrev_b32 v{R1}, 1, v{R}")
    I(f"v_and_b32 v{G0}, 1, v{G}")
    I(f"v_lshrrev_b32 v{G1}, 1, v{G}")
    I(f"v_and_b32 v{CP}, 3, v{C}")
    I(f"s_and_b32 s{sT0}, s{sWV}, 1")
    I(f"s_lshl_b32 s{sT0}, s{sT0}, 2")
    I(f"s_lshr_b32 s{sT1}, s{sWV}, 1")
    I(f"s_lshl_b32 s{sT1}, s{sT1}, 4")
    I(f"s_add_u32 s{sT0}, s{sT0}, s{sT1}")
    I(f"v_add_u32 v20, s{sT0}, v{G}")
    I("v_lshlrev_b32 v20, 13, v20")
    I(f"s_lshl_b32 s{sT0}, s{sWV}, 2")
    I(f"v_lshlrev_b32 v{X}, 1, v{G1}")
    I(f"v_or_b32 v{X}, s{sT0}, v{X}")
    I(f"v_xor_b32 v{X}, v{C}, v{X}")
    I(f"v_lshl_add_u32 v20, v{X}, 4, v20")
    I(f"s_lshl_b32 s{sT1}, s{sH}, 8")
    I(f"v_add_u32 v20, s{sT1}, v20")

    chunks = [(1, 0), (1, 1), (2, 0), (2, 1), (0, 0), (0, 1), (3, 0), (3, 1)]
    HOLD = 32; HW = HOLD + 8*NL
    def srd_for(mat):
        I(f"s_load_dwordx2 s[{sW}:{sW+1}], s[0:1], {16 + 8*mat}")
        I(f"s_mov_b32 s{sW+2}, {4<<20}")
        I(f"s_mov_b32 s{sW+3}, 0x20000")
        I("s_waitcnt lgkmcnt(0)")
    def dma(ci):
        mat, half = chunks[ci]
        if half == 0: srd_for(mat)
        reg = half * 65536
        if mat < 3:
            I(f"s_lshl_b32 s{sT0}, s{sWV}, 10")
            for i in range(16):
                I(f"s_add_u32 m0, s{sT0}, {reg + i*4096}")
                I(f"s_mov_b32 s{sT1}, {(32*i + 8*half)*8192}")
                I(f"buffer_load_dwordx4 v20, s[{sW}:{sW+3}], s{sT1} offen lds")
        else:
            I(f"s_lshl_b32 s{sT0}, s{sWV}, 14")
            for i in range(16):
                I(f"s_add_u32 m0, s{sT0}, {reg + i*1024}")
                I(f"s_mov_b32 s{sT1}, {((i&7) + 64*(i>>3) + 8*half)*1024}")
                I(f"buffer_load_dwordx4 v{21 + (i&1)}, s[{sW}:{sW+3}], s{sT1} offen lds")
    I(f"s_load_dwordx2 s[{sW}:{sW+1}], s[0:1], 8")
    I(f"s_mov_b32 s{sW+2}, 8192"); I(f"s_mov_b32 s{sW+3}, 0x20000")
    I(f"v_and_b32 v{Y}, 1, v{C}")
    I(f"v_lshl_add_u32 v{X}, v{R}, 1, v{Y}")
    I(f"v_lshlrev_b32 v{X}, 10, v{X}")
    I(f"v_lshl_add_u32 v{X}, v{G}, 8, v{X}")
    I(f"v_and_b32 v{Y}, 2, v{C}")
    I(f"v_lshl_add_u32 v{vT}, v{Y}, 2, v{X}")
    I("s_waitcnt lgkmcnt(0)")
    for k in range(8):
        I(f"buffer_load_dwordx2 {vr(60+4*k,2)}, v{vT}, s[{sW}:{sW+3}], 0 offen offset:{64*(k>>1) + 16*(k&1)}")
        I(f"buffer_load_dwordx2 {vr(62+4*k,2)}, v{vT}, s[{sW}:{sW+3}], 0 offen offset:{64*(k>>1) + 16*(k&1) + 32}")
    dma(0); dma(1)
    I(f"s_and_b32 s{sT0}, s{sWV}, 1")
    I(f"s_lshl_b32 s{sT0}, s{sT0}, 3")
    I(f"v_xor_b32 v21, s{sT0}, v{LN}")
    I("v_xor_b32 v22, 4, v21")
    I(f"s_lshl_b32 s{sT1}, s{sH}, 17")
    I(f"s_lshl_b32 s{sT2}, s{sWV}, 14")
    I(f"s_add_u32 s{sT1}, s{sT1}, s{sT2}")
    I("v_lshlrev_b32 v21, 4, v21")
    I("v_lshlrev_b32 v22, 4, v22")
    I(f"v_add_u32 v21, s{sT1}, v21")
    I(f"v_add_u32 v22, s{sT1}, v22")
    I(f"v_lshl_add_u32 v{X}, v{R1}, 1, v{G0}")
    I(f"v_lshl_add_u32 v{X}, v{R0}, 2, v{X}")
    I(f"v_lshlrev_b32 v{Y}, 9, v{X}")
    I(f"v_lshl_add_u32 v{Y}, v{G1}, 14, v{Y}")
    I(f"v_lshl_add_u32 v{Y}, v{CP}, 3, v{Y}")
    I(f"s_lshl_b32 s{sT1}, s{sWV}, 1")
    I(f"v_xor_b32 v{X}, s{sT1}, v{X}")
    I(f"v_lshl_add_u32 v23, v{X}, 5, v{Y}")
    I("v_xor_b32 v24, 32, v23")
    I(f"v_lshl_add_u32 v{Y}, v{G1}, 2, v{R0}")
    I(f"v_lshl_add_u32 v{Y}, v{G0}, 4, v{Y}")
    I(f"v_lshlrev_b32 v{Y}, 10, v{Y}")
    I(f"v_lshl_add_u32 v{Y}, v{CP}, 3, v{Y}")
    I(f"v_lshl_add_u32 v{X}, v{R0}, 1, v{R1}")
    I(f"v_lshl_add_u32 v{X}, v{G0}, 2, v{X}")
    I(f"v_lshl_add_u32 v{Y}, v{X}, 5, v{Y}")
    I(f"s_lshl_b32 s{sT1}, s{sWV}, 8")
    I(f"v_add_u32 v25, s{sT1}, v{Y}")
    I(f"v_lshlrev_b32 v{vL16}, 4, v{LN}")
    I(f"s_lshl_b32 s{sT1}, s{sWV}, 14")
    I(f"v_add_u32 v{vF0}, s{sT1}, v{vL16}")
    I(f"v_add_u32 v{vF1}, 0x10000, v{vF0}")
    I(f"v_add_u32 v{vL16}, {LW}, v{vL16}")
    I(f"s_lshl_b32 s{sT1}, s{sWV}, 11")
    I(f"v_add_u32 v{vMW}, s{sT1}, v{vL16}")
    I(f"s_lshl_b32 s{sT1}, s{sWV}, 10")
    I(f"v_add_u32 v{vOW}, s{sT1}, v{vL16}")
    I(f"v_and_b32 v{vOR}, {hex(0xffffffff ^ 32)}, v{vL16}")
    I(f"v_lshlrev_b32 v{X}, 5, v{C}")
    I(f"v_lshl_add_u32 v{X}, v{G}, 3, v{X}")
    I(f"s_add_u32 s{sT1}, s{sT1}, {LW}")
    I(f"v_add_u32 v{vXW}, s{sT1}, v{X}")
    I(f"v_lshlrev_b32 v{X}, 3, v{LN}")
    I(f"v_add_u32 v{vTR}, {LW}, v{X}")
    I(f"v_lshl_add_u32 v{X}, v{R1}, 2, v{G}")
    I(f"v_lshlrev_b32 v{X}, 13, v{X}")
    I(f"v_and_b32 v{Y}, 7, v{C}")
    I(f"v_lshl_add_u32 v{X}, v{Y}, 3, v{X}")
    I(f"s_lshl_b32 s{sT1}, s{sWV}, 16")
    I(f"s_lshl_b32 s{sT2}, s{sH}, 6")
    I(f"s_add_u32 s{sT1}, s{sT1}, s{sT2}")
    I(f"v_add_u32 v{vAST}, s{sT1}, v{X}")
    I(f"s_lshl_b32 s{sT1}, s{sWV}, 11")
    I(f"s_and_b32 s{sT2}, s{sH}, 4")
    I(f"s_lshl_b32 s{sT2}, s{sT2}, 8")
    I(f"s_add_u32 s{sT1}, s{sT1}, s{sT2}")
    I(f"s_lshr_b32 s{sT2}, s{sH}, 3")
    I(f"s_lshl_b32 s{sT2}, s{sT2}, 8")
    I(f"s_add_u32 s{sT1}, s{sT1}, s{sT2}")
    I(f"s_and_b32 s{sT2}, s{sH}, 3")
    I(f"s_lshl_b32 s{sT2}, s{sT2}, 6")
    I(f"s_add_u32 s{sT1}, s{sT1}, s{sT2}")
    I(f"v_and_b32 v{Y}, 1, v{C}")
    I(f"v_and_b32 v{Z}, 2, v{C}")
    I(f"v_add_u32 v{X}, v{Z}, v{G0}")
    I(f"v_lshlrev_b32 v{X}, 4, v{X}")
    I(f"v_lshl_add_u32 v{X}, v{Y}, 3, v{X}")
    I(f"v_lshl_add_u32 v{X}, v{G1}, 2, v{X}")
    I(f"v_add_u32 v{X}, s{sT1}, v{X}")
    I(f"v_mov_b32 v{Z}, 0x40000000")
    I(f"v_cmp_gt_u32 vcc, 4, v{C}")
    I(f"v_cndmask_b32 v{vBST}, v{Z}, v{X}, vcc")
    for i in range(4):
        I(f"s_mov_b32 s{sMSK+2*i}, {hex(0x000f000f << (4*i))}")
        I(f"s_mov_b32 s{sMSK+2*i+1}, {hex(0x000f000f << (4*i))}")
    I(f"v_lshlrev_b32 v{Z}, 4, v{Y}")
    I(f"v_mov_b32 v{X}, 0x3f80")
    I(f"v_lshlrev_b32 v{vSEL}, v{Z}, v{X}")
    I(f"v_add_u32 v{vKR}, {L_K}, v{vL16}")
    I(f"v_and_b32 v{Y}, 2, v{C}")
    I(f"v_mov_b32 v{X}, 0x44444444")
    I(f"v_mov_b32 v{Z}, 0xeeeeeeee")
    I(f"v_cmp_eq_u32 vcc, 0, v{Y}")
    I(f"v_cndmask_b32 v{vIDX}, v{Z}, v{X}, vcc")
    for i in range(4): I(f"v_mov_b32 v{PZ+i}, 0")
    I(f"s_mov_b32 s{sT1}, 0x05040100")
    I(f"s_mov_b32 s{sT2}, 0x07060302")
    I("s_waitcnt vmcnt(32)")
    for k in range(8):
        for x in range(4):
            I(f"v_perm_b32 v{92+4*k+x}, v{62+4*k+(x>>1)}, v{60+4*k+(x>>1)}, s{sT2 if x&1 else sT1}")
            I(f"v_min_u32 v{92+4*k+x}, -2, v{92+4*k+x}")
    for k in range(8):
        I(f"ds_write_b128 v{vL16}, {vr(92+4*k,4)} offset:{L_MEM + k*1024}")
    I(f"s_mov_b32 s{sHB}, {WS_HB}")
    I(f"s_mov_b32 s{sB0}, {WS_HB - LW}")
    I(f"s_mov_b32 s{sSTEP}, 0")
    I(f"s_mov_b32 s{sHA}, {WS_HA}")
    I(f"s_lshl_b32 s{sRC}, s{sH}, 13")
    I(f"s_sub_u32 s{sRC}, s{sRC}, {LW}")
    I(f"s_add_u32 s{sRA}, s{sRC}, {WS_HA + (256<<10)}")
    I(f"s_mov_b32 s{sRB}, {WS_HB + 3*8192}")
    I(f"s_lshl_b32 s{sKV}, s{sH}, 14")
    I(f"s_add_u32 s{sKV}, s{sKV}, {WS_KV - LW}")
    I(f"s_mul_i32 s{sKM}, s{sH}, {65*4096}")
    I(f"s_add_u32 s{sKM}, s{sKM}, {WS_KM - LW - 4096}")
    I(f"s_mov_b32 s{sSPIN}, 0")
    I(f"s_mov_b32 s{sSPA}, 0")
    I(f"s_mov_b32 s{sSC}, {hex(f2u(SCALE_LOG2E))}")
    I(f"s_lshl_b32 s{sM0A}, s{sWV}, 11")
    I(f"s_add_u32 s{sM0B}, s{sM0A}, {LW + L_V}")
    I(f"s_add_u32 s{sM0A}, s{sM0A}, {LW + L_K}")
    I(f"s_mov_b64 s[{sKVM}:{sKVM+1}], -1")
    I("s_waitcnt lgkmcnt(0)")

    for ci in range(8):
        mat, half = chunks[ci]
        I(f"s_waitcnt vmcnt({(17 if (hooks and ci == 5) else 16) if ci < 7 else 0})")
        I("s_barrier")
        if hooks: hooks(A, "landed", ci)
        if mat < 3:
            for pp in range(4):
                for tau in range(2):
                    key = (mat, tau, 2*pp + half)
                    for u in range(4):
                        off = (u >> 1) * 32768 + (u & 1) * 256 + pp * 4096
                        dst = vr(HOLD + 8*LRES.index(key) + 2*u, 2) if key in LRES else slot_reg(key, 2*u, 2)
                        I(f"ds_read_b64_tr_b16 {dst}, v{23+tau} offset:{off}")
            I("s_waitcnt lgkmcnt(0)")
            I("v_xor_b32 v23, 0x10000, v23"); I("v_xor_b32 v24, 0x10000, v24")
            I("s_barrier")
            if ci + 2 < 8: dma(ci + 2)
            if hooks: hooks(A, "issued", ci + 2)
        else:
            for j in range(4):
                I(f"s_xor_b32 s{sT1}, s{sWV}, {j}")
                I(f"s_lshr_b32 s{sT2}, s{sT1}, 1")
                I(f"s_lshl_b32 s{sT2}, s{sT2}, 13")
                I(f"s_and_b32 s{sT1}, s{sT1}, 1")
                I(f"s_lshl_b32 s{sT1}, s{sT1}, 15")
                I(f"s_add_u32 s{sT1}, s{sT1}, s{sT2}")
                I(f"s_add_u32 s{sT1}, s{sT1}, {half*65536}")
                I(f"v_add_u32 v26, s{sT1}, v25")
                for p in range(4):
                    I(f"v_xor_b32 v27, {p<<6}, v26")
                    key = (3, p, j)
                    for u1 in range(2):
                        dst = vr(HW + 4*WOL.index(key) + 2*u1, 2) if key in WOL else slot_reg(key, 4*half + 2*u1, 2)
                        I(f"ds_read_b64_tr_b16 {dst}, v27 offset:{u1*2048}")
            I("s_waitcnt lgkmcnt(0)")
            I("s_barrier")
            a = vF1 if half else vF0
            for i in range(NL): I(f"ds_write_b128 v{a}, {vr(HOLD+8*i+4*half,4)} offset:{i*1024}")
            for i in range(NW): I(f"ds_write_b128 v{a}, {vr(HW+4*i,4)} offset:{(NL+i)*1024}")
            I("s_waitcnt lgkmcnt(0)")

def kv_dma(A, ld=""):
    return [f"s_mov_b32 m0, s{sM0A}",
            f"s_add_u32 s{sT3}, s{sKV}, 8192",
            f"buffer_load_dwordx4 v{vMW}, s[{sWS}:{sWS+3}], s{sKV} offen {ld} lds",
            f"buffer_load_dwordx4 v{vMW}, s[{sWS}:{sWS+3}], s{sKV} offen offset:1024 {ld} lds",
            f"s_mov_b32 m0, s{sM0B}",
            f"s_xor_b32 s{sM0A}, s{sM0A}, 8192",
            f"buffer_load_dwordx4 v{vMW}, s[{sWS}:{sWS+3}], s{sT3} offen {ld} lds",
            f"buffer_load_dwordx4 v{vMW}, s[{sWS}:{sWS+3}], s{sT3} offen offset:1024 {ld} lds",
            f"s_add_u32 s{sKV}, s{sKV}, {32*16384}"]

def kv_flag_load(A):
    I = A.I
    I(f"v_lshrrev_b32 v{vT}, 2, v{vL16}")
    I(f"s_lshl_b32 s{sT3}, s{sH}, 7")
    I(f"v_subrev_u32 v{vT}, {LW//4}, v{vT}")
    I(f"s_add_u32 s{sT3}, s{sT3}, {F_KV}")
    I(f"buffer_load_dword v{vFL}, v{vT}, s[{sWS}:{sWS+3}], s{sT3} offen sc1")

def kv_wait(A, pfx, need, preloaded=False):
    I = A.I
    I(f"s_branch {pfx}_kve")
    A.label(f"{pfx}_kvw")
    kv_flag_load(A)
    I(f"s_add_u32 s{sSPIN}, s{sSPIN}, 1")
    I("s_waitcnt vmcnt(0)")
    A.label(f"{pfx}_kve")
    I(f"v_readlane_b32 s{sRDY}, v{vFL}, 0")
    I(f"s_mul_i32 s{sRDY}, s{sRDY}, {NG1}")
    for g in range(1, NG1):
        I(f"v_readlane_b32 s{sT3}, v{vFL}, {g}")
        I(f"s_mul_i32 s{sT3}, s{sT3}, {NG1}")
        I(f"s_add_u32 s{sT3}, s{sT3}, {g}")
        I(f"s_min_u32 s{sRDY}, s{sRDY}, s{sT3}")
    I(f"s_cmp_gt_u32 s{sSPIN}, {SPIN_MAX}")
    I(f"s_cbranch_scc1 {pfx}_kvw_done")
    I(f"s_add_u32 s{sT3}, s{sSTEP}, {need}")
    I(f"s_cmp_ge_u32 s{sT3}, s{sRDY}")
    I(f"s_cbranch_scc1 {pfx}_kvw")
    A.label(f"{pfx}_kvw_done")
    kv_flag_load(A)

def hs(x): return f"v_pk_add_f32 {vr(x,2)}, {vr(x,2)}, {vr(x+2,2)}"
def hs2(x): return [f"v_add_f32 v{x}, v{x}, v{x+2}", f"v_add_f32 v{x+1}, v{x+1}, v{x+3}"]
def cv(d, x): return f"v_cvt_pk_bf16_f32 v{d}, v{x}, v{x+1}"
def zero(base, n): return [f"v_mov_b64 {vr(base+2*i,2)}, 0" for i in range(n // 2)]
def frag_rd(i, dst):
    return [f"ds_read_b128 {vr(dst,4)}, v{vF0} offset:{i*1024}", f"ds_read_b128 {vr(dst+4,4)}, v{vF1} offset:{i*1024}"]
def chk(base, tmp):
    return [f"v_max3_u32 v{tmp}, v{base}, v{base+1}, v{base+2}", f"v_max3_u32 v{tmp+1}, v{base+3}, v{base+4}, v{base+5}",
            f"v_max3_u32 v{tmp}, v{tmp}, v{base+6}, v{base+7}", f"v_max_u32 v{tmp}, v{tmp}, v{tmp+1}", f"v_cmp_eq_u32 vcc, -1, v{tmp}"]
def delay(A, n):
    while n > 0:
        k = min(n, 16); A.I(f"s_nop {k-1}"); n -= k
def slots(A, mfmas, fills):
    for i, m in enumerate(mfmas):
        A.I(m)
        if i < len(fills):
            for f in fills[i]: A.I(f)


def chain_loop(A, st, pfx, stamp=None, pub="sc1", opt={}):
    I = A.I
    for w in range(3):
        I(f"s_cmp_eq_u32 s{sWV}, {w}"); I(f"s_cbranch_scc1 {pfx}{w}_entry")
    for w in (3, 2, 1, 0):
        A.label(f"{pfx}{w}_entry")
        chain_wave(A, st, f"{pfx}{w}", w, stamp, pub, opt)
        if w: I(f"s_branch {pfx}_exit")
    A.label(f"{pfx}_exit")

def chain_wave(A, st, pfx, w, stamp, pub, opt):
    I = A.I
    WS = f"s[{sWS}:{sWS+3}]"
    nohop = opt.get("nohop")
    def T(i):
        if stamp: stamp(A, i)
    lres_rd = sum([frag_rd(i, LBUF[i]) for i in range(NL)], [])
    PB = S + 8
    mega = opt.get("mega")
    kld = "sc1" if mega else ""
    I("s_waitcnt lgkmcnt(0)")
    for x in ([] if mega else kv_dma(A, kld)) + lres_rd + zero(AQ, 24): I(x)
    I("s_waitcnt vmcnt(0) lgkmcnt(0)")
    I("s_barrier")
    I(f"s_branch {pfx}_b1")
    rsc = opt.get('rsc', 1)
    e2 = opt.get("e2", 1)
    BS = [M + 16, M + 24] if e2 else [M + 16, M + 20, M + 24]
    NB_ = 2 if e2 else 1
    NEG = S + 4 if rsc == 1 else (M + 28 if rsc == 0 else KX)
    m0E = LW + L_MEM + w*1024*NB_; m0L = LW + L_MEM + w*1024 + 4096
    vE = vMW if e2 else vOW
    def pollB(b): return ([f"buffer_load_dwordx4 {vr(b+4*i,4)}, v{vE}, {WS}, s{sB0} offen offset:{1024*i} sc1" for i in range(NB_)] +
                          [f"buffer_load_dwordx4 v{vE}, {WS}, s{sB0} offen offset:{1024*i} sc1 lds" for i in range(NB_)])
    mr = [f"ds_read_b128 {vr(M+4*k,4)}, v{vL16} offset:{L_MEM+1024*k}" for k in range(8)]
    def ckr(base, n):
        regs = list(range(base, base + n))
        out = [f"v_max3_u32 v{vT}, v{regs[0]}, v{regs[1]}, v{regs[2]}"]
        for i in range(3, len(regs) - 1, 2): out.append(f"v_max3_u32 v{vT}, v{vT}, v{regs[i]}, v{regs[i+1]}")
        out.append(f"v_max_u32 v{vT}, v{vT}, v{regs[-1]}")
        out.append(f"v_cmp_eq_u32 vcc, -1, v{vT}")
        return out
    lateD = f"buffer_load_dwordx4 v{vOW}, {WS}, s{sT2} offen sc1 lds"
    A.label(f"{pfx}_side")
    I(f"v_cmp_eq_u32 vcc, -1, v{vT}")
    I(f"s_cbranch_vccz {pfx}_side2")
    A.label(f"{pfx}_lateB")
    I(lateD)
    I(f"s_add_u32 s{sSPIN}, s{sSPIN}, 1")
    I(f"s_cmp_gt_u32 s{sSPIN}, {SPIN_MAX}")
    I("s_waitcnt vmcnt(1)")
    I(f"s_cbranch_scc1 {pfx}_lateB_ok")
    for x in mr[4:]: I(x)
    I("s_waitcnt lgkmcnt(0)")
    for x in ckr(M + 16, 16): I(x)
    I(f"s_cbranch_vccnz {pfx}_lateB")
    A.label(f"{pfx}_lateB_ok")
    I("s_waitcnt vmcnt(0)")
    A.label(f"{pfx}_side2")
    if mega:
        I(f"s_cmp_eq_u32 s{sKVM}, 0"); I(f"s_cbranch_scc1 {pfx}_late_done")
        kv_wait(A, pfx + "_l", 1)
        I(f"s_cmp_le_u32 s{sRDY}, 64"); I(f"s_cselect_b64 s[{sKVM}:{sKVM+1}], -1, 0")
    I(f"s_branch {pfx}_late_done")
    NR = 0 if rsc else 3
    resets = [f"buffer_store_dwordx4 {vr(NEG,4)}, v{vMW}, {WS}, s{sRA} offen {st}", f"buffer_store_dwordx4 {vr(NEG,4)}, v{vMW}, {WS}, s{sRA} offen offset:1024 {st}",
              f"buffer_store_dword v{NEG}, v{vBST}, {WS}, s{sRB} offen {st}"]
    neg = [f"v_mov_b64 {vr(NEG,2)}, -1", f"v_mov_b64 {vr(NEG+2,2)}, -1"]
    npB = opt.get("npB", 2)
    if e2:
        def chkB(b):
            I("s_waitcnt vmcnt(6)")
            for x in chk(b, vT): I(x)
            I("s_waitcnt vmcnt(4)")
        A.label(f"{pfx}_e1")
        for x in pollB(BS[0]): I(x)
        chkB(BS[1])
        I(f"s_cbranch_vccz {pfx}_go")
        for x in pollB(BS[1]): I(x)
        I(f"s_add_u32 s{sSPIN}, s{sSPIN}, 1")
        I(f"s_cmp_gt_u32 s{sSPIN}, {SPIN_MAX}")
        I(f"s_cbranch_scc1 {pfx}_go")
        A.label(f"{pfx}_e0")
        if w < 2:
            chkB(BS[0])
            if not nohop: I(f"s_cbranch_vccnz {pfx}_e1")
        else: I("s_waitcnt vmcnt(0)")
    else:
        A.label(f"{pfx}_eslow")
        for x in pollB(BS[0]): I(x)
        I(f"s_add_u32 s{sSPIN}, s{sSPIN}, 1")
        I(f"s_cmp_gt_u32 s{sSPIN}, {SPIN_MAX}")
        I("s_waitcnt vmcnt(0)")
        I(f"s_cbranch_scc1 {pfx}_go")
        for x in ckr(BS[0], 4): I(x)
        I(f"s_cbranch_vccnz {pfx}_eslow")
        I(f"s_branch {pfx}_go")
        npB = opt.get("npB", 2)
        A.label(f"{pfx}_e1")
        for i in range(1, npB):
            y = 2*(npB - 1 - i) + NR
            I(f"s_waitcnt vmcnt({y+1})")
            for x in ckr(BS[i], 4): I(x)
            I(f"s_waitcnt vmcnt({y})")
            I(f"s_cbranch_vccz {pfx}_go")
        I(f"s_branch {pfx}_eslow")
        A.label(f"{pfx}_e0")
        y = 2*(npB - 1) + NR
        I(f"s_waitcnt vmcnt({y+1})")
        for x in ckr(BS[0], 4): I(x)
        I(f"s_waitcnt vmcnt({y})")
        if not nohop: I(f"s_cbranch_vccnz {pfx}_e1")
    A.label(f"{pfx}_go")
    I(f"s_mov_b32 m0, {m0L}")
    T(53)
    if not e2: I(lateD)
    I("s_barrier")
    if e2: I(lateD)
    A.label(f"{pfx}_b1")
    T(0)
    acc = {0: AQ, 1: AK, 2: AV}
    def m1(mat, tau, p): return smf(acc[mat] + 4*tau, M + 4*p, wfrag(mat, tau, p))
    def mm(mat, p): return [m1(mat, 0, p), m1(mat, 1, p)]
    kx = [f"ds_read_b128 {vr(KX+4*i,4)}, v{vKR} offset:{1024*i}" for i in range(8)]
    vx = [f"ds_read_b128 {vr(VX+4*i,4)}, v{vMW} offset:{L_V+1024*i}" for i in range(2)]
    q0p = hs2(AQ) + [cv(AQ+2, AQ)]; q1p = hs2(AQ+4) + [cv(AQ+6, AQ+4)]
    k0p = hs2(AK) + [cv(AQ+3, AK)]; k1p = hs2(AK+4) + [cv(AQ+7, AK+4)]
    dma = ["s_nop 0"]*9 if opt.get("nodma") else kv_dma(A, kld)
    publish = [] if opt.get("nopub") else [f"buffer_store_dwordx4 {vr(PB,4)}, v{vOW}, {WS}, s{sKM} offen {pub}"]
    for x in mr[:4]: I(x)
    I("s_waitcnt lgkmcnt(3)")
    T(10)
    vm = sum([mm(2, p) for p in range(8)], [])
    nb = opt.get("nb", 10)
    ph1 = sum([mm(0, k) + mm(1, k) for k in range(4)], []) + vm[:8]
    vm = vm[8:]
    kvr = vx + kx
    fl = [[] for _ in range(24)]
    fl[2].append("s_waitcnt lgkmcnt(0)")
    for i in range(5, nb - 1): fl[i].append(kvr.pop(0))
    fl[nb-1] += ["s_waitcnt vmcnt(0)", "s_barrier"]
    if nb >= 11:
        fl[nb-1] += [mr[4]]; fl[nb] += [mr[5], mr[6]]; fl[nb+1] += [mr[7]]
    else:
        for i in range(4): fl[nb+i].append(mr[4+i])
    c = ckr(M + 16, 16)
    st0 = 22 - len(c) if mega else 23 - len(c)
    assert st0 >= (nb + 1 if nb >= 11 else nb + 3)
    fl[st0].append("s_waitcnt lgkmcnt(2)"); fl[st0+3].append("s_waitcnt lgkmcnt(0)")
    for i, x in enumerate(c):
        if i >= 4 and kvr: fl[st0+i].append(kvr.pop(0))
        fl[st0+i].append(x)
    if rsc == 2 and publish:
        k = nb + 2 + w; fl[k] = [x for x in fl[k] if not x.startswith('v_')] + publish + [x for x in fl[k] if x.startswith('v_')]
    if rsc == 1:
        fl[3].append(neg[0]); fl[4].append(neg[1])
        if opt.get("pubat", 1) == 1 and publish: resets[2] = publish[0]
        for i in range(3):
            k = min(nb + 4*i + w + opt.get("rso", 0), 22)
            nv_ = [x for x in fl[k] if not x.startswith("v_")]; vv = [x for x in fl[k] if x.startswith("v_")]
            fl[k] = nv_ + [resets[i]] + vv
    if mega: fl[22].append(f"s_or_b64 vcc, vcc, s[{sKVM}:{sKVM+1}]")
    slots(A, ph1, fl)
    if not nohop: I(f"s_cbranch_vccnz {pfx}_side")
    A.label(f"{pfx}_late_done")
    T(14)
    ph2 = mm(0, 4) + mm(0, 5) + mm(0, 6) + mm(0, 7) + [m1(1, 0, p) for p in range(4, 8)] + [m1(1, 1, p) for p in range(4, 8)]
    pre = [[] for _ in range(16)]; val = [[] for _ in range(16)]
    for i, x in enumerate(q0p + q1p + k0p[:1]): val[9+i].append(x)
    vslot = [w, 4 + w, 8 + w, 12 + w]
    pre[vslot[0]] += ([dma[0], dma[1]] if w == 0 else []) + [dma[2]]
    if w: pre[0] += [dma[0], dma[1]]
    pre[vslot[1]] += [dma[3], dma[4]]; pre[vslot[1]+1] += [dma[5]]
    pre[vslot[2]] += [dma[6]]; pre[vslot[3]] += [dma[7]]
    free = [i for i in range(8) if not pre[i]]
    while kvr: pre[free.pop(0)].append(kvr.pop(0))
    for i in (7, 8):
        if len(pre[i]) < 2: pre[i].append(f"s_nop {1 - len(pre[i])}")
    slots(A, ph2, [pre[i] + val[i] for i in range(16)])
    T(13)
    for x in k0p[1:]: I(x)
    I(f"ds_write_b64 v{vXW}, {vr(AQ+2,2)} offset:{L_QK}")
    I(dma[8])
    for x in k1p: I(x)
    I(f"ds_write_b64 v{vXW}, {vr(AQ+6,2)} offset:{L_QK+512}")
    T(20)
    wo = sum([frag_rd(NL + i, WBUF[i]) for i in range(NW)], [])
    fl = [[], [], [], []]
    oth = [i for i in range(4) if i != w]
    if opt.get("pubat", 1) == 1 and rsc == 1 and publish: fl[w] = [f"buffer_store_dword v{NEG}, v{vBST}, {WS}, s{sRB} offen {st}"]
    if opt.get("pubat", 1) == 0: fl[w] = publish
    fl[oth[0]] = [wo[0], cv(AK, AK)]; fl[oth[1]] = [wo[1], cv(AK+1, AK+4)]
    slots(A, vm[:4], fl)
    I(f"s_waitcnt lgkmcnt(2)")
    T(22)
    I("s_barrier")
    T(2)
    F = [M, M + 4, AQ, AQ + 4]
    frd = [f"ds_read_b64_tr_b16 {vr(F[sg]+2*rho,2)}, v{vTR} offset:{L_QK + sg*1024 + rho*512}" for sg in range(4) for rho in range(2)]
    for x in frd[:2]: I(x)
    slots(A, vm[4:], [frd[2:4], frd[4:6], frd[6:8], ["s_waitcnt lgkmcnt(4)"]])
    ONES = AV; LA = AK + 4; OA = AQ; tmx = AK + 4
    def sx(tau, sg): return mf32(S + 4 + 4*tau, KX + 16*tau + 4*sg, F[sg], "0" if sg == 0 else vr(S + 4 + 4*tau, 4))
    def s0(sg): return mf32(S, F[sg], F[sg], "0" if sg == 0 else vr(S, 4))
    slots(A, [sx(1, sg) for sg in range(4)], [[wo[2]], [wo[3], "s_waitcnt lgkmcnt(2)"], [wo[4]], [wo[5]]])
    slots(A, [sx(0, sg) for sg in range(4)], [[wo[6]] + hs2(AV)[:1], [wo[7]] + hs2(AV)[1:], [wo[8]] + hs2(AV+4)[:1], [wo[9]] + hs2(AV+4)[1:]])
    slots(A, [s0(sg) for sg in range(4)],
          [[wo[10], f"v_max3_f32 v{tmx}, v{S+8}, v{S+9}, v{S+10}"], [wo[11], cv(AK+2, AV)], [wo[12], cv(AK+3, AV+4)],
           [wo[13], f"v_max3_f32 v{tmx}, v{tmx}, v{S+11}, v{S+4}"]])
    T(3)
    I(f"v_max3_f32 v{tmx}, v{tmx}, v{S+5}, v{S+6}")
    I(f"v_max_f32 v{tmx}, v{tmx}, v{S+7}")
    I(f"v_mov_b32 v{tmx+2}, s{sSC}")
    I(f"v_xor_b32 v{vKR}, {0 if opt.get('nodma') else 8192}, v{vKR}")
    for x in zero(AV + 4, 4): I(x)
    I(f"v_max3_f32 v{tmx+1}, v{tmx}, v{S+2}, v{S+3}")
    I(f"v_max3_f32 v{tmx}, v{tmx}, v{S+2}, v{S+3}")
    I(f"v_mov_b32 v{ONES}, 0x3f803f80")
    I(f"v_mov_b32 v{ONES+1}, 0x3f803f80")
    I(f"v_permlane32_swap_b32 v{tmx}, v{tmx+1}")
    I(f"v_max_f32 v{tmx}, v{tmx}, v{tmx+1}")
    I(f"v_mov_b32 v{tmx+1}, v{tmx}")
    I(f"v_mov_b64 {vr(ONES+2,2)}, {vr(ONES,2)}")
    I(f"v_permlane16_swap_b32 v{tmx}, v{tmx+1}")
    I(f"v_max_f32 v{tmx}, v{tmx}, v{tmx+1}")
    I(f"v_mul_f32 v{tmx}, s{sSC}, v{tmx}")
    for i in range(1, 6):
        I(f"v_pk_fma_f32 {vr(S+2*i,2)}, {vr(S+2*i,2)}, {vr(tmx+2,2)}, {vr(tmx,2)} op_sel_hi:[1,0,0] neg_lo:[0,0,1] neg_hi:[0,0,1]")
    ex = [f"v_exp_f32 v{S+i}, v{S+i}" for i in range(12)]
    I(ex[2]); I(ex[3]); I(ex[4])
    I(cv(PZ, S+2)); I(cv(PZ+3, S+2))
    I(ex[5])
    T(4)
    pk = [cv(S+4+i, S+4+2*i) for i in range(4)]
    slots(A, [mf16(OA, AK+2, PZ, "0"), mf16(OA+4, AK+2, PZ+2, "0"), mf16(LA, ONES, PZ, "0")],
          [[ex[6], ex[7]], [ex[8], ex[9]], [ex[10], ex[11]]])
    for x in pk: I(x)
    I(f"v_mov_b64 {vr(PB,2)}, {vr(AK,2)}"); I(f"v_mov_b64 {vr(PB+2,2)}, {vr(AK+2,2)}")
    slots(A, [mf32(LA, ONES, S+4, vr(LA,4)), mf32(OA, VX, S+4, vr(OA,4)), mf32(OA+4, VX+4, S+4, vr(OA+4,4))],
          [[wo[14]] + zero(AK, 2), [wo[15]] + zero(AK+2, 2), [f"s_cmp_ge_u32 s{sSTEP}, 62", f"s_cbranch_scc1 {pfx}_done"]])
    A.label(f"{pfx}_resume")
    wrest = wo[16:]
    T(40)
    I(f"v_rcp_f32 v{LA}, v{LA}")
    for x in zero(AV, 4): I(x)
    for i in range(4):
        I(f"v_pk_mul_f32 {vr(OA+2*i,2)}, {vr(OA+2*i,2)}, {vr(LA,2)} op_sel_hi:[1,0]")
    for i in range(4): I(cv(OA+i, OA+2*i))
    I(f"ds_write_b128 v{vOW}, {vr(OA,4)} offset:{L_O}")
    T(41)
    WA = [AV, AV + 4, AK, AK + 4]
    OF = [OA, OA + 4, VX, VX + 4]
    def wm(p, j): return smf(WA[p], OF[j], wfrag(3, p, j))
    for i in range(4): I(f"v_mov_b32_dpp v{OA+i}, v{OA+i} quad_perm:[0,1,0,1] row_mask:0xf bank_mask:0xf")
    z = zero(AK + 4, 4)
    I(z[0]); I(z[1])
    sal = [f"s_add_u32 s{sT1}, s{sHA}, 4096", f"s_mov_b32 s{sRB}, s{sHB}", f"s_add_u32 s{sHB}, s{sHB}, 8192",
           f"s_and_b32 s{sHB}, s{sHB}, {hex(0xffffffff ^ (1<<15))}", f"s_sub_u32 s{sB0}, s{sHB}, {LW}", f"s_add_u32 s{sRA}, s{sRC}, s{sHA}",
           f"s_add_u32 s{sKM}, s{sKM}, 4096", f"s_add_u32 s{sSTEP}, s{sSTEP}, 1"]
    npre3 = opt.get("npre3", 2)
    own = [wm(p, 0) for p in range(4)]
    slots(A, own[:npre3], [sal[:3]])
    I("s_waitcnt lgkmcnt(0)")
    T(42)
    I("s_barrier")
    T(5)
    for j in (1, 3, 2): I(f"ds_read_b128 {vr(OF[j],4)}, v{vOR} offset:{L_O + ((j ^ w) << 10)}")
    for x in own[npre3:]: I(x)
    I("s_waitcnt lgkmcnt(2)")
    T(31)
    def post(p):
        x = WA[p]
        return [f"v_cvt_pk_bf16_f32 v{x}, v{x}, v{x+2}", f"v_cvt_pk_bf16_f32 v{x+1}, v{x+1}, v{x+3}",
                f"buffer_store_dwordx2 {vr(x,2)}, v{vAST}, {WS}, s{sHA if p < 2 else sT1} offen offset:{2048*(p&1)} {st}"]
    P = [post(p) for p in range(4)]
    ms = [wm(p, j) for p in range(4) for j in (1, 3, 2)]
    fl = [["s_waitcnt lgkmcnt(1)", wrest[0]], ["s_waitcnt lgkmcnt(1)", wrest[1]], [wrest[2], sal[3]],
          [wrest[3], sal[4]], sal[5:7] + [P[0][0]], sal[7:8] + ["s_nop 0", P[0][1]],
          [P[0][2]], ["s_nop 1", P[1][0]], ["s_waitcnt lgkmcnt(0)", "s_nop 0", P[1][1]],
          [P[1][2]], ["s_nop 1", P[2][0]], P[2][1:3]]
    hl = opt.get("hl", 0)
    if hl: fl[11] = P[2][1:2]
    slots(A, ms, fl)
    T(34)
    for x in (P[3][:2] if hl else P[3]): I(x)
    T(6)
    RAs = [M, M + 8]; SEL = M + 16; RD = M + 20
    def pollA(b): return [f"buffer_load_dwordx4 {vr(b,4)}, v{vMW}, {WS}, s{sRA} offen sc1", f"buffer_load_dwordx4 {vr(b+4,4)}, v{vMW}, {WS}, s{sRA} offen offset:1024 sc1"]
    if opt.get("bar6", 1): I("s_barrier")
    work = zero(AQ, 24) + [f"v_cndmask_b32 v{SEL+i}, 0, v{vSEL}, s[{sMSK+2*i}:{sMSK+2*i+1}]" for i in range(4)] + ([] if rsc else neg)
    if rsc == 2:
        for x in neg: I(x)
        if w >= 2:
            I(f"s_xor_b32 s{sT3}, s{sHA}, {256<<10}"); I(f"s_add_u32 s{sT3}, s{sT3}, s{sRC}")
            if w == 3: I(f"s_add_u32 s{sT3}, s{sT3}, 4096")
            for i in range(4): I(f"buffer_store_dwordx4 {vr(NEG,4)}, v{vL16}, {WS}, s{sT3} offen offset:{i*1024} {st}")
    if hl and w >= 2:
        delay(A, opt.get("dH", 24)); I(P[2][2]); I(P[3][2])
    delay(A, opt.get("dA", [20, 32, 48, 60])[w])
    T(51)
    for x in pollA(RAs[0]): I(x)
    if hl and w < 2:
        if w == 0: delay(A, opt.get("dH0", 8))
        I(P[2][2]); I(P[3][2])
    for x in work: I(x)
    delay(A, opt.get("gapA", 4))
    for x in pollA(RAs[1]): I(x)
    I(f"s_xor_b32 s{sHA}, s{sHA}, {256<<10}")
    I(f"s_mov_b32 m0, {m0E}")
    I(f"s_add_u32 s{sT2}, s{sB0}, 4096")
    I(f"s_branch {pfx}_waitA")
    def red(b, n=2):
        I(f"s_waitcnt vmcnt({n})")
        c = chk(b, vT)
        slots(A, [mf32(RD, SEL, b, "0"), mf32(RD, SEL, b + 4, vr(RD, 4))], [c[:2], c[2:]])
    A.label(f"{pfx}_pollA_retry")
    for x in pollA(RAs[0]): I(x)
    I(f"s_add_u32 s{sSPA}, s{sSPA}, 1")
    red(RAs[1])
    I(f"s_cbranch_vccz {pfx}_goA")
    for x in pollA(RAs[1]): I(x)
    I(f"s_cmp_gt_u32 s{sSPA}, {SPIN_MAX}")
    I(f"s_cbranch_scc1 {pfx}_goA")
    if hl and w < 2: I("s_waitcnt vmcnt(2)")
    A.label(f"{pfx}_waitA")
    red(RAs[0], 4 if (hl and w < 2) else 2)
    I("s_nop 3")
    if not nohop: I(f"s_cbranch_vccnz {pfx}_pollA_retry")
    A.label(f"{pfx}_goA_n")
    T(7)
    for rot in (4, 8):
        I(f"v_add_f32_dpp v{RD}, v{RD}, v{RD} row_ror:{rot} row_mask:0xf bank_mask:0xf")
        I(f"v_add_f32_dpp v{RD+1}, v{RD+1}, v{RD+1} row_ror:{rot} row_mask:0xf bank_mask:0xf")
    I(cv(RD, RD))
    I(f"buffer_store_dword v{RD}, v{vBST}, {WS}, s{sHB} offen {st}")
    T(8)
    if rsc == 2: I(resets[2])
    nl0 = opt.get("nl0", 8)
    for x in lres_rd[:nl0]: I(x)
    delay(A, opt.get("dB", [36, 24, 24, 12])[w])
    T(50)
    rest = lres_rd[nl0:]
    for i in range(0 if (e2 and w >= 2) else npB):
        for x in pollB(BS[i]): I(x)
        if i < npB - 1:
            for x in rest[:2]: I(x)
            delay(A, opt.get("gapB", 16)); rest = rest[2:]
    for x in rest: I(x)
    if not rsc:
        for x in resets: I(x)
    T(52)
    I("s_waitcnt lgkmcnt(0)")
    I(f"s_branch {pfx}_e0")
    A.label(f"{pfx}_goA")
    I("s_nop 3")
    I(f"s_branch {pfx}_goA_n")
    A.label(f"{pfx}_done")
    I(f"s_add_u32 s{sKM}, s{sKM}, 4096")
    for x in publish: I(x)
    I(f"s_sub_u32 s{sKM}, s{sKM}, 4096")
    I(f"s_cmp_eq_u32 s{sSTEP}, 62")
    I(f"s_cbranch_scc1 {pfx}_resume")
```

```python
from chain import *

sG = 39
D_OVF, D_PINIT, D_CHAIN, D_PROG, D_P2 = 192, 200, 204, 136, 208
WSS = f"s[{sWS}:{sWS+3}]"
DBG = f"s[{sDBG}:{sDBG+3}]"
SW = f"s[{sW}:{sW+3}]"
OOB = 0x40000000
wLN, wC, wG, wR, wCP, wL16 = 1, 2, 3, 4, 5, 6

TRACE = [False]
WS_TR = 1 << 20
def TS(A, vreg, lane):
    if not TRACE[0]: return
    A.I("s_memrealtime s[62:63]"); A.I("s_waitcnt lgkmcnt(0)")
    if isinstance(lane, int): A.I(f"v_writelane_b32 v{vreg}, s62, {lane}")
    else:
        A.I(f"s_mov_b32 m0, {lane}"); A.I("s_nop 0"); A.I(f"v_writelane_b32 v{vreg}, s62, m0")
def TDUMP(A, vregs, tmp, dbgw=None):
    if not TRACE[0]: return
    I = A.I
    l = A.newlabel("td")
    I(f"s_cmp_lg_u32 s{sWV}, 0"); I(f"s_cbranch_scc1 {l}")
    I(f"s_lshl_b32 s62, s{sG}, 5"); I(f"s_add_u32 s62, s62, s{sH}"); I("s_lshl_b32 s62, s62, 10"); I(f"s_add_u32 s62, s62, {WS_TR}")
    I(f"v_mbcnt_lo_u32_b32 v{tmp}, -1, 0"); I(f"v_mbcnt_hi_u32_b32 v{tmp}, -1, v{tmp}"); I(f"v_lshlrev_b32 v{tmp}, 2, v{tmp}")
    for i, r in enumerate(vregs): I(f"buffer_store_dword v{r}, v{tmp}, {WSS}, s62 offen offset:{256*i}")
    if dbgw:
        g, w0, lo, n = dbgw
        e = A.newlabel("te")
        I(f"s_cmp_lg_u32 s{sG}, {g}"); I(f"s_cbranch_scc1 {e}"); I(f"s_cmp_lg_u32 s{sH}, 0"); I(f"s_cbranch_scc1 {e}")
        I(f"s_mov_b64 exec, {hex(((1 << n) - 1) << lo)}")
        I(f"buffer_store_dword v{vregs[0]}, v{tmp}, {DBG}, 0 offen offset:{4*(w0 - lo)}")
        I("s_mov_b64 exec, -1")
        A.label(e)
    I("s_waitcnt vmcnt(0)")
    A.label(l)

def srd(A, karg_off, nbytes):
    A.I(f"s_load_dwordx2 s[{sW}:{sW+1}], s[0:1], {karg_off}")
    A.I(f"s_mov_b32 s{sW+2}, {nbytes}")
    A.I(f"s_mov_b32 s{sW+3}, 0x20000")
    A.I("s_waitcnt lgkmcnt(0)")

def prologue(A, force=None, early=1, rot=0):
    I = A.I
    if TRACE[0]: I("s_memrealtime s[64:65]")
    I(f"s_load_dwordx2 s[{sWS}:{sWS+1}], s[0:1], 112")
    I(f"s_load_dwordx2 s[{sDBG}:{sDBG+1}], s[0:1], 104")
    I("s_cmp_ge_u32 s2, 256")
    I("s_cbranch_scc1 L_end")
    I(f"s_mov_b32 s{sWS+2}, {WS_BYTES}"); I(f"s_mov_b32 s{sWS+3}, 0x20000")
    I(f"s_mov_b32 s{sDBG+2}, 256"); I(f"s_mov_b32 s{sDBG+3}, 0x20000")
    I("v_lshrrev_b32 v1, 6, v0")
    I(f"v_mov_b32 v4, {LDS_BYTES - 16}")
    I(f"v_readfirstlane_b32 s{sWV}, v1")
    I("s_waitcnt lgkmcnt(0)")
    I("s_getreg_b32 s24, hwreg(HW_REG_XCC_ID, 0, 4)")
    I(f"s_cmp_eq_u32 s{sWV}, 0")
    I("s_cbranch_scc1 L_elect")
    if early:
        I("s_cmp_eq_u32 s24, 0"); I("s_cbranch_scc1 L_elect_wait")
        I("s_load_dwordx4 s[48:51], s[0:1], 16"); I("s_load_dwordx4 s[52:55], s[0:1], 32")
        I("s_lshl_b32 s26, s2, 14")
        I("v_subrev_u32 v7, 64, v0"); I("v_lshlrev_b32 v7, 4, v7")
        I(f"s_mov_b32 s46, {4<<20}"); I("s_mov_b32 s47, 0x20000")
        I("s_waitcnt lgkmcnt(0)")
        n = 0
        for r in (50, 52, 48, 54):
            I(f"s_mov_b32 s44, s{r}"); I(f"s_mov_b32 s45, s{r+1}"); I("s_mov_b32 s27, s26")
            for i in range(6):
                I(f"buffer_load_dwordx4 v[{108+4*(n%18)}:{111+4*(n%18)}], v7, s[44:47], s27 offen"); n += 1
                I("s_add_u32 s27, s27, 3072")
    I("s_branch L_elect_wait")
    A.label("L_elect")
    if rot:
        I(f"s_sub_u32 s25, s24, {rot}"); I("s_and_b32 s25, s25, 7"); I("s_cmp_lt_u32 s24, 8"); I("s_cselect_b32 s24, s25, s24")
    if force == "skew":
        I("s_lshr_b32 s24, s2, 4"); I("s_and_b32 s24, s24, 15")
    I("s_and_b32 s25, s24, 1"); I("s_lshl_b32 s25, s25, 6")
    I("s_lshr_b32 s26, s24, 1"); I("s_lshl_b32 s26, s26, 2")
    I("s_add_u32 s25, s25, s26")
    I("s_cmp_eq_u32 s24, 0")
    I("s_cselect_b32 s25, 128, s25")
    I("s_mov_b64 exec, 1")
    I("v_mov_b32 v1, 1"); I("v_mov_b32 v2, s25")
    I(f"buffer_atomic_add v1, v2, {DBG}, 0 offen sc0")
    I("s_waitcnt vmcnt(0)")
    I("v_readfirstlane_b32 s25, v1")
    I("s_mov_b64 exec, -1")
    I("s_mov_b32 s40, 0")
    I("s_cmp_ge_u32 s24, 8"); I("s_cbranch_scc1 L_ovf")
    I("s_cmp_lt_u32 s25, 32"); I("s_cbranch_scc1 L_elect_pub")
    A.label("L_ovf")
    I("s_mov_b64 exec, 1")
    I("v_mov_b32 v1, 1"); I(f"v_mov_b32 v2, {D_OVF}")
    I(f"buffer_atomic_add v1, v2, {DBG}, 0 offen sc0")
    I("s_waitcnt vmcnt(0)")
    I("v_readfirstlane_b32 s26, v1")
    I("s_mov_b64 exec, -1")
    I("v_lshlrev_b32 v2, 2, v0")
    I("s_mov_b32 s28, 0")
    def word(x): return 32 if x == 0 else (x & 1) * 16 + (x >> 1)
    A.label("L_ovf_poll")
    I(f"buffer_load_dword v1, v2, {DBG}, 0 offen sc1")
    I("s_add_u32 s28, s28, 1")
    I("s_waitcnt vmcnt(0)")
    I("s_mov_b32 s27, 0")
    for x in range(16):
        I(f"v_readlane_b32 s25, v1, {word(x)}"); I("s_add_u32 s27, s27, s25")
    I(f"s_cmp_gt_u32 s28, {SPIN_MAX}"); I("s_cbranch_scc1 L_ovf_go")
    I("s_cmp_lt_u32 s27, 256"); I("s_cbranch_scc1 L_ovf_poll")
    A.label("L_ovf_go")
    I("s_mov_b32 s40, 1")
    for x in range(8):
        I(f"v_readlane_b32 s25, v1, {word(x)}")
        I("s_min_u32 s25, s25, 32")
        I("s_add_u32 s25, s25, s26")
        I(f"s_mov_b32 s24, {x}")
        I("s_cmp_lt_u32 s25, 32"); I("s_cbranch_scc1 L_elect_pub")
        I("s_sub_u32 s26, s25, 32")
    I("s_mov_b32 s24, 8")
    A.label("L_elect_pub")
    I("s_lshl_b32 s24, s24, 8"); I("s_lshl_b32 s26, s40, 16"); I("s_add_u32 s24, s24, s25"); I("s_add_u32 s24, s24, s26")
    I("v_mov_b32 v1, s24")
    I("ds_write_b32 v4, v1")
    I("s_waitcnt lgkmcnt(0)")
    A.label("L_elect_wait")
    I("s_barrier")
    I("ds_read_b32 v1, v4")
    I("s_waitcnt lgkmcnt(0)")
    I("v_readfirstlane_b32 s24, v1")
    I(f"s_and_b32 s{sH}, s24, 31")
    I(f"s_bfe_u32 s{sG}, s24, {hex((8 << 16) | 8)}")
    I("s_lshr_b32 s40, s24, 16")
    I(f"s_cmp_ge_u32 s{sG}, 8"); I("s_cbranch_scc1 L_end")

def signal_add(A, srdname, off_sgpr_or_imm, val, t0, t1):
    I = A.I
    l = A.newlabel("sig")
    I(f"s_cmp_lg_u32 s{sWV}, 0"); I(f"s_cbranch_scc1 {l}")
    I(f"v_mov_b32 v{t0}, {val}"); I(f"v_mov_b32 v{t1}, {off_sgpr_or_imm}")
    I("s_mov_b64 exec, 1")
    I(f"buffer_atomic_add v{t0}, v{t1}, {srdname}, 0 offen")
    I("s_mov_b64 exec, -1")
    A.label(l)

def signal_store(A, off, val, t0, t1):
    I = A.I
    l = A.newlabel("sig")
    I(f"s_cmp_lg_u32 s{sWV}, 0"); I(f"s_cbranch_scc1 {l}")
    I(f"v_mov_b32 v{t0}, {val}"); I(f"v_mov_b32 v{t1}, {off}")
    I("s_mov_b64 exec, 1")
    I(f"buffer_store_dword v{t0}, v{t1}, {WSS}, 0 offen sc1")
    I("s_mov_b64 exec, -1")
    A.label(l)

def wait_ge(A, srdname, off, target, t0, t1, sres, sleep=2, mask=None, barrier=True, allwaves=False):
    I = A.I
    l = A.newlabel("wt"); e = A.newlabel("wte")
    if not allwaves:
        I(f"s_cmp_lg_u32 s{sWV}, 0"); I(f"s_cbranch_scc1 {e}")
    I(f"v_mov_b32 v{t1}, {off}")
    A.label(l)
    I(f"buffer_load_dword v{t0}, v{t1}, {srdname}, 0 offen sc1")
    I(f"s_add_u32 s{sSPIN}, s{sSPIN}, 1")
    I("s_waitcnt vmcnt(0)")
    I(f"v_readfirstlane_b32 s{sres}, v{t0}")
    I(f"s_cmp_gt_u32 s{sSPIN}, {SPIN_MAX}"); I(f"s_cbranch_scc1 {e}")
    if mask is not None:
        I(f"s_and_b32 s{sres+1}, s{sres}, {mask}"); I(f"s_cmp_ge_u32 s{sres+1}, {target}")
    else:
        I(f"s_cmp_ge_u32 s{sres}, {target}")
    I(f"s_cbranch_scc1 {e}")
    if sleep: I(f"s_sleep {sleep}")
    I(f"s_branch {l}")
    A.label(e)
    if barrier: I("s_barrier")

sLOC = 31
sSEG, sXB, sCNT, sA0, sA1 = 18, 19, 20, 21, 22
sD0, sD1, sD2 = 34, 35, 36
def dual(A, fn):
    g = A.newlabel("dg"); e = A.newlabel("de")
    A.I(f"s_cmp_eq_u32 s{sLOC}, 0"); A.I(f"s_cbranch_scc1 {g}")
    fn(""); A.I(f"s_branch {e}")
    A.label(g); fn("sc1"); A.label(e)

def group_mode(A, t0, t1):
    I = A.I
    I(f"s_and_b32 s24, s{sG}, 1"); I("s_lshl_b32 s24, s24, 6"); I(f"s_lshr_b32 s25, s{sG}, 1"); I("s_lshl_b32 s25, s25, 2"); I("s_add_u32 s24, s24, s25")
    I(f"v_mov_b32 v{t1}, s24")
    I(f"buffer_load_dword v{t0}, v{t1}, {DBG}, 0 offen sc1")
    I("s_waitcnt vmcnt(0)")
    I(f"v_readfirstlane_b32 s24, v{t0}")
    I("s_cmp_ge_u32 s24, 32"); I(f"s_cselect_b32 s{sLOC}, 1, 0")

def gsignal(A, sline, t0, t1):
    I = A.I
    l = A.newlabel("gs")
    I(f"s_cmp_lg_u32 s{sWV}, 0"); I(f"s_cbranch_scc1 {l}")
    I(f"s_lshl_b32 s24, s{sH}, 2")
    I(f"s_add_u32 s25, s{sSEG}, 1"); I(f"v_mov_b32 v{t0}, s25"); I(f"v_mov_b32 v{t1}, s24")
    I("s_mov_b64 exec, 1")
    dual(A, lambda f: I(f"buffer_store_dword v{t0}, v{t1}, {WSS}, s{sline} offen {f}"))
    I("s_mov_b64 exec, -1")
    A.label(l)

def gwait(A, sline, t0, t1, sleep=0, barrier=True):
    I = A.I
    l = A.newlabel("gw"); e = A.newlabel("gwe")
    I(f"s_cmp_lg_u32 s{sWV}, 0"); I(f"s_cbranch_scc1 {e}")
    I(f"v_and_b32 v{t1}, 31, v{wLN}"); I(f"v_lshlrev_b32 v{t1}, 2, v{t1}")
    A.label(l)
    I(f"buffer_load_dword v{t0}, v{t1}, {WSS}, s{sline} offen sc1")
    I(f"s_add_u32 s{sSPIN}, s{sSPIN}, 1")
    I(f"s_cmp_gt_u32 s{sSPIN}, {SPIN_MAX}"); I(f"s_cbranch_scc1 {e}")
    I("s_waitcnt vmcnt(0)")
    I(f"v_cmp_ge_u32 vcc, s{sSEG}, v{t0}")
    if sleep: I(f"s_sleep {sleep}")
    I(f"s_cbranch_vccnz {l}")
    A.label(e)
    if barrier: I("s_barrier")

def allreduce(A, regs, tmp, op="add"):
    I = A.I
    for rot in (8, 4, 2, 1):
        for r in regs: I(f"v_{op}_f32_dpp v{r}, v{r}, v{r} row_ror:{rot} row_mask:0xf bank_mask:0xf")
    for sw in ("16", "32"):
        for r in regs:
            I(f"v_mov_b32 v{tmp}, v{r}")
            I(f"v_permlane{sw}_swap_b32 v{r}, v{tmp}")
            I(f"v_{op}_f32 v{r}, v{r}, v{tmp}")

def unpack(A, src, dst, n):
    for i in range(n):
        A.I(f"v_lshlrev_b32 v{dst+2*i}, 16, v{src+i}")
        A.I(f"v_and_b32 v{dst+2*i+1}, 0xffff0000, v{src+i}")

def rbf(A, r):
    A.I(f"v_cvt_pk_bf16_f32 v{r}, v{r}, v{r}")
    A.I(f"v_and_b32 v{r}, 0xffff0000, v{r}")

def ln_finish(A, mean, var):
    I = A.I
    rbf(A, mean); rbf(A, var)
    I(f"v_add_f32 v{var}, {hex(f2u(1e-5))}, v{var}")
    rbf(A, var)
    I(f"v_sqrt_f32 v{var}, v{var}")
    rbf(A, var)
    I(f"v_rcp_f32 v{var}, v{var}")

def ln_row(A, x, out, t):
    I = A.I
    m, v, tm, d = t, t + 1, t + 2, t + 4
    I(f"v_add_f32 v{m}, v{x}, v{x+1}")
    for i in range(2, 8): I(f"v_add_f32 v{m}, v{m}, v{x+i}")
    allreduce(A, [m], tm)
    I(f"v_mul_f32 v{m}, {hex(f2u(1/512))}, v{m}")
    for i in range(8): I(f"v_sub_f32 v{d+i}, v{x+i}, v{m}")
    I(f"v_mul_f32 v{v}, v{d}, v{d}")
    for i in range(1, 8): I(f"v_fmac_f32 v{v}, v{d+i}, v{d+i}")
    allreduce(A, [v], tm)
    I(f"v_mul_f32 v{v}, {hex(f2u(1/512))}, v{v}")
    ln_finish(A, m, v)
    for i in range(8): I(f"v_sub_f32 v{d+i}, v{x+i}, v{m}")
    for i in range(4): I(cv(out + i, d + 2*i))
    unpack(A, out, d, 4)
    for i in range(8): I(f"v_mul_f32 v{d+i}, v{d+i}, v{v}")
    for i in range(4): I(cv(out + i, d + 2*i))

def lanes(A):
    I = A.I
    I(f"v_and_b32 v{wLN}, 63, v0")
    I(f"v_and_b32 v{wC}, 15, v{wLN}")
    I(f"v_lshrrev_b32 v{wG}, 4, v{wLN}")
    I(f"v_lshrrev_b32 v{wR}, 2, v{wC}")
    I(f"v_and_b32 v{wCP}, 3, v{wC}")
    I(f"v_lshlrev_b32 v{wL16}, 4, v{wLN}")
    I(f"s_mov_b32 s{sSPIN}, 0")

def touch_weights(A, dst):
    I = A.I
    I("s_load_dwordx4 s[48:51], s[0:1], 16"); I("s_load_dwordx4 s[52:55], s[0:1], 32")
    I(f"s_lshl_b32 s26, s{sG}, 5"); I(f"s_add_u32 s26, s26, s{sH}"); I("s_sub_u32 s26, s26, 32"); I("s_mul_i32 s26, s26, 18944")
    I("v_lshlrev_b32 v7, 4, v0")
    I(f"s_mov_b32 s46, {4<<20}"); I("s_mov_b32 s47, 0x20000")
    I("s_waitcnt lgkmcnt(0)")
    n = 0
    for r in (50, 52, 48, 54):
        I(f"s_mov_b32 s44, s{r}"); I(f"s_mov_b32 s45, s{r+1}"); I("s_mov_b32 s27, s26")
        for i in range(5):
            I(f"buffer_load_dwordx4 v[{dst+4*n}:{dst+3+4*n}], v7, s[44:47], s27 offen"); n += 1
            I("s_add_u32 s27, s27, 4096")

def p_init(A, opt={}):
    I = A.I
    sJ = 18
    I(f"s_sub_u32 s{sJ}, s{sG}, 6"); I(f"s_lshl_b32 s{sJ}, s{sJ}, 5"); I(f"s_add_u32 s{sJ}, s{sJ}, s{sH}")
    srd(A, 0, 2 << 20)
    I(f"s_lshl_b32 s24, s{sJ}, 15"); I(f"s_lshl_b32 s25, s{sWV}, 13"); I("s_add_u32 s24, s24, s25")
    I("s_add_u32 s25, s24, 4096")
    for i in range(8): I(f"buffer_load_dwordx4 {vr(32+4*i,4)}, v{wL16}, {SW}, s{24 if i < 4 else 25} offen offset:{(i&3)*1024}")
    if opt.get("touch", 1): touch_weights(A, 100)
    I("v_lshlrev_b32 v10, 2, v0"); I("v_mov_b32 v11, 0"); I(f"s_lshl_b32 s26, s{sJ}, 10")
    I(f"buffer_store_dword v11, v10, {WSS}, s26 offen sc1")
    I(f"s_add_u32 s24, s24, {WS_XN}"); I(f"s_add_u32 s25, s25, {WS_XN}")
    for i in range(8):
        I(f"s_waitcnt vmcnt({28 if opt.get('touch', 1) else 8})")
        unpack(A, 32 + 4*i, 12, 4)
        ln_row(A, 12, 64 + 4*i, 20)
        I(f"buffer_store_dwordx4 {vr(64+4*i,4)}, v{wL16}, {WSS}, s{24 if i < 4 else 25} offen offset:{(i&3)*1024} sc1")
    I("s_waitcnt vmcnt(0)")
    I("s_barrier")
    signal_add(A, DBG, D_PINIT, 1, 10, 11)
    if TRACE[0]: I("v_writelane_b32 v187, s64, 0")
    TS(A, 187, 1)

def w256_addr(A, vd, vt):
    I = A.I
    I(f"s_lshl_b32 s24, s{sWV}, 2")
    I(f"v_add_u32 v{vd}, s24, v{wG}")
    I(f"v_lshlrev_b32 v{vd}, 13, v{vd}")
    I(f"s_lshr_b32 s24, s{sWV}, 1"); I("s_lshl_b32 s24, s24, 3")
    I(f"v_lshlrev_b32 v{vt}, 1, v{wG}")
    I(f"v_or_b32 v{vt}, s24, v{vt}")
    I(f"v_xor_b32 v{vt}, v{wC}, v{vt}")
    I(f"v_lshl_add_u32 v{vd}, v{vt}, 4, v{vd}")
    I(f"s_lshl_b32 s24, s{sH}, 8")
    I(f"v_add_u32 v{vd}, s24, v{vd}")
    I(f"v_and_b32 v{vt}, 1, v{wG}")
    I(f"v_lshl_add_u32 v{vt}, v{vt}, 2, v{wR}")
    I(f"s_lshl_b32 s24, s{sWV}, 1")
    I(f"v_xor_b32 v{vt}, s24, v{vt}")
    I(f"v_lshlrev_b32 v{vt}, 5, v{vt}")
    I(f"v_lshl_add_u32 v{vt}, v{wCP}, 3, v{vt}")
    I(f"v_lshl_add_u32 v{vt+1}, v{wG}, 3, v{wR}")
    I(f"v_lshl_add_u32 v{vt}, v{vt+1}, 8, v{vt}")
    I(f"v_xor_b32 v{vt+1}, 32, v{vt}")
def w256_dma(A, vd, half):
    I = A.I
    I(f"s_lshl_b32 s24, s{sWV}, 10")
    for i in range(16):
        I(f"s_add_u32 m0, s24, {half*65536 + i*4096}")
        I(f"s_mov_b32 s25, {(256*half + 16*i)*8192}")
        I(f"buffer_load_dwordx4 v{vd}, {SW}, s25 offen lds")
def w256_read(A, vt, half, abase):
    for eps in range(2):
        for k in range(8):
            for u in range(2):
                A.I(f"ds_read_b64_tr_b16 {ar(abase + (eps*16 + 8*half + k)*4 + 2*u, 2)}, v{vt+eps} offset:{(32*k + 4*u)*256}")
    A.I("s_waitcnt lgkmcnt(0)")
    A.I(f"v_xor_b32 v{vt}, 0x10000, v{vt}"); A.I(f"v_xor_b32 v{vt+1}, 0x10000, v{vt+1}")

def rows_addr(A, vd, va, perm=False):
    I = A.I
    if not perm:
        I(f"v_xor_b32 v{va}, v{wG}, v{wC}")
        I(f"v_lshlrev_b32 v{va}, 4, v{va}")
        I(f"v_lshl_add_u32 v{va}, v{wC}, 10, v{va}")
    for k in range(1, 4): I(f"v_xor_b32 v{va+k}, {k<<6}, v{va}")
def rows_dma(A, vtmp, sbase, lds, ld="sc1"):
    I = A.I
    I(f"s_lshl_b32 s24, s{sWV}, 13")
    I(f"s_add_u32 s25, s24, s{sbase}")
    I(f"s_and_b32 s26, s{sWV}, 1"); I("s_lshl_b32 s26, s26, 7")
    for i in range(8):
        I(f"s_add_u32 s27, s26, {i<<4}")
        I(f"v_xor_b32 v{vtmp}, s27, v{wL16}")
        if isinstance(lds, int): I(f"s_add_u32 m0, s24, {lds + i*1024}")
        else:
            I(f"s_add_u32 s27, s24, {i*1024}"); I(f"s_add_u32 m0, s27, {lds}")
        I(f"buffer_load_dwordx4 v{vtmp}, {WSS}, s25 offen {ld} lds")
        I("s_add_u32 s25, s25, 1024")

def rows_dma_prep(A, sbase, lds):
    I = A.I
    I(f"s_lshl_b32 s{sD0}, s{sWV}, 13")
    I(f"s_add_u32 s{sD1}, s{sD0}, s{sbase}")
    I(f"s_add_u32 s{sD0}, s{sD0}, {lds}")
    I(f"s_and_b32 s{sD2}, s{sWV}, 1"); I(f"s_lshl_b32 s{sD2}, s{sD2}, 7")
def rows_dma_items(vtmp):
    return [([f"s_mov_b32 m0, s{sD0}", f"s_add_u32 s{sD0}, s{sD0}, 1024", f"v_xor_b32 v{vtmp}, s{sD2}, v{wL16}"],
             [f"buffer_load_dwordx4 v{vtmp}, {WSS}, s{sD1} offen sc1 lds", f"s_add_u32 s{sD1}, s{sD1}, 1024", f"s_add_u32 s{sD2}, s{sD2}, 16"]) for i in range(8)]

def h_phase1(A, opt={}):
    I = A.I
    vD, vTt, vXA, vTm = 8, 10, 12, 16
    if TRACE[0]: I("v_writelane_b32 v188, s64, 0")
    TS(A, 188, 1)
    if opt.get("touch", 1): touch_weights(A, 100)
    A.label("L_h1")
    w256_addr(A, vD, vTt)
    if opt.get("hold"):
        I(f"s_cmp_lt_u32 s{sG}, {opt['hold'][0]}"); I("s_cbranch_scc1 H1_nohold")
        wait_ge(A, DBG, D_PROG, 32, 20, 21, 24, sleep=16)
        A.label("H1_nohold")
    srd(A, 24, 4 << 20)
    w256_dma(A, vD, 0); w256_dma(A, vD, 1)
    rows_addr(A, None, vXA)
    I(f"s_sub_u32 s{sSEG}, s{sG}, 1")
    for ci in range(4):
        I(f"s_waitcnt vmcnt({16 if ci < 3 else 0})")
        I("s_barrier")
        w256_read(A, vTt, ci & 1, 128 * (ci >> 1))
        I("s_barrier")
        if ci == 0: srd(A, 32, 4 << 20)
        if ci < 2: w256_dma(A, vD, ci)
        if ci == 2:
            wait_ge(A, DBG, D_PINIT, 64, 20, 21, 24)
            I(f"s_lshl_b32 s{sA0}, s{sSEG}, 15"); I(f"s_add_u32 s{sA0}, s{sA0}, {WS_XN}")
            I(f"s_mov_b32 s{sXB}, 0")
            rows_dma(A, vTm, sA0, 0)
    TS(A, 188, 2)
    TS(A, 188, 3)
    I(f"s_mov_b32 s{sCNT}, 0")
    for i in range(4): I(f"v_mov_b32 v{104+i}, -1")
    I(f"s_mul_i32 s37, s{sH}, 65"); I(f"s_add_u32 s37, s37, s{sSEG}"); I("s_lshl_b32 s37, s37, 12"); I(f"s_lshl_b32 s24, s{sWV}, 10")
    I("s_add_u32 s37, s37, s24"); I(f"s_add_u32 s37, s37, {WS_KM}")
    A.label("H1_loop")
    I(f"s_cmp_gt_u32 s{sCNT}, 1"); I("s_cbranch_scc1 H1_lag")
    I("s_waitcnt vmcnt(0)")
    A.label("H1_lag")
    I("s_waitcnt vmcnt(5)")
    I("s_barrier")
    I(f"s_lshl_b32 s28, s{sH}, 7"); I(f"s_lshl_b32 s29, s{sG}, 2"); I("s_add_u32 s28, s28, s29"); I(f"s_add_u32 s28, s28, {F_KV - 4}")
    I(f"s_sub_u32 s29, s{sCNT}, 1"); I(f"s_cmp_gt_u32 s{sCNT}, 1"); I(f"s_cselect_b32 s29, s29, s{sCNT}")
    signal_store(A, "s28", "s29", 20, 21)
    if TRACE[0]: I(f"s_add_u32 s61, s{sCNT}, 8")
    TS(A, 188, "s61")
    I(f"s_add_u32 s{sA0}, s{sA0}, {NG1 << 15}")
    I(f"s_xor_b32 s{sXB}, s{sXB}, 32768")
    I(f"s_cmp_ge_u32 s{sSEG}, {64 - NG1}"); I(f"s_cselect_b32 s{sA0}, {OOB}, s{sA0}")
    rows_dma_prep(A, sA0, f"s{sXB}")
    items = rows_dma_items(vTm)
    XF = 24; AC = 56
    def rd(ks): return [f"ds_read_b128 {vr(XF + 8*(ks&3) + 4*t,4)}, v{vXA + (ks&3)} offset:{(ks>>2)*256 + t*16384}" for t in range(2)]
    for ks in range(3):
        for x in rd(ks): I(x)
    for ks in range(16):
        I(f"s_waitcnt lgkmcnt({4 if ks < 14 else (2 if ks == 14 else 0)})")
        ms = []
        for eps in range(2):
            for t in range(2):
                xk = vr(XF + 8*(ks&3) + 4*t, 4)
                dk = AC + 8*t + 4*eps; dv = AC + 16 + 8*eps + 4*t
                ms.append(f"v_mfma_f32_16x16x32_bf16 {vr(dk,4)}, {ar((eps*16+ks)*4,4)}, {xk}, {'0' if ks == 0 else vr(dk,4)}")
                ms.append(f"v_mfma_f32_16x16x32_bf16 {vr(dv,4)}, {xk}, {ar(128+(eps*16+ks)*4,4)}, {'0' if ks == 0 else vr(dv,4)}")
        fl = [[x] for x in rd(ks + 3)] if ks + 3 < 16 else [[], []]
        if ks < 8: fl += [[], items[ks][0], items[ks][1]]
        slots(A, ms, fl)
    for k in range(4): I(f"v_xor_b32 v{vXA+k}, 0x8000, v{vXA+k}")
    I(f"s_lshl_b32 s24, s{sSEG}, 19"); I(f"s_lshl_b32 s25, s{sH}, 14"); I("s_add_u32 s24, s24, s25"); I(f"s_add_u32 s24, s24, {WS_KV}")
    I(f"s_lshl_b32 s25, s{sWV}, 10"); I("s_add_u32 s26, s24, s25"); I("s_add_u32 s27, s26, 4096")
    I("s_add_u32 s25, s25, s26"); I("s_add_u32 s25, s25, 8192")
    for j in range(4):
        for i in range(4): I(cv(88 + 4*j + i, AC + 8*j + 2*i))
    I(f"buffer_store_dwordx4 v[88:91], v{wL16}, {WSS}, s26 offen sc1")
    I(f"buffer_store_dwordx4 v[92:95], v{wL16}, {WSS}, s27 offen sc1")
    I(f"buffer_store_dwordx4 v[96:99], v{wL16}, {WSS}, s25 offen sc1")
    I(f"buffer_store_dwordx4 v[100:103], v{wL16}, {WSS}, s25 offen offset:1024 sc1")
    I(f"buffer_store_dwordx4 v[104:107], v{wL16}, {WSS}, s37 offen sc1")
    I(f"s_add_u32 s37, s37, {NG1*4096}")
    I(f"s_add_u32 s{sCNT}, s{sCNT}, 1")
    I(f"s_add_u32 s{sSEG}, s{sSEG}, {NG1}")
    I(f"s_cmp_lt_u32 s{sSEG}, 64"); I("s_cbranch_scc1 H1_loop")
    I("s_waitcnt vmcnt(0)")
    I("s_barrier")
    signal_store(A, "s28", 100, 20, 21)
    TS(A, 188, 4)

def chain_role(A, opt):
    I = A.I
    I("s_waitcnt vmcnt(0)")
    I("v_lshlrev_b32 v10, 4, v0")
    for i in range(4): I(f"v_mov_b32 v{12+i}, -1")
    I(f"s_lshl_b32 s24, s{sH}, 13"); I(f"s_add_u32 s24, s24, {WS_HA}")
    for sl in range(2):
        for hf in range(2):
            I(f"s_add_u32 s25, s24, {sl*(256<<10) + hf*4096}")
            I(f"buffer_store_dwordx4 v[12:15], v10, {WSS}, s25 offen sc1")
    I("v_lshlrev_b32 v10, 2, v0")
    I(f"s_lshl_b32 s24, s{sH}, 10"); I(f"s_add_u32 s24, s24, {WS_HB}")
    I(f"buffer_store_dword v12, v10, {WSS}, s24 offen sc1")
    if TRACE[0]: I("s_memrealtime s[66:67]")
    def hooks(A, what, ci):
        if what == "landed" and ci == 0:
            I("s_lshl_b32 s41, s40, 16"); I("s_add_u32 s41, s41, 1")
            signal_add(A, DBG, D_CHAIN, "s41", vT, vT + 1)
        if what == "landed" and ci == 1 and opt.get("tlb", 0):
            I(f"v_subrev_u32 v28, {LW}, v{vL16}"); I("v_lshlrev_b32 v28, 15, v28")
            I(f"s_add_u32 s43, s{sKV}, {LW}")
            I(f"buffer_load_dword v29, v28, {WSS}, s43 offen sc1")
        if what == "landed" and opt.get("hold") and ci == opt["hold"][1]:
            signal_add(A, DBG, D_PROG, 1, vT, vT + 1)
        if what == "issued" and ci == 6:
            I(f"v_mov_b32 v28, {D_PINIT}")
            I(f"buffer_load_dwordx2 {vr(vT,2)}, v28, {DBG}, 0 offen sc1")
        if what == "landed" and ci == 6:
            I(f"v_readfirstlane_b32 s43, v{vT}"); I(f"v_readfirstlane_b32 s42, v{vT+1}")
            I("s_cmp_lt_u32 s43, 64"); I("s_cbranch_scc1 L_ch_slow")
            I("s_and_b32 s43, s42, 0xffff"); I("s_cmp_ge_u32 s43, 32"); I("s_cbranch_scc1 L_ch_fast")
            A.label("L_ch_slow")
            wait_ge(A, DBG, D_PINIT, 64, vT, vT + 1, 42, barrier=False, allwaves=True, sleep=4)
            wait_ge(A, DBG, D_CHAIN, 32, vT, vT + 1, 42, mask=0xffff, barrier=False, allwaves=True, sleep=4)
            A.label("L_ch_fast")
            I(f"s_add_u32 m0, s{sM0A}, 8192")
            for sl in range(2):
                I(f"s_add_u32 s43, s{sRC}, {WS_HA + sl*(256<<10)}")
                for i in range(2): I(f"buffer_load_dwordx4 v{vMW}, {WSS}, s43 offen offset:{i*1024} sc1 lds")
            I(f"s_lshl_b32 s43, s{sH}, 10"); I(f"s_add_u32 s43, s43, {WS_HB - LW}")
            I(f"buffer_load_dwordx4 v{vL16}, {WSS}, s43 offen sc1 lds")
            kv_flag_load(A)
        if what == "landed" and ci == 7:
            if TRACE[0]: I("s_memrealtime s[66:67]"); I("s_waitcnt lgkmcnt(0)")
            kv_wait(A, "CI", 0, preloaded=True)
            for x in kv_dma(A, "sc1"): I(x)
    chain_setup(A, "", hooks)
    if TRACE[0]: I("s_memrealtime s[68:69]"); I("s_waitcnt lgkmcnt(0)")
    if TRACE[0]: I("s_memrealtime s[70:71]"); I("s_memtime s[80:81]"); I("s_waitcnt lgkmcnt(0)")
    I("s_lshr_b32 s42, s42, 16")
    I("s_cmp_lg_u32 s42, 0")
    I("s_cbranch_scc1 L_chain_global")
    o = dict(opt); o["mega"] = 1
    def stamp(A, i):
        if i == 6:
            l = A.newlabel("st")
            tsd = opt.get("tsd", 8)
            if tsd == 8: A.I(f"s_and_b32 s60, s{sSTEP}, 7"); A.I("s_cmp_eq_u32 s60, 1"); A.I(f"s_cbranch_scc0 {l}")
            A.I("s_memrealtime s[62:63]"); A.I("s_memtime s[60:61]"); A.I("s_waitcnt lgkmcnt(0)")
            for k in range(8):
                A.I(f"s_cmp_eq_u32 s{sSTEP}, {tsd*k+1+opt.get('ts0',0)}"); A.I(f"s_cselect_b32 s{72+k}, s62, s{72+k}"); A.I(f"s_cselect_b32 s{84+k}, s60, s{84+k}")
            A.label(l)
    chain_loop(A, "", "CL", stamp if TRACE[0] else None, "sc1", o)
    I("s_branch L_chain_end")
    A.label("L_chain_global")
    chain_loop(A, "sc1", "CG", None, "sc1", o)
    A.label("L_chain_end")
    if TRACE[0]:
        for i, r in enumerate([64, 66, 68, 70]): I(f"v_writelane_b32 v20, s{r}, {i}")
        TS(A, 20, 4)
        I("s_memtime s[62:63]"); I("s_waitcnt lgkmcnt(0)"); I("s_sub_u32 s62, s62, s80"); I("v_writelane_b32 v20, s62, 7")
        I(f"v_writelane_b32 v20, s{sSPIN}, 5"); I(f"v_writelane_b32 v20, s{sSPA}, 6")
        for k in range(8): I(f"v_writelane_b32 v20, s{72+k}, {8+k}")
        for k in range(8): I(f"v_writelane_b32 v20, s{84+k}, {16+k}")
        TDUMP(A, [20], 21, (0, 4, 0, 5))
```

```python
from asmlib import *
import struct

WS_KV = 2 << 20
WS_KM = (36 << 20) + 4096
WS_HA = 48 << 20
WS_HB = 49 << 20
WS_XN = 50 << 20
WS_H = 52 << 20
WS_HN = 54 << 20
WS_Z = 56 << 20
WS_ZS = 62 << 20
WS_U = 72 << 20
WS_PART = 64 << 20
F_KV = 0; F_PART = 4096; F_HN = 6144; F_ZL = 8192; F_Z = 16384
NG = 5
NG1 = 7
WS_BYTES = 256 << 20
LW = 128 << 10
L_MEM = 0; L_QK = 0; L_O = 4096; L_V = 8192; L_K = 16384
LDS_BYTES = 160 << 10
SCALE_LOG2E = (128 ** -0.5) * 1.4426950408889634

SPIN_MAX = 1 << 18
def f2u(x): return struct.unpack("<I", struct.pack("<f", x))[0]
def vr(b, n): return f"v[{b}:{b+n-1}]"
def ar(b, n): return f"a[{b}:{b+n-1}]"

vIDX, vL16, vT, vMW, vOR, vKR, vSEL = 0, 1, 2, 4, 5, 6, 7
vXW, vTR, vOW, vF0, vF1, vAST, vALD, vBST = 8, 9, 10, 11, 12, 13, 14, 15
PZ = 16
M = 20; AQ = 52; AK = 60; AV = 68; KX = 76; VX = 108; S = 116
sWS = 4
sW = 8
sDBG = 12
sH, sWV, sSTEP, sHA, sHB, sKV, sKM, sSPIN, sT0, sT1, sT2, sT3, sSC = 16, 17, 18, 19, 20, 21, 22, 23, 24, 25, 26, 27, 28
sM0A, sM0B, sRA, sRB, sRC, sPF, sSPA, sB0, sB1 = 29, 30, 31, 32, 33, 34, 35, 36, 37
sRDY = 38
sKVM = 50
vFL = 14
sMSK = 52

LRES = [(0, 0, 0), (0, 1, 0), (1, 0, 0), (1, 1, 0), (0, 0, 1), (0, 1, 1)]
LBUF = [VX, VX + 8, KX, KX + 8, KX + 16, KX + 24]
WOL = [(3, 0, 2), (3, 1, 1), (3, 1, 3), (3, 1, 2), (3, 2, 1), (3, 2, 3), (3, 2, 2), (3, 3, 1), (3, 3, 3), (3, 3, 2)]
WBUF = [M + 8, M + 16, M + 24, KX + 16, KX + 24, KX, KX + 8, M, S, M + 8]
NL = len(LRES); NW = len(WOL)
_slots = {}
def _assign():
    n = 0
    for mat in range(3):
        for tau in range(2):
            for p in range(8):
                if (mat, tau, p) in LRES: continue
                _slots[(mat, tau, p)] = n; n += 1
    for p in range(4):
        for j in range(4):
            if (3, p, j) in WOL: continue
            _slots[(3, p, j)] = n; n += 1
    assert n == 48
_assign()
def slot_reg(key, off, n):
    i = _slots[key] * 8 + off
    return ar(i, n) if i < 256 else vr(128 + i - 256, n)
def wfrag(*key):
    if key in LRES: return vr(LBUF[LRES.index(key)], 8)
    if key in WOL: return vr(WBUF[WOL.index(key)], 8)
    return slot_reg(key, 0, 8)

def smf(acc, a, b): return f"v_smfmac_f32_16x16x64_bf16 {vr(acc,4)}, {vr(a,4)}, {b}, v{vIDX}"
def mf32(d, a, b, c): return f"v_mfma_f32_16x16x32_bf16 {vr(d,4)}, {vr(a,4)}, {vr(b,4)}, {c}"
def mf16(d, a, b, c): return f"v_mfma_f32_16x16x16_bf16 {vr(d,4)}, {vr(a,2)}, {vr(b,2)}, {c}"

def chain_setup(A, st, hooks=None):
    I = A.I
    WS = f"s[{sWS}:{sWS+3}]"
    LN, C, G, R, R0, R1, G0, G1, CP, X, Y, Z = 40, 41, 42, 43, 44, 45, 46, 47, 48, 49, 50, 51
    I(f"v_lshrrev_b32 v{X}, 6, v0")
    I(f"v_and_b32 v{LN}, 63, v0")
    I(f"v_readfirstlane_b32 s{sWV}, v{X}")
    I(f"v_and_b32 v{C}, 15, v{LN}")
    I(f"v_lshrrev_b32 v{G}, 4, v{LN}")
    I(f"v_lshrrev_b32 v{R}, 2, v{C}")
    I(f"v_and_b32 v{R0}, 1, v{R}")
    I(f"v_lshrrev_b32 v{R1}, 1, v{R}")
    I(f"v_and_b32 v{G0}, 1, v{G}")
    I(f"v_lshrrev_b32 v{G1}, 1, v{G}")
    I(f"v_and_b32 v{CP}, 3, v{C}")
    I(f"s_and_b32 s{sT0}, s{sWV}, 1")
    I(f"s_lshl_b32 s{sT0}, s{sT0}, 2")
    I(f"s_lshr_b32 s{sT1}, s{sWV}, 1")
    I(f"s_lshl_b32 s{sT1}, s{sT1}, 4")
    I(f"s_add_u32 s{sT0}, s{sT0}, s{sT1}")
    I(f"v_add_u32 v20, s{sT0}, v{G}")
    I("v_lshlrev_b32 v20, 13, v20")
    I(f"s_lshl_b32 s{sT0}, s{sWV}, 2")
    I(f"v_lshlrev_b32 v{X}, 1, v{G1}")
    I(f"v_or_b32 v{X}, s{sT0}, v{X}")
    I(f"v_xor_b32 v{X}, v{C}, v{X}")
    I(f"v_lshl_add_u32 v20, v{X}, 4, v20")
    I(f"s_lshl_b32 s{sT1}, s{sH}, 8")
    I(f"v_add_u32 v20, s{sT1}, v20")

    chunks = [(1, 0), (1, 1), (2, 0), (2, 1), (0, 0), (0, 1), (3, 0), (3, 1)]
    HOLD = 32; HW = HOLD + 8*NL
    def srd_for(mat):
        I(f"s_load_dwordx2 s[{sW}:{sW+1}], s[0:1], {16 + 8*mat}")
        I(f"s_mov_b32 s{sW+2}, {4<<20}")
        I(f"s_mov_b32 s{sW+3}, 0x20000")
        I("s_waitcnt lgkmcnt(0)")
    def dma(ci):
        mat, half = chunks[ci]
        if half == 0: srd_for(mat)
        reg = half * 65536
        if mat < 3:
            I(f"s_lshl_b32 s{sT0}, s{sWV}, 10")
            for i in range(16):
                I(f"s_add_u32 m0, s{sT0}, {reg + i*4096}")
                I(f"s_mov_b32 s{sT1}, {(32*i + 8*half)*8192}")
                I(f"buffer_load_dwordx4 v20, s[{sW}:{sW+3}], s{sT1} offen lds")
        else:
            I(f"s_lshl_b32 s{sT0}, s{sWV}, 14")
            for i in range(16):
                I(f"s_add_u32 m0, s{sT0}, {reg + i*1024}")
                I(f"s_mov_b32 s{sT1}, {((i&7) + 64*(i>>3) + 8*half)*1024}")
                I(f"buffer_load_dwordx4 v{21 + (i&1)}, s[{sW}:{sW+3}], s{sT1} offen lds")
    dma(0)
    I(f"s_load_dwordx2 s[44:45], s[0:1], 8")
    I(f"s_mov_b32 s46, 8192"); I(f"s_mov_b32 s47, 0x20000")
    I(f"v_and_b32 v{Y}, 1, v{C}")
    I(f"v_lshl_add_u32 v{X}, v{R}, 1, v{Y}")
    I(f"v_lshlrev_b32 v{X}, 10, v{X}")
    I(f"v_lshl_add_u32 v{X}, v{G}, 8, v{X}")
    I(f"v_and_b32 v{Y}, 2, v{C}")
    I(f"v_lshl_add_u32 v{vT}, v{Y}, 2, v{X}")
    I("s_waitcnt lgkmcnt(0)")
    for k in range(8):
        I(f"buffer_load_dwordx2 {vr(60+4*k,2)}, v{vT}, s[44:47], 0 offen offset:{64*(k>>1) + 16*(k&1)}")
        I(f"buffer_load_dwordx2 {vr(62+4*k,2)}, v{vT}, s[44:47], 0 offen offset:{64*(k>>1) + 16*(k&1) + 32}")
    if hooks: hooks(A, 'first', 0)
    dma(1)
    I(f"s_and_b32 s{sT0}, s{sWV}, 1")
    I(f"s_lshl_b32 s{sT0}, s{sT0}, 3")
    I(f"v_xor_b32 v21, s{sT0}, v{LN}")
    I("v_xor_b32 v22, 4, v21")
    I(f"s_lshl_b32 s{sT1}, s{sH}, 17")
    I(f"s_lshl_b32 s{sT2}, s{sWV}, 14")
    I(f"s_add_u32 s{sT1}, s{sT1}, s{sT2}")
    I("v_lshlrev_b32 v21, 4, v21")
    I("v_lshlrev_b32 v22, 4, v22")
    I(f"v_add_u32 v21, s{sT1}, v21")
    I(f"v_add_u32 v22, s{sT1}, v22")
    I(f"v_lshl_add_u32 v{X}, v{R1}, 1, v{G0}")
    I(f"v_lshl_add_u32 v{X}, v{R0}, 2, v{X}")
    I(f"v_lshlrev_b32 v{Y}, 9, v{X}")
    I(f"v_lshl_add_u32 v{Y}, v{G1}, 14, v{Y}")
    I(f"v_lshl_add_u32 v{Y}, v{CP}, 3, v{Y}")
    I(f"s_lshl_b32 s{sT1}, s{sWV}, 1")
    I(f"v_xor_b32 v{X}, s{sT1}, v{X}")
    I(f"v_lshl_add_u32 v23, v{X}, 5, v{Y}")
    I("v_xor_b32 v24, 32, v23")
    I(f"v_lshl_add_u32 v{Y}, v{G1}, 2, v{R0}")
    I(f"v_lshl_add_u32 v{Y}, v{G0}, 4, v{Y}")
    I(f"v_lshlrev_b32 v{Y}, 10, v{Y}")
    I(f"v_lshl_add_u32 v{Y}, v{CP}, 3, v{Y}")
    I(f"v_lshl_add_u32 v{X}, v{R0}, 1, v{R1}")
    I(f"v_lshl_add_u32 v{X}, v{G0}, 2, v{X}")
    I(f"v_lshl_add_u32 v{Y}, v{X}, 5, v{Y}")
    I(f"s_lshl_b32 s{sT1}, s{sWV}, 8")
    I(f"v_add_u32 v25, s{sT1}, v{Y}")
    I(f"v_lshlrev_b32 v{vL16}, 4, v{LN}")
    I(f"s_lshl_b32 s{sT1}, s{sWV}, 14")
    I(f"v_add_u32 v{vF0}, s{sT1}, v{vL16}")
    I(f"v_add_u32 v{vF1}, 0x10000, v{vF0}")
    I(f"v_add_u32 v{vL16}, {LW}, v{vL16}")
    I(f"s_lshl_b32 s{sT1}, s{sWV}, 11")
    I(f"v_add_u32 v{vMW}, s{sT1}, v{vL16}")
    I(f"s_lshl_b32 s{sT1}, s{sWV}, 10")
    I(f"v_add_u32 v{vOW}, s{sT1}, v{vL16}")
    I(f"v_and_b32 v{vOR}, {hex(0xffffffff ^ 32)}, v{vL16}")
    I(f"v_lshlrev_b32 v{X}, 5, v{C}")
    I(f"v_lshl_add_u32 v{X}, v{G}, 3, v{X}")
    I(f"s_add_u32 s{sT1}, s{sT1}, {LW}")
    I(f"v_add_u32 v{vXW}, s{sT1}, v{X}")
    I(f"v_lshlrev_b32 v{X}, 3, v{LN}")
    I(f"v_add_u32 v{vTR}, {LW}, v{X}")
    I(f"v_lshl_add_u32 v{X}, v{R1}, 2, v{G}")
    I(f"v_lshlrev_b32 v{X}, 13, v{X}")
    I(f"v_and_b32 v{Y}, 7, v{C}")
    I(f"v_lshl_add_u32 v{X}, v{Y}, 3, v{X}")
    I(f"s_lshl_b32 s{sT1}, s{sWV}, 16")
    I(f"s_lshl_b32 s{sT2}, s{sH}, 6")
    I(f"s_add_u32 s{sT1}, s{sT1}, s{sT2}")
    I(f"v_add_u32 v{vAST}, s{sT1}, v{X}")
    I(f"s_lshl_b32 s{sT1}, s{sWV}, 11")
    I(f"s_and_b32 s{sT2}, s{sH}, 4")
    I(f"s_lshl_b32 s{sT2}, s{sT2}, 8")
    I(f"s_add_u32 s{sT1}, s{sT1}, s{sT2}")
    I(f"s_lshr_b32 s{sT2}, s{sH}, 3")
    I(f"s_lshl_b32 s{sT2}, s{sT2}, 8")
    I(f"s_add_u32 s{sT1}, s{sT1}, s{sT2}")
    I(f"s_and_b32 s{sT2}, s{sH}, 3")
    I(f"s_lshl_b32 s{sT2}, s{sT2}, 6")
    I(f"s_add_u32 s{sT1}, s{sT1}, s{sT2}")
    I(f"v_and_b32 v{Y}, 1, v{C}")
    I(f"v_and_b32 v{Z}, 2, v{C}")
    I(f"v_add_u32 v{X}, v{Z}, v{G0}")
    I(f"v_lshlrev_b32 v{X}, 4, v{X}")
    I(f"v_lshl_add_u32 v{X}, v{Y}, 3, v{X}")
    I(f"v_lshl_add_u32 v{X}, v{G1}, 2, v{X}")
    I(f"v_add_u32 v{X}, s{sT1}, v{X}")
    I(f"v_mov_b32 v{Z}, 0x40000000")
    I(f"v_cmp_gt_u32 vcc, 4, v{C}")
    I(f"v_cndmask_b32 v{vBST}, v{Z}, v{X}, vcc")
    for i in range(4):
        I(f"s_mov_b32 s{sMSK+2*i}, {hex(0x000f000f << (4*i))}")
        I(f"s_mov_b32 s{sMSK+2*i+1}, {hex(0x000f000f << (4*i))}")
    I(f"v_lshlrev_b32 v{Z}, 4, v{Y}")
    I(f"v_mov_b32 v{X}, 0x3f80")
    I(f"v_lshlrev_b32 v{vSEL}, v{Z}, v{X}")
    I(f"v_add_u32 v{vKR}, {L_K}, v{vL16}")
    I(f"v_and_b32 v{Y}, 2, v{C}")
    I(f"v_mov_b32 v{X}, 0x44444444")
    I(f"v_mov_b32 v{Z}, 0xeeeeeeee")
    I(f"v_cmp_eq_u32 vcc, 0, v{Y}")
    I(f"v_cndmask_b32 v{vIDX}, v{Z}, v{X}, vcc")
    for i in range(4): I(f"v_mov_b32 v{PZ+i}, 0")
    I(f"s_mov_b32 s{sT1}, 0x05040100")
    I(f"s_mov_b32 s{sT2}, 0x07060302")
    I("s_waitcnt vmcnt(16)")
    for k in range(8):
        for x in range(4):
            I(f"v_perm_b32 v{92+4*k+x}, v{62+4*k+(x>>1)}, v{60+4*k+(x>>1)}, s{sT2 if x&1 else sT1}")
            I(f"v_min_u32 v{92+4*k+x}, -2, v{92+4*k+x}")
    for k in range(8):
        I(f"ds_write_b128 v{vL16}, {vr(92+4*k,4)} offset:{L_MEM + k*1024}")
    I(f"s_mov_b32 s{sHB}, {WS_HB}")
    I(f"s_mov_b32 s{sB0}, {WS_HB - LW}")
    I(f"s_mov_b32 s{sSTEP}, 0")
    I(f"s_mov_b32 s{sHA}, {WS_HA}")
    I(f"s_lshl_b32 s{sRC}, s{sH}, 13")
    I(f"s_sub_u32 s{sRC}, s{sRC}, {LW}")
    I(f"s_add_u32 s{sRA}, s{sRC}, {WS_HA + (256<<10)}")
    I(f"s_mov_b32 s{sRB}, {WS_HB + 3*8192}")
    I(f"s_lshl_b32 s{sKV}, s{sH}, 14")
    I(f"s_add_u32 s{sKV}, s{sKV}, {WS_KV - LW}")
    I(f"s_mul_i32 s{sKM}, s{sH}, {65*4096}")
    I(f"s_add_u32 s{sKM}, s{sKM}, {WS_KM - LW - 4096}")
    I(f"s_mov_b32 s{sSPIN}, 0")
    I(f"s_mov_b32 s{sSPA}, 0")
    I(f"s_mov_b32 s{sSC}, {hex(f2u(SCALE_LOG2E))}")
    I(f"s_lshl_b32 s{sM0A}, s{sWV}, 11")
    I(f"s_add_u32 s{sM0B}, s{sM0A}, {LW + L_V}")
    I(f"s_add_u32 s{sM0A}, s{sM0A}, {LW + L_K}")
    I(f"s_mov_b64 s[{sKVM}:{sKVM+1}], -1")
    I("s_waitcnt lgkmcnt(0)")

    for ci in range(8):
        mat, half = chunks[ci]
        I(f"s_waitcnt vmcnt({(17 if (hooks and ci == 5) else 16) if ci < 7 else 0})")
        I("s_barrier")
        if hooks: hooks(A, "landed", ci)
        if mat < 3:
            for pp in range(4):
                for tau in range(2):
                    key = (mat, tau, 2*pp + half)
                    for u in range(4):
                        off = (u >> 1) * 32768 + (u & 1) * 256 + pp * 4096
                        dst = vr(HOLD + 8*LRES.index(key) + 2*u, 2) if key in LRES else slot_reg(key, 2*u, 2)
                        I(f"ds_read_b64_tr_b16 {dst}, v{23+tau} offset:{off}")
            I("s_waitcnt lgkmcnt(0)")
            I("v_xor_b32 v23, 0x10000, v23"); I("v_xor_b32 v24, 0x10000, v24")
            I("s_barrier")
            if ci + 2 < 8: dma(ci + 2)
            if hooks: hooks(A, "issued", ci + 2)
        else:
            for j in range(4):
                I(f"s_xor_b32 s{sT1}, s{sWV}, {j}")
                I(f"s_lshr_b32 s{sT2}, s{sT1}, 1")
                I(f"s_lshl_b32 s{sT2}, s{sT2}, 13")
                I(f"s_and_b32 s{sT1}, s{sT1}, 1")
                I(f"s_lshl_b32 s{sT1}, s{sT1}, 15")
                I(f"s_add_u32 s{sT1}, s{sT1}, s{sT2}")
                I(f"s_add_u32 s{sT1}, s{sT1}, {half*65536}")
                I(f"v_add_u32 v26, s{sT1}, v25")
                for p in range(4):
                    I(f"v_xor_b32 v27, {p<<6}, v26")
                    key = (3, p, j)
                    for u1 in range(2):
                        dst = vr(HW + 4*WOL.index(key) + 2*u1, 2) if key in WOL else slot_reg(key, 4*half + 2*u1, 2)
                        I(f"ds_read_b64_tr_b16 {dst}, v27 offset:{u1*2048}")
            I("s_waitcnt lgkmcnt(0)")
            I("s_barrier")
            a = vF1 if half else vF0
            for i in range(NL): I(f"ds_write_b128 v{a}, {vr(HOLD+8*i+4*half,4)} offset:{i*1024}")
            for i in range(NW): I(f"ds_write_b128 v{a}, {vr(HW+4*i,4)} offset:{(NL+i)*1024}")
            I("s_waitcnt lgkmcnt(0)")

def kv_dma(A, ld=""):
    return [f"s_mov_b32 m0, s{sM0A}",
            f"s_add_u32 s{sT3}, s{sKV}, 8192",
            f"buffer_load_dwordx4 v{vMW}, s[{sWS}:{sWS+3}], s{sKV} offen {ld} lds",
            f"buffer_load_dwordx4 v{vMW}, s[{sWS}:{sWS+3}], s{sKV} offen offset:1024 {ld} lds",
            f"s_mov_b32 m0, s{sM0B}",
            f"s_xor_b32 s{sM0A}, s{sM0A}, 8192",
            f"buffer_load_dwordx4 v{vMW}, s[{sWS}:{sWS+3}], s{sT3} offen {ld} lds",
            f"buffer_load_dwordx4 v{vMW}, s[{sWS}:{sWS+3}], s{sT3} offen offset:1024 {ld} lds",
            f"s_add_u32 s{sKV}, s{sKV}, {32*16384}"]

def kv_flag_load(A):
    I = A.I
    I(f"v_lshrrev_b32 v{vT}, 2, v{vL16}")
    I(f"s_lshl_b32 s{sT3}, s{sH}, 7")
    I(f"v_subrev_u32 v{vT}, {LW//4}, v{vT}")
    I(f"s_add_u32 s{sT3}, s{sT3}, {F_KV}")
    I(f"buffer_load_dword v{vFL}, v{vT}, s[{sWS}:{sWS+3}], s{sT3} offen sc1")

def kv_eval(A):
    I = A.I
    I(f"v_readlane_b32 s{sRDY}, v{vFL}, 0")
    I(f"s_mul_i32 s{sRDY}, s{sRDY}, {NG1}")
    for g in range(1, NG1):
        I(f"v_readlane_b32 s{sT3}, v{vFL}, {g}")
        I(f"s_mul_i32 s{sT3}, s{sT3}, {NG1}")
        I(f"s_add_u32 s{sT3}, s{sT3}, {g}")
        I(f"s_min_u32 s{sRDY}, s{sRDY}, s{sT3}")

def kv_wait(A, pfx, need, preloaded=False):
    I = A.I
    if preloaded: I(f"s_branch {pfx}_kve")
    A.label(f"{pfx}_kvw")
    kv_flag_load(A)
    I(f"s_add_u32 s{sSPIN}, s{sSPIN}, 1")
    I("s_waitcnt vmcnt(0)")
    A.label(f"{pfx}_kve")
    kv_eval(A)
    I(f"s_cmp_gt_u32 s{sSPIN}, {SPIN_MAX}")
    I(f"s_cbranch_scc1 {pfx}_kvw_done")
    I(f"s_add_u32 s{sT3}, s{sSTEP}, {need}")
    I(f"s_cmp_ge_u32 s{sT3}, s{sRDY}")
    I(f"s_cbranch_scc1 {pfx}_kvw")
    A.label(f"{pfx}_kvw_done")

def hs(x): return f"v_pk_add_f32 {vr(x,2)}, {vr(x,2)}, {vr(x+2,2)}"
def hs2(x): return [f"v_add_f32 v{x}, v{x}, v{x+2}", f"v_add_f32 v{x+1}, v{x+1}, v{x+3}"]
def cv(d, x): return f"v_cvt_pk_bf16_f32 v{d}, v{x}, v{x+1}"
def zero(base, n): return [f"v_mov_b64 {vr(base+2*i,2)}, 0" for i in range(n // 2)]
def frag_rd(i, dst):
    return [f"ds_read_b128 {vr(dst,4)}, v{vF0} offset:{i*1024}", f"ds_read_b128 {vr(dst+4,4)}, v{vF1} offset:{i*1024}"]
def chk(base, tmp):
    return [f"v_max3_u32 v{tmp}, v{base}, v{base+1}, v{base+2}", f"v_max3_u32 v{tmp+1}, v{base+3}, v{base+4}, v{base+5}",
            f"v_max3_u32 v{tmp}, v{tmp}, v{base+6}, v{base+7}", f"v_max_u32 v{tmp}, v{tmp}, v{tmp+1}", f"v_cmp_eq_u32 vcc, -1, v{tmp}"]
def delay(A, n):
    while n > 0:
        k = min(n, 16); A.I(f"s_nop {k-1}"); n -= k
def slots(A, mfmas, fills):
    for i, m in enumerate(mfmas):
        A.I(m)
        if i < len(fills):
            for f in fills[i]: A.I(f)


def chain_loop(A, st, pfx, stamp=None, pub="sc1", opt={}):
    I = A.I
    for w in range(3):
        I(f"s_cmp_eq_u32 s{sWV}, {w}"); I(f"s_cbranch_scc1 {pfx}{w}_entry")
    for w in (3, 2, 1, 0):
        A.label(f"{pfx}{w}_entry")
        chain_wave(A, st, f"{pfx}{w}", w, stamp, pub, opt)
        if w: I(f"s_branch {pfx}_exit")
    A.label(f"{pfx}_exit")

def chain_wave(A, st, pfx, w, stamp, pub, opt):
    I = A.I
    WS = f"s[{sWS}:{sWS+3}]"
    nohop = opt.get("nohop")
    def T(i):
        if stamp: stamp(A, i)
    lres_rd = sum([frag_rd(i, LBUF[i]) for i in range(NL)], [])
    PB = S + 8
    mega = opt.get("mega")
    kld = "sc1" if mega else ""
    I("s_waitcnt lgkmcnt(0)")
    for x in ([] if mega else kv_dma(A, kld)) + lres_rd + zero(AQ, 24): I(x)
    if mega:
        I(f"s_cmp_le_u32 s{sRDY}, 1"); I(f"s_cselect_b64 s[{sKVM}:{sKVM+1}], -1, 0")
        I(f"s_lshl_b32 s{sPF}, s{sH}, 7"); I(f"s_add_u32 s{sPF}, s{sPF}, {F_KV}")
    I("s_waitcnt vmcnt(0) lgkmcnt(0)")
    I("s_barrier")
    I(f"s_branch {pfx}_b1")
    rsc = opt.get('rsc', 1)
    e2 = opt.get("e2", 1)
    BS = [M + 16, M + 24] if e2 else [M + 16, M + 20, M + 24]
    NB_ = 2 if e2 else 1
    NEG = S + 4 if rsc == 1 else (M + 28 if rsc == 0 else KX)
    m0E = LW + L_MEM + w*1024*NB_; m0L = LW + L_MEM + w*1024 + 4096
    vE = vMW if e2 else vOW
    def pollB(b): return ([f"buffer_load_dwordx4 {vr(b+4*i,4)}, v{vE}, {WS}, s{sB0} offen offset:{1024*i} sc1" for i in range(NB_)] +
                          [f"buffer_load_dwordx4 v{vE}, {WS}, s{sB0} offen offset:{1024*i} sc1 lds" for i in range(NB_)])
    mr = [f"ds_read_b128 {vr(M+4*k,4)}, v{vL16} offset:{L_MEM+1024*k}" for k in range(8)]
    def ckr(base, n):
        regs = list(range(base, base + n))
        out = [f"v_max3_u32 v{vT}, v{regs[0]}, v{regs[1]}, v{regs[2]}"]
        for i in range(3, len(regs) - 1, 2): out.append(f"v_max3_u32 v{vT}, v{vT}, v{regs[i]}, v{regs[i+1]}")
        out.append(f"v_max_u32 v{vT}, v{vT}, v{regs[-1]}")
        out.append(f"v_cmp_eq_u32 vcc, -1, v{vT}")
        return out
    lateD = f"buffer_load_dwordx4 v{vOW}, {WS}, s{sT2} offen sc1 lds"
    A.label(f"{pfx}_side")
    I(f"v_cmp_eq_u32 vcc, -1, v{vT}")
    I(f"s_cbranch_vccz {pfx}_side2")
    A.label(f"{pfx}_lateB")
    I(lateD)
    I(f"s_add_u32 s{sSPIN}, s{sSPIN}, 1")
    I(f"s_cmp_gt_u32 s{sSPIN}, {SPIN_MAX}")
    I("s_waitcnt vmcnt(1)")
    I(f"s_cbranch_scc1 {pfx}_lateB_ok")
    for x in mr[4:]: I(x)
    I("s_waitcnt lgkmcnt(0)")
    for x in ckr(M + 16, 16): I(x)
    I(f"s_cbranch_vccnz {pfx}_lateB")
    A.label(f"{pfx}_lateB_ok")
    I("s_waitcnt vmcnt(0)")
    A.label(f"{pfx}_side2")
    if mega:
        I(f"s_cmp_eq_u32 s{sKVM}, 0"); I(f"s_cbranch_scc1 {pfx}_late_done")
        kv_wait(A, pfx + "_l", 1)
    I(f"s_branch {pfx}_late_done")
    NR = 0 if rsc else 3
    resets = [f"buffer_store_dwordx4 {vr(NEG,4)}, v{vMW}, {WS}, s{sRA} offen {st}", f"buffer_store_dwordx4 {vr(NEG,4)}, v{vMW}, {WS}, s{sRA} offen offset:1024 {st}",
              f"buffer_store_dword v{NEG}, v{vBST}, {WS}, s{sRB} offen {st}"]
    neg = [f"v_mov_b64 {vr(NEG,2)}, -1", f"v_mov_b64 {vr(NEG+2,2)}, -1"]
    npB = opt.get("npB", 2)
    if e2:
        def chkB(b):
            I("s_waitcnt vmcnt(6)")
            for x in chk(b, vT): I(x)
            I("s_waitcnt vmcnt(4)")
        A.label(f"{pfx}_e1")
        for x in pollB(BS[0]): I(x)
        chkB(BS[1])
        I(f"s_cbranch_vccz {pfx}_go")
        for x in pollB(BS[1]): I(x)
        I(f"s_add_u32 s{sSPIN}, s{sSPIN}, 1")
        I(f"s_cmp_gt_u32 s{sSPIN}, {SPIN_MAX}")
        I(f"s_cbranch_scc1 {pfx}_go")
        A.label(f"{pfx}_e0")
        if w < 2:
            chkB(BS[0])
            if not nohop: I(f"s_cbranch_vccnz {pfx}_e1")
        else: I("s_waitcnt vmcnt(0)")
    else:
        A.label(f"{pfx}_eslow")
        for x in pollB(BS[0]): I(x)
        I(f"s_add_u32 s{sSPIN}, s{sSPIN}, 1")
        I(f"s_cmp_gt_u32 s{sSPIN}, {SPIN_MAX}")
        I("s_waitcnt vmcnt(0)")
        I(f"s_cbranch_scc1 {pfx}_go")
        for x in ckr(BS[0], 4): I(x)
        I(f"s_cbranch_vccnz {pfx}_eslow")
        I(f"s_branch {pfx}_go")
        npB = opt.get("npB", 2)
        A.label(f"{pfx}_e1")
        for i in range(1, npB):
            y = 2*(npB - 1 - i) + NR
            I(f"s_waitcnt vmcnt({y+1})")
            for x in ckr(BS[i], 4): I(x)
            I(f"s_waitcnt vmcnt({y})")
            I(f"s_cbranch_vccz {pfx}_go")
        I(f"s_branch {pfx}_eslow")
        A.label(f"{pfx}_e0")
        y = 2*(npB - 1) + NR
        I(f"s_waitcnt vmcnt({y+1})")
        for x in ckr(BS[0], 4): I(x)
        I(f"s_waitcnt vmcnt({y})")
        if not nohop: I(f"s_cbranch_vccnz {pfx}_e1")
    A.label(f"{pfx}_go")
    I(f"s_mov_b32 m0, {m0L}")
    T(53)
    if not e2: I(lateD)
    I("s_barrier")
    if e2: I(lateD)
    A.label(f"{pfx}_b1")
    T(0)
    acc = {0: AQ, 1: AK, 2: AV}
    def m1(mat, tau, p): return smf(acc[mat] + 4*tau, M + 4*p, wfrag(mat, tau, p))
    def mm(mat, p): return [m1(mat, 0, p), m1(mat, 1, p)]
    kx = [f"ds_read_b128 {vr(KX+4*i,4)}, v{vKR} offset:{1024*i}" for i in range(8)]
    vx = [f"ds_read_b128 {vr(VX+4*i,4)}, v{vMW} offset:{L_V+1024*i}" for i in range(2)]
    q0p = hs2(AQ) + [cv(AQ+2, AQ)]; q1p = hs2(AQ+4) + [cv(AQ+6, AQ+4)]
    k0p = hs2(AK) + [cv(AQ+3, AK)]; k1p = hs2(AK+4) + [cv(AQ+7, AK+4)]
    dma = ["s_nop 0"]*9 if opt.get("nodma") else kv_dma(A, kld)
    publish = [] if opt.get("nopub") else [f"buffer_store_dwordx4 {vr(PB,4)}, v{vOW}, {WS}, s{sKM} offen {pub}"]
    for x in mr[:4]: I(x)
    I("s_waitcnt lgkmcnt(3)")
    T(10)
    vm = sum([mm(2, p) for p in range(8)], [])
    nb = opt.get("nb", 10)
    ph1 = sum([mm(0, k) + mm(1, k) for k in range(4)], []) + vm[:8]
    vm = vm[8:]
    kvr = vx + kx
    fl = [[] for _ in range(24)]
    fl[2].append("s_waitcnt lgkmcnt(0)")
    for i in range(5, nb - 1): fl[i].append(kvr.pop(0))
    fl[nb-1] += ["s_waitcnt vmcnt(0)", "s_barrier"]
    if nb >= 11:
        fl[nb-1] += [mr[4]]; fl[nb] += [mr[5], mr[6]]; fl[nb+1] += [mr[7]]
    else:
        for i in range(4): fl[nb+i].append(mr[4+i])
    c = ckr(M + 16, 16)
    st0 = 22 - len(c) if mega else 23 - len(c)
    assert st0 >= (nb + 1 if nb >= 11 else nb + 3)
    fl[st0].append("s_waitcnt lgkmcnt(2)"); fl[st0+3].append("s_waitcnt lgkmcnt(0)")
    for i, x in enumerate(c):
        if i >= 4 and kvr: fl[st0+i].append(kvr.pop(0))
        fl[st0+i].append(x)
    if rsc == 2 and publish:
        k = nb + 2 + w; fl[k] = [x for x in fl[k] if not x.startswith('v_')] + publish + [x for x in fl[k] if x.startswith('v_')]
    if rsc == 1:
        fl[3].append(neg[0]); fl[4].append(neg[1])
        if opt.get("pubat", 1) == 1 and publish: resets[2] = publish[0]
        for i in range(3):
            k = min(nb + 4*i + w + opt.get("rso", 0), 22)
            nv_ = [x for x in fl[k] if not x.startswith("v_")]; vv = [x for x in fl[k] if x.startswith("v_")]
            fl[k] = nv_ + [resets[i]] + vv
    if mega: fl[22].append(f"s_or_b64 vcc, vcc, s[{sKVM}:{sKVM+1}]")
    slots(A, ph1, fl)
    if not nohop: I(f"s_cbranch_vccnz {pfx}_side")
    A.label(f"{pfx}_late_done")
    T(14)
    ph2 = mm(0, 4) + mm(0, 5) + mm(0, 6) + mm(0, 7) + [m1(1, 0, p) for p in range(4, 8)] + [m1(1, 1, p) for p in range(4, 8)]
    pre = [[] for _ in range(16)]; val = [[] for _ in range(16)]
    for i, x in enumerate(q0p + q1p + k0p[:1]): val[9+i].append(x)
    vslot = [w, 4 + w, 8 + w, 12 + w]
    pre[vslot[0]] += ([dma[0], dma[1]] if w == 0 else []) + [dma[2]]
    if w: pre[0] += [dma[0], dma[1]]
    pre[vslot[1]] += [dma[3], dma[4]]; pre[vslot[1]+1] += [dma[5]]
    pre[vslot[2]] += [dma[6]]; pre[vslot[3]] += [dma[7]]
    free = [i for i in range(8) if not pre[i]]
    while kvr: pre[free.pop(0)].append(kvr.pop(0))
    if mega:
        val[5] += [f"v_lshrrev_b32 v{vT}, 2, v{vL16}"]; val[6] += [f"v_subrev_u32 v{vT}, {LW//4}, v{vT}"]
    for i in (7, 8):
        if len(pre[i]) < 2: pre[i].append(f"s_nop {1 - len(pre[i])}")
    slots(A, ph2, [pre[i] + val[i] for i in range(16)])
    T(13)
    for x in k0p[1:]: I(x)
    I(f"ds_write_b64 v{vXW}, {vr(AQ+2,2)} offset:{L_QK}")
    I(dma[8])
    for x in k1p: I(x)
    I(f"ds_write_b64 v{vXW}, {vr(AQ+6,2)} offset:{L_QK+512}")
    T(20)
    wo = sum([frag_rd(NL + i, WBUF[i]) for i in range(NW)], [])
    fl = [[], [], [], []]
    oth = [i for i in range(4) if i != w]
    if opt.get("pubat", 1) == 1 and rsc == 1 and publish: fl[w] = [f"buffer_store_dword v{NEG}, v{vBST}, {WS}, s{sRB} offen {st}"]
    if opt.get("pubat", 1) == 0: fl[w] = publish
    fl[oth[0]] = [wo[0], cv(AK, AK)]; fl[oth[1]] = [wo[1], cv(AK+1, AK+4)]
    flagld = [f"buffer_load_dword v{vFL}, v{vT}, {WS}, s{sPF} offen sc1"] if mega else []
    slots(A, vm[:4], fl)
    I(f"s_waitcnt lgkmcnt(2)")
    T(22)
    I("s_barrier")
    T(2)
    F = [M, M + 4, AQ, AQ + 4]
    frd = [f"ds_read_b64_tr_b16 {vr(F[sg]+2*rho,2)}, v{vTR} offset:{L_QK + sg*1024 + rho*512}" for sg in range(4) for rho in range(2)]
    for x in frd[:2]: I(x)
    slots(A, vm[4:], [frd[2:4], frd[4:6], frd[6:8], ["s_waitcnt lgkmcnt(4)"]])
    ONES = AV; LA = AK + 4; OA = AQ; tmx = AK + 4
    def sx(tau, sg): return mf32(S + 4 + 4*tau, KX + 16*tau + 4*sg, F[sg], "0" if sg == 0 else vr(S + 4 + 4*tau, 4))
    def s0(sg): return mf32(S, F[sg], F[sg], "0" if sg == 0 else vr(S, 4))
    fl = [[wo[2]], [wo[3], "s_waitcnt lgkmcnt(2)"], [wo[4]], [wo[5], f"s_cmp_ge_u32 s{sSTEP}, {opt.get('imm', 62)}"]]
    fl[0 if w < 2 else 2] += flagld
    slots(A, [sx(1, sg) for sg in range(4)], fl)
    slots(A, [sx(0, sg) for sg in range(4)], [[wo[6]] + hs2(AV)[:1], [wo[7]] + hs2(AV)[1:], [wo[8]] + hs2(AV+4)[:1], [wo[9]] + hs2(AV+4)[1:]])
    slots(A, [s0(sg) for sg in range(4)],
          [[wo[10], f"v_max3_f32 v{tmx}, v{S+8}, v{S+9}, v{S+10}"], [wo[11], cv(AK+2, AV)], [wo[12], cv(AK+3, AV+4)],
           [wo[13], f"v_max3_f32 v{tmx}, v{tmx}, v{S+11}, v{S+4}"]])
    I(f"s_cbranch_scc1 {pfx}_done")
    A.label(f"{pfx}_resume")
    T(3)
    I(f"v_max3_f32 v{tmx}, v{tmx}, v{S+5}, v{S+6}")
    I(f"v_max_f32 v{tmx}, v{tmx}, v{S+7}")
    I(f"v_mov_b32 v{tmx+2}, s{sSC}")
    I(f"v_xor_b32 v{vKR}, {0 if opt.get('nodma') else 8192}, v{vKR}")
    for x in zero(AV + 4, 4): I(x)
    I(f"v_max3_f32 v{tmx+1}, v{tmx}, v{S+2}, v{S+3}")
    I(f"v_max3_f32 v{tmx}, v{tmx}, v{S+2}, v{S+3}")
    I(f"v_mov_b32 v{ONES}, 0x3f803f80")
    I(f"v_mov_b32 v{ONES+1}, 0x3f803f80")
    I(f"v_permlane32_swap_b32 v{tmx}, v{tmx+1}")
    I(f"v_max_f32 v{tmx}, v{tmx}, v{tmx+1}")
    I(f"v_mov_b32 v{tmx+1}, v{tmx}")
    I(f"v_mov_b64 {vr(ONES+2,2)}, {vr(ONES,2)}")
    I(f"v_permlane16_swap_b32 v{tmx}, v{tmx+1}")
    I(f"v_max_f32 v{tmx}, v{tmx}, v{tmx+1}")
    I(f"v_mul_f32 v{tmx}, s{sSC}, v{tmx}")
    for i in range(1, 6):
        I(f"v_pk_fma_f32 {vr(S+2*i,2)}, {vr(S+2*i,2)}, {vr(tmx+2,2)}, {vr(tmx,2)} op_sel_hi:[1,0,0] neg_lo:[0,0,1] neg_hi:[0,0,1]")
    ex = [f"v_exp_f32 v{S+i}, v{S+i}" for i in range(12)]
    I(ex[2]); I(ex[3]); I(ex[4])
    I(cv(PZ, S+2)); I(cv(PZ+3, S+2))
    I(ex[5])
    T(4)
    pk = [cv(S+4+i, S+4+2*i) for i in range(4)]
    slots(A, [mf16(OA, AK+2, PZ, "0"), mf16(OA+4, AK+2, PZ+2, "0"), mf16(LA, ONES, PZ, "0")],
          [[ex[6], ex[7]], [ex[8], ex[9]], [ex[10], ex[11]]])
    for x in pk: I(x)
    I(f"v_mov_b64 {vr(PB,2)}, {vr(AK,2)}"); I(f"v_mov_b64 {vr(PB+2,2)}, {vr(AK+2,2)}")
    slots(A, [mf32(LA, ONES, S+4, vr(LA,4)), mf32(OA, VX, S+4, vr(OA,4)), mf32(OA+4, VX+4, S+4, vr(OA+4,4))],
          [[wo[14]] + zero(AK, 2), [wo[15]] + zero(AK+2, 2), zero(AV, 4)])
    wrest = wo[16:]
    T(40)
    I(f"v_rcp_f32 v{LA}, v{LA}")
    for i in range(4):
        I(f"v_pk_mul_f32 {vr(OA+2*i,2)}, {vr(OA+2*i,2)}, {vr(LA,2)} op_sel_hi:[1,0]")
    for i in range(4): I(cv(OA+i, OA+2*i))
    I(f"ds_write_b128 v{vOW}, {vr(OA,4)} offset:{L_O}")
    T(41)
    WA = [AV, AV + 4, AK, AK + 4]
    OF = [OA, OA + 4, VX, VX + 4]
    def wm(p, j): return smf(WA[p], OF[j], wfrag(3, p, j))
    for i in range(4): I(f"v_mov_b32_dpp v{OA+i}, v{OA+i} quad_perm:[0,1,0,1] row_mask:0xf bank_mask:0xf")
    z = zero(AK + 4, 4)
    I(z[0]); I(z[1])
    sal = [f"s_add_u32 s{sT1}, s{sHA}, 4096", f"s_mov_b32 s{sRB}, s{sHB}", f"s_add_u32 s{sHB}, s{sHB}, 8192",
           f"s_and_b32 s{sHB}, s{sHB}, {hex(0xffffffff ^ (1<<15))}", f"s_sub_u32 s{sB0}, s{sHB}, {LW}", f"s_add_u32 s{sRA}, s{sRC}, s{sHA}",
           f"s_add_u32 s{sKM}, s{sKM}, 4096", f"s_add_u32 s{sSTEP}, s{sSTEP}, 1"]
    npre3 = opt.get("npre3", 2)
    own = [wm(p, 0) for p in range(4)]
    slots(A, own[:npre3], [sal[:3]])
    I("s_waitcnt lgkmcnt(0)")
    T(42)
    I("s_barrier")
    T(5)
    for j in (1, 3, 2): I(f"ds_read_b128 {vr(OF[j],4)}, v{vOR} offset:{L_O + ((j ^ w) << 10)}")
    for x in own[npre3:]: I(x)
    I("s_waitcnt lgkmcnt(2)")
    T(31)
    def post(p):
        x = WA[p]
        return [f"v_cvt_pk_bf16_f32 v{x}, v{x}, v{x+2}", f"v_cvt_pk_bf16_f32 v{x+1}, v{x+1}, v{x+3}",
                f"buffer_store_dwordx2 {vr(x,2)}, v{vAST}, {WS}, s{sHA if p < 2 else sT1} offen offset:{2048*(p&1)} {st}"]
    P = [post(p) for p in range(4)]
    ms = [wm(p, j) for p in range(4) for j in (1, 3, 2)]
    fl = [["s_waitcnt lgkmcnt(1)", wrest[0]], ["s_waitcnt lgkmcnt(1)", wrest[1]], [wrest[2], sal[3]],
          [wrest[3], sal[4]], sal[5:7] + [P[0][0]], sal[7:8] + ["s_nop 0", P[0][1]],
          [P[0][2]], ["s_nop 1", P[1][0]], ["s_waitcnt lgkmcnt(0)", "s_nop 0", P[1][1]],
          [P[1][2]], ["s_nop 1", P[2][0]], P[2][1:3]]
    hl = opt.get("hl", 0)
    if hl: fl[11] = P[2][1:2]
    slots(A, ms, fl)
    T(34)
    for x in (P[3][:2] if hl else P[3]): I(x)
    T(6)
    RAs = [M, M + 8]; SEL = M + 16; RD = M + 20
    def pollA(b): return [f"buffer_load_dwordx4 {vr(b,4)}, v{vMW}, {WS}, s{sRA} offen sc1", f"buffer_load_dwordx4 {vr(b+4,4)}, v{vMW}, {WS}, s{sRA} offen offset:1024 sc1"]
    if opt.get("bar6", 1): I("s_barrier")
    work = zero(AQ, 24) + [f"v_cndmask_b32 v{SEL+i}, 0, v{vSEL}, s[{sMSK+2*i}:{sMSK+2*i+1}]" for i in range(4)] + ([] if rsc else neg)
    if rsc == 2:
        for x in neg: I(x)
        if w >= 2:
            I(f"s_xor_b32 s{sT3}, s{sHA}, {256<<10}"); I(f"s_add_u32 s{sT3}, s{sT3}, s{sRC}")
            if w == 3: I(f"s_add_u32 s{sT3}, s{sT3}, 4096")
            for i in range(4): I(f"buffer_store_dwordx4 {vr(NEG,4)}, v{vL16}, {WS}, s{sT3} offen offset:{i*1024} {st}")
    if hl and w >= 2:
        delay(A, opt.get("dH", 24)); I(P[2][2]); I(P[3][2])
    delay(A, opt.get("dA", [20, 32, 48, 60])[w])
    T(51)
    for x in pollA(RAs[0]): I(x)
    if hl and w < 2:
        if w == 0: delay(A, opt.get("dH0", 8))
        I(P[2][2]); I(P[3][2])
    for x in work: I(x)
    delay(A, opt.get("gapA", 4))
    for x in pollA(RAs[1]): I(x)
    I(f"s_xor_b32 s{sHA}, s{sHA}, {256<<10}")
    I(f"s_mov_b32 m0, {m0E}")
    I(f"s_add_u32 s{sT2}, s{sB0}, 4096")
    I(f"s_branch {pfx}_waitA")
    def red(b, n=2):
        I(f"s_waitcnt vmcnt({n})")
        c = chk(b, vT)
        slots(A, [mf32(RD, SEL, b, "0"), mf32(RD, SEL, b + 4, vr(RD, 4))], [c[:2], c[2:]])
    A.label(f"{pfx}_pollA_retry")
    for x in pollA(RAs[0]): I(x)
    I(f"s_add_u32 s{sSPA}, s{sSPA}, 1")
    red(RAs[1])
    I(f"s_cbranch_vccz {pfx}_goA")
    for x in pollA(RAs[1]): I(x)
    I(f"s_cmp_gt_u32 s{sSPA}, {SPIN_MAX}")
    I(f"s_cbranch_scc1 {pfx}_goA")
    if hl and w < 2: I("s_waitcnt vmcnt(2)")
    A.label(f"{pfx}_waitA")
    red(RAs[0], 4 if (hl and w < 2) else 2)
    I("s_nop 3")
    if not nohop: I(f"s_cbranch_vccnz {pfx}_pollA_retry")
    A.label(f"{pfx}_goA_n")
    T(7)
    for rot in (4, 8):
        I(f"v_add_f32_dpp v{RD}, v{RD}, v{RD} row_ror:{rot} row_mask:0xf bank_mask:0xf")
        I(f"v_add_f32_dpp v{RD+1}, v{RD+1}, v{RD+1} row_ror:{rot} row_mask:0xf bank_mask:0xf")
    I(cv(RD, RD))
    I(f"buffer_store_dword v{RD}, v{vBST}, {WS}, s{sHB} offen {st}")
    T(8)
    if rsc == 2: I(resets[2])
    nl0 = opt.get("nl0", 8)
    for x in lres_rd[:nl0]: I(x)
    if mega:
        I(f"s_cmp_gt_u32 s{sRDY}, 64"); I(f"s_cbranch_scc1 {pfx}_kvall")
        kv_eval(A)
        I(f"s_add_u32 s{sT3}, s{sSTEP}, 1"); I(f"s_cmp_ge_u32 s{sT3}, s{sRDY}"); I(f"s_cselect_b64 s[{sKVM}:{sKVM+1}], -1, 0")
        I(f"s_cmp_gt_u32 s{sRDY}, 64"); I(f"s_cselect_b32 s{sPF}, 0x40000000, s{sPF}")
        I(f"s_branch {pfx}_kvdone")
        A.label(f"{pfx}_kvall")
        I(f"s_mov_b64 s[{sKVM}:{sKVM+1}], 0")
    delay(A, opt.get("dB", [36, 24, 24, 12])[w])
    A.label(f"{pfx}_kvdone")
    T(50)
    rest = lres_rd[nl0:]
    for i in range(0 if (e2 and w >= 2) else npB):
        for x in pollB(BS[i]): I(x)
        if i < npB - 1:
            for x in rest[:2]: I(x)
            delay(A, opt.get("gapB", 16)); rest = rest[2:]
    for x in rest: I(x)
    if not rsc:
        for x in resets: I(x)
    T(52)
    I("s_waitcnt lgkmcnt(0)")
    I(f"s_branch {pfx}_e0")
    A.label(f"{pfx}_goA")
    I("s_nop 3")
    I(f"s_branch {pfx}_goA_n")
    A.label(f"{pfx}_done")
    I(f"s_add_u32 s{sKM}, s{sKM}, 4096")
    if publish: I(f"buffer_store_dwordx4 {vr(AK,4)}, v{vOW}, {WS}, s{sKM} offen {pub}")
    I(f"s_sub_u32 s{sKM}, s{sKM}, 4096")
    I(f"s_cmp_lt_u32 s{sSTEP}, 63")
    I(f"s_cbranch_scc1 {pfx}_resume")
```

```python
from chain import *

sG = 39
D_OVF, D_PINIT, D_CHAIN, D_PROG, D_P2 = 192, 200, 204, 136, 208
WSS = f"s[{sWS}:{sWS+3}]"
DBG = f"s[{sDBG}:{sDBG+3}]"
SW = f"s[{sW}:{sW+3}]"
OOB = 0x40000000
wLN, wC, wG, wR, wCP, wL16 = 1, 2, 3, 4, 5, 6

TRACE = [False]
WS_TR = 1 << 20
def TS(A, vreg, lane):
    if not TRACE[0]: return
    A.I("s_memrealtime s[62:63]"); A.I("s_waitcnt lgkmcnt(0)")
    if isinstance(lane, int): A.I(f"v_writelane_b32 v{vreg}, s62, {lane}")
    else:
        A.I(f"s_mov_b32 m0, {lane}"); A.I("s_nop 0"); A.I(f"v_writelane_b32 v{vreg}, s62, m0")
def TDUMP(A, vregs, tmp, dbgw=None):
    if not TRACE[0]: return
    I = A.I
    l = A.newlabel("td")
    I(f"s_cmp_lg_u32 s{sWV}, 0"); I(f"s_cbranch_scc1 {l}")
    I(f"s_lshl_b32 s62, s{sG}, 5"); I(f"s_add_u32 s62, s62, s{sH}"); I("s_lshl_b32 s62, s62, 10"); I(f"s_add_u32 s62, s62, {WS_TR}")
    I(f"v_mbcnt_lo_u32_b32 v{tmp}, -1, 0"); I(f"v_mbcnt_hi_u32_b32 v{tmp}, -1, v{tmp}"); I(f"v_lshlrev_b32 v{tmp}, 2, v{tmp}")
    for i, r in enumerate(vregs): I(f"buffer_store_dword v{r}, v{tmp}, {WSS}, s62 offen offset:{256*i}")
    if dbgw:
        g, w0, lo, n = dbgw
        e = A.newlabel("te")
        I(f"s_cmp_lg_u32 s{sG}, {g}"); I(f"s_cbranch_scc1 {e}"); I(f"s_cmp_lg_u32 s{sH}, 0"); I(f"s_cbranch_scc1 {e}")
        I(f"s_mov_b64 exec, {hex(((1 << n) - 1) << lo)}")
        I(f"buffer_store_dword v{vregs[0]}, v{tmp}, {DBG}, 0 offen offset:{4*(w0 - lo)}")
        I("s_mov_b64 exec, -1")
        A.label(e)
    I("s_waitcnt vmcnt(0)")
    A.label(l)

def srd(A, karg_off, nbytes):
    A.I(f"s_load_dwordx2 s[{sW}:{sW+1}], s[0:1], {karg_off}")
    A.I(f"s_mov_b32 s{sW+2}, {nbytes}")
    A.I(f"s_mov_b32 s{sW+3}, 0x20000")
    A.I("s_waitcnt lgkmcnt(0)")

def prologue(A, force=None, early=1, rot=0):
    I = A.I
    if TRACE[0]: I("s_memrealtime s[64:65]")
    I(f"s_load_dwordx2 s[{sWS}:{sWS+1}], s[0:1], 112")
    I(f"s_load_dwordx2 s[{sDBG}:{sDBG+1}], s[0:1], 104")
    I("s_load_dwordx4 s[48:51], s[0:1], 16"); I("s_load_dwordx4 s[52:55], s[0:1], 32")
    I("s_cmp_ge_u32 s2, 256")
    I("s_cbranch_scc1 L_end")
    I(f"s_mov_b32 s{sWS+2}, {WS_BYTES}"); I(f"s_mov_b32 s{sWS+3}, 0x20000")
    I(f"s_mov_b32 s{sDBG+2}, 256"); I(f"s_mov_b32 s{sDBG+3}, 0x20000")
    I("v_lshrrev_b32 v1, 6, v0")
    I(f"v_mov_b32 v4, {LDS_BYTES - 16}")
    I(f"v_readfirstlane_b32 s{sWV}, v1")
    I("s_waitcnt lgkmcnt(0)")
    I("s_getreg_b32 s24, hwreg(HW_REG_XCC_ID, 0, 4)")
    if rot:
        I(f"s_sub_u32 s25, s24, {rot}"); I("s_and_b32 s25, s25, 7"); I("s_cmp_lt_u32 s24, 8"); I("s_cselect_b32 s24, s25, s24")
    I(f"s_cmp_eq_u32 s{sWV}, 0")
    I("s_cbranch_scc1 L_elect")
    if early:
        I(f"s_cmp_ge_u32 s24, {early}"); I("s_cbranch_scc1 L_elect_wait")
        I("s_lshr_b32 s26, s2, 3"); I("s_lshl_b32 s26, s26, 17")
        I("v_subrev_u32 v7, 64, v0"); I("v_lshlrev_b32 v7, 4, v7")
        I("v_and_b32 v8, 3, v0"); I("v_lshlrev_b32 v8, 20, v8")
        I(f"s_mov_b32 s46, {4<<20}"); I("s_mov_b32 s47, 0x20000")
        I("s_mov_b32 s44, s50"); I("s_mov_b32 s45, s51")
        for i in range(21):
            I(f"buffer_load_dwordx4 v[{128+4*i}:{131+4*i}], v7, s[44:47], s26 offen"); I("s_add_u32 s26, s26, 3072")
        for r in (52, 48, 54):
            I(f"s_mov_b32 s44, s{r}"); I(f"s_mov_b32 s45, s{r+1}")
            I("buffer_load_dword v220, v8, s[44:47], 0 offen")
    I("s_branch L_elect_wait")
    A.label("L_elect")
    if force == "skew":
        I("s_lshr_b32 s24, s2, 4"); I("s_and_b32 s24, s24, 15")
    I("s_and_b32 s25, s24, 1"); I("s_lshl_b32 s25, s25, 6")
    I("s_lshr_b32 s26, s24, 1"); I("s_lshl_b32 s26, s26, 2")
    I("s_add_u32 s25, s25, s26")
    I("s_cmp_eq_u32 s24, 0")
    I("s_cselect_b32 s25, 128, s25")
    I("s_mov_b64 exec, 1")
    I("v_mov_b32 v1, 1"); I("v_mov_b32 v2, s25")
    I(f"buffer_atomic_add v1, v2, {DBG}, 0 offen sc0")
    I("s_waitcnt vmcnt(0)")
    I("v_readfirstlane_b32 s25, v1")
    I("s_mov_b64 exec, -1")
    I("s_mov_b32 s40, 0")
    I("s_cmp_ge_u32 s24, 8"); I("s_cbranch_scc1 L_ovf")
    I("s_cmp_lt_u32 s25, 32"); I("s_cbranch_scc1 L_elect_pub")
    A.label("L_ovf")
    I("s_mov_b64 exec, 1")
    I("v_mov_b32 v1, 1"); I(f"v_mov_b32 v2, {D_OVF}")
    I(f"buffer_atomic_add v1, v2, {DBG}, 0 offen sc0")
    I("s_waitcnt vmcnt(0)")
    I("v_readfirstlane_b32 s26, v1")
    I("s_mov_b64 exec, -1")
    I("v_lshlrev_b32 v2, 2, v0")
    I("s_mov_b32 s28, 0")
    def word(x): return 32 if x == 0 else (x & 1) * 16 + (x >> 1)
    A.label("L_ovf_poll")
    I(f"buffer_load_dword v1, v2, {DBG}, 0 offen sc1")
    I("s_add_u32 s28, s28, 1")
    I("s_waitcnt vmcnt(0)")
    I("s_mov_b32 s27, 0")
    for x in range(16):
        I(f"v_readlane_b32 s25, v1, {word(x)}"); I("s_add_u32 s27, s27, s25")
    I(f"s_cmp_gt_u32 s28, {SPIN_MAX}"); I("s_cbranch_scc1 L_ovf_go")
    I("s_cmp_lt_u32 s27, 256"); I("s_cbranch_scc1 L_ovf_poll")
    A.label("L_ovf_go")
    I("s_mov_b32 s40, 1")
    for x in range(8):
        I(f"v_readlane_b32 s25, v1, {word(x)}")
        I("s_min_u32 s25, s25, 32")
        I("s_add_u32 s25, s25, s26")
        I(f"s_mov_b32 s24, {x}")
        I("s_cmp_lt_u32 s25, 32"); I("s_cbranch_scc1 L_elect_pub")
        I("s_sub_u32 s26, s25, 32")
    I("s_mov_b32 s24, 8")
    A.label("L_elect_pub")
    I("s_lshl_b32 s24, s24, 8"); I("s_lshl_b32 s26, s40, 16"); I("s_add_u32 s24, s24, s25"); I("s_add_u32 s24, s24, s26")
    I("v_mov_b32 v1, s24")
    I("ds_write_b32 v4, v1")
    I("s_waitcnt lgkmcnt(0)")
    A.label("L_elect_wait")
    I("s_barrier")
    I("ds_read_b32 v1, v4")
    I("s_waitcnt lgkmcnt(0)")
    I("v_readfirstlane_b32 s24, v1")
    I(f"s_and_b32 s{sH}, s24, 31")
    I(f"s_bfe_u32 s{sG}, s24, {hex((8 << 16) | 8)}")
    I("s_lshr_b32 s40, s24, 16")
    I(f"s_cmp_ge_u32 s{sG}, 8"); I("s_cbranch_scc1 L_end")

def signal_add(A, srdname, off_sgpr_or_imm, val, t0, t1):
    I = A.I
    l = A.newlabel("sig")
    I(f"s_cmp_lg_u32 s{sWV}, 0"); I(f"s_cbranch_scc1 {l}")
    I(f"v_mov_b32 v{t0}, {val}"); I(f"v_mov_b32 v{t1}, {off_sgpr_or_imm}")
    I("s_mov_b64 exec, 1")
    I(f"buffer_atomic_add v{t0}, v{t1}, {srdname}, 0 offen")
    I("s_mov_b64 exec, -1")
    A.label(l)

def signal_store(A, off, val, t0, t1):
    I = A.I
    l = A.newlabel("sig")
    I(f"s_cmp_lg_u32 s{sWV}, 0"); I(f"s_cbranch_scc1 {l}")
    I(f"v_mov_b32 v{t0}, {val}"); I(f"v_mov_b32 v{t1}, {off}")
    I("s_mov_b64 exec, 1")
    I(f"buffer_store_dword v{t0}, v{t1}, {WSS}, 0 offen sc1")
    I("s_mov_b64 exec, -1")
    A.label(l)

def wait_ge(A, srdname, off, target, t0, t1, sres, sleep=2, mask=None, barrier=True, allwaves=False):
    I = A.I
    l = A.newlabel("wt"); e = A.newlabel("wte")
    if not allwaves:
        I(f"s_cmp_lg_u32 s{sWV}, 0"); I(f"s_cbranch_scc1 {e}")
    I(f"v_mov_b32 v{t1}, {off}")
    A.label(l)
    I(f"buffer_load_dword v{t0}, v{t1}, {srdname}, 0 offen sc1")
    I(f"s_add_u32 s{sSPIN}, s{sSPIN}, 1")
    I("s_waitcnt vmcnt(0)")
    I(f"v_readfirstlane_b32 s{sres}, v{t0}")
    I(f"s_cmp_gt_u32 s{sSPIN}, {SPIN_MAX}"); I(f"s_cbranch_scc1 {e}")
    if mask is not None:
        I(f"s_and_b32 s{sres+1}, s{sres}, {mask}"); I(f"s_cmp_ge_u32 s{sres+1}, {target}")
    else:
        I(f"s_cmp_ge_u32 s{sres}, {target}")
    I(f"s_cbranch_scc1 {e}")
    if sleep: I(f"s_sleep {sleep}")
    I(f"s_branch {l}")
    A.label(e)
    if barrier: I("s_barrier")

sLOC = 31
sSEG, sXB, sCNT, sA0, sA1 = 18, 19, 20, 21, 22
sD0, sD1, sD2 = 34, 35, 36
def dual(A, fn):
    g = A.newlabel("dg"); e = A.newlabel("de")
    A.I(f"s_cmp_eq_u32 s{sLOC}, 0"); A.I(f"s_cbranch_scc1 {g}")
    fn(""); A.I(f"s_branch {e}")
    A.label(g); fn("sc1"); A.label(e)

def group_mode(A, t0, t1):
    I = A.I
    I(f"s_and_b32 s24, s{sG}, 1"); I("s_lshl_b32 s24, s24, 6"); I(f"s_lshr_b32 s25, s{sG}, 1"); I("s_lshl_b32 s25, s25, 2"); I("s_add_u32 s24, s24, s25")
    I(f"v_mov_b32 v{t1}, s24")
    I(f"buffer_load_dword v{t0}, v{t1}, {DBG}, 0 offen sc1")
    I("s_waitcnt vmcnt(0)")
    I(f"v_readfirstlane_b32 s24, v{t0}")
    I("s_cmp_ge_u32 s24, 32"); I(f"s_cselect_b32 s{sLOC}, 1, 0")

def gsignal(A, sline, t0, t1):
    I = A.I
    l = A.newlabel("gs")
    I(f"s_cmp_lg_u32 s{sWV}, 0"); I(f"s_cbranch_scc1 {l}")
    I(f"s_lshl_b32 s24, s{sH}, 2")
    I(f"s_add_u32 s25, s{sSEG}, 1"); I(f"v_mov_b32 v{t0}, s25"); I(f"v_mov_b32 v{t1}, s24")
    I("s_mov_b64 exec, 1")
    dual(A, lambda f: I(f"buffer_store_dword v{t0}, v{t1}, {WSS}, s{sline} offen {f}"))
    I("s_mov_b64 exec, -1")
    A.label(l)

def gwait(A, sline, t0, t1, sleep=0, barrier=True):
    I = A.I
    l = A.newlabel("gw"); e = A.newlabel("gwe")
    I(f"s_cmp_lg_u32 s{sWV}, 0"); I(f"s_cbranch_scc1 {e}")
    I(f"v_and_b32 v{t1}, 31, v{wLN}"); I(f"v_lshlrev_b32 v{t1}, 2, v{t1}")
    A.label(l)
    I(f"buffer_load_dword v{t0}, v{t1}, {WSS}, s{sline} offen sc1")
    I(f"s_add_u32 s{sSPIN}, s{sSPIN}, 1")
    I(f"s_cmp_gt_u32 s{sSPIN}, {SPIN_MAX}"); I(f"s_cbranch_scc1 {e}")
    I("s_waitcnt vmcnt(0)")
    I(f"v_cmp_ge_u32 vcc, s{sSEG}, v{t0}")
    if sleep: I(f"s_sleep {sleep}")
    I(f"s_cbranch_vccnz {l}")
    A.label(e)
    if barrier: I("s_barrier")

def allreduce(A, regs, tmp, op="add"):
    I = A.I
    for rot in (8, 4, 2, 1):
        for r in regs: I(f"v_{op}_f32_dpp v{r}, v{r}, v{r} row_ror:{rot} row_mask:0xf bank_mask:0xf")
    for sw in ("16", "32"):
        for r in regs:
            I(f"v_mov_b32 v{tmp}, v{r}")
            I(f"v_permlane{sw}_swap_b32 v{r}, v{tmp}")
            I(f"v_{op}_f32 v{r}, v{r}, v{tmp}")

def unpack(A, src, dst, n):
    for i in range(n):
        A.I(f"v_lshlrev_b32 v{dst+2*i}, 16, v{src+i}")
        A.I(f"v_and_b32 v{dst+2*i+1}, 0xffff0000, v{src+i}")

def rbf(A, r):
    A.I(f"v_cvt_pk_bf16_f32 v{r}, v{r}, v{r}")
    A.I(f"v_and_b32 v{r}, 0xffff0000, v{r}")

def ln_finish(A, mean, var):
    I = A.I
    rbf(A, mean); rbf(A, var)
    I(f"v_add_f32 v{var}, {hex(f2u(1e-5))}, v{var}")
    rbf(A, var)
    I(f"v_sqrt_f32 v{var}, v{var}")
    rbf(A, var)
    I(f"v_rcp_f32 v{var}, v{var}")

def ln_row(A, x, out, t):
    I = A.I
    m, v, tm, d = t, t + 1, t + 2, t + 4
    I(f"v_add_f32 v{m}, v{x}, v{x+1}")
    for i in range(2, 8): I(f"v_add_f32 v{m}, v{m}, v{x+i}")
    allreduce(A, [m], tm)
    I(f"v_mul_f32 v{m}, {hex(f2u(1/512))}, v{m}")
    for i in range(8): I(f"v_sub_f32 v{d+i}, v{x+i}, v{m}")
    I(f"v_mul_f32 v{v}, v{d}, v{d}")
    for i in range(1, 8): I(f"v_fmac_f32 v{v}, v{d+i}, v{d+i}")
    allreduce(A, [v], tm)
    I(f"v_mul_f32 v{v}, {hex(f2u(1/512))}, v{v}")
    ln_finish(A, m, v)
    for i in range(8): I(f"v_sub_f32 v{d+i}, v{x+i}, v{m}")
    for i in range(4): I(cv(out + i, d + 2*i))
    unpack(A, out, d, 4)
    for i in range(8): I(f"v_mul_f32 v{d+i}, v{d+i}, v{v}")
    for i in range(4): I(cv(out + i, d + 2*i))

def lanes(A):
    I = A.I
    I(f"v_and_b32 v{wLN}, 63, v0")
    I(f"v_and_b32 v{wC}, 15, v{wLN}")
    I(f"v_lshrrev_b32 v{wG}, 4, v{wLN}")
    I(f"v_lshrrev_b32 v{wR}, 2, v{wC}")
    I(f"v_and_b32 v{wCP}, 3, v{wC}")
    I(f"v_lshlrev_b32 v{wL16}, 4, v{wLN}")
    I(f"s_mov_b32 s{sSPIN}, 0")

def touch_weights(A, dst):
    I = A.I
    I("s_load_dwordx4 s[48:51], s[0:1], 16"); I("s_load_dwordx4 s[52:55], s[0:1], 32")
    I(f"s_lshl_b32 s26, s{sG}, 5"); I(f"s_add_u32 s26, s26, s{sH}"); I("s_sub_u32 s26, s26, 32"); I("s_mul_i32 s26, s26, 18944")
    I("v_lshlrev_b32 v7, 4, v0")
    I(f"s_mov_b32 s46, {4<<20}"); I("s_mov_b32 s47, 0x20000")
    I("s_waitcnt lgkmcnt(0)")
    n = 0
    for r in (50, 52, 48, 54):
        I(f"s_mov_b32 s44, s{r}"); I(f"s_mov_b32 s45, s{r+1}"); I("s_mov_b32 s27, s26")
        for i in range(5):
            I(f"buffer_load_dwordx4 v[{dst+4*n}:{dst+3+4*n}], v7, s[44:47], s27 offen"); n += 1
            I("s_add_u32 s27, s27, 4096")

def p_init(A, opt={}):
    I = A.I
    sJ = 18
    I(f"s_sub_u32 s{sJ}, s{sG}, 6"); I(f"s_lshl_b32 s{sJ}, s{sJ}, 5"); I(f"s_add_u32 s{sJ}, s{sJ}, s{sH}")
    srd(A, 0, 2 << 20)
    I(f"s_lshl_b32 s24, s{sJ}, 15"); I(f"s_lshl_b32 s25, s{sWV}, 13"); I("s_add_u32 s24, s24, s25")
    I("s_add_u32 s25, s24, 4096")
    for i in range(8): I(f"buffer_load_dwordx4 {vr(32+4*i,4)}, v{wL16}, {SW}, s{24 if i < 4 else 25} offen offset:{(i&3)*1024}")
    if opt.get("touch", 1): touch_weights(A, 100)
    I("v_lshlrev_b32 v10, 2, v0"); I("v_mov_b32 v11, 0"); I(f"s_lshl_b32 s26, s{sJ}, 10")
    I(f"buffer_store_dword v11, v10, {WSS}, s26 offen sc1")
    I(f"s_add_u32 s24, s24, {WS_XN}"); I(f"s_add_u32 s25, s25, {WS_XN}")
    for i in range(8):
        I(f"s_waitcnt vmcnt({28 if opt.get('touch', 1) else 8})")
        unpack(A, 32 + 4*i, 12, 4)
        ln_row(A, 12, 64 + 4*i, 20)
        I(f"buffer_store_dwordx4 {vr(64+4*i,4)}, v{wL16}, {WSS}, s{24 if i < 4 else 25} offen offset:{(i&3)*1024} sc1")
    I("s_waitcnt vmcnt(0)")
    I("s_barrier")
    signal_add(A, DBG, D_PINIT, 1, 10, 11)
    if TRACE[0]: I("v_writelane_b32 v187, s64, 0")
    TS(A, 187, 1)

def w256_addr(A, vd, vt):
    I = A.I
    I(f"s_lshl_b32 s24, s{sWV}, 2")
    I(f"v_add_u32 v{vd}, s24, v{wG}")
    I(f"v_lshlrev_b32 v{vd}, 13, v{vd}")
    I(f"s_lshr_b32 s24, s{sWV}, 1"); I("s_lshl_b32 s24, s24, 3")
    I(f"v_lshlrev_b32 v{vt}, 1, v{wG}")
    I(f"v_or_b32 v{vt}, s24, v{vt}")
    I(f"v_xor_b32 v{vt}, v{wC}, v{vt}")
    I(f"v_lshl_add_u32 v{vd}, v{vt}, 4, v{vd}")
    I(f"s_lshl_b32 s24, s{sH}, 8")
    I(f"v_add_u32 v{vd}, s24, v{vd}")
    I(f"v_and_b32 v{vt}, 1, v{wG}")
    I(f"v_lshl_add_u32 v{vt}, v{vt}, 2, v{wR}")
    I(f"s_lshl_b32 s24, s{sWV}, 1")
    I(f"v_xor_b32 v{vt}, s24, v{vt}")
    I(f"v_lshlrev_b32 v{vt}, 5, v{vt}")
    I(f"v_lshl_add_u32 v{vt}, v{wCP}, 3, v{vt}")
    I(f"v_lshl_add_u32 v{vt+1}, v{wG}, 3, v{wR}")
    I(f"v_lshl_add_u32 v{vt}, v{vt+1}, 8, v{vt}")
    I(f"v_xor_b32 v{vt+1}, 32, v{vt}")
def w256_dma(A, vd, half, thr=0):
    I = A.I
    I(f"s_lshl_b32 s24, s{sWV}, 10")
    for i in range(16):
        I(f"s_add_u32 m0, s24, {half*65536 + i*4096}")
        I(f"s_mov_b32 s25, {(256*half + 16*i)*8192}")
        if thr: I(f"s_waitcnt vmcnt({thr - 1})")
        I(f"buffer_load_dwordx4 v{vd}, {SW}, s25 offen lds")
def w256_read(A, vt, half, abase):
    for eps in range(2):
        for k in range(8):
            for u in range(2):
                A.I(f"ds_read_b64_tr_b16 {ar(abase + (eps*16 + 8*half + k)*4 + 2*u, 2)}, v{vt+eps} offset:{(32*k + 4*u)*256}")
    A.I("s_waitcnt lgkmcnt(0)")
    A.I(f"v_xor_b32 v{vt}, 0x10000, v{vt}"); A.I(f"v_xor_b32 v{vt+1}, 0x10000, v{vt+1}")

def rows_addr(A, vd, va, perm=False):
    I = A.I
    if not perm:
        I(f"v_xor_b32 v{va}, v{wG}, v{wC}")
        I(f"v_lshlrev_b32 v{va}, 4, v{va}")
        I(f"v_lshl_add_u32 v{va}, v{wC}, 10, v{va}")
    for k in range(1, 4): I(f"v_xor_b32 v{va+k}, {k<<6}, v{va}")
def rows_dma(A, vtmp, sbase, lds, ld="sc1"):
    I = A.I
    I(f"s_lshl_b32 s24, s{sWV}, 13")
    I(f"s_add_u32 s25, s24, s{sbase}")
    I(f"s_and_b32 s26, s{sWV}, 1"); I("s_lshl_b32 s26, s26, 7")
    for i in range(8):
        I(f"s_add_u32 s27, s26, {i<<4}")
        I(f"v_xor_b32 v{vtmp}, s27, v{wL16}")
        if isinstance(lds, int): I(f"s_add_u32 m0, s24, {lds + i*1024}")
        else:
            I(f"s_add_u32 s27, s24, {i*1024}"); I(f"s_add_u32 m0, s27, {lds}")
        I(f"buffer_load_dwordx4 v{vtmp}, {WSS}, s25 offen {ld} lds")
        I("s_add_u32 s25, s25, 1024")

def rows_dma_prep(A, sbase, lds):
    I = A.I
    I(f"s_lshl_b32 s{sD0}, s{sWV}, 13")
    I(f"s_add_u32 s{sD1}, s{sD0}, s{sbase}")
    I(f"s_add_u32 s{sD0}, s{sD0}, {lds}")
    I(f"s_and_b32 s{sD2}, s{sWV}, 1"); I(f"s_lshl_b32 s{sD2}, s{sD2}, 7")
def rows_dma_items(vtmp):
    return [([f"s_mov_b32 m0, s{sD0}", f"s_add_u32 s{sD0}, s{sD0}, 1024", f"v_xor_b32 v{vtmp}, s{sD2}, v{wL16}"],
             [f"buffer_load_dwordx4 v{vtmp}, {WSS}, s{sD1} offen sc1 lds", f"s_add_u32 s{sD1}, s{sD1}, 1024", f"s_add_u32 s{sD2}, s{sD2}, 16"]) for i in range(8)]

def h_phase1(A, opt={}):
    I = A.I
    vD, vTt, vXA, vTm = 8, 10, 12, 16
    if TRACE[0]: I("v_writelane_b32 v188, s64, 0")
    TS(A, 188, 1)
    if opt.get("touch", 1): touch_weights(A, 100)
    A.label("L_h1")
    w256_addr(A, vD, vTt)
    if opt.get("hold"):
        I(f"s_cmp_lt_u32 s{sG}, {opt['hold'][0]}"); I("s_cbranch_scc1 H1_nohold")
        wait_ge(A, DBG, D_PROG, 32, 20, 21, 24, sleep=16)
        A.label("H1_nohold")
    srd(A, 24, 4 << 20)
    thr = opt.get('thr', 0)
    w256_dma(A, vD, 0, thr); w256_dma(A, vD, 1, thr)
    rows_addr(A, None, vXA)
    I(f"s_sub_u32 s{sSEG}, s{sG}, 1")
    for ci in range(4):
        I(f"s_waitcnt vmcnt({16 if ci < 3 else 0})")
        I("s_barrier")
        w256_read(A, vTt, ci & 1, 128 * (ci >> 1))
        I("s_barrier")
        if ci == 0: srd(A, 32, 4 << 20)
        if ci < 2: w256_dma(A, vD, ci, thr)
        if ci == 2:
            wait_ge(A, DBG, D_PINIT, 64, 20, 21, 24)
            I(f"s_lshl_b32 s{sA0}, s{sSEG}, 15"); I(f"s_add_u32 s{sA0}, s{sA0}, {WS_XN}")
            I(f"s_mov_b32 s{sXB}, 0")
            rows_dma(A, vTm, sA0, 0)
    TS(A, 188, 2)
    TS(A, 188, 3)
    I(f"s_mov_b32 s{sCNT}, 0")
    for i in range(4): I(f"v_mov_b32 v{104+i}, -1")
    I(f"s_mul_i32 s37, s{sH}, 65"); I(f"s_add_u32 s37, s37, s{sSEG}"); I("s_lshl_b32 s37, s37, 12"); I(f"s_lshl_b32 s24, s{sWV}, 10")
    I("s_add_u32 s37, s37, s24"); I(f"s_add_u32 s37, s37, {WS_KM}")
    A.label("H1_loop")
    I(f"s_cmp_gt_u32 s{sCNT}, 1"); I("s_cbranch_scc1 H1_lag")
    I("s_waitcnt vmcnt(0)")
    A.label("H1_lag")
    I("s_waitcnt vmcnt(5)")
    I("s_barrier")
    I(f"s_lshl_b32 s28, s{sH}, 7"); I(f"s_lshl_b32 s29, s{sG}, 2"); I("s_add_u32 s28, s28, s29"); I(f"s_add_u32 s28, s28, {F_KV - 4}")
    I(f"s_sub_u32 s29, s{sCNT}, 1"); I(f"s_cmp_gt_u32 s{sCNT}, 1"); I(f"s_cselect_b32 s29, s29, s{sCNT}")
    signal_store(A, "s28", "s29", 20, 21)
    if TRACE[0]: I(f"s_add_u32 s61, s{sCNT}, 8")
    TS(A, 188, "s61")
    I(f"s_add_u32 s{sA0}, s{sA0}, {NG1 << 15}")
    I(f"s_xor_b32 s{sXB}, s{sXB}, 32768")
    I(f"s_cmp_ge_u32 s{sSEG}, {64 - NG1}"); I(f"s_cselect_b32 s{sA0}, {OOB}, s{sA0}")
    rows_dma_prep(A, sA0, f"s{sXB}")
    items = rows_dma_items(vTm)
    XF = 24; AC = 56
    def rd(ks): return [f"ds_read_b128 {vr(XF + 8*(ks&3) + 4*t,4)}, v{vXA + (ks&3)} offset:{(ks>>2)*256 + t*16384}" for t in range(2)]
    for ks in range(3):
        for x in rd(ks): I(x)
    for ks in range(16):
        I(f"s_waitcnt lgkmcnt({4 if ks < 14 else (2 if ks == 14 else 0)})")
        ms = []
        for eps in range(2):
            for t in range(2):
                xk = vr(XF + 8*(ks&3) + 4*t, 4)
                dk = AC + 8*t + 4*eps; dv = AC + 16 + 8*eps + 4*t
                ms.append(f"v_mfma_f32_16x16x32_bf16 {vr(dk,4)}, {ar((eps*16+ks)*4,4)}, {xk}, {'0' if ks == 0 else vr(dk,4)}")
                ms.append(f"v_mfma_f32_16x16x32_bf16 {vr(dv,4)}, {xk}, {ar(128+(eps*16+ks)*4,4)}, {'0' if ks == 0 else vr(dv,4)}")
        fl = [[x] for x in rd(ks + 3)] if ks + 3 < 16 else [[], []]
        if ks < 8: fl += [[], items[ks][0], items[ks][1]]
        slots(A, ms, fl)
    for k in range(4): I(f"v_xor_b32 v{vXA+k}, 0x8000, v{vXA+k}")
    I(f"s_lshl_b32 s24, s{sSEG}, 19"); I(f"s_lshl_b32 s25, s{sH}, 14"); I("s_add_u32 s24, s24, s25"); I(f"s_add_u32 s24, s24, {WS_KV}")
    I(f"s_lshl_b32 s25, s{sWV}, 10"); I("s_add_u32 s26, s24, s25"); I("s_add_u32 s27, s26, 4096")
    I("s_add_u32 s25, s25, s26"); I("s_add_u32 s25, s25, 8192")
    for j in range(4):
        for i in range(4): I(cv(88 + 4*j + i, AC + 8*j + 2*i))
    I(f"buffer_store_dwordx4 v[88:91], v{wL16}, {WSS}, s26 offen sc1")
    I(f"buffer_store_dwordx4 v[92:95], v{wL16}, {WSS}, s27 offen sc1")
    I(f"buffer_store_dwordx4 v[96:99], v{wL16}, {WSS}, s25 offen sc1")
    I(f"buffer_store_dwordx4 v[100:103], v{wL16}, {WSS}, s25 offen offset:1024 sc1")
    I(f"buffer_store_dwordx4 v[104:107], v{wL16}, {WSS}, s37 offen sc1")
    I(f"s_add_u32 s37, s37, {NG1*4096}")
    I(f"s_add_u32 s{sCNT}, s{sCNT}, 1")
    I(f"s_add_u32 s{sSEG}, s{sSEG}, {NG1}")
    I(f"s_cmp_lt_u32 s{sSEG}, 64"); I("s_cbranch_scc1 H1_loop")
    I("s_waitcnt vmcnt(0)")
    I("s_barrier")
    signal_store(A, "s28", 100, 20, 21)
    TS(A, 188, 4)

def chain_role(A, opt):
    I = A.I
    if TRACE[0]: I("s_memrealtime s[66:67]")
    def hooks(A, what, ci):
        if TRACE[0] and what == "landed":
            I("s_memrealtime s[62:63]"); I("s_waitcnt lgkmcnt(0)"); I(f"s_mov_b32 s{92+ci}, s62")
        if what == "first":
            I("v_lshlrev_b32 v28, 4, v0")
            for i in range(4): I(f"v_mov_b32 v{32+i}, -1")
            I(f"s_lshl_b32 s24, s{sH}, 13"); I(f"s_add_u32 s24, s24, {WS_HA}")
            for sl in range(2):
                for hf in range(2):
                    I(f"s_add_u32 s25, s24, {sl*(256<<10) + hf*4096}")
                    I(f"buffer_store_dwordx4 v[32:35], v28, {WSS}, s25 offen sc1")
            I("v_lshlrev_b32 v28, 2, v0")
            I(f"s_lshl_b32 s24, s{sH}, 10"); I(f"s_add_u32 s24, s24, {WS_HB}")
            I(f"buffer_store_dword v32, v28, {WSS}, s24 offen sc1")
        if what == "landed" and ci == 0:
            I("s_lshl_b32 s41, s40, 16"); I("s_add_u32 s41, s41, 1")
            signal_add(A, DBG, D_CHAIN, "s41", vT, vT + 1)
        if what == "landed" and ci == 1 and opt.get("tlb", 0):
            I(f"v_subrev_u32 v28, {LW}, v{vL16}"); I("v_lshlrev_b32 v28, 15, v28")
            I(f"s_add_u32 s43, s{sKV}, {LW}")
            I(f"buffer_load_dword v29, v28, {WSS}, s43 offen sc1")
        if what == "landed" and opt.get("hold") and ci == opt["hold"][1]:
            signal_add(A, DBG, D_PROG, 1, vT, vT + 1)
        if what == "issued" and ci == 6:
            I(f"v_mov_b32 v28, {D_PINIT}")
            I(f"buffer_load_dwordx2 {vr(vT,2)}, v28, {DBG}, 0 offen sc1")
        if what == "landed" and ci == 6:
            I(f"v_readfirstlane_b32 s43, v{vT}"); I(f"v_readfirstlane_b32 s42, v{vT+1}")
            I("s_cmp_lt_u32 s43, 64"); I("s_cbranch_scc1 L_ch_slow")
            I("s_and_b32 s43, s42, 0xffff"); I("s_cmp_ge_u32 s43, 32"); I("s_cbranch_scc1 L_ch_fast")
            A.label("L_ch_slow")
            wait_ge(A, DBG, D_PINIT, 64, vT, vT + 1, 42, barrier=False, allwaves=True, sleep=4)
            wait_ge(A, DBG, D_CHAIN, 32, vT, vT + 1, 42, mask=0xffff, barrier=False, allwaves=True, sleep=4)
            A.label("L_ch_fast")
            I(f"s_add_u32 m0, s{sM0A}, 8192")
            for sl in range(2):
                I(f"s_add_u32 s43, s{sRC}, {WS_HA + sl*(256<<10)}")
                for i in range(2): I(f"buffer_load_dwordx4 v{vMW}, {WSS}, s43 offen offset:{i*1024} sc1 lds")
            I(f"s_lshl_b32 s43, s{sH}, 10"); I(f"s_add_u32 s43, s43, {WS_HB - LW}")
            I(f"buffer_load_dwordx4 v{vL16}, {WSS}, s43 offen sc1 lds")
            kv_flag_load(A)
        if what == "landed" and ci == 7:
            if TRACE[0]: I("s_memrealtime s[66:67]"); I("s_waitcnt lgkmcnt(0)")
            kv_wait(A, "CI", 0, preloaded=True)
            for x in kv_dma(A, "sc1"): I(x)
    chain_setup(A, "", hooks)
    if TRACE[0]: I("s_memrealtime s[68:69]"); I("s_waitcnt lgkmcnt(0)")
    if TRACE[0]: I("s_memrealtime s[70:71]"); I("s_memtime s[80:81]"); I("s_waitcnt lgkmcnt(0)")
    I("s_lshr_b32 s42, s42, 16")
    I("s_cmp_lg_u32 s42, 0")
    I("s_cbranch_scc1 L_chain_global")
    o = dict(opt); o["mega"] = 1
    def stamp(A, i):
        if i == 6:
            l = A.newlabel("st")
            tsd = opt.get("tsd", 8)
            if tsd == 8: A.I(f"s_and_b32 s60, s{sSTEP}, 7"); A.I("s_cmp_eq_u32 s60, 1"); A.I(f"s_cbranch_scc0 {l}")
            A.I("s_memrealtime s[62:63]"); A.I("s_memtime s[60:61]"); A.I("s_waitcnt lgkmcnt(0)")
            for k in range(8):
                A.I(f"s_cmp_eq_u32 s{sSTEP}, {tsd*k+1+opt.get('ts0',0)}"); A.I(f"s_cselect_b32 s{72+k}, s62, s{72+k}"); A.I(f"s_cselect_b32 s{84+k}, s60, s{84+k}")
            A.label(l)
    chain_loop(A, "", "CL", stamp if TRACE[0] else None, "sc1", o)
    I("s_branch L_chain_end")
    A.label("L_chain_global")
    chain_loop(A, "sc1", "CG", None, "sc1", o)
    A.label("L_chain_end")
    wait_ge(A, DBG, D_P2, 64, vT, vT + 1, 24, sleep=4, barrier=False, allwaves=True)
    I("s_mov_b32 s38, 0")
    if TRACE[0]:
        for i, r in enumerate([64, 66, 68, 70]): I(f"v_writelane_b32 v20, s{r}, {i}")
        TS(A, 20, 4)
        I("s_memtime s[62:63]"); I("s_waitcnt lgkmcnt(0)"); I("s_sub_u32 s62, s62, s80"); I("v_writelane_b32 v20, s62, 7")
        I(f"v_writelane_b32 v20, s{sSPIN}, 5"); I(f"v_writelane_b32 v20, s{sSPA}, 6")
        for k in range(8): I(f"v_writelane_b32 v20, s{72+k}, {8+k}")
        for k in range(8): I(f"v_writelane_b32 v20, s{84+k}, {16+k}")
        for k in range(8): I(f"v_writelane_b32 v20, s{92+k}, {24+k}")
        TDUMP(A, [20], 21, (0, 4, 0, 5))
```

```python
from work import *

def w1k_addr(A, vd, vt, sbase_bytes):
    I = A.I
    I(f"s_lshl_b32 s24, s{sWV}, 6")
    I(f"v_xor_b32 v{vd}, s24, v{wL16}")
    I(f"s_lshl_b32 s24, s{sWV}, 10")
    if sbase_bytes: I(f"s_add_u32 s24, s24, {sbase_bytes}")
    I(f"v_add_u32 v{vd}, s24, v{vd}")
    I(f"v_lshl_add_u32 v{vt}, v{wG}, 2, v{wR}")
    I(f"v_lshlrev_b32 v{vt}, 10, v{vt}")
    I(f"v_lshl_add_u32 v{vt}, v{wR}, 6, v{vt}")
    I(f"v_lshl_add_u32 v{vt}, v{wCP}, 4, v{vt}")
    I(f"s_lshl_b32 s24, s{sWV}, 8")
    I(f"v_add_u32 v{vt}, s24, v{vt}")
    for p in range(1, 4): I(f"v_xor_b32 v{vt+p}, {p<<6}, v{vt}")
def w1k_dma(A, vd, row0, nrows, lds):
    I = A.I
    I(f"s_lshl_b32 s24, s{sWV}, 10")
    for i in range(nrows // 4):
        I(f"s_add_u32 m0, s24, {lds + i*4096}")
        I(f"s_mov_b32 s25, {(row0 + 4*i)*1024}")
        I(f"buffer_load_dwordx4 v{vd}, {SW}, s25 offen lds")
def w1k_rd(vt, t8, ksl, u, dst):
    return f"ds_read_b64_tr_b16 {dst}, v{vt + (t8>>1)} offset:{(32*ksl + 16*u)*1024 + (t8&1)*8}"

L_XB, L_HB, L_PT, L_QX, L_OX, L_KM, L_RED, L_KV2 = 0, 32768, 65536, 102400, 110592, 118784, 122880, 131072
PSTR = 1040
sMK = 44
sTILE = 30
L_U = 98304
sJ6, sQ6 = 18, 19
def wout_preload(A, t, rounds=((0, 8), (8, 16), (16, 22)), sq=None):
    I = A.I
    sq = sQ6 if sq is None else sq
    I("s_load_dwordx2 s[40:41], s[0:1], 88"); I(f"s_mov_b32 s42, {688*1024}"); I("s_mov_b32 s43, 0x20000")
    I(f"v_lshrrev_b32 v{t}, 6, v{wL16}"); I(f"v_lshlrev_b32 v{t}, 10, v{t}")
    I(f"v_and_b32 v{t+1}, 48, v{wL16}"); I(f"v_add_u32 v{t}, v{t}, v{t+1}")
    I(f"s_lshl_b32 s24, s{sq}, 8"); I(f"s_lshl_b32 s25, s{sWV}, 6"); I("s_add_u32 s25, s25, s24"); I(f"s_add_u32 s25, s25, {rounds[0][0]*32768}")
    I(f"s_mul_i32 s24, s{sWV}, 24576")
    I(f"v_add_u32 v{t+1}, s24, v{wL16}")
    I("s_waitcnt lgkmcnt(0)")
    kss = [k for lo, hi in rounds for k in range(lo, hi)]
    D = 12
    def dma(n):
        for i in range(2):
            I(f"s_add_u32 m0, s24, {(n % D)*2048 + i*1024}")
            I("s_nop 0")
            I(f"buffer_load_dwordx4 v{t}, s[40:43], s25 offen lds")
            I("s_add_u32 s25, s25, 16384")
    for n in range(min(D - 1, len(kss))): dma(n)
    for n, ks in enumerate(kss):
        I(f"s_waitcnt vmcnt({2*(min(n + D - 1, len(kss)) - n - 1)}) lgkmcnt(0)")
        for par in range(2):
            for u in range(2):
                I(f"ds_read_b64_tr_b16 {ar((ks*2 + par)*4 + 2*u, 2)}, v{t+1} offset:{(n % D)*2048 + u*1024 + par*8}")
        if n + D - 1 < len(kss): dma(n + D - 1)
    I("s_waitcnt lgkmcnt(0)")

def helper_ids(A, sj, sq):
    I = A.I
    I(f"s_lshl_b32 s24, s{sG}, 5"); I(f"s_add_u32 s24, s24, s{sH}")
    I(f"s_mul_i32 s{sj}, s24, 171"); I(f"s_lshr_b32 s{sj}, s{sj}, 9"); I(f"s_mul_i32 s25, s{sj}, 3"); I(f"s_sub_u32 s{sq}, s24, s25"); I(f"s_add_u32 s{sq}, s{sq}, 1")
sPRE = 38

def h_phase2(A, opt):
    I = A.I
    vD, vTt, vXA, vHA, vTm = 8, 10, 12, 16, 24
    vKW, vTR2, vPW, vPR, vZ = 25, 26, 27, 28, 30
    WIN = 192
    w256_addr(A, vD, vTt)
    srd(A, 16, 4 << 20)
    w256_dma(A, vD, 0); w256_dma(A, vD, 1)
    I(f"s_lshl_b32 s28, s{sH}, 17")
    w1k_addr(A, 40, 44, "s28")
    for ci in range(4):
        I(f"s_waitcnt vmcnt({16 if ci < 3 else 0})")
        I("s_barrier")
        if ci < 2: w256_read(A, vTt, ci, 0)
        else:
            for t8 in range(8):
                for ksl in range(2):
                    for u in range(2): I(w1k_rd(44, t8, ksl, u, ar(128 + (t8*4 + 2*(ci-2) + ksl)*4 + 2*u, 2)))
            I("s_waitcnt lgkmcnt(0)")
            for p in range(4): I(f"v_xor_b32 v{44+p}, 0x10000, v{44+p}")
        I("s_barrier")
        if ci == 0: srd(A, 40, 4 << 20)
        if ci < 2: w1k_dma(A, 40, 64*ci, 64, 65536*ci)
    srd(A, 64, 512*1376*2)
    I(f"s_lshl_b32 s{sTILE}, s{sWV}, 5"); I(f"s_add_u32 s{sTILE}, s{sTILE}, s{sH}")
    I(f"s_cmp_ge_u32 s{sTILE}, 86"); I("s_cbranch_scc1 H2_nowin")
    I(f"v_lshrrev_b32 v40, 1, v{wLN}"); I("v_mul_u32_u24 v40, 2752, v40")
    I(f"v_and_b32 v41, 1, v{wLN}"); I("v_lshl_add_u32 v40, v41, 4, v40")
    I(f"s_lshl_b32 s25, s{sTILE}, 5"); I(f"s_lshl_b32 s24, s{sWV}, 14")
    for i in range(16):
        I(f"s_add_u32 m0, s24, {i*1024}")
        I("s_nop 0")
        I(f"buffer_load_dwordx4 v40, {SW}, s25 offen lds")
        I(f"s_add_u32 s25, s25, {32*2752}")
    I(f"v_lshl_add_u32 v41, v{wG}, 3, v{wR}"); I("v_lshlrev_b32 v41, 5, v41"); I(f"v_lshl_add_u32 v41, v{wCP}, 3, v41"); I("v_add_u32 v41, s24, v41")
    I("s_waitcnt vmcnt(0)")
    for ks in range(16):
        for u in range(2): I(f"ds_read_b64_tr_b16 {vr(WIN + 4*ks + 2*u, 2)}, v41 offset:{ks*1024 + u*128}")
    I("s_waitcnt lgkmcnt(0)")
    A.label("H2_nowin")
    srd(A, 0, 2 << 20)
    for _ in range(opt.get("hdelay", 0)): I("s_sleep 32")
    group_mode(A, 40, 41)
    I(f"v_lshlrev_b32 v41, 2, v{wLN}"); I(f"s_lshl_b32 s28, s{sH}, 7"); I(f"s_add_u32 s28, s28, {F_KV}")
    A.label("H2_kvw")
    I(f"buffer_load_dword v40, v41, {WSS}, s28 offen sc1")
    I(f"s_add_u32 s{sSPIN}, s{sSPIN}, 1"); I(f"s_cmp_gt_u32 s{sSPIN}, {SPIN_MAX}")
    I("s_waitcnt vmcnt(0)")
    I("s_cbranch_scc1 H2_kvd")
    I("v_cmp_gt_u32 vcc, 64, v40"); I("s_nop 0"); I(f"s_and_b32 s24, vcc_lo, {(1 << NG1) - 1}")
    I("s_cbranch_scc1 H2_kvw")
    A.label("H2_kvd")
    wait_ge(A, DBG, D_P2, 64, 40, 41, 24, sleep=4, barrier=False, allwaves=True)
    rows_addr(A, None, vXA)
    I(f"v_lshl_add_u32 v40, v{wR}, 3, v{wCP}")
    I(f"s_cmp_lt_u32 s{sTILE}, 43"); I("s_cselect_b64 vcc, -1, 0"); I("s_cselect_b32 s24, 16, 4")
    I(f"v_cndmask_b32 v40, v40, v{wC}, vcc")
    for t in range(2):
        if t: I("v_add_u32 v40, s24, v40")
        I("v_and_b32 v41, 15, v40"); I(f"v_xor_b32 v41, v41, v{wG}"); I("v_lshlrev_b32 v41, 4, v41")
        I("v_lshl_add_u32 v41, v40, 10, v41"); I(f"v_add_u32 v{vHA+4*t}, {L_HB}, v41")
        for k in range(1, 4): I(f"v_xor_b32 v{vHA+4*t+k}, {k<<6}, v{vHA+4*t}")
    I(f"v_lshlrev_b32 v{vKW}, 5, v{wC}"); I(f"v_lshl_add_u32 v{vKW}, v{wG}, 3, v{vKW}")
    I(f"s_lshl_b32 s24, s{sWV}, 10"); I(f"s_add_u32 s24, s24, {L_KM}"); I(f"v_add_u32 v{vKW}, s24, v{vKW}")
    I(f"v_lshlrev_b32 v{vTR2}, 3, v{wLN}"); I(f"v_add_u32 v{vTR2}, {L_KM}, v{vTR2}")
    QS = 272
    I(f"s_mul_i32 s24, s{sWV}, {32*QS}"); I(f"s_add_u32 s24, s24, {L_PT}")
    I(f"v_mul_u32_u24 v{vPW}, {QS}, v{wC}"); I(f"v_lshl_add_u32 v{vPW}, v{wG}, 4, v{vPW}"); I(f"v_add_u32 v{vPW}, s24, v{vPW}")
    I(f"v_mul_u32_u24 v{vPR}, {QS}, v{wG}"); I(f"v_lshl_add_u32 v{vPR}, v{wC}, 4, v{vPR}"); I(f"v_add_u32 v{vPR}, s24, v{vPR}")
    vPG, vRL, vRO, vKVR, vSEL4 = 29, 38, 39, 9, 184
    I(f"s_lshl_b32 s24, s{sWV}, 8")
    I(f"v_lshlrev_b32 v40, 4, v{wC}"); I("v_add_u32 v40, s24, v40")
    I(f"v_lshl_add_u32 v{vPG}, v{wG}, 15, v40")
    I(f"v_lshl_add_u32 v{vRL}, v{wG}, 10, v40")
    I(f"v_lshl_add_u32 v{vRO}, v{wG}, 2, v40")
    I(f"v_add_u32 v{vKVR}, {L_KV2}, v{wL16}")
    I(f"s_lshr_b32 s24, s{sWV}, 1"); I("s_lshl_b32 s24, s24, 12"); I(f"v_add_u32 v8, s24, v{vKVR}")
    I(f"v_and_b32 v40, 1, v{wC}"); I("v_lshlrev_b32 v40, 4, v40"); I("v_mov_b32 v41, 0x3f80"); I("v_lshlrev_b32 v41, v40, v41")
    for i in range(4):
        I(f"v_cmp_eq_u32 vcc, {i}, v{wR}"); I(f"v_cndmask_b32 v{vSEL4+i}, 0, v41, vcc")
    vQW, vQR, vOWr, vL64 = 34, 35, 36, 37
    I(f"v_add_u32 v{vL64}, 65536, v{wL16}")
    I(f"s_lshl_b32 s24, s{sWV}, 10"); I(f"v_add_u32 v{vQW}, s24, v{vL64}")
    I(f"s_and_b32 s24, s{sWV}, 1"); I("s_lshl_b32 s24, s24, 12"); I(f"v_add_u32 v{vQR}, s24, v{vL64}")
    I(f"s_lshr_b32 s25, s{sWV}, 1"); I("s_lshl_b32 s25, s25, 11"); I(f"v_add_u32 v{vOWr}, s25, v{vQR}")
    I(f"s_and_b32 s24, s{sWV}, 1"); I("s_lshl_b32 s24, s24, 4"); I(f"v_add_u32 v40, s24, v{wC}")
    I(f"v_lshlrev_b32 v41, 2, v{wG}"); I("v_sub_u32 v40, v40, v41")
    for j in range(8): I(f"v_cmp_le_i32 s[{sMK+2*j}:{sMK+2*j+1}], {16*(j>>2) + (j&3)}, v40")
    for i in range(4): I(f"v_mov_b32 v{vZ+i}, 0")
    I(f"s_sub_u32 s{sSEG}, s{sG}, 1")
    sGR = 33
    I(f"s_mov_b32 s{sPRE}, 0")
    I(f"s_lshl_b32 s{sGR}, s{sG}, 5"); I(f"s_add_u32 s{sGR}, s{sGR}, s{sH}")
    I("s_barrier")
    XF = 40; KF = 72; VF = 104; QF = 120; SS = 136; KMF = 148; T0 = 164; XR = 10
    TS(A, 188, 5)
    if TRACE[0]: I("s_mov_b32 s60, 0")
    def TH(k):
        if not TRACE[0]: return
        I(f"s_add_u32 s61, s60, {k & 3}"); TS(A, 189 + (k >> 2), "s61")
    def issue(tag, segoff):
        I(f"s_add_u32 s26, s{sSEG}, {segoff}")
        I("s_lshl_b32 s25, s26, 15"); I(f"s_add_u32 s25, s25, {WS_XN}")
        I("s_mov_b32 s24, 0")
        A.label(f"H2_is{tag}")
        I("s_and_b32 s27, s24, 15"); I("s_lshl_b32 s27, s27, 4")
        I(f"v_xor_b32 v{vTm}, s27, v{wL16}")
        I("s_lshl_b32 m0, s24, 10")
        I("s_add_u32 s24, s24, 1")
        I(f"buffer_load_dwordx4 v{vTm}, {WSS}, s25 offen sc1 lds")
        I("s_add_u32 s25, s25, 1024")
        I("s_cmp_lt_u32 s24, 32"); I(f"s_cbranch_scc1 H2_is{tag}")
        I("s_lshl_b32 s25, s26, 19"); I(f"s_lshl_b32 s27, s{sH}, 14"); I("s_add_u32 s25, s25, s27"); I(f"s_add_u32 s25, s25, {WS_KV}")
        for q in range(4):
            I(f"s_mov_b32 m0, {L_KV2 + q*4096}")
            I("s_nop 0")
            for i in range(4): I(f"buffer_load_dwordx4 v{wL16}, {WSS}, s25 offen offset:{i*1024} sc1 lds")
            I("s_add_u32 s25, s25, 4096")
    I(f"s_cmp_lg_u32 s{sWV}, 3"); I("s_cbranch_scc1 H2_loop")
    issue("a", 0)
    I("s_waitcnt vmcnt(0)")
    A.label("H2_loop")
    TH(0)
    I(f"s_lshl_b32 s{sA1}, s{sSEG}, 5"); I(f"s_add_u32 s{sA1}, s{sA1}, s{sH}")
    I(f"s_lshl_b32 s24, s{sA1}, 10")
    I(f"buffer_load_dword v{XR}, v{vRO}, {SW}, s24 offen")
    I("s_barrier")
    AC = T0
    def rd(ks): return [f"ds_read_b128 {vr(XF + 8*(ks&3) + 4*t,4)}, v{vXA + (ks&3)} offset:{L_XB + (ks>>2)*256 + t*16384}" for t in range(2)]
    for ks in range(3):
        for x in rd(ks): I(x)
    for ks in range(16):
        I(f"s_waitcnt lgkmcnt({4 if ks < 14 else (2 if ks == 14 else 0)})")
        ms = []
        for eps in range(2):
            for t in range(2):
                dk = AC + 8*t + 4*eps
                ms.append(f"v_mfma_f32_16x16x32_bf16 {vr(dk,4)}, {ar((eps*16+ks)*4,4)}, {vr(XF + 8*(ks&3) + 4*t, 4)}, {'0' if ks == 0 else vr(dk,4)}")
        slots(A, ms, [[x] for x in rd(ks + 3)] if ks + 3 < 16 else [])
    for i in range(8): I(f"ds_read_b128 {vr(KF+4*i,4)}, v{vKVR} offset:{i*1024}")
    for i in range(4): I(f"ds_read_b128 {vr(VF+4*i,4)}, v8 offset:{8192 + i*1024}")
    for t in range(2):
        for i in range(4): I(cv(XF + 4*t + i, AC + 8*t + 2*i))
        I(f"ds_write_b128 v{vQW}, {vr(XF+4*t,4)} offset:{L_QX - 65536 + t*4096}")
    I("s_waitcnt lgkmcnt(0)")
    I("s_barrier")
    for sg in range(4): I(f"ds_read_b128 {vr(QF+4*sg,4)}, v{vQR} offset:{L_QX - 65536 + sg*1024}")
    I("s_waitcnt lgkmcnt(0)")
    for tk in range(2):
        for sg in range(4): I(mf32(SS + 4 + 4*tk, KF + 16*tk + 4*sg, QF + 4*sg, "0" if sg == 0 else vr(SS + 4 + 4*tk, 4)))
    regs = [SS + 4 + j for j in range(8)] + [SS, SS + 1]
    tm = T0 + 8
    def rb2(a, b, t):
        I(f"v_cvt_pk_bf16_f32 v{t}, v{a}, v{b}"); I(f"v_lshlrev_b32 v{a}, 16, v{t}"); I(f"v_and_b32 v{b}, 0xffff0000, v{t}")
    def scal(i):
        a, b = regs[i], regs[i+1]
        rb2(a, b, tm + 2)
        I(f"v_mul_f32 v{a}, {hex(f2u(128 ** -0.5))}, v{a}"); I(f"v_mul_f32 v{b}, {hex(f2u(128 ** -0.5))}, v{b}")
        rb2(a, b, tm + 2)
    I(f"v_mov_b32 v{tm+1}, {hex(f2u(-1e9))}")
    for i in range(0, 8, 2): scal(i)
    for j in range(8): I(f"v_cndmask_b32 v{regs[j]}, v{tm+1}, v{regs[j]}, s[{sMK+2*j}:{sMK+2*j+1}]")
    I(f"v_max3_f32 v{tm}, v{regs[0]}, v{regs[1]}, v{regs[2]}")
    for i in range(3, 7, 2): I(f"v_max3_f32 v{tm}, v{tm}, v{regs[i]}, v{regs[i+1]}")
    I(f"v_max_f32 v{tm}, v{tm}, v{regs[7]}")
    I(f"s_mul_i32 s26, s{sH}, 65"); I(f"s_add_u32 s26, s26, s{sSEG}"); I("s_lshl_b32 s26, s26, 12"); I(f"s_add_u32 s26, s26, {WS_KM}")
    I(f"s_lshl_b32 s27, s{sWV}, 10"); I("s_add_u32 s27, s27, s26")
    I(f"s_lshr_b32 s24, s{sWV}, 1"); I("s_lshl_b32 s24, s24, 11"); I("s_add_u32 s26, s26, s24")
    TH(1)
    VM = T0 + 4
    I("s_branch H2_kmp")
    A.label("H2_kmr")
    I(f"s_cmp_ge_u32 s{sSEG}, {opt.get('ktight', 63)}"); I("s_cbranch_scc1 H2_kmp")
    I(f"v_mov_b32 v{T0+3}, 0")
    A.label("H2_kmc")
    I(f"s_sleep {opt.get('ksleep', 8)}")
    I(f"buffer_load_dword v{T0+2}, v{T0+3}, {WSS}, s27 offen sc1")
    I(f"s_add_u32 s{sSPIN}, s{sSPIN}, 1")
    I(f"s_cmp_gt_u32 s{sSPIN}, {SPIN_MAX}")
    I("s_waitcnt vmcnt(0)")
    I("s_cbranch_scc1 H2_kmp")
    I(f"v_cmp_eq_u32 vcc, -1, v{T0+2}")
    I("s_cbranch_vccnz H2_kmc")
    A.label("H2_kmp")
    I(f"buffer_load_dwordx2 {vr(T0,2)}, v{wL16}, {WSS}, s27 offen sc1")
    I(f"buffer_load_dwordx2 {vr(VM,2)}, v{wL16}, {WSS}, s26 offen offset:8 sc1")
    I(f"buffer_load_dwordx2 {vr(VM+2,2)}, v{wL16}, {WSS}, s26 offen offset:1032 sc1")
    I(f"s_add_u32 s{sSPIN}, s{sSPIN}, 1")
    I(f"s_cmp_gt_u32 s{sSPIN}, {SPIN_MAX}")
    I("s_waitcnt vmcnt(0)")
    I("s_cbranch_scc1 H2_kmd")
    I(f"v_max3_u32 v{T0+2}, v{T0}, v{T0+1}, v{VM}"); I(f"v_max3_u32 v{T0+2}, v{T0+2}, v{VM+1}, v{VM+2}"); I(f"v_max_u32 v{T0+2}, v{T0+2}, v{VM+3}")
    I(f"v_cmp_eq_u32 vcc, -1, v{T0+2}")
    I("s_cbranch_vccnz H2_kmr")
    A.label("H2_kmd")
    TH(2)
    I(f"ds_write2st64_b32 v{vKW}, v{T0}, v{T0+1} offset0:0 offset1:2")
    I("s_waitcnt lgkmcnt(0)")
    I("s_barrier")
    for sg in range(4):
        for rho in range(2): I(f"ds_read_b64_tr_b16 {vr(KMF+4*sg+2*rho,2)}, v{vTR2} offset:{sg*1024 + rho*512}")
    I(f"s_add_u32 s26, s{sSEG}, {NG}")
    I(f"s_lshl_b32 s{sA0}, s26, 15"); I(f"s_add_u32 s{sA0}, s{sA0}, {WS_XN}")
    I("s_lshl_b32 s27, s26, 19"); I(f"s_lshl_b32 s25, s{sH}, 14"); I("s_add_u32 s27, s27, s25"); I(f"s_lshl_b32 s25, s{sWV}, 12"); I("s_add_u32 s27, s27, s25"); I(f"s_add_u32 s27, s27, {WS_KV}")
    I(f"s_add_u32 m0, s25, {L_KV2}")
    I("s_cmp_ge_u32 s26, 64"); I(f"s_cselect_b32 s{sA0}, {OOB}, s{sA0}"); I(f"s_cselect_b32 s27, {OOB}, s27")
    kvd = [f"buffer_load_dwordx4 v{wL16}, {WSS}, s27 offen offset:{i*1024} sc1 lds" for i in range(4)]
    for sg in range(4):
        I(f"s_waitcnt lgkmcnt({6-2*sg})")
        I(mf32(SS, KMF + 4*sg, QF + 4*sg, "0" if sg == 0 else vr(SS, 4)))
    I(kvd[0])
    scal(8)
    I(f"v_max3_f32 v{tm}, v{tm}, v{regs[8]}, v{regs[9]}")
    def xred(r, op):
        for sw in ("16", "32"):
            I(f"v_mov_b32 v{tm+2}, v{r}"); I(f"v_permlane{sw}_swap_b32 v{r}, v{tm+2}"); I(f"v_{op}_f32 v{r}, v{r}, v{tm+2}")
    xred(tm, "max")
    I(f"v_mov_b32 v{tm+2}, {hex(f2u(1.4426950408889634))}")
    prs = [SS + 4, SS + 6, SS + 8, SS + 10, SS]
    for r in prs: I(f"v_pk_add_f32 {vr(r,2)}, {vr(r,2)}, {vr(tm,2)} op_sel_hi:[1,0] neg_lo:[0,1] neg_hi:[0,1]")
    for r in prs: I(f"v_pk_mul_f32 {vr(r,2)}, {vr(r,2)}, {vr(tm+2,2)} op_sel_hi:[1,0]")
    for r in regs: I(f"v_exp_f32 v{r}, v{r}")
    I(f"v_pk_add_f32 {vr(tm,2)}, {vr(prs[0],2)}, {vr(prs[1],2)}")
    for r in prs[2:]: I(f"v_pk_add_f32 {vr(tm,2)}, {vr(tm,2)}, {vr(r,2)}")
    I(f"v_add_f32 v{tm}, v{tm}, v{tm+1}")
    xred(tm, "add")
    I(f"v_rcp_f32 v{tm}, v{tm}")
    for r in prs: I(f"v_pk_mul_f32 {vr(r,2)}, {vr(r,2)}, {vr(tm,2)} op_sel_hi:[1,0]")
    for i in range(4): I(cv(SS + 4 + i, SS + 4 + 2*i))
    I(cv(vZ, SS)); I(cv(vZ + 3, SS))
    OA = XF
    slots(A, [mf32(OA + 4*e, VF + 4*e, SS + 4, "0") for e in range(4)], [[kvd[1]]])
    slots(A, [mf16(OA + 4*e, VM + 2*(e>>1), vZ + 2*(e&1), vr(OA + 4*e, 4)) for e in range(4)], [[], [], [], [kvd[2]]])
    for i in range(2):
        for j in range(4): I(cv(QF + 4*i + j, OA + 8*i + 2*j))
        I(f"ds_write_b128 v{vOWr}, {vr(QF+4*i,4)} offset:{L_OX - 65536 + i*1024}")
    I(f"s_lshl_b32 s24, s{sG}, 20"); I(f"s_lshl_b32 s25, s{sH}, 10"); I("s_add_u32 s24, s24, s25"); I(f"s_add_u32 s24, s24, {WS_PART}")
    I("s_waitcnt lgkmcnt(0)")
    I("s_barrier")
    OF = XF
    for i in range(8): I(f"ds_read_b128 {vr(OF+4*i,4)}, v{vL64} offset:{L_OX - 65536 + i*1024}")
    I(kvd[3])
    rows_dma_prep(A, sA0, L_XB)
    items = rows_dma_items(vTm)
    PA = KF
    PB_ = SS
    def wo(t): return [f"v_mfma_f32_16x16x32_bf16 {vr(PA + 32*t + 4*t8,4)}, {ar(128 + (t8*4 + ks)*4,4)}, {vr(OF + 16*t + 4*ks,4)}, {'0' if ks == 0 else vr(PA + 32*t + 4*t8,4)}"
                       for t8 in range(8) for ks in range(4)]
    def pkw(t, p):
        d = PA + 32*t + 8*p
        return [cv(d + i, d + 2*i) for i in range(4)] + [f"ds_write_b128 v{vPW}, {vr(d,4)} offset:{t*16*QS + p*64}"]
    def rdb(t): return [f"ds_read_b128 {vr(PB_+4*i,4)}, v{vPR} offset:{(t*16 + 4*i)*QS}" for i in range(4)]
    def body(f):
        def st(i): return [f"buffer_store_dwordx4 {vr(PB_+4*i,4)}, v{vPG}, {WSS}, s24 offen {f}", "s_add_u32 s24, s24, 131072"]
        fl = [[] for _ in range(64)]
        for t in range(2):
            for p in range(4):
                q = pkw(t, p); at = 32*t + 8*p + 11
                if at + 2 < 64:
                    fl[at] += q[:2]; fl[at+1] += q[2:4]; fl[at+2] += q[4:]
        fl[40] += ["s_waitcnt lgkmcnt(0)"] + rdb(0)[:2]; fl[41] += rdb(0)[2:]
        fl[47] += ["s_waitcnt lgkmcnt(1)"] + st(0); fl[51] = st(1) + fl[51]; fl[55] += st(2); fl[59] = st(3) + fl[59]
        I("s_waitcnt lgkmcnt(4)")
        ms = wo(0) + wo(1)
        fl[30] += ["s_waitcnt lgkmcnt(3)"]
        for i, at in enumerate([1, 5, 9, 15, 17+5, 25, 31, 33+5]):
            fl[at] += items[i][0]; fl[at+1] = items[i][1] + fl[at+1]
        slots(A, ms, fl)
        for x in pkw(1, 3): I(x)
        I("s_waitcnt lgkmcnt(0)")
        for x in rdb(1): I(x)
        for i in range(4):
            I(f"s_waitcnt lgkmcnt({3-i})")
            for x in st(i): I(x)
    dual(A, body)
    TH(3)
    I("s_waitcnt vmcnt(0)")
    I("s_barrier")
    TH(4)
    I(f"s_lshl_b32 s29, s{sG}, 7"); I(f"s_add_u32 s28, s29, {F_PART}")
    gsignal(A, 28, T0, T0 + 1)
    I(f"s_lshl_b32 s26, s{sGR}, 15"); I(f"s_add_u32 s26, s26, {WS_PART}")
    gwait(A, 28, T0, T0 + 1)
    TH(5)
    for i in range(8):
        I(f"buffer_load_dwordx4 {vr(XF+4*i,4)}, v{vRL}, {WSS}, s26 offen sc1")
        I("s_add_u32 s26, s26, 4096")
    RS = KF; RT = KF + 4
    unpack(A, XR, RT, 1)
    for i in range(8):
        I(f"s_waitcnt vmcnt({7-i})")
        I(mf32(RS, vSEL4, XF + 4*i, "0" if i == 0 else vr(RS, 4)))
    I(cv(RS + 2, RS)); unpack(A, RS + 2, RS, 1)
    I(f"v_add_f32 v{RS}, v{RS}, v{RT}"); I(f"v_add_f32 v{RS+1}, v{RS+1}, v{RT+1}")
    I(cv(XR, RS)); unpack(A, XR, RS, 1)
    I(f"v_add_f32 v{RT}, v{RS}, v{RS+1}")
    I(f"v_mul_f32 v{RT+1}, v{RS}, v{RS}"); I(f"v_fmac_f32 v{RT+1}, v{RS+1}, v{RS+1}")
    allreduce(A, [RT, RT + 1], RT + 2)
    I(f"s_lshl_b32 s24, s{sWV}, 3"); I(f"s_add_u32 s24, s24, {L_RED}"); I(f"v_mov_b32 v{RT+2}, s24"); I(f"v_mov_b32 v{RT+3}, {L_RED}")
    I(f"ds_write_b64 v{RT+2}, {vr(RT,2)}")
    I(f"s_lshl_b32 s24, s{sGR}, 10"); I(f"s_add_u32 s26, s24, {WS_HN}")
    I("s_waitcnt lgkmcnt(0)")
    I("s_barrier")
    I(f"ds_read_b128 {vr(RT+4,4)}, v{RT+3}"); I(f"ds_read_b128 {vr(RT+8,4)}, v{RT+3} offset:16")
    I("s_waitcnt lgkmcnt(0)")
    I(f"v_pk_add_f32 {vr(RT+4,2)}, {vr(RT+4,2)}, {vr(RT+6,2)}"); I(f"v_pk_add_f32 {vr(RT+8,2)}, {vr(RT+8,2)}, {vr(RT+10,2)}")
    I(f"v_pk_add_f32 {vr(RT,2)}, {vr(RT+4,2)}, {vr(RT+8,2)}")
    I(f"v_mul_f32 v{RT}, {hex(f2u(1/512))}, v{RT}"); I(f"v_mul_f32 v{RT+1}, {hex(f2u(1/512))}, v{RT+1}")
    I(f"v_fma_f32 v{RT+1}, -v{RT}, v{RT}, v{RT+1}"); I(f"v_max_f32 v{RT+1}, 0, v{RT+1}")
    ln_finish(A, RT, RT + 1)
    I(f"v_sub_f32 v{RS}, v{RS}, v{RT}"); I(f"v_sub_f32 v{RS+1}, v{RS+1}, v{RT}")
    I(cv(RS + 2, RS)); unpack(A, RS + 2, RS, 1)
    I(f"v_mul_f32 v{RS}, v{RS}, v{RT+1}"); I(f"v_mul_f32 v{RS+1}, v{RS+1}, v{RT+1}")
    I(cv(RS + 2, RS))
    dual(A, lambda f: I(f"buffer_store_dword v{RS+2}, v{vRO}, {WSS}, s26 offen {f}"))
    I("s_waitcnt vmcnt(0)")
    I("s_barrier")
    I(f"s_add_u32 s28, s29, {F_HN}")
    gsignal(A, 28, T0, T0 + 1)
    TH(6)
    gwait(A, 28, T0, T0 + 1)
    TH(7)
    I(f"s_lshl_b32 s{sA0}, s{sG}, 15"); I(f"s_add_u32 s{sA0}, s{sA0}, {WS_HN}")
    rows_dma(A, vTm, sA0, L_HB)
    I(f"s_lshl_b32 s25, s{sA1}, 10"); I(f"s_add_u32 s25, s25, {WS_H}")
    I(f"buffer_store_dword v{XR}, v{vRO}, {WSS}, s25 offen sc1")
    I("s_waitcnt vmcnt(1)")
    I("s_barrier")
    TH(8)
    I(f"s_cmp_ge_u32 s{sTILE}, 86"); I("s_cbranch_scc1 H2_skipz")
    HF = XF
    for ks in range(16):
        for t in range(2): I(f"ds_read_b128 {vr(HF + 8*ks + 4*t,4)}, v{vHA + 4*t + (ks&3)} offset:{(ks>>2)*256}") if ks < 4 else None
    ZA = 168
    I(f"s_cmp_lt_u32 s{sTILE}, 43"); I("s_cbranch_scc1 H2_z1")
    for var in range(2):
        if var == 1: A.label("H2_z1")
        for ks in range(16):
            I(f"s_waitcnt lgkmcnt({6 if ks < 13 else 2*(15-ks)})")
            for t in range(2):
                a, b = (HF + 8*ks + 4*t, WIN + 4*ks) if var == 0 else (WIN + 4*ks, HF + 8*ks + 4*t)
                I(mf32(ZA + 4*t, a, b, "0" if ks == 0 else vr(ZA + 4*t, 4)))
                k2 = ks + 4
                if k2 < 16: I(f"ds_read_b128 {vr(HF + 8*k2 + 4*t,4)}, v{vHA + 4*t + (k2&3)} offset:{(k2>>2)*256}")
        if var == 0: I("s_branch H2_zc")
    A.label("H2_zc")
    I("s_nop 7")
    tm = 176
    k1 = -2 * 0.7978845608028654 * 1.4426950408889634
    I(f"v_mov_b32 v{XF}, {hex(f2u(k1 * 0.044715))}"); I(f"v_mov_b32 v{XF+2}, {hex(f2u(k1))}")
    for i in range(0, 8, 2):
        I(f"v_cvt_pk_bf16_f32 v{tm}, v{ZA+i}, v{ZA+i+1}"); I(f"v_lshlrev_b32 v{ZA+i}, 16, v{tm}"); I(f"v_and_b32 v{ZA+i+1}, 0xffff0000, v{tm}")
    for i in range(0, 8, 2):
        I(f"v_pk_mul_f32 {vr(tm+i,2)}, {vr(ZA+i,2)}, {vr(ZA+i,2)}")
        I(f"v_pk_fma_f32 {vr(tm+i,2)}, {vr(tm+i,2)}, {vr(XF,2)}, {vr(XF+2,2)} op_sel_hi:[1,0,0]")
        I(f"v_pk_mul_f32 {vr(tm+i,2)}, {vr(tm+i,2)}, {vr(ZA+i,2)}")
    for i in range(8): I(f"v_exp_f32 v{tm+i}, v{tm+i}")
    for i in range(0, 8, 2): I(f"v_pk_add_f32 {vr(tm+i,2)}, {vr(tm+i,2)}, 1.0 op_sel_hi:[1,0]")
    for i in range(8): I(f"v_rcp_f32 v{tm+i}, v{tm+i}")
    for i in range(0, 8, 2): I(f"v_pk_mul_f32 {vr(ZA+i,2)}, {vr(ZA+i,2)}, {vr(tm+i,2)}")
    for i in range(4): I(cv(tm + i, ZA + 2*i))
    I(f"s_mul_i32 s24, s{sSEG}, 86"); I(f"s_add_u32 s24, s24, s{sTILE}"); I("s_lshl_b32 s24, s24, 10"); I(f"s_add_u32 s24, s24, {WS_Z}")
    I(f"buffer_store_dwordx4 {vr(tm,4)}, v{wL16}, {WSS}, s24 offen sc1")
    I(f"s_cmp_lt_u32 s{sTILE}, 43"); I("s_cbranch_scc1 H2_nostat")
    ST = XF
    for i in range(4):
        I(f"v_lshlrev_b32 v{ST+4*i}, 16, v{tm+i}"); I(f"v_and_b32 v{ST+4*i+2}, 0xffff0000, v{tm+i}")
    for i in range(8): I(f"v_mul_f32 v{ST+2*i+1}, v{ST+2*i}, v{ST+2*i}")
    for r in range(16): I(f"v_add_f32_dpp v{ST+r}, v{ST+r}, v{ST+r} row_ror:8 row_mask:0xf bank_mask:0xf")
    for r in range(8): I(f"v_mov_b32_dpp v{ST+r}, v{ST+8+r} quad_perm:[0,1,2,3] row_mask:0xf bank_mask:0xc")
    for r in range(8): I(f"v_add_f32_dpp v{ST+r}, v{ST+r}, v{ST+r} row_half_mirror row_mask:0xf bank_mask:0xf")
    for r in range(4): I(f"v_mov_b32_dpp v{ST+r}, v{ST+4+r} quad_perm:[0,1,2,3] row_mask:0xf bank_mask:0xa")
    for r in range(4): I(f"v_add_f32_dpp v{ST+r}, v{ST+r}, v{ST+r} quad_perm:[1,0,3,2] row_mask:0xf bank_mask:0xf")
    for r in range(4): I(f"v_add_f32_dpp v{ST+r}, v{ST+r}, v{ST+r} quad_perm:[2,3,0,1] row_mask:0xf bank_mask:0xf")
    I(f"v_lshlrev_b32 v{ST+4}, 2, v{wLN}")
    I(f"v_mov_b32 v{ST+5}, {OOB}"); I(f"v_cmp_eq_u32 vcc, 0, v{wCP}"); I(f"v_cndmask_b32 v{ST+4}, v{ST+5}, v{ST+4}, vcc")
    I(f"s_lshl_b32 s24, s{sSEG}, 6"); I(f"s_add_u32 s24, s24, s{sTILE}"); I("s_lshl_b32 s24, s24, 8"); I(f"s_add_u32 s24, s24, {WS_ZS - 43*256}")
    I(f"buffer_store_dwordx4 {vr(ST,4)}, v{ST+4}, {WSS}, s24 offen sc1")
    A.label("H2_nostat")
    I("s_waitcnt vmcnt(0)")
    A.label("H2_skipz")
    I("s_waitcnt vmcnt(0)")
    A.label("H2_zend")
    I("s_barrier")
    I(f"s_add_u32 s28, s29, {F_ZL}")
    gsignal(A, 28, T0, T0 + 1)
    I(f"s_cmp_lg_u32 s{sH}, 31"); I("s_cbranch_scc1 H2_nosig")
    gwait(A, 28, T0, T0 + 1, barrier=False)
    I(f"s_lshl_b32 s28, s{sSEG}, 7"); I(f"s_add_u32 s28, s28, {F_Z}")
    signal_store(A, "s28", 1, T0, T0 + 1)
    A.label("H2_nosig")
    TH(9)
    if TRACE[0]: I("s_add_u32 s60, s60, 4")
    I(f"s_add_u32 s{sSEG}, s{sSEG}, {NG}")
    I(f"s_cmp_lt_u32 s{sSEG}, 64"); I("s_cbranch_scc1 H2_loop")
    TDUMP(A, [188, 189, 190, 191], 40, (4, 9, 3, 3))


def t6_mm(A, kss, first, YA, UF, vU, extra=()):
    I = A.I
    extra = list(extra)
    def rd(n): return [f"ds_read_b128 {vr(UF + 8*(n%3) + 4*t,4)}, v{vU} offset:{kss[n]*2048 + t*1024}" for t in range(2)]
    for n in range(2):
        for x in rd(n): I(x)
    for n, ks in enumerate(kss):
        I(f"s_waitcnt lgkmcnt({2 if n + 1 < len(kss) else 0})")
        ms = [f"v_mfma_f32_16x16x32_bf16 {vr(YA + 8*t + 4*par,4)}, {ar((ks*2+par)*4,4)}, {vr(UF + 8*(n%3) + 4*t,4)}, {'0' if (first and n == 0) else vr(YA + 8*t + 4*par,4)}"
              for t in range(2) for par in range(2)]
        fl = [[x] for x in rd(n + 2)] if n + 2 < len(kss) else [[], []]
        fl += [[extra.pop(0)] if extra else []]
        slots(A, ms, fl)

def t6_addr(A, vO):
    I = A.I
    I(f"v_lshlrev_b32 v{vO}, 10, v{wC}"); I(f"v_lshl_add_u32 v{vO}, v{wG}, 4, v{vO}")
    I(f"s_lshl_b32 s26, s{sJ6}, 15"); I(f"s_lshl_b32 s24, s{sQ6}, 8"); I("s_add_u32 s26, s26, s24"); I(f"s_lshl_b32 s24, s{sWV}, 6"); I("s_add_u32 s26, s26, s24")
    I("s_add_u32 s27, s26, 16384"); I(f"s_add_u32 s28, s26, {WS_H}"); I(f"s_add_u32 s29, s27, {WS_H}")
def t6_hload(HR, vO): return [f"buffer_load_dwordx4 {vr(HR+4*t,4)}, v{vO}, {WSS}, s{28+t} offen sc1" for t in range(2)]
def t6_out(A, YA, HR, T, vO):
    I = A.I
    I("s_waitcnt vmcnt(0)")
    for t in range(2):
        d = YA + 8*t
        unpack(A, HR + 4*t, T, 4)
        for i in range(4): I(cv(T + 8 + i, d + 2*i))
        unpack(A, T + 8, d, 4)
        for j in range(4): I(f"v_pk_add_f32 {vr(d+2*j,2)}, {vr(d+2*j,2)}, {vr(T+2*j,2)}")
        for j in range(4): I(cv(d + j, d + 2*j))
        I(f"buffer_store_dwordx4 {vr(d,4)}, v{vO}, {SW}, s{26+t} offen")

def helper_t6(A, opt):
    I = A.I
    I("v_mbcnt_lo_u32_b32 v0, -1, 0"); I("v_mbcnt_hi_u32_b32 v0, -1, v0")
    lanes(A)
    helper_ids(A, sJ6, sQ6)
    I("s_waitcnt vmcnt(0) lgkmcnt(0)")
    I("s_barrier")
    TS(A, 15, 47)
    I(f"s_cmp_eq_u32 s{sPRE}, 1"); I("s_cbranch_scc1 T6_rest")
    wout_preload(A, 8, ((0, 16),))
    A.label("T6_rest")
    wout_preload(A, 8, ((16, 22),))
    TS(A, 15, 48)
    vU, vW, vO, vX, YA, UF, HR, LB, T = 8, 9, 10, 11, 16, 32, 56, 64, 112
    srd(A, 96, 2 << 20)
    t6_addr(A, vO)
    I(f"v_add_u32 v{vU}, {L_U}, v{wL16}"); I(f"s_lshl_b32 s24, s{sWV}, 11"); I(f"v_add_u32 v{vW}, s24, v{vU}")
    I(f"s_mul_i32 s31, s{sJ6}, 49152"); I("s_add_u32 s31, s31, s24"); I(f"s_add_u32 s31, s31, {WS_U}")
    for i in range(1, 6): I(f"s_add_u32 s{31+i}, s31, {i*8192}")
    I(f"s_lshl_b32 s37, s{sJ6}, 7"); I(f"s_add_u32 s37, s37, {F_Z}")
    def lds(bt): return [f"buffer_load_dwordx4 {vr(LB + 24*bt + 8*i + 4*t,4)}, v{wL16}, {WSS}, s{31 + 3*bt + i} offen offset:{t*1024} sc1" for i in range(3) for t in range(2)]
    I("v_mov_b32 v12, 0")
    TS(A, 15, 49)
    mode = opt.get("t6mode", "adapt")
    def canload(bt): return f"buffer_load_dword v13, v12, {WSS}, s{33 + 3*bt} offen offset:{opt.get('cano', 1024)} sc1"
    def canary(bt, tag):
        A.label(f"T6_c{tag}")
        I(canload(bt))
        if tag == "a": I(f"buffer_load_dword v14, v12, {WSS}, s37 offen sc1")
        I(f"s_add_u32 s{sSPIN}, s{sSPIN}, 1"); I(f"s_cmp_gt_u32 s{sSPIN}, {SPIN_MAX}")
        I("s_waitcnt vmcnt(0)")
        I(f"s_cbranch_scc1 T6_ce{tag}")
        if tag == "a":
            I("v_add_u32 v14, -1, v14"); I("v_max_u32 v13, v13, v14")
        I("v_cmp_eq_u32 vcc, -1, v13")
        I(f"s_cbranch_vccz T6_ce{tag}")
        if tag == "a": I(f"s_sleep {opt.get('csleep', 1)}")
        I(f"s_branch T6_c{tag}")
        A.label(f"T6_ce{tag}")
    def check(bt, keep):
        A.label(f"T6_w{bt}")
        I(f"s_add_u32 s{sSPIN}, s{sSPIN}, 1"); I(f"s_cmp_gt_u32 s{sSPIN}, {SPIN_MAX}")
        I(f"s_cbranch_scc1 T6_d{bt}")
        b = LB + 24*bt
        I(f"v_max3_u32 v{vX}, v{b}, v{b+1}, v{b+2}")
        for r in range(3, 23, 2): I(f"v_max3_u32 v{vX}, v{vX}, v{b+r}, v{b+r+1}")
        I(f"v_max_u32 v{vX}, v{vX}, v{b+23}")
        I(f"v_cmp_eq_u32 vcc, -1, v{vX}")
        I(f"s_cbranch_vccz T6_d{bt}")
        for x in lds(bt): I(x)
        I("s_waitcnt vmcnt(0)")
        I(f"s_branch T6_w{bt}")
        A.label(f"T6_d{bt}")
    def share(bt):
        b = LB + 24*bt
        for i in range(3):
            for t in range(2): I(f"ds_write_b128 v{vW}, {vr(b + 8*i + 4*t,4)} offset:{(3*bt + i)*8192 + t*1024}")
        I("s_waitcnt lgkmcnt(0)")
        I("s_barrier")
    if mode == "last":
        canary(1, "a"); TS(A, 15, 50)
        for x in lds(0) + lds(1): I(x)
        I("s_waitcnt vmcnt(6)")
        check(0, 6); TS(A, 15, 51); share(0); TS(A, 15, 52)
        t6_mm(A, list(range(12)), True, YA, UF, vU, t6_hload(HR, vO)); TS(A, 15, 53)
        I("s_waitcnt vmcnt(2)")
    else:
        canary(0, "a"); TS(A, 15, 50)
        for x in lds(0): I(x)
        I("s_waitcnt vmcnt(0)")
        I(canload(1))
        check(0, 0); TS(A, 15, 51); share(0); TS(A, 15, 52)
        I("s_waitcnt vmcnt(0)")
        I("v_cmp_eq_u32 vcc, -1, v13")
        I("s_cbranch_vccnz T6_late")
        t6_mm(A, list(range(12)), True, YA, UF, vU, lds(1) + t6_hload(HR, vO))
        I("s_branch T6_join")
        A.label("T6_late")
        t6_mm(A, list(range(12)), True, YA, UF, vU, t6_hload(HR, vO))
        canary(1, "b")
        for x in lds(1): I(x)
        A.label("T6_join")
        TS(A, 15, 53)
        I("s_waitcnt vmcnt(0)")
    check(1, 0); TS(A, 15, 55); share(1); TS(A, 15, 56)
    t6_mm(A, list(range(12, 22)), False, YA, UF, vU); TS(A, 15, 57)
    t6_out(A, YA, HR, T, vO)

def p_main(A, opt):
    I = A.I
    sJ = 18; sS = 36; sZ = 20; sSP = 21; sRD = 22; sISS = 32
    L_ST = 147456; L_ST2 = L_ST + 2048
    vO5, vSO, vWS, vSW, vSR, vS2W, vS2R, vFA, vFD = 7, 9, 12, 13, 14, 15, 16, 4, 5
    TRC = 17
    COR = 0
    ACC = 20; BUF = [116, 164]; SB = 212; MU = 224; RS = 232; WF = 240; TM = 248
    if TRACE[0]: I(f"v_mov_b32 v{TRC}, v187")
    I(f"s_sub_u32 s{sJ}, s{sG}, 6"); I(f"s_lshl_b32 s{sJ}, s{sJ}, 5"); I(f"s_add_u32 s{sJ}, s{sJ}, s{sH}")
    for i in range(4): I(f"v_mov_b32 v{TM+i}, -1")
    I(f"s_mul_i32 s37, s{sJ}, 49152"); I(f"s_lshl_b32 s24, s{sWV}, 11"); I("s_add_u32 s37, s37, s24"); I(f"s_add_u32 s37, s37, {WS_U}")
    I(f"v_lshlrev_b32 v{TM+4}, 4, v0")
    I(f"s_mul_i32 s24, s{sJ}, {86*1024}"); I(f"s_add_u32 s24, s24, {WS_Z}")
    for i in range(22):
        if i == 21: I("s_sub_u32 s24, s24, 2048")
        I(f"buffer_store_dwordx4 {vr(TM,4)}, v{TM+4}, {WSS}, s24 offen sc1"); I("s_add_u32 s24, s24, 4096")
    I(f"s_lshl_b32 s24, s{sJ}, 14"); I(f"s_add_u32 s24, s24, {WS_ZS}")
    for i in range(3):
        I(f"buffer_store_dwordx4 {vr(TM,4)}, v{TM+4}, {WSS}, s24 offen sc1"); I("s_add_u32 s24, s24, 4096")
    I("s_mov_b32 s24, s37")
    for i in range(6):
        for t in range(2): I(f"buffer_store_dwordx4 {vr(TM,4)}, v{wL16}, {WSS}, s24 offen offset:{t*1024} sc1")
        I("s_add_u32 s24, s24, 8192")
    I("s_waitcnt vmcnt(0)")
    I("s_barrier")
    signal_add(A, DBG, D_P2, 1, TM, TM + 1)
    I(f"s_mov_b32 s{sQ6}, 0")
    wout_preload(A, TM)
    srd(A, 72, 8 << 20)
    I(f"s_lshl_b32 s{sSP}, s{sJ}, 17")
    I(f"s_lshl_b32 s24, s{sWV}, 15"); I(f"s_add_u32 s24, s24, s{sSP}")
    for i in range(32):
        I(f"buffer_load_dwordx4 {vr(ACC + 4*(i&15),4)}, v{wL16}, {SW}, s24 offen offset:{(i&3)*1024}")
        if (i & 3) == 3: I("s_add_u32 s24, s24, 4096")
    I(f"v_mov_b32 v{TM}, {OOB}")
    for par in range(2):
        I(f"s_lshl_b32 s24, s{sWV}, 1"); I(f"s_add_u32 s24, s24, {40 + par}"); I("s_cmp_lt_u32 s24, 43"); I("s_cselect_b64 vcc, -1, 0")
        I(f"v_cndmask_b32 v{vO5+par}, v{TM}, v{wL16}, vcc")
    for n in range(3):
        I(f"s_mul_i32 s24, s{sWV}, 12"); I(f"s_add_u32 s24, s24, {4*n}")
        I(f"v_add_u32 v{TM+1}, s24, v{wG}"); I(f"v_cmp_gt_u32 vcc, 43, v{TM+1}")
        I("s_lshl_b32 s24, s24, 8"); I(f"v_add_u32 v{TM+1}, s24, v{wL16}")
        I(f"v_cndmask_b32 v{vSO+n}, v{TM}, v{TM+1}, vcc")
    I(f"v_lshlrev_b32 v{vWS}, 12, v{wC}"); I(f"v_lshl_add_u32 v{vWS}, v{wG}, 4, v{vWS}")
    I(f"v_lshlrev_b32 v{vSR}, 4, v{wC}"); I(f"v_add_u32 v{vSR}, {L_ST}, v{vSR}")
    I(f"s_lshl_b32 s24, s{sWV}, 8"); I(f"v_add_u32 v{vSW}, s24, v{vSR}")
    I(f"s_add_u32 s24, s24, {L_ST2}")
    I(f"v_lshlrev_b32 v{vS2W}, 3, v{wC}"); I(f"v_add_u32 v{vS2W}, s24, v{vS2W}")
    I(f"v_lshlrev_b32 v{vS2R}, 5, v{wG}"); I(f"v_add_u32 v{vS2R}, s24, v{vS2R}")
    I("s_load_dwordx2 s[48:49], s[0:1], 80"); I("s_mov_b32 s50, 4096"); I("s_mov_b32 s51, 0x20000")
    I(f"v_lshlrev_b32 v{TM}, 1, v{wC}"); I(f"s_lshl_b32 s24, s{sJ}, 6")
    I("s_waitcnt lgkmcnt(0)")
    I(f"buffer_load_ushort v{COR}, v{TM}, s[48:51], s24 offen"); I(f"buffer_load_ushort v{COR+1}, v{TM}, s[48:51], s24 offen offset:32")
    I("s_waitcnt vmcnt(0)")
    I(f"v_cmp_eq_u32 vcc, 0, v{wG}")
    for t in range(2):
        I(f"v_lshlrev_b32 v{COR+t}, 16, v{COR+t}"); I(f"v_xor_b32 v{COR+t}, 0x80000000, v{COR+t}"); I(f"v_cndmask_b32 v{COR+t}, 0, v{COR+t}, vcc")
    for x in zero(ACC, 96): I(x)
    I(f"s_mov_b32 s{sS}, 0"); I(f"s_mov_b32 s{sRD}, 0"); I(f"s_mov_b32 s{sISS}, 0")
    I(f"s_lshl_b32 s{sZ}, s{sWV}, 11"); I(f"s_add_u32 s{sZ}, s{sZ}, {WS_Z + 43*1024}")
    TS(A, TRC, 2)
    CR = TM + 4 - 4 + 0
    def tiles(dst, sb):
        out = []
        for i in range(6):
            for par in range(2):
                v = vO5 + par if i == 5 else wL16
                x = [f"buffer_load_dwordx4 {vr(dst + 8*i + 4*par,4)}, v{v}, {WSS}, s{sb} offen offset:{par*1024} sc1"]
                if par == 1 and i < 5: x.append(f"s_add_u32 s{sb}, s{sb}, 8192")
                out.append(x)
        return out
    def wf_load():
        I(f"s_add_u32 s24, s{sSP}, 65536")
        I(f"buffer_load_dwordx4 {vr(WF,4)}, v{vWS}, {SW}, s{sSP} offen"); I(f"buffer_load_dwordx4 {vr(WF+4,4)}, v{vWS}, {SW}, s24 offen")
        I(f"s_add_u32 s{sSP}, s{sSP}, 64")
    def stat_loads(): return [[f"buffer_load_dwordx4 {vr(SB+4*n,4)}, v{vSO+n}, {WSS}, s27 offen sc1"] for n in range(3)]
    sVAL = 35
    def mxchk(base, n):
        out = [f"v_max3_u32 v{TM}, v{base}, v{base+1}, v{base+2}"]
        for r in range(3, n - 1, 2): out.append(f"v_max3_u32 v{TM}, v{TM}, v{base+r}, v{base+r+1}")
        return out + [f"v_max_u32 v{TM}, v{TM}, v{base+n-1}", f"v_cmp_eq_u32 vcc, -1, v{TM}"]
    def z1dma():
        I(f"s_lshl_b32 s24, s{sWV}, 11"); I(f"s_add_u32 s24, s24, {L_U}"); I("s_mov_b32 s25, s33")
        for i in range(6):
            I(f"s_add_u32 m0, s24, {i*8192}")
            I("s_nop 0")
            for par in range(2): I(f"buffer_load_dwordx4 v{vO5 + par if i == 5 else wL16}, {WSS}, s25 offen offset:{par*1024} sc1 lds")
            I("s_add_u32 s25, s25, 8192")
    def flag_load():
        I("s_add_u32 s28, s27, 16384")
        I(f"buffer_load_dword v{vFD}, v{vFA}, {WSS}, s28 offen sc1")
    I(f"s_mul_i32 s33, s{sJ}, {86*1024}"); I(f"s_lshl_b32 s27, s{sWV}, 11"); I("s_add_u32 s33, s33, s27"); I(f"s_add_u32 s33, s33, {WS_Z}")
    I(f"s_lshl_b32 s34, s{sJ}, 2"); I(f"s_add_u32 s34, s34, s{sWV}"); I("s_mul_i32 s34, s34, 86"); I("s_lshr_b32 s34, s34, 8"); I("s_lshl_b32 s34, s34, 7")
    I(f"v_mov_b32 v{vFA}, s34"); I(f"s_mov_b32 s27, {WS_ZS}")
    wait_ge(A, DBG, D_P2, 64, TM, TM + 1, 24, sleep=4)
    wf_load()
    A.label("P_loop")
    for b in range(2):
        RAW = BUF[b]
        I(f"s_cmp_lg_u32 s{sISS}, 0"); I(f"s_cbranch_scc1 P_have{b}")
        A.label(f"P_poll{b}")
        I(f"buffer_load_dword v{vFD}, v{vFA}, {WSS}, s27 offen sc1")
        I(f"s_add_u32 s{sSPIN}, s{sSPIN}, 1")
        I("s_waitcnt vmcnt(0)")
        I(f"v_cmp_eq_u32 vcc, -1, v{vFD}")
        I(f"s_cbranch_vccz P_rdy{b}")
        I(f"s_sleep {opt.get('psleep', 1)}")
        I(f"s_cmp_gt_u32 s{sSPIN}, {SPIN_MAX}"); I(f"s_cbranch_scc0 P_poll{b}")
        A.label(f"P_rdy{b}")
        TS(A, TRC + 1, f"s{sS}")
        I(f"s_mov_b32 s26, s{sZ}")
        for x in sum(stat_loads() + tiles(RAW, 26), []): I(x)
        A.label(f"P_have{b}")
        I("s_waitcnt vmcnt(12)")
        A.label(f"P_sv{b}")
        for x in mxchk(SB, 12): I(x)
        I(f"s_cbranch_vccz P_sok{b}")
        for x in sum(stat_loads(), []): I(x)
        I(f"s_add_u32 s{sSPIN}, s{sSPIN}, 1"); I(f"s_cmp_gt_u32 s{sSPIN}, {SPIN_MAX}")
        I("s_waitcnt vmcnt(0)")
        I(f"s_cbranch_scc0 P_sv{b}")
        A.label(f"P_sok{b}")
        flag_load()
        for n in (1, 2):
            for j in range(2): I(f"v_pk_add_f32 {vr(MU+2*j,2)}, {vr((SB if n == 1 else MU)+2*j,2)}, {vr(SB+4*n+2*j,2)}")
        for sw in ("16", "32"):
            for r in range(4): I(f"v_mov_b32 v{MU+4+r}, v{MU+r}")
            for r in range(4): I(f"v_permlane{sw}_swap_b32 v{MU+r}, v{MU+4+r}")
            for j in range(2): I(f"v_pk_add_f32 {vr(MU+2*j,2)}, {vr(MU+2*j,2)}, {vr(MU+4+2*j,2)}")
        I(f"ds_write_b128 v{vSW}, {vr(MU,4)} offset:{b*1024}")
        I("s_waitcnt lgkmcnt(0)")
        I("s_barrier")
        for w in range(4): I(f"ds_read_b128 {vr(MU+4*w,4)}, v{vSR} offset:{b*1024 + w*256}")
        I("s_waitcnt lgkmcnt(0)")
        for w in range(1, 4):
            for j in range(2): I(f"v_pk_add_f32 {vr(MU+2*j,2)}, {vr(MU+2*j,2)}, {vr(MU+4*w+2*j,2)}")
        for r in range(4): I(f"v_mul_f32 v{MU+r}, {hex(f2u(1/688))}, v{MU+r}")
        for j in range(2):
            I(f"v_fma_f32 v{MU+2*j+1}, -v{MU+2*j}, v{MU+2*j}, v{MU+2*j+1}")
            I(f"v_max_f32 v{MU+2*j+1}, 0, v{MU+2*j+1}")
            ln_finish(A, MU + 2*j, MU + 2*j + 1)
        I(f"ds_write2_b32 v{vS2W}, v{MU}, v{MU+2} offset0:0 offset1:1"); I(f"ds_write2_b32 v{vS2W}, v{MU+1}, v{MU+3} offset0:32 offset1:33")
        I("s_waitcnt lgkmcnt(0)")
        for i in range(2):
            I(f"ds_read_b128 {vr(RS+4*i,4)}, v{vS2R} offset:{128+16*i}"); I(f"ds_read_b128 {vr(MU+4*i,4)}, v{vS2R} offset:{16*i}")
        unpack(A, WF, TM, 4); unpack(A, WF + 4, SB, 4)
        I("s_waitcnt lgkmcnt(0)")
        for t, r in enumerate((TM, SB)):
            for j in range(4): I(f"v_pk_mul_f32 {vr(r+2*j,2)}, {vr(r+2*j,2)}, {vr(RS+2*j,2)}")
        for t, r in enumerate((TM, SB)):
            for j in range(4): I(cv(RS + 4*t + j, r + 2*j))
        I("s_waitcnt vmcnt(0)")
        A.label(f"P_val{b}")
        for x in mxchk(RAW, 48): I(x)
        I(f"s_cbranch_vccz P_ok{b}")
        I(f"s_mov_b32 s26, s{sZ}")
        for x in sum(tiles(RAW, 26), []): I(x)
        I(f"s_add_u32 s{sSPIN}, s{sSPIN}, 1"); I(f"s_cmp_gt_u32 s{sSPIN}, {SPIN_MAX}")
        I("s_waitcnt vmcnt(0)")
        I(f"s_cbranch_scc0 P_val{b}")
        A.label(f"P_ok{b}")
        I(f"s_cmp_eq_u32 s{sS}, s{sJ}"); I(f"s_cbranch_scc0 P_noz1{b}")
        z1dma()
        A.label(f"P_noz1{b}")
        cor = []
        for t in range(2):
            for j in range(4):
                cor += [f"v_lshlrev_b32 v{TM}, 16, v{RS+4*t+j}", f"v_fmac_f32 v{COR+t}, v{TM}, v{MU+2*j}",
                        f"v_and_b32 v{TM+1}, 0xffff0000, v{RS+4*t+j}", f"v_fmac_f32 v{COR+t}, v{TM+1}, v{MU+2*j+1}"]
        ms = [mf32(ACC + 16*(n>>1) + 8*t + 4*(n&1), RAW + 4*n, RS + 4*t, vr(ACC + 16*(n>>1) + 8*t + 4*(n&1), 4)) for n in range(12) for t in range(2)]
        wf_load()
        I(f"s_add_u32 s{sZ}, s{sZ}, {86*1024}")
        I("s_add_u32 s27, s27, 16384"); I(f"s_mov_b32 s26, s{sZ}")
        I(f"v_cmp_eq_u32 vcc, -1, v{vFD}")
        I(f"s_mov_b32 s{sISS}, 0")
        I(f"s_cbranch_vccnz P_nopf{b}")
        if b == 1:
            I(f"s_cmp_eq_u32 s{sS}, 63"); I(f"s_cbranch_scc1 P_nopf{b}")
        I(f"s_mov_b32 s{sISS}, 1")
        ld = stat_loads() + tiles(BUF[1 - b], 26)
        fl = [cor[2*i:2*i+2] for i in range(24)]
        for i in range(6): fl[4*i] = ld[i] + fl[4*i]
        slots(A, ms, fl)
        for x in sum(ld[6:], []): I(x)
        I(f"s_branch P_done{b}")
        A.label(f"P_nopf{b}")
        slots(A, ms, [cor[2*i:2*i+2] for i in range(24)])
        A.label(f"P_done{b}")
        TS(A, TRC + 2, f"s{sS}")
        I(f"s_add_u32 s{sS}, s{sS}, 1")
    I(f"s_cmp_lt_u32 s{sS}, 64"); I("s_cbranch_scc1 P_loop")
    vU, vO = SB, SB + 1
    I(f"v_add_u32 v{vU}, {L_U}, v{wL16}")
    I(f"s_lshl_b32 s24, s{sWV}, 11"); I(f"v_add_u32 v{vSW}, s24, v{vU}")
    ZB = BUF[0]; HR = BUF[1]; UF = BUF[1] + 8; YA = BUF[1] + 32
    def zread():
        for i in range(6):
            for par in range(2): I(f"ds_read_b128 {vr(ZB+8*i+4*par,4)}, v{vSW} offset:{i*8192 + par*1024}")
    I("s_waitcnt vmcnt(2)")
    zread()
    for sw in ("16", "32"):
        for t in range(2):
            I(f"v_mov_b32 v{TM}, v{COR+t}"); I(f"v_permlane{sw}_swap_b32 v{COR+t}, v{TM}"); I(f"v_add_f32 v{COR+t}, v{COR+t}, v{TM}")
    A.label("P_z1c")
    I("s_waitcnt lgkmcnt(0)")
    for x in mxchk(ZB, 48): I(x)
    I("s_cbranch_vccz P_z1ok")
    z1dma()
    I(f"s_add_u32 s{sSPIN}, s{sSPIN}, 1"); I(f"s_cmp_gt_u32 s{sSPIN}, {SPIN_MAX}")
    I("s_waitcnt vmcnt(0)")
    I("s_cbranch_scc1 P_z1ok")
    zread()
    I("s_branch P_z1c")
    A.label("P_z1ok")
    for i in range(6):
        for t in range(2):
            d = ACC + 16*i + 8*t
            for j in range(4): I(f"v_pk_add_f32 {vr(d+2*j,2)}, {vr(d+2*j,2)}, {vr(COR,2)} op_sel:[0,{t}] op_sel_hi:[1,{t}] neg_lo:[0,1] neg_hi:[0,1]")
            for j in range(4): I(cv(MU + j, d + 2*j))
            unpack(A, MU, d, 4)
            for par in range(2): unpack(A, ZB + 8*i + 4*par + 2*t, TM + 4*par, 2)
            for j in range(4): I(f"v_pk_mul_f32 {vr(d+2*j,2)}, {vr(d+2*j,2)}, {vr(TM+2*j,2)}")
            for j in range(4): I(cv(d + j, d + 2*j))
            I(f"buffer_store_dwordx4 {vr(d,4)}, v{wL16}, {WSS}, s37 offen offset:{t*1024} sc1")
        I("s_add_u32 s37, s37, 8192")
    for i in range(6):
        for t in range(2): I(f"ds_write_b128 v{vSW}, {vr(ACC + 16*i + 8*t,4)} offset:{i*8192 + t*1024}")
    srd(A, 96, 2 << 20)
    I("s_barrier")
    TS(A, TRC, 3)
    t6_mm(A, list(range(22)), True, YA, UF, vU)
    TS(A, TRC, 4)
    I(f"s_lshl_b32 s28, s{sJ}, 7"); I(f"s_add_u32 s28, s28, {F_Z}")
    wait_ge(A, WSS, "s28", 1, TM, TM + 1, 24, sleep=0, barrier=False, allwaves=True)
    t6_addr(A, vO)
    for x in t6_hload(HR, vO): I(x)
    t6_out(A, YA, HR, MU, vO)
    if TRACE[0]: I("s_waitcnt vmcnt(0)")
    TS(A, TRC, 5)
    TDUMP(A, [TRC, TRC + 1, TRC + 2], TM, (6, 12, 2, 4))
```

```python
from asmlib import *
import struct

WS_KV = 2 << 20
WS_KM = (36 << 20) + 4096
WS_HA = 48 << 20
WS_HB = 49 << 20
WS_XN = 50 << 20
WS_H = 52 << 20
WS_HN = 54 << 20
WS_Z = 56 << 20
WS_ZS = 62 << 20
WS_U = 72 << 20
WS_PART = 64 << 20
F_KV = 0; F_PART = 4096; F_HN = 6144; F_ZL = 8192; F_Z = 16384
NG = 5
NG1 = 7
WS_BYTES = 256 << 20
LW = 128 << 10
L_MEM = 0; L_QK = 0; L_O = 4096; L_V = 8192; L_K = 16384
LDS_BYTES = 160 << 10
SCALE_LOG2E = (128 ** -0.5) * 1.4426950408889634

SPIN_MAX = 1 << 18
def f2u(x): return struct.unpack("<I", struct.pack("<f", x))[0]
def vr(b, n): return f"v[{b}:{b+n-1}]"
def ar(b, n): return f"a[{b}:{b+n-1}]"

vIDX, vL16, vT, vMW, vOR, vKR, vSEL = 0, 1, 2, 4, 5, 6, 7
vXW, vTR, vOW, vF0, vF1, vAST, vALD, vBST = 8, 9, 10, 11, 12, 13, 14, 15
PZ = 16
M = 20; AQ = 52; AK = 60; AV = 68; KX = 76; VX = 108; S = 116
sWS = 4
sW = 8
sDBG = 12
sH, sWV, sSTEP, sHA, sHB, sKV, sKM, sSPIN, sT0, sT1, sT2, sT3, sSC = 16, 17, 18, 19, 20, 21, 22, 23, 24, 25, 26, 27, 28
sM0A, sM0B, sRA, sRB, sRC, sPF, sSPA, sB0, sB1 = 29, 30, 31, 32, 33, 34, 35, 36, 37
sRDY = 38
sKVM = 50
vFL = 14
sMSK = 52

LRES = [(0, 0, 0), (0, 1, 0), (1, 0, 0), (1, 1, 0), (0, 0, 1), (0, 1, 1)]
LBUF = [VX, VX + 8, KX, KX + 8, KX + 16, KX + 24]
WOL = [(3, 0, 2), (3, 1, 1), (3, 1, 3), (3, 1, 2), (3, 2, 1), (3, 2, 3), (3, 2, 2), (3, 3, 1), (3, 3, 3), (3, 3, 2)]
WBUF = [M + 8, M + 16, M + 24, KX + 16, KX + 24, KX, KX + 8, M, S, M + 8]
NL = len(LRES); NW = len(WOL)
_slots = {}
def _assign():
    n = 0
    for mat in range(3):
        for tau in range(2):
            for p in range(8):
                if (mat, tau, p) in LRES: continue
                _slots[(mat, tau, p)] = n; n += 1
    for p in range(4):
        for j in range(4):
            if (3, p, j) in WOL: continue
            _slots[(3, p, j)] = n; n += 1
    assert n == 48
_assign()
def slot_reg(key, off, n):
    i = _slots[key] * 8 + off
    return ar(i, n) if i < 256 else vr(128 + i - 256, n)
def wfrag(*key):
    if key in LRES: return vr(LBUF[LRES.index(key)], 8)
    if key in WOL: return vr(WBUF[WOL.index(key)], 8)
    return slot_reg(key, 0, 8)

def smf(acc, a, b): return f"v_smfmac_f32_16x16x64_bf16 {vr(acc,4)}, {vr(a,4)}, {b}, v{vIDX}"
def mf32(d, a, b, c): return f"v_mfma_f32_16x16x32_bf16 {vr(d,4)}, {vr(a,4)}, {vr(b,4)}, {c}"
def mf16(d, a, b, c): return f"v_mfma_f32_16x16x16_bf16 {vr(d,4)}, {vr(a,2)}, {vr(b,2)}, {c}"

def chain_setup(A, st, hooks=None, order=(1, 2, 0)):
    I = A.I
    WS = f"s[{sWS}:{sWS+3}]"
    LN, C, G, R, R0, R1, G0, G1, CP, X, Y, Z = 40, 41, 42, 43, 44, 45, 46, 47, 48, 49, 50, 51
    I(f"v_lshrrev_b32 v{X}, 6, v0")
    I(f"v_and_b32 v{LN}, 63, v0")
    I(f"v_readfirstlane_b32 s{sWV}, v{X}")
    I(f"v_and_b32 v{C}, 15, v{LN}")
    I(f"v_lshrrev_b32 v{G}, 4, v{LN}")
    I(f"v_lshrrev_b32 v{R}, 2, v{C}")
    I(f"v_and_b32 v{R0}, 1, v{R}")
    I(f"v_lshrrev_b32 v{R1}, 1, v{R}")
    I(f"v_and_b32 v{G0}, 1, v{G}")
    I(f"v_lshrrev_b32 v{G1}, 1, v{G}")
    I(f"v_and_b32 v{CP}, 3, v{C}")
    I(f"s_and_b32 s{sT0}, s{sWV}, 1")
    I(f"s_lshl_b32 s{sT0}, s{sT0}, 2")
    I(f"s_lshr_b32 s{sT1}, s{sWV}, 1")
    I(f"s_lshl_b32 s{sT1}, s{sT1}, 4")
    I(f"s_add_u32 s{sT0}, s{sT0}, s{sT1}")
    I(f"v_add_u32 v20, s{sT0}, v{G}")
    I("v_lshlrev_b32 v20, 13, v20")
    I(f"s_lshl_b32 s{sT0}, s{sWV}, 2")
    I(f"v_lshlrev_b32 v{X}, 1, v{G1}")
    I(f"v_or_b32 v{X}, s{sT0}, v{X}")
    I(f"v_xor_b32 v{X}, v{C}, v{X}")
    I(f"v_lshl_add_u32 v20, v{X}, 4, v20")
    I(f"s_lshl_b32 s{sT1}, s{sH}, 8")
    I(f"v_add_u32 v20, s{sT1}, v20")

    chunks = [(m, h) for m in list(order) + [3] for h in range(2)]
    HOLD = 32; HW = HOLD + 8*NL
    def srd_for(mat):
        I(f"s_load_dwordx2 s[{sW}:{sW+1}], s[0:1], {16 + 8*mat}")
        I(f"s_mov_b32 s{sW+2}, {4<<20}")
        I(f"s_mov_b32 s{sW+3}, 0x20000")
        I("s_waitcnt lgkmcnt(0)")
    def dma(ci):
        mat, half = chunks[ci]
        if half == 0: srd_for(mat)
        reg = half * 65536
        if mat < 3:
            I(f"s_lshl_b32 s{sT0}, s{sWV}, 10")
            for i in range(16):
                I(f"s_add_u32 m0, s{sT0}, {reg + i*4096}")
                I(f"s_mov_b32 s{sT1}, {(32*i + 8*half)*8192}")
                I(f"buffer_load_dwordx4 v20, s[{sW}:{sW+3}], s{sT1} offen lds")
        else:
            I(f"s_lshl_b32 s{sT0}, s{sWV}, 14")
            for i in range(16):
                I(f"s_add_u32 m0, s{sT0}, {reg + i*1024}")
                I(f"s_mov_b32 s{sT1}, {((i&7) + 64*(i>>3) + 8*half)*1024}")
                I(f"buffer_load_dwordx4 v{21 + (i&1)}, s[{sW}:{sW+3}], s{sT1} offen lds")
    if hooks: hooks(A, 'ts', 0)
    dma(0)
    if hooks: hooks(A, 'ts', 1)
    I(f"s_load_dwordx2 s[44:45], s[0:1], 8")
    I(f"s_mov_b32 s46, 8192"); I(f"s_mov_b32 s47, 0x20000")
    I(f"v_and_b32 v{Y}, 1, v{C}")
    I(f"v_lshl_add_u32 v{X}, v{R}, 1, v{Y}")
    I(f"v_lshlrev_b32 v{X}, 10, v{X}")
    I(f"v_lshl_add_u32 v{X}, v{G}, 8, v{X}")
    I(f"v_and_b32 v{Y}, 2, v{C}")
    I(f"v_lshl_add_u32 v{vT}, v{Y}, 2, v{X}")
    I("s_waitcnt lgkmcnt(0)")
    for k in range(8):
        I(f"buffer_load_dwordx2 {vr(60+4*k,2)}, v{vT}, s[44:47], 0 offen offset:{64*(k>>1) + 16*(k&1)}")
        I(f"buffer_load_dwordx2 {vr(62+4*k,2)}, v{vT}, s[44:47], 0 offen offset:{64*(k>>1) + 16*(k&1) + 32}")
    if hooks: hooks(A, 'first', 0)
    if hooks: hooks(A, 'ts', 2)
    dma(1)
    if hooks: hooks(A, 'ts', 3)
    I(f"s_and_b32 s{sT0}, s{sWV}, 1")
    I(f"s_lshl_b32 s{sT0}, s{sT0}, 3")
    I(f"v_xor_b32 v21, s{sT0}, v{LN}")
    I("v_xor_b32 v22, 4, v21")
    I(f"s_lshl_b32 s{sT1}, s{sH}, 17")
    I(f"s_lshl_b32 s{sT2}, s{sWV}, 14")
    I(f"s_add_u32 s{sT1}, s{sT1}, s{sT2}")
    I("v_lshlrev_b32 v21, 4, v21")
    I("v_lshlrev_b32 v22, 4, v22")
    I(f"v_add_u32 v21, s{sT1}, v21")
    I(f"v_add_u32 v22, s{sT1}, v22")
    I(f"v_lshl_add_u32 v{X}, v{R1}, 1, v{G0}")
    I(f"v_lshl_add_u32 v{X}, v{R0}, 2, v{X}")
    I(f"v_lshlrev_b32 v{Y}, 9, v{X}")
    I(f"v_lshl_add_u32 v{Y}, v{G1}, 14, v{Y}")
    I(f"v_lshl_add_u32 v{Y}, v{CP}, 3, v{Y}")
    I(f"s_lshl_b32 s{sT1}, s{sWV}, 1")
    I(f"v_xor_b32 v{X}, s{sT1}, v{X}")
    I(f"v_lshl_add_u32 v23, v{X}, 5, v{Y}")
    I("v_xor_b32 v24, 32, v23")
    I(f"v_lshl_add_u32 v{Y}, v{G1}, 2, v{R0}")
    I(f"v_lshl_add_u32 v{Y}, v{G0}, 4, v{Y}")
    I(f"v_lshlrev_b32 v{Y}, 10, v{Y}")
    I(f"v_lshl_add_u32 v{Y}, v{CP}, 3, v{Y}")
    I(f"v_lshl_add_u32 v{X}, v{R0}, 1, v{R1}")
    I(f"v_lshl_add_u32 v{X}, v{G0}, 2, v{X}")
    I(f"v_lshl_add_u32 v{Y}, v{X}, 5, v{Y}")
    I(f"s_lshl_b32 s{sT1}, s{sWV}, 8")
    I(f"v_add_u32 v25, s{sT1}, v{Y}")
    I(f"v_lshlrev_b32 v{vL16}, 4, v{LN}")
    I(f"s_lshl_b32 s{sT1}, s{sWV}, 14")
    I(f"v_add_u32 v{vF0}, s{sT1}, v{vL16}")
    I(f"v_add_u32 v{vF1}, 0x10000, v{vF0}")
    I(f"v_add_u32 v{vL16}, {LW}, v{vL16}")
    I(f"s_lshl_b32 s{sT1}, s{sWV}, 11")
    I(f"v_add_u32 v{vMW}, s{sT1}, v{vL16}")
    I(f"s_lshl_b32 s{sT1}, s{sWV}, 10")
    I(f"v_add_u32 v{vOW}, s{sT1}, v{vL16}")
    I(f"v_and_b32 v{vOR}, {hex(0xffffffff ^ 32)}, v{vL16}")
    I(f"v_lshlrev_b32 v{X}, 5, v{C}")
    I(f"v_lshl_add_u32 v{X}, v{G}, 3, v{X}")
    I(f"s_add_u32 s{sT1}, s{sT1}, {LW}")
    I(f"v_add_u32 v{vXW}, s{sT1}, v{X}")
    I(f"v_lshlrev_b32 v{X}, 3, v{LN}")
    I(f"v_add_u32 v{vTR}, {LW}, v{X}")
    I(f"v_lshl_add_u32 v{X}, v{R1}, 2, v{G}")
    I(f"v_lshlrev_b32 v{X}, 13, v{X}")
    I(f"v_and_b32 v{Y}, 7, v{C}")
    I(f"v_lshl_add_u32 v{X}, v{Y}, 3, v{X}")
    I(f"s_lshl_b32 s{sT1}, s{sWV}, 16")
    I(f"s_lshl_b32 s{sT2}, s{sH}, 6")
    I(f"s_add_u32 s{sT1}, s{sT1}, s{sT2}")
    I(f"v_add_u32 v{vAST}, s{sT1}, v{X}")
    I(f"s_lshl_b32 s{sT1}, s{sWV}, 11")
    I(f"s_and_b32 s{sT2}, s{sH}, 4")
    I(f"s_lshl_b32 s{sT2}, s{sT2}, 8")
    I(f"s_add_u32 s{sT1}, s{sT1}, s{sT2}")
    I(f"s_lshr_b32 s{sT2}, s{sH}, 3")
    I(f"s_lshl_b32 s{sT2}, s{sT2}, 8")
    I(f"s_add_u32 s{sT1}, s{sT1}, s{sT2}")
    I(f"s_and_b32 s{sT2}, s{sH}, 3")
    I(f"s_lshl_b32 s{sT2}, s{sT2}, 6")
    I(f"s_add_u32 s{sT1}, s{sT1}, s{sT2}")
    I(f"v_and_b32 v{Y}, 1, v{C}")
    I(f"v_and_b32 v{Z}, 2, v{C}")
    I(f"v_add_u32 v{X}, v{Z}, v{G0}")
    I(f"v_lshlrev_b32 v{X}, 4, v{X}")
    I(f"v_lshl_add_u32 v{X}, v{Y}, 3, v{X}")
    I(f"v_lshl_add_u32 v{X}, v{G1}, 2, v{X}")
    I(f"v_add_u32 v{X}, s{sT1}, v{X}")
    I(f"v_mov_b32 v{Z}, 0x40000000")
    I(f"v_cmp_gt_u32 vcc, 4, v{C}")
    I(f"v_cndmask_b32 v{vBST}, v{Z}, v{X}, vcc")
    for i in range(4):
        I(f"s_mov_b32 s{sMSK+2*i}, {hex(0x000f000f << (4*i))}")
        I(f"s_mov_b32 s{sMSK+2*i+1}, {hex(0x000f000f << (4*i))}")
    I(f"v_lshlrev_b32 v{Z}, 4, v{Y}")
    I(f"v_mov_b32 v{X}, 0x3f80")
    I(f"v_lshlrev_b32 v{vSEL}, v{Z}, v{X}")
    I(f"v_add_u32 v{vKR}, {L_K}, v{vL16}")
    I(f"v_and_b32 v{Y}, 2, v{C}")
    I(f"v_mov_b32 v{X}, 0x44444444")
    I(f"v_mov_b32 v{Z}, 0xeeeeeeee")
    I(f"v_cmp_eq_u32 vcc, 0, v{Y}")
    I(f"v_cndmask_b32 v{vIDX}, v{Z}, v{X}, vcc")
    for i in range(4): I(f"v_mov_b32 v{PZ+i}, 0")
    I(f"s_mov_b32 s{sT1}, 0x05040100")
    I(f"s_mov_b32 s{sT2}, 0x07060302")
    if hooks: hooks(A, 'ts', 4)
    I("s_waitcnt vmcnt(16)")
    if hooks: hooks(A, 'ts', 5)
    for k in range(8):
        for x in range(4):
            I(f"v_perm_b32 v{92+4*k+x}, v{62+4*k+(x>>1)}, v{60+4*k+(x>>1)}, s{sT2 if x&1 else sT1}")
            I(f"v_min_u32 v{92+4*k+x}, -2, v{92+4*k+x}")
    for k in range(8):
        I(f"ds_write_b128 v{vL16}, {vr(92+4*k,4)} offset:{L_MEM + k*1024}")
    I(f"s_mov_b32 s{sHB}, {WS_HB}")
    I(f"s_mov_b32 s{sB0}, {WS_HB - LW}")
    I(f"s_mov_b32 s{sSTEP}, 0")
    I(f"s_mov_b32 s{sHA}, {WS_HA}")
    I(f"s_lshl_b32 s{sRC}, s{sH}, 13")
    I(f"s_sub_u32 s{sRC}, s{sRC}, {LW}")
    I(f"s_add_u32 s{sRA}, s{sRC}, {WS_HA + (256<<10)}")
    I(f"s_mov_b32 s{sRB}, {WS_HB + 3*8192}")
    I(f"s_lshl_b32 s{sKV}, s{sH}, 14")
    I(f"s_add_u32 s{sKV}, s{sKV}, {WS_KV - LW}")
    I(f"s_mul_i32 s{sKM}, s{sH}, {65*4096}")
    I(f"s_add_u32 s{sKM}, s{sKM}, {WS_KM - LW - 4096}")
    I(f"s_mov_b32 s{sSPIN}, 0")
    I(f"s_mov_b32 s{sSPA}, 0")
    I(f"s_mov_b32 s{sSC}, {hex(f2u(SCALE_LOG2E))}")
    I(f"s_lshl_b32 s{sM0A}, s{sWV}, 11")
    I(f"s_add_u32 s{sM0B}, s{sM0A}, {LW + L_V}")
    I(f"s_add_u32 s{sM0A}, s{sM0A}, {LW + L_K}")
    I(f"s_mov_b64 s[{sKVM}:{sKVM+1}], -1")
    I("s_waitcnt lgkmcnt(0)")

    for ci in range(8):
        mat, half = chunks[ci]
        I(f"s_waitcnt vmcnt({(17 if (hooks and ci == 5) else 16) if ci < 7 else 0})")
        I("s_barrier")
        if hooks: hooks(A, "landed", ci)
        if mat < 3:
            for pp in range(4):
                for tau in range(2):
                    key = (mat, tau, 2*pp + half)
                    for u in range(4):
                        off = (u >> 1) * 32768 + (u & 1) * 256 + pp * 4096
                        dst = vr(HOLD + 8*LRES.index(key) + 2*u, 2) if key in LRES else slot_reg(key, 2*u, 2)
                        I(f"ds_read_b64_tr_b16 {dst}, v{23+tau} offset:{off}")
            I("s_waitcnt lgkmcnt(0)")
            I("v_xor_b32 v23, 0x10000, v23"); I("v_xor_b32 v24, 0x10000, v24")
            I("s_barrier")
            if ci + 2 < 8: dma(ci + 2)
            if hooks: hooks(A, "issued", ci + 2)
        else:
            for j in range(4):
                I(f"s_xor_b32 s{sT1}, s{sWV}, {j}")
                I(f"s_lshr_b32 s{sT2}, s{sT1}, 1")
                I(f"s_lshl_b32 s{sT2}, s{sT2}, 13")
                I(f"s_and_b32 s{sT1}, s{sT1}, 1")
                I(f"s_lshl_b32 s{sT1}, s{sT1}, 15")
                I(f"s_add_u32 s{sT1}, s{sT1}, s{sT2}")
                I(f"s_add_u32 s{sT1}, s{sT1}, {half*65536}")
                I(f"v_add_u32 v26, s{sT1}, v25")
                for p in range(4):
                    I(f"v_xor_b32 v27, {p<<6}, v26")
                    key = (3, p, j)
                    for u1 in range(2):
                        dst = vr(HW + 4*WOL.index(key) + 2*u1, 2) if key in WOL else slot_reg(key, 4*half + 2*u1, 2)
                        I(f"ds_read_b64_tr_b16 {dst}, v27 offset:{u1*2048}")
            I("s_waitcnt lgkmcnt(0)")
            I("s_barrier")
            a = vF1 if half else vF0
            for i in range(NL): I(f"ds_write_b128 v{a}, {vr(HOLD+8*i+4*half,4)} offset:{i*1024}")
            for i in range(NW): I(f"ds_write_b128 v{a}, {vr(HW+4*i,4)} offset:{(NL+i)*1024}")
            I("s_waitcnt lgkmcnt(0)")

def kv_dma(A, ld=""):
    return [f"s_mov_b32 m0, s{sM0A}",
            f"s_add_u32 s{sT3}, s{sKV}, 8192",
            f"buffer_load_dwordx4 v{vMW}, s[{sWS}:{sWS+3}], s{sKV} offen {ld} lds",
            f"buffer_load_dwordx4 v{vMW}, s[{sWS}:{sWS+3}], s{sKV} offen offset:1024 {ld} lds",
            f"s_mov_b32 m0, s{sM0B}",
            f"s_xor_b32 s{sM0A}, s{sM0A}, 8192",
            f"buffer_load_dwordx4 v{vMW}, s[{sWS}:{sWS+3}], s{sT3} offen {ld} lds",
            f"buffer_load_dwordx4 v{vMW}, s[{sWS}:{sWS+3}], s{sT3} offen offset:1024 {ld} lds",
            f"s_add_u32 s{sKV}, s{sKV}, {32*16384}"]

def kv_flag_load(A):
    I = A.I
    I(f"v_lshrrev_b32 v{vT}, 2, v{vL16}")
    I(f"s_lshl_b32 s{sT3}, s{sH}, 7")
    I(f"v_subrev_u32 v{vT}, {LW//4}, v{vT}")
    I(f"s_add_u32 s{sT3}, s{sT3}, {F_KV}")
    I(f"buffer_load_dword v{vFL}, v{vT}, s[{sWS}:{sWS+3}], s{sT3} offen sc1")

def kv_eval(A):
    I = A.I
    I(f"v_readlane_b32 s{sRDY}, v{vFL}, 0")
    I(f"s_mul_i32 s{sRDY}, s{sRDY}, {NG1}")
    for g in range(1, NG1):
        I(f"v_readlane_b32 s{sT3}, v{vFL}, {g}")
        I(f"s_mul_i32 s{sT3}, s{sT3}, {NG1}")
        I(f"s_add_u32 s{sT3}, s{sT3}, {g}")
        I(f"s_min_u32 s{sRDY}, s{sRDY}, s{sT3}")

def kv_wait(A, pfx, need, preloaded=False):
    I = A.I
    if preloaded: I(f"s_branch {pfx}_kve")
    A.label(f"{pfx}_kvw")
    kv_flag_load(A)
    I(f"s_add_u32 s{sSPIN}, s{sSPIN}, 1")
    I("s_waitcnt vmcnt(0)")
    A.label(f"{pfx}_kve")
    kv_eval(A)
    I(f"s_cmp_gt_u32 s{sSPIN}, {SPIN_MAX}")
    I(f"s_cbranch_scc1 {pfx}_kvw_done")
    I(f"s_add_u32 s{sT3}, s{sSTEP}, {need}")
    I(f"s_cmp_ge_u32 s{sT3}, s{sRDY}")
    I(f"s_cbranch_scc1 {pfx}_kvw")
    A.label(f"{pfx}_kvw_done")

def hs(x): return f"v_pk_add_f32 {vr(x,2)}, {vr(x,2)}, {vr(x+2,2)}"
def hs2(x): return [f"v_add_f32 v{x}, v{x}, v{x+2}", f"v_add_f32 v{x+1}, v{x+1}, v{x+3}"]
def cv(d, x): return f"v_cvt_pk_bf16_f32 v{d}, v{x}, v{x+1}"
def zero(base, n): return [f"v_mov_b64 {vr(base+2*i,2)}, 0" for i in range(n // 2)]
def frag_rd(i, dst):
    return [f"ds_read_b128 {vr(dst,4)}, v{vF0} offset:{i*1024}", f"ds_read_b128 {vr(dst+4,4)}, v{vF1} offset:{i*1024}"]
def chk(base, tmp):
    return [f"v_max3_u32 v{tmp}, v{base}, v{base+1}, v{base+2}", f"v_max3_u32 v{tmp+1}, v{base+3}, v{base+4}, v{base+5}",
            f"v_max3_u32 v{tmp}, v{tmp}, v{base+6}, v{base+7}", f"v_max_u32 v{tmp}, v{tmp}, v{tmp+1}", f"v_cmp_eq_u32 vcc, -1, v{tmp}"]
def delay(A, n):
    while n > 0:
        k = min(n, 16); A.I(f"s_nop {k-1}"); n -= k
def slots(A, mfmas, fills):
    for i, m in enumerate(mfmas):
        A.I(m)
        if i < len(fills):
            for f in fills[i]: A.I(f)


def chain_loop(A, st, pfx, stamp=None, pub="sc1", opt={}):
    I = A.I
    for w in range(3):
        I(f"s_cmp_eq_u32 s{sWV}, {w}"); I(f"s_cbranch_scc1 {pfx}{w}_entry")
    for w in (3, 2, 1, 0):
        A.label(f"{pfx}{w}_entry")
        chain_wave(A, st, f"{pfx}{w}", w, stamp, pub, opt)
        if w: I(f"s_branch {pfx}_exit")
    A.label(f"{pfx}_exit")

def chain_wave(A, st, pfx, w, stamp, pub, opt):
    I = A.I
    WS = f"s[{sWS}:{sWS+3}]"
    nohop = opt.get("nohop")
    def T(i):
        if stamp: stamp(A, i)
    lres_rd = sum([frag_rd(i, LBUF[i]) for i in range(NL)], [])
    PB = S + 8
    mega = opt.get("mega")
    kld = "sc1" if mega else ""
    I("s_waitcnt lgkmcnt(0)")
    for x in ([] if mega else kv_dma(A, kld)) + lres_rd + zero(AQ, 24): I(x)
    if mega:
        I(f"s_cmp_le_u32 s{sRDY}, 1"); I(f"s_cselect_b64 s[{sKVM}:{sKVM+1}], -1, 0")
        I(f"s_lshl_b32 s{sPF}, s{sH}, 7"); I(f"s_add_u32 s{sPF}, s{sPF}, {F_KV}")
    I("s_waitcnt vmcnt(0) lgkmcnt(0)")
    if opt.get("dm", 0) and w >= 2: I(f"s_branch {pfx}_e0")
    else:
        I("s_barrier")
        I(f"s_branch {pfx}_b1")
    rsc = opt.get('rsc', 1)
    e2 = opt.get("e2", 1)
    BS = [M + 16, M + 24] if e2 else [M + 16, M + 20, M + 24]
    NB_ = 2 if e2 else 1
    NEG = S + 4 if rsc == 1 else (M + 28 if rsc == 0 else KX)
    m0E = LW + L_MEM + w*1024*NB_; m0L = LW + L_MEM + w*1024 + 4096
    vE = vMW if e2 else vOW
    def pollB(b): return ([f"buffer_load_dwordx4 {vr(b+4*i,4)}, v{vE}, {WS}, s{sB0} offen offset:{1024*i} sc1" for i in range(NB_)] +
                          [f"buffer_load_dwordx4 v{vE}, {WS}, s{sB0} offen offset:{1024*i} sc1 lds" for i in range(NB_)])
    mr = [f"ds_read_b128 {vr(M+4*k,4)}, v{vL16} offset:{L_MEM+1024*k}" for k in range(8)]
    def ckr(base, n):
        regs = list(range(base, base + n))
        out = [f"v_max3_u32 v{vT}, v{regs[0]}, v{regs[1]}, v{regs[2]}"]
        for i in range(3, len(regs) - 1, 2): out.append(f"v_max3_u32 v{vT}, v{vT}, v{regs[i]}, v{regs[i+1]}")
        out.append(f"v_max_u32 v{vT}, v{vT}, v{regs[-1]}")
        out.append(f"v_cmp_eq_u32 vcc, -1, v{vT}")
        return out
    dm = opt.get("dm", 0)
    lateD = f"buffer_load_dwordx4 v{vOW}, {WS}, s{sT2} offen sc1 lds"
    if dm == 2:
        m0L = LW + L_MEM + 4096 + w*2048
        lateD = "\n".join(f"buffer_load_dwordx4 v{vMW}, {WS}, s{sT2} offen offset:{1024*i} sc1 lds" for i in range(2)) if w < 2 else "s_nop 0"
    hw = w - 2
    def kdma(): return [f"s_add_u32 m0, s{sM0A}, {hw*4096 - w*2048}", f"s_add_u32 s{sT3}, s{sKV}, {hw*4096}"] + [f"buffer_load_dwordx4 v{vL16}, {WS}, s{sT3} offen offset:{1024*i} {kld} lds" for i in range(4)]
    def vdma(): return [f"s_mov_b32 m0, {LW + L_V + hw*4096}", f"s_add_u32 s{sT3}, s{sKV}, {8192 + hw*4096}"] + [f"buffer_load_dwordx4 v{vL16}, {WS}, s{sT3} offen offset:{1024*i} {kld} lds" for i in range(4)]
    kvadv = [f"s_xor_b32 s{sM0A}, s{sM0A}, 8192", f"s_add_u32 s{sKV}, s{sKV}, {32*16384}"]
    A.label(f"{pfx}_side")
    I(f"v_cmp_eq_u32 vcc, -1, v{vT}")
    I(f"s_cbranch_vccz {pfx}_side2")
    A.label(f"{pfx}_lateB")
    if dm: I(f"s_mov_b32 m0, {m0L}")
    I(lateD)
    I(f"s_add_u32 s{sSPIN}, s{sSPIN}, 1")
    I(f"s_cmp_gt_u32 s{sSPIN}, {SPIN_MAX}")
    if not (dm == 2 and w >= 2): I(f"s_waitcnt vmcnt({2 if dm == 2 else 1})")
    I(f"s_cbranch_scc1 {pfx}_lateB_ok")
    for x in mr[4:]: I(x)
    I("s_waitcnt lgkmcnt(0)")
    for x in ckr(M + 16, 16): I(x)
    I(f"s_cbranch_vccnz {pfx}_lateB")
    A.label(f"{pfx}_lateB_ok")
    if not (dm == 2 and w >= 2): I("s_waitcnt vmcnt(0)")
    A.label(f"{pfx}_side2")
    if mega and not dm:
        I(f"s_cmp_eq_u32 s{sKVM}, 0"); I(f"s_cbranch_scc1 {pfx}_late_done")
        kv_wait(A, pfx + "_l", 1)
    I(f"s_branch {pfx}_late_done")
    NR = 0 if rsc else 3
    resets = [f"buffer_store_dwordx4 {vr(NEG,4)}, v{vMW}, {WS}, s{sRA} offen {st}", f"buffer_store_dwordx4 {vr(NEG,4)}, v{vMW}, {WS}, s{sRA} offen offset:1024 {st}",
              f"buffer_store_dword v{NEG}, v{vBST}, {WS}, s{sRB} offen {st}"]
    neg = [f"v_mov_b64 {vr(NEG,2)}, -1", f"v_mov_b64 {vr(NEG+2,2)}, -1"]
    npB = opt.get("npB", 2)
    if e2:
        def chkB(b):
            I("s_waitcnt vmcnt(6)")
            for x in chk(b, vT): I(x)
            I("s_waitcnt vmcnt(4)")
        A.label(f"{pfx}_e1")
        for x in pollB(BS[0]): I(x)
        chkB(BS[1])
        I(f"s_cbranch_vccz {pfx}_go")
        for x in pollB(BS[1]): I(x)
        I(f"s_add_u32 s{sSPIN}, s{sSPIN}, 1")
        I(f"s_cmp_gt_u32 s{sSPIN}, {SPIN_MAX}")
        I(f"s_cbranch_scc1 {pfx}_go")
        A.label(f"{pfx}_e0")
        if w < 2:
            chkB(BS[0])
            if not nohop: I(f"s_cbranch_vccnz {pfx}_e1")
        else:
            I("s_waitcnt vmcnt(0)")
            if dm and mega:
                I(f"s_cmp_eq_u32 s{sKVM}, 0"); I(f"s_cbranch_scc1 {pfx}_kvgo")
                kv_wait(A, pfx + "_l", 1)
                A.label(f"{pfx}_kvgo")
            if dm == 2:
                delay(A, opt.get("dK", 0))
                for x in kdma(): I(x)
            if dm in (1, 3):
                I(f"s_cmp_eq_u32 s{sSTEP}, 0"); I(f"s_cbranch_scc0 {pfx}_go"); I("s_barrier"); I(f"s_branch {pfx}_b1")
    else:
        A.label(f"{pfx}_eslow")
        for x in pollB(BS[0]): I(x)
        I(f"s_add_u32 s{sSPIN}, s{sSPIN}, 1")
        I(f"s_cmp_gt_u32 s{sSPIN}, {SPIN_MAX}")
        I("s_waitcnt vmcnt(0)")
        I(f"s_cbranch_scc1 {pfx}_go")
        for x in ckr(BS[0], 4): I(x)
        I(f"s_cbranch_vccnz {pfx}_eslow")
        I(f"s_branch {pfx}_go")
        npB = opt.get("npB", 2)
        A.label(f"{pfx}_e1")
        for i in range(1, npB):
            y = 2*(npB - 1 - i) + NR
            I(f"s_waitcnt vmcnt({y+1})")
            for x in ckr(BS[i], 4): I(x)
            I(f"s_waitcnt vmcnt({y})")
            I(f"s_cbranch_vccz {pfx}_go")
        I(f"s_branch {pfx}_eslow")
        A.label(f"{pfx}_e0")
        y = 2*(npB - 1) + NR
        I(f"s_waitcnt vmcnt({y+1})")
        for x in ckr(BS[0], 4): I(x)
        I(f"s_waitcnt vmcnt({y})")
        if not nohop: I(f"s_cbranch_vccnz {pfx}_e1")
    A.label(f"{pfx}_go")
    I(f"s_mov_b32 m0, {m0L}")
    T(53)
    if not e2: I(lateD)
    I("s_barrier")
    if e2: I(lateD)
    A.label(f"{pfx}_b1")
    T(0)
    acc = {0: AQ, 1: AK, 2: AV}
    def m1(mat, tau, p): return smf(acc[mat] + 4*tau, M + 4*p, wfrag(mat, tau, p))
    def mm(mat, p): return [m1(mat, 0, p), m1(mat, 1, p)]
    kx = [f"ds_read_b128 {vr(KX+4*i,4)}, v{vKR} offset:{1024*i}" for i in range(8)]
    vx = [f"ds_read_b128 {vr(VX+4*i,4)}, v{vMW} offset:{L_V+1024*i}" for i in range(2)]
    q0p = hs2(AQ) + [cv(AQ+2, AQ)]; q1p = hs2(AQ+4) + [cv(AQ+6, AQ+4)]
    k0p = hs2(AK) + [cv(AQ+3, AK)]; k1p = hs2(AK+4) + [cv(AQ+7, AK+4)]
    dma = ["s_nop 0"]*9 if opt.get("nodma") else kv_dma(A, kld)
    publish = [] if opt.get("nopub") else [f"buffer_store_dwordx4 {vr(PB,4)}, v{vOW}, {WS}, s{sKM} offen {pub}"]
    for x in mr[:4]: I(x)
    I("s_waitcnt lgkmcnt(3)")
    T(10)
    vm = sum([mm(2, p) for p in range(8)], [])
    nb = opt.get("nb", 10)
    ph1 = sum([mm(0, k) + mm(1, k) for k in range(4)], []) + vm[:8]
    vm = vm[8:]
    kvr = vx + kx
    fl = [[] for _ in range(24)]
    fl[2].append("s_waitcnt lgkmcnt(0)")
    for i in range(5, nb - 1): fl[i].append(kvr.pop(0))
    nrd = nb - 1 - 5
    fl[nb-1] += [("s_waitcnt" + ("" if (dm == 2 and w >= 2) else (" vmcnt(4)" if (dm == 3 and w >= 2) else " vmcnt(0)")) + (f" lgkmcnt({nrd - 2})" if dm else "")), "s_barrier"]
    if nb >= 11:
        fl[nb-1] += [mr[4]]; fl[nb] += [mr[5], mr[6]]; fl[nb+1] += [mr[7]]
    else:
        for i in range(4): fl[nb+i].append(mr[4+i])
    c = ckr(M + 16, 16)
    st0 = 22 - len(c) if (mega and not dm) else 23 - len(c)
    assert st0 >= (nb + 1 if nb >= 11 else nb + 3)
    fl[st0].append("s_waitcnt lgkmcnt(2)"); fl[st0+3].append("s_waitcnt lgkmcnt(0)")
    for i, x in enumerate(c):
        if i >= 4 and kvr: fl[st0+i].append(kvr.pop(0))
        fl[st0+i].append(x)
    if rsc == 2 and publish:
        k = nb + 2 + w; fl[k] = [x for x in fl[k] if not x.startswith('v_')] + publish + [x for x in fl[k] if x.startswith('v_')]
    if rsc == 1 and not dm:
        fl[3].append(neg[0]); fl[4].append(neg[1])
        if opt.get("pubat", 1) == 1 and publish: resets[2] = publish[0]
        for i in range(3):
            k = min(nb + 4*i + w + opt.get("rso", 0), 22)
            nv_ = [x for x in fl[k] if not x.startswith("v_")]; vv = [x for x in fl[k] if x.startswith("v_")]
            fl[k] = nv_ + [resets[i]] + vv
    def put(fl, k, items):
        fl[k] = [x for x in fl[k] if not x.startswith("v_")] + items + [x for x in fl[k] if x.startswith("v_")]
    late_vm = []
    if dm:
        if rsc == 1: fl[3].append(neg[0]); fl[4].append(neg[1])
        st3 = [resets[0], resets[1]] + publish
        if dm == 3:
            if w < 2:
                k0 = nb + 8 + w
                put(fl, k0, [st3[0]]); put(fl, k0 + 2, [st3[1]])
                late_vm = [[]]*3 + [[x] for x in st3[2:]]
            else:
                d = kdma()
                put(fl, 0, d[:2])
                for i in range(4): put(fl, 1 + 2*i + hw, [d[2+i]])
                d = vdma()
                fl[nb-1] = d[:2] + fl[nb-1]
                for i in range(4): put(fl, nb + 2*i + hw, [d[2+i]])
                late_vm = [[x] for x in st3]
        elif w < 2:
            for i, x in enumerate(st3): put(fl, nb + 4*i + w, [x])
        else:
            d = vdma() if dm == 2 else kdma()
            put(fl, nb + w - 1, d[:2])
            for i in range(3): put(fl, nb + 4*i + w, [d[2+i]])
            late_vm = [[d[5]]] + ([] if dm == 2 else [vdma()[:3]] + [[x] for x in vdma()[3:]]) + [[x] for x in st3]
    if mega and not dm: fl[22].append(f"s_or_b64 vcc, vcc, s[{sKVM}:{sKVM+1}]")
    slots(A, ph1, fl)
    if not nohop: I(f"s_cbranch_vccnz {pfx}_side")
    A.label(f"{pfx}_late_done")
    T(14)
    ph2 = mm(0, 4) + mm(0, 5) + mm(0, 6) + mm(0, 7) + [m1(1, 0, p) for p in range(4, 8)] + [m1(1, 1, p) for p in range(4, 8)]
    pre = [[] for _ in range(16)]; val = [[] for _ in range(16)]
    for i, x in enumerate(q0p + q1p + k0p[:1]): val[9+i].append(x)
    if dm:
        if late_vm and dm != 3: I(f"s_mov_b32 m0, {LW + L_V + hw*4096}" if dm == 2 else kdma()[0])
        for i, x in enumerate(late_vm): pre[2*i + (w & 1)] += x
        if w >= 2: dma[8] = "\n".join(kvadv)
        else: dma[8] = "s_nop 0"
    else:
        vslot = [w, 4 + w, 8 + w, 12 + w]
        pre[vslot[0]] += ([dma[0], dma[1]] if w == 0 else []) + [dma[2]]
        if w: pre[0] += [dma[0], dma[1]]
        pre[vslot[1]] += [dma[3], dma[4]]; pre[vslot[1]+1] += [dma[5]]
        pre[vslot[2]] += [dma[6]]; pre[vslot[3]] += [dma[7]]
    free = [i for i in range(8) if not pre[i]]
    while kvr: pre[free.pop(0)].append(kvr.pop(0))
    kvw = mega and (not dm or w >= 2)
    if kvw:
        val[5] += [f"v_lshrrev_b32 v{vT}, 2, v{vL16}"]; val[6] += [f"v_subrev_u32 v{vT}, {LW//4}, v{vT}"]
    for i in (7, 8):
        if len(pre[i]) < 2: pre[i].append(f"s_nop {1 - len(pre[i])}")
    slots(A, ph2, [pre[i] + val[i] for i in range(16)])
    T(13)
    for x in k0p[1:]: I(x)
    I(f"ds_write_b64 v{vXW}, {vr(AQ+2,2)} offset:{L_QK}")
    I(dma[8])
    for x in k1p: I(x)
    I(f"ds_write_b64 v{vXW}, {vr(AQ+6,2)} offset:{L_QK+512}")
    T(20)
    wo = sum([frag_rd(NL + i, WBUF[i]) for i in range(NW)], [])
    fl = [[], [], [], []]
    oth = [i for i in range(4) if i != w]
    if opt.get("pubat", 1) == 1 and rsc == 1 and publish: fl[w] = [f"buffer_store_dword v{NEG}, v{vBST}, {WS}, s{sRB} offen {st}"]
    if opt.get("pubat", 1) == 0: fl[w] = publish
    fl[oth[0]] = [wo[0], cv(AK, AK)]; fl[oth[1]] = [wo[1], cv(AK+1, AK+4)]
    flagld = [f"buffer_load_dword v{vFL}, v{vT}, {WS}, s{sPF} offen sc1"] if kvw else []
    slots(A, vm[:4], fl)
    I(f"s_waitcnt lgkmcnt(2)")
    T(22)
    I("s_barrier")
    T(2)
    F = [M, M + 4, AQ, AQ + 4]
    frd = [f"ds_read_b64_tr_b16 {vr(F[sg]+2*rho,2)}, v{vTR} offset:{L_QK + sg*1024 + rho*512}" for sg in range(4) for rho in range(2)]
    for x in frd[:2]: I(x)
    slots(A, vm[4:], [frd[2:4], frd[4:6], frd[6:8], ["s_waitcnt lgkmcnt(4)"]])
    ONES = AV; LA = AK + 4; OA = AQ; tmx = AK + 4
    def sx(tau, sg): return mf32(S + 4 + 4*tau, KX + 16*tau + 4*sg, F[sg], "0" if sg == 0 else vr(S + 4 + 4*tau, 4))
    def s0(sg): return mf32(S, F[sg], F[sg], "0" if sg == 0 else vr(S, 4))
    fl = [[wo[2]], [wo[3], "s_waitcnt lgkmcnt(2)"], [wo[4]], [wo[5], f"s_cmp_ge_u32 s{sSTEP}, {opt.get('imm', 61)}"]]
    fl[0 if w < 2 else 2] += flagld
    slots(A, [sx(1, sg) for sg in range(4)], fl)
    slots(A, [sx(0, sg) for sg in range(4)], [[wo[6]] + hs2(AV)[:1], [wo[7]] + hs2(AV)[1:], [wo[8]] + hs2(AV+4)[:1], [wo[9]] + hs2(AV+4)[1:]])
    slots(A, [s0(sg) for sg in range(4)],
          [[wo[10], f"v_max3_f32 v{tmx}, v{S+8}, v{S+9}, v{S+10}"], [wo[11], cv(AK+2, AV)], [wo[12], cv(AK+3, AV+4)],
           [wo[13], f"v_max3_f32 v{tmx}, v{tmx}, v{S+11}, v{S+4}"]])
    I(f"s_cbranch_scc1 {pfx}_done")
    A.label(f"{pfx}_resume")
    T(3)
    I(f"v_max3_f32 v{tmx}, v{tmx}, v{S+5}, v{S+6}")
    I(f"v_max_f32 v{tmx}, v{tmx}, v{S+7}")
    I(f"v_mov_b32 v{tmx+2}, s{sSC}")
    I(f"v_xor_b32 v{vKR}, {0 if opt.get('nodma') else 8192}, v{vKR}")
    for x in zero(AV + 4, 4): I(x)
    I(f"v_max3_f32 v{tmx+1}, v{tmx}, v{S+2}, v{S+3}")
    I(f"v_max3_f32 v{tmx}, v{tmx}, v{S+2}, v{S+3}")
    I(f"v_mov_b32 v{ONES}, 0x3f803f80")
    I(f"v_mov_b32 v{ONES+1}, 0x3f803f80")
    I(f"v_permlane32_swap_b32 v{tmx}, v{tmx+1}")
    I(f"v_max_f32 v{tmx}, v{tmx}, v{tmx+1}")
    I(f"v_mov_b32 v{tmx+1}, v{tmx}")
    I(f"v_mov_b64 {vr(ONES+2,2)}, {vr(ONES,2)}")
    I(f"v_permlane16_swap_b32 v{tmx}, v{tmx+1}")
    I(f"v_max_f32 v{tmx}, v{tmx}, v{tmx+1}")
    I(f"v_mul_f32 v{tmx}, s{sSC}, v{tmx}")
    for i in range(1, 6):
        I(f"v_pk_fma_f32 {vr(S+2*i,2)}, {vr(S+2*i,2)}, {vr(tmx+2,2)}, {vr(tmx,2)} op_sel_hi:[1,0,0] neg_lo:[0,0,1] neg_hi:[0,0,1]")
    ex = [f"v_exp_f32 v{S+i}, v{S+i}" for i in range(12)]
    I(ex[2]); I(ex[3]); I(ex[4])
    I(cv(PZ, S+2)); I(cv(PZ+3, S+2))
    I(ex[5])
    T(4)
    pk = [cv(S+4+i, S+4+2*i) for i in range(4)]
    slots(A, [mf16(OA, AK+2, PZ, "0"), mf16(OA+4, AK+2, PZ+2, "0"), mf16(LA, ONES, PZ, "0")],
          [[ex[6], ex[7]], [ex[8], ex[9]], [ex[10], ex[11]]])
    for x in pk: I(x)
    I(f"v_mov_b64 {vr(PB,2)}, {vr(AK,2)}"); I(f"v_mov_b64 {vr(PB+2,2)}, {vr(AK+2,2)}")
    slots(A, [mf32(LA, ONES, S+4, vr(LA,4)), mf32(OA, VX, S+4, vr(OA,4)), mf32(OA+4, VX+4, S+4, vr(OA+4,4))],
          [[wo[14]] + zero(AK, 2), [wo[15]] + zero(AK+2, 2), zero(AV, 4)])
    wrest = wo[16:]
    T(40)
    I(f"v_rcp_f32 v{LA}, v{LA}")
    for i in range(4):
        I(f"v_pk_mul_f32 {vr(OA+2*i,2)}, {vr(OA+2*i,2)}, {vr(LA,2)} op_sel_hi:[1,0]")
    for i in range(4): I(cv(OA+i, OA+2*i))
    I(f"ds_write_b128 v{vOW}, {vr(OA,4)} offset:{L_O}")
    T(41)
    WA = [AV, AV + 4, AK, AK + 4]
    OF = [OA, OA + 4, VX, VX + 4]
    def wm(p, j): return smf(WA[p], OF[j], wfrag(3, p, j))
    for i in range(4): I(f"v_mov_b32_dpp v{OA+i}, v{OA+i} quad_perm:[0,1,0,1] row_mask:0xf bank_mask:0xf")
    z = zero(AK + 4, 4)
    I(z[0]); I(z[1])
    sal = [f"s_add_u32 s{sT1}, s{sHA}, 4096", f"s_mov_b32 s{sRB}, s{sHB}", f"s_add_u32 s{sHB}, s{sHB}, 8192",
           f"s_and_b32 s{sHB}, s{sHB}, {hex(0xffffffff ^ (1<<15))}", f"s_sub_u32 s{sB0}, s{sHB}, {LW}", f"s_add_u32 s{sRA}, s{sRC}, s{sHA}",
           f"s_add_u32 s{sKM}, s{sKM}, 4096", f"s_add_u32 s{sSTEP}, s{sSTEP}, 1"]
    npre3 = opt.get("npre3", 2)
    own = [wm(p, 0) for p in range(4)]
    slots(A, own[:npre3], [sal[:3]])
    I("s_waitcnt lgkmcnt(0)")
    T(42)
    I("s_barrier")
    T(5)
    for j in (1, 3, 2): I(f"ds_read_b128 {vr(OF[j],4)}, v{vOR} offset:{L_O + ((j ^ w) << 10)}")
    for x in own[npre3:]: I(x)
    I("s_waitcnt lgkmcnt(2)")
    T(31)
    def post(p):
        x = WA[p]
        return [f"v_cvt_pk_bf16_f32 v{x}, v{x}, v{x+2}", f"v_cvt_pk_bf16_f32 v{x+1}, v{x+1}, v{x+3}",
                f"buffer_store_dwordx2 {vr(x,2)}, v{vAST}, {WS}, s{sHA if p < 2 else sT1} offen offset:{2048*(p&1)} {st}"]
    P = [post(p) for p in range(4)]
    ms = [wm(p, j) for p in range(4) for j in (1, 3, 2)]
    fl = [["s_waitcnt lgkmcnt(1)", wrest[0]], ["s_waitcnt lgkmcnt(1)", wrest[1]], [wrest[2], sal[3]],
          [wrest[3], sal[4]], sal[5:7] + [P[0][0]], sal[7:8] + ["s_nop 0", P[0][1]],
          [P[0][2]], ["s_nop 1", P[1][0]], ["s_waitcnt lgkmcnt(0)", "s_nop 0", P[1][1]],
          [P[1][2]], ["s_nop 1", P[2][0]], P[2][1:3]]
    hl = opt.get("hl", 0)
    if hl: fl[11] = P[2][1:2]
    slots(A, ms, fl)
    T(34)
    for x in (P[3][:2] if hl else P[3]): I(x)
    T(6)
    RAs = [M, M + 8]; SEL = M + 16; RD = M + 20
    def pollA(b): return [f"buffer_load_dwordx4 {vr(b,4)}, v{vMW}, {WS}, s{sRA} offen sc1", f"buffer_load_dwordx4 {vr(b+4,4)}, v{vMW}, {WS}, s{sRA} offen offset:1024 sc1"]
    if opt.get("bar6", 1): I("s_barrier")
    work = zero(AQ, 24) + [f"v_cndmask_b32 v{SEL+i}, 0, v{vSEL}, s[{sMSK+2*i}:{sMSK+2*i+1}]" for i in range(4)] + ([] if rsc else neg)
    if rsc == 2:
        for x in neg: I(x)
        if w >= 2:
            I(f"s_xor_b32 s{sT3}, s{sHA}, {256<<10}"); I(f"s_add_u32 s{sT3}, s{sT3}, s{sRC}")
            if w == 3: I(f"s_add_u32 s{sT3}, s{sT3}, 4096")
            for i in range(4): I(f"buffer_store_dwordx4 {vr(NEG,4)}, v{vL16}, {WS}, s{sT3} offen offset:{i*1024} {st}")
    if hl and w >= 2:
        delay(A, opt.get("dH", 24)); I(P[2][2]); I(P[3][2])
    delay(A, opt.get("dA", [20, 32, 48, 60])[w])
    T(51)
    for x in pollA(RAs[0]): I(x)
    if hl and w < 2:
        if w == 0: delay(A, opt.get("dH0", 8))
        I(P[2][2]); I(P[3][2])
    for x in work: I(x)
    delay(A, opt.get("gapA", 4))
    for x in pollA(RAs[1]): I(x)
    I(f"s_xor_b32 s{sHA}, s{sHA}, {256<<10}")
    I(f"s_mov_b32 m0, {m0E}")
    I(f"s_add_u32 s{sT2}, s{sB0}, 4096")
    I(f"s_branch {pfx}_waitA")
    def red(b, n=2):
        I(f"s_waitcnt vmcnt({n})")
        c = chk(b, vT)
        slots(A, [mf32(RD, SEL, b, "0"), mf32(RD, SEL, b + 4, vr(RD, 4))], [c[:2], c[2:]])
    A.label(f"{pfx}_pollA_retry")
    for x in pollA(RAs[0]): I(x)
    I(f"s_add_u32 s{sSPA}, s{sSPA}, 1")
    red(RAs[1])
    I(f"s_cbranch_vccz {pfx}_goA")
    for x in pollA(RAs[1]): I(x)
    I(f"s_cmp_gt_u32 s{sSPA}, {SPIN_MAX}")
    I(f"s_cbranch_scc1 {pfx}_goA")
    if hl and w < 2: I("s_waitcnt vmcnt(2)")
    A.label(f"{pfx}_waitA")
    red(RAs[0], 4 if (hl and w < 2) else 2)
    I("s_nop 3")
    if not nohop: I(f"s_cbranch_vccnz {pfx}_pollA_retry")
    A.label(f"{pfx}_goA_n")
    T(7)
    for rot in (4, 8):
        I(f"v_add_f32_dpp v{RD}, v{RD}, v{RD} row_ror:{rot} row_mask:0xf bank_mask:0xf")
        I(f"v_add_f32_dpp v{RD+1}, v{RD+1}, v{RD+1} row_ror:{rot} row_mask:0xf bank_mask:0xf")
    I(cv(RD, RD))
    I(f"buffer_store_dword v{RD}, v{vBST}, {WS}, s{sHB} offen {st}")
    T(8)
    if rsc == 2: I(resets[2])
    nl0 = opt.get("nl0", 8)
    for x in lres_rd[:nl0]: I(x)
    if kvw:
        I(f"s_cmp_gt_u32 s{sRDY}, 64"); I(f"s_cbranch_scc1 {pfx}_kvall")
        kv_eval(A)
        I(f"s_add_u32 s{sT3}, s{sSTEP}, 1"); I(f"s_cmp_ge_u32 s{sT3}, s{sRDY}"); I(f"s_cselect_b64 s[{sKVM}:{sKVM+1}], -1, 0")
        I(f"s_cmp_gt_u32 s{sRDY}, 64"); I(f"s_cselect_b32 s{sPF}, 0x40000000, s{sPF}")
        I(f"s_branch {pfx}_kvdone")
        A.label(f"{pfx}_kvall")
        I(f"s_mov_b64 s[{sKVM}:{sKVM+1}], 0")
    delay(A, opt.get("dB", [36, 24, 24, 12])[w])
    A.label(f"{pfx}_kvdone")
    T(50)
    rest = lres_rd[nl0:]
    for i in range(0 if (e2 and w >= 2) else npB):
        for x in pollB(BS[i]): I(x)
        if i < npB - 1:
            for x in rest[:2]: I(x)
            delay(A, opt.get("gapB", 16)); rest = rest[2:]
    for x in rest: I(x)
    if not rsc:
        for x in resets: I(x)
    T(52)
    I("s_waitcnt lgkmcnt(0)")
    I(f"s_branch {pfx}_e0")
    A.label(f"{pfx}_goA")
    I("s_nop 3")
    I(f"s_branch {pfx}_goA_n")
    A.label(f"{pfx}_done")
    I(f"s_add_u32 s{sKM}, s{sKM}, 4096")
    if publish: I(f"buffer_store_dwordx4 {vr(AK,4)}, v{vOW}, {WS}, s{sKM} offen {pub}")
    I(f"s_sub_u32 s{sKM}, s{sKM}, 4096")
    I(f"s_cmp_lt_u32 s{sSTEP}, 63")
    I(f"s_cbranch_scc1 {pfx}_resume")
```

```python
from work import *
NAME = "sequential_preLN__memory_aug_recurrent_mem_tr__mixer_gmlp__prompt_kernel"
def gen(opt={}):
    A = Asm(); I = A.I
    TRACE[0] = bool(opt.get('trace'))
    A.raw(f"; @launch grid=(256,1,1) block=(256,1,1) lds={LDS_BYTES}")
    A.raw(f'.amdgcn_target "amdgcn-amd-amdhsa--gfx950"\n.text\n.globl {NAME}\n.p2align 8\n.type {NAME},@function\n{NAME}:')
    lt = opt.get("lt")
    if lt: I("s_memrealtime s[96:97]")
    def ltend():
        if not lt: return
        I("s_waitcnt vmcnt(0)"); I("s_memrealtime s[98:99]"); I("s_waitcnt lgkmcnt(0)")
        I("v_mov_b32 v20, s96"); I("v_mov_b32 v21, s98"); I(f"s_lshl_b32 s62, s2, 2"); I(f"s_add_u32 s62, s62, s{sWV}"); I("s_lshl_b32 s62, s62, 3"); I(f"s_add_u32 s62, s62, {WS_TR}")
        I("v_mov_b32 v22, 0"); I("s_mov_b64 exec, 1"); I(f"buffer_store_dwordx2 v[20:21], v22, {WSS}, s62 offen")
    prologue(A, opt.get("force"), opt.get("early", 0), opt.get("rot", 1))
    I(f"s_cmp_eq_u32 s{sG}, 0"); I("s_cbranch_scc0 L_notchain")
    chain_role(A, dict(dict(dA=[28,40,56,68], dB=[24,24,0,0], gapA=8, gapB=16, nb=10, dm=3, hold=opt.get('hold')), **opt.get('chain', {})))
    I("s_branch L_helper" if opt.get("stage", 9) >= 3 else "s_endpgm")
    A.label("L_notchain")
    lanes(A)
    I(f"s_cmp_ge_u32 s{sG}, 6"); I("s_cbranch_scc1 L_post")
    h_phase1(A, opt)
    I(f"s_cmp_ge_u32 s{sG}, 6"); I("s_cbranch_scc1 L_post2")
    if opt.get("stage", 9) >= 2:
        import work2; work2.h_phase2(A, opt)
    if opt.get("stage", 9) >= 3:
        A.label("L_helper")
        work2.helper_t6(A, opt)
        if TRACE[0]:
            I("s_waitcnt vmcnt(0)"); TS(A, 15, 63)
            I(f"s_cmp_lg_u32 s{sWV}, 0"); I("s_cbranch_scc1 L_end")
            I(f"s_lshl_b32 s62, s{sG}, 5"); I(f"s_add_u32 s62, s62, s{sH}"); I("s_lshl_b32 s62, s62, 10"); I(f"s_add_u32 s62, s62, {WS_TR}")
            I("v_lshlrev_b32 v21, 2, v0"); I("s_mov_b32 exec_lo, 0"); I("s_mov_b32 exec_hi, 0xffff8000"); I(f"buffer_store_dword v15, v21, {WSS}, s62 offen")
    ltend()
    I("s_endpgm")
    A.label("L_post")
    p_init(A, opt)
    I("s_branch L_h1")
    A.label("L_post2")
    if opt.get("stage", 9) >= 3:
        import work2; work2.p_main(A, opt)
    ltend()
    A.label("L_end"); I("s_endpgm")
    A.raw('.section .rodata,"a"\n.p2align 6'); A.raw(kd(NAME, 512, 100, 256))
    return A.text()
if __name__ == "__main__":
    import sys
    open("mega_test.s", "w").write(gen({"stage": int(sys.argv[1]) if len(sys.argv) > 1 else 9}))
```

```python
from chain import *

sG = 39
D_OVF, D_PINIT, D_CHAIN, D_PROG, D_P2 = 192, 200, 204, 136, 208
WSS = f"s[{sWS}:{sWS+3}]"
DBG = f"s[{sDBG}:{sDBG+3}]"
SW = f"s[{sW}:{sW+3}]"
OOB = 0x40000000
wLN, wC, wG, wR, wCP, wL16 = 1, 2, 3, 4, 5, 6

TRACE = [False]
WS_TR = 1 << 20
def TS(A, vreg, lane):
    if not TRACE[0]: return
    A.I("s_memrealtime s[62:63]"); A.I("s_waitcnt lgkmcnt(0)")
    if isinstance(lane, int): A.I(f"v_writelane_b32 v{vreg}, s62, {lane}")
    else:
        A.I(f"s_mov_b32 m0, {lane}"); A.I("s_nop 0"); A.I(f"v_writelane_b32 v{vreg}, s62, m0")
def TDUMP(A, vregs, tmp, dbgw=None):
    if not TRACE[0]: return
    I = A.I
    l = A.newlabel("td")
    I(f"s_cmp_lg_u32 s{sWV}, 0"); I(f"s_cbranch_scc1 {l}")
    I(f"s_lshl_b32 s62, s{sG}, 5"); I(f"s_add_u32 s62, s62, s{sH}"); I("s_lshl_b32 s62, s62, 10"); I(f"s_add_u32 s62, s62, {WS_TR}")
    I(f"v_mbcnt_lo_u32_b32 v{tmp}, -1, 0"); I(f"v_mbcnt_hi_u32_b32 v{tmp}, -1, v{tmp}"); I(f"v_lshlrev_b32 v{tmp}, 2, v{tmp}")
    for i, r in enumerate(vregs): I(f"buffer_store_dword v{r}, v{tmp}, {WSS}, s62 offen offset:{256*i}")
    if dbgw:
        g, w0, lo, n = dbgw
        e = A.newlabel("te")
        I(f"s_cmp_lg_u32 s{sG}, {g}"); I(f"s_cbranch_scc1 {e}"); I(f"s_cmp_lg_u32 s{sH}, 0"); I(f"s_cbranch_scc1 {e}")
        I(f"s_mov_b64 exec, {hex(((1 << n) - 1) << lo)}")
        I(f"buffer_store_dword v{vregs[0]}, v{tmp}, {DBG}, 0 offen offset:{4*(w0 - lo)}")
        I("s_mov_b64 exec, -1")
        A.label(e)
    I("s_waitcnt vmcnt(0)")
    A.label(l)

def srd(A, karg_off, nbytes):
    A.I(f"s_load_dwordx2 s[{sW}:{sW+1}], s[0:1], {karg_off}")
    A.I(f"s_mov_b32 s{sW+2}, {nbytes}")
    A.I(f"s_mov_b32 s{sW+3}, 0x20000")
    A.I("s_waitcnt lgkmcnt(0)")

def prologue(A, force=None, early=1, rot=0):
    I = A.I
    if TRACE[0]: I("s_memrealtime s[64:65]")
    I(f"s_load_dwordx2 s[{sWS}:{sWS+1}], s[0:1], 112")
    I(f"s_load_dwordx2 s[{sDBG}:{sDBG+1}], s[0:1], 104")
    I("s_load_dwordx4 s[48:51], s[0:1], 16"); I("s_load_dwordx4 s[52:55], s[0:1], 32"); I("s_load_dwordx4 s[56:59], s[0:1], 0")
    I("s_cmp_ge_u32 s2, 256")
    I("s_cbranch_scc1 L_end")
    I(f"s_mov_b32 s{sWS+2}, {WS_BYTES}"); I(f"s_mov_b32 s{sWS+3}, 0x20000")
    I(f"s_mov_b32 s{sDBG+2}, 256"); I(f"s_mov_b32 s{sDBG+3}, 0x20000")
    I("v_lshrrev_b32 v1, 6, v0")
    I(f"v_mov_b32 v4, {LDS_BYTES - 16}")
    I(f"v_readfirstlane_b32 s{sWV}, v1")
    I("s_waitcnt lgkmcnt(0)")
    I("s_getreg_b32 s24, hwreg(HW_REG_XCC_ID, 0, 4)")
    if rot:
        I(f"s_sub_u32 s25, s24, {rot}"); I("s_and_b32 s25, s25, 7"); I("s_cmp_lt_u32 s24, 8"); I("s_cselect_b32 s24, s25, s24")
    I(f"s_cmp_eq_u32 s{sWV}, 0")
    I("s_cbranch_scc1 L_elect")
    if early:
        I("s_mov_b32 s47, 0x20000")
        I("v_and_b32 v8, 63, v0")
        I(f"s_cmp_eq_u32 s{sWV}, 1"); I("s_cbranch_scc0 L_tw2")
        I("v_lshlrev_b32 v8, 20, v8"); I(f"s_mov_b32 s46, {4<<20}")
        for r in (50, 52, 48, 54):
            I(f"s_mov_b32 s44, s{r}"); I(f"s_mov_b32 s45, s{r+1}")
            I("buffer_load_dword v220, v8, s[44:47], 0 offen")
        I("s_branch L_elect_wait")
        A.label("L_tw2")
        I(f"s_cmp_eq_u32 s{sWV}, 2"); I("s_cbranch_scc0 L_tw3")
        I("v_lshlrev_b32 v8, 20, v8")
        I("s_mov_b32 s44, s58"); I("s_mov_b32 s45, s59"); I("s_mov_b32 s46, 8192")
        I("buffer_load_dword v220, v8, s[44:47], 0 offen")
        I("s_mov_b32 s44, s56"); I("s_mov_b32 s45, s57"); I(f"s_mov_b32 s46, {2<<20}")
        I("buffer_load_dword v220, v8, s[44:47], 0 offen")
        I("s_branch L_elect_wait")
        A.label("L_tw3")
        I("v_lshlrev_b32 v8, 21, v8")
        mask = sum(1 << i for i in ([0, 1, 24, 25] if early == 1 else range(38)))
        I(f"s_mov_b32 exec_lo, {hex(mask & 0xffffffff)}"); I(f"s_mov_b32 exec_hi, {hex(mask >> 32)}")
        I(f"buffer_load_dword v220, v8, {WSS}, 0 offen offset:4092 sc1")
        I("s_mov_b64 exec, -1")
    I("s_branch L_elect_wait")
    A.label("L_elect")
    if force == "skew":
        I("s_lshr_b32 s24, s2, 4"); I("s_and_b32 s24, s24, 15")
    I("s_and_b32 s25, s24, 1"); I("s_lshl_b32 s25, s25, 6")
    I("s_lshr_b32 s26, s24, 1"); I("s_lshl_b32 s26, s26, 2")
    I("s_add_u32 s25, s25, s26")
    I("s_cmp_eq_u32 s24, 0")
    I("s_cselect_b32 s25, 128, s25")
    I("s_mov_b64 exec, 1")
    I("v_mov_b32 v1, 1"); I("v_mov_b32 v2, s25")
    I(f"buffer_atomic_add v1, v2, {DBG}, 0 offen sc0")
    I("s_waitcnt vmcnt(0)")
    I("v_readfirstlane_b32 s25, v1")
    I("s_mov_b64 exec, -1")
    I("s_mov_b32 s40, 0")
    I("s_cmp_ge_u32 s24, 8"); I("s_cbranch_scc1 L_ovf")
    I("s_cmp_lt_u32 s25, 32"); I("s_cbranch_scc1 L_elect_pub")
    A.label("L_ovf")
    I("s_mov_b64 exec, 1")
    I("v_mov_b32 v1, 1"); I(f"v_mov_b32 v2, {D_OVF}")
    I(f"buffer_atomic_add v1, v2, {DBG}, 0 offen sc0")
    I("s_waitcnt vmcnt(0)")
    I("v_readfirstlane_b32 s26, v1")
    I("s_mov_b64 exec, -1")
    I("v_lshlrev_b32 v2, 2, v0")
    I("s_mov_b32 s28, 0")
    def word(x): return 32 if x == 0 else (x & 1) * 16 + (x >> 1)
    A.label("L_ovf_poll")
    I(f"buffer_load_dword v1, v2, {DBG}, 0 offen sc1")
    I("s_add_u32 s28, s28, 1")
    I("s_waitcnt vmcnt(0)")
    I("s_mov_b32 s27, 0")
    for x in range(16):
        I(f"v_readlane_b32 s25, v1, {word(x)}"); I("s_add_u32 s27, s27, s25")
    I(f"s_cmp_gt_u32 s28, {SPIN_MAX}"); I("s_cbranch_scc1 L_ovf_go")
    I("s_cmp_lt_u32 s27, 256"); I("s_cbranch_scc1 L_ovf_poll")
    A.label("L_ovf_go")
    I("s_mov_b32 s40, 1")
    for x in range(8):
        I(f"v_readlane_b32 s25, v1, {word(x)}")
        I("s_min_u32 s25, s25, 32")
        I("s_add_u32 s25, s25, s26")
        I(f"s_mov_b32 s24, {x}")
        I("s_cmp_lt_u32 s25, 32"); I("s_cbranch_scc1 L_elect_pub")
        I("s_sub_u32 s26, s25, 32")
    I("s_mov_b32 s24, 8")
    A.label("L_elect_pub")
    I("s_lshl_b32 s24, s24, 8"); I("s_lshl_b32 s26, s40, 16"); I("s_add_u32 s24, s24, s25"); I("s_add_u32 s24, s24, s26")
    I("v_mov_b32 v1, s24")
    I("ds_write_b32 v4, v1")
    I("s_waitcnt lgkmcnt(0)")
    A.label("L_elect_wait")
    I("s_barrier")
    I("ds_read_b32 v1, v4")
    I("s_waitcnt lgkmcnt(0)")
    I("v_readfirstlane_b32 s24, v1")
    I(f"s_and_b32 s{sH}, s24, 31")
    I(f"s_bfe_u32 s{sG}, s24, {hex((8 << 16) | 8)}")
    I("s_lshr_b32 s40, s24, 16")
    I(f"s_cmp_ge_u32 s{sG}, 8"); I("s_cbranch_scc1 L_end")

def signal_add(A, srdname, off_sgpr_or_imm, val, t0, t1):
    I = A.I
    l = A.newlabel("sig")
    I(f"s_cmp_lg_u32 s{sWV}, 0"); I(f"s_cbranch_scc1 {l}")
    I(f"v_mov_b32 v{t0}, {val}"); I(f"v_mov_b32 v{t1}, {off_sgpr_or_imm}")
    I("s_mov_b64 exec, 1")
    I(f"buffer_atomic_add v{t0}, v{t1}, {srdname}, 0 offen")
    I("s_mov_b64 exec, -1")
    A.label(l)

def signal_store(A, off, val, t0, t1):
    I = A.I
    l = A.newlabel("sig")
    I(f"s_cmp_lg_u32 s{sWV}, 0"); I(f"s_cbranch_scc1 {l}")
    I(f"v_mov_b32 v{t0}, {val}"); I(f"v_mov_b32 v{t1}, {off}")
    I("s_mov_b64 exec, 1")
    I(f"buffer_store_dword v{t0}, v{t1}, {WSS}, 0 offen sc1")
    I("s_mov_b64 exec, -1")
    A.label(l)

def wait_ge(A, srdname, off, target, t0, t1, sres, sleep=2, mask=None, barrier=True, allwaves=False):
    I = A.I
    l = A.newlabel("wt"); e = A.newlabel("wte")
    if not allwaves:
        I(f"s_cmp_lg_u32 s{sWV}, 0"); I(f"s_cbranch_scc1 {e}")
    I(f"v_mov_b32 v{t1}, {off}")
    A.label(l)
    I(f"buffer_load_dword v{t0}, v{t1}, {srdname}, 0 offen sc1")
    I(f"s_add_u32 s{sSPIN}, s{sSPIN}, 1")
    I("s_waitcnt vmcnt(0)")
    I(f"v_readfirstlane_b32 s{sres}, v{t0}")
    I(f"s_cmp_gt_u32 s{sSPIN}, {SPIN_MAX}"); I(f"s_cbranch_scc1 {e}")
    if mask is not None:
        I(f"s_and_b32 s{sres+1}, s{sres}, {mask}"); I(f"s_cmp_ge_u32 s{sres+1}, {target}")
    else:
        I(f"s_cmp_ge_u32 s{sres}, {target}")
    I(f"s_cbranch_scc1 {e}")
    if sleep: I(f"s_sleep {sleep}")
    I(f"s_branch {l}")
    A.label(e)
    if barrier: I("s_barrier")

sLOC = 31
sSEG, sXB, sCNT, sA0, sA1 = 18, 19, 20, 21, 22
sD0, sD1, sD2 = 34, 35, 36
def dual(A, fn):
    g = A.newlabel("dg"); e = A.newlabel("de")
    A.I(f"s_cmp_eq_u32 s{sLOC}, 0"); A.I(f"s_cbranch_scc1 {g}")
    fn(""); A.I(f"s_branch {e}")
    A.label(g); fn("sc1"); A.label(e)

def group_mode(A, t0, t1):
    I = A.I
    I(f"s_and_b32 s24, s{sG}, 1"); I("s_lshl_b32 s24, s24, 6"); I(f"s_lshr_b32 s25, s{sG}, 1"); I("s_lshl_b32 s25, s25, 2"); I("s_add_u32 s24, s24, s25")
    I(f"v_mov_b32 v{t1}, s24")
    I(f"buffer_load_dword v{t0}, v{t1}, {DBG}, 0 offen sc1")
    I("s_waitcnt vmcnt(0)")
    I(f"v_readfirstlane_b32 s24, v{t0}")
    I("s_cmp_ge_u32 s24, 32"); I(f"s_cselect_b32 s{sLOC}, 1, 0")

def gsignal(A, sline, t0, t1):
    I = A.I
    l = A.newlabel("gs")
    I(f"s_cmp_lg_u32 s{sWV}, 0"); I(f"s_cbranch_scc1 {l}")
    I(f"s_lshl_b32 s24, s{sH}, 2")
    I(f"s_add_u32 s25, s{sSEG}, 1"); I(f"v_mov_b32 v{t0}, s25"); I(f"v_mov_b32 v{t1}, s24")
    I("s_mov_b64 exec, 1")
    dual(A, lambda f: I(f"buffer_store_dword v{t0}, v{t1}, {WSS}, s{sline} offen {f}"))
    I("s_mov_b64 exec, -1")
    A.label(l)

def gwait(A, sline, t0, t1, sleep=0, barrier=True):
    I = A.I
    l = A.newlabel("gw"); e = A.newlabel("gwe")
    I(f"s_cmp_lg_u32 s{sWV}, 0"); I(f"s_cbranch_scc1 {e}")
    I(f"v_and_b32 v{t1}, 31, v{wLN}"); I(f"v_lshlrev_b32 v{t1}, 2, v{t1}")
    A.label(l)
    I(f"buffer_load_dword v{t0}, v{t1}, {WSS}, s{sline} offen sc1")
    I(f"s_add_u32 s{sSPIN}, s{sSPIN}, 1")
    I(f"s_cmp_gt_u32 s{sSPIN}, {SPIN_MAX}"); I(f"s_cbranch_scc1 {e}")
    I("s_waitcnt vmcnt(0)")
    I(f"v_cmp_ge_u32 vcc, s{sSEG}, v{t0}")
    if sleep: I(f"s_sleep {sleep}")
    I(f"s_cbranch_vccnz {l}")
    A.label(e)
    if barrier: I("s_barrier")

def allreduce(A, regs, tmp, op="add"):
    I = A.I
    for rot in (8, 4, 2, 1):
        for r in regs: I(f"v_{op}_f32_dpp v{r}, v{r}, v{r} row_ror:{rot} row_mask:0xf bank_mask:0xf")
    for sw in ("16", "32"):
        for r in regs:
            I(f"v_mov_b32 v{tmp}, v{r}")
            I(f"v_permlane{sw}_swap_b32 v{r}, v{tmp}")
            I(f"v_{op}_f32 v{r}, v{r}, v{tmp}")

def unpack(A, src, dst, n):
    for i in range(n):
        A.I(f"v_lshlrev_b32 v{dst+2*i}, 16, v{src+i}")
        A.I(f"v_and_b32 v{dst+2*i+1}, 0xffff0000, v{src+i}")

def rbf(A, r):
    A.I(f"v_cvt_pk_bf16_f32 v{r}, v{r}, v{r}")
    A.I(f"v_and_b32 v{r}, 0xffff0000, v{r}")

def ln_finish(A, mean, var):
    I = A.I
    rbf(A, mean); rbf(A, var)
    I(f"v_add_f32 v{var}, {hex(f2u(1e-5))}, v{var}")
    rbf(A, var)
    I(f"v_sqrt_f32 v{var}, v{var}")
    rbf(A, var)
    I(f"v_rcp_f32 v{var}, v{var}")

def ln_row(A, x, out, t):
    I = A.I
    m, v, tm, d = t, t + 1, t + 2, t + 4
    I(f"v_add_f32 v{m}, v{x}, v{x+1}")
    for i in range(2, 8): I(f"v_add_f32 v{m}, v{m}, v{x+i}")
    allreduce(A, [m], tm)
    I(f"v_mul_f32 v{m}, {hex(f2u(1/512))}, v{m}")
    for i in range(8): I(f"v_sub_f32 v{d+i}, v{x+i}, v{m}")
    I(f"v_mul_f32 v{v}, v{d}, v{d}")
    for i in range(1, 8): I(f"v_fmac_f32 v{v}, v{d+i}, v{d+i}")
    allreduce(A, [v], tm)
    I(f"v_mul_f32 v{v}, {hex(f2u(1/512))}, v{v}")
    ln_finish(A, m, v)
    for i in range(8): I(f"v_sub_f32 v{d+i}, v{x+i}, v{m}")
    for i in range(4): I(cv(out + i, d + 2*i))
    unpack(A, out, d, 4)
    for i in range(8): I(f"v_mul_f32 v{d+i}, v{d+i}, v{v}")
    for i in range(4): I(cv(out + i, d + 2*i))

def lanes(A):
    I = A.I
    I(f"v_and_b32 v{wLN}, 63, v0")
    I(f"v_and_b32 v{wC}, 15, v{wLN}")
    I(f"v_lshrrev_b32 v{wG}, 4, v{wLN}")
    I(f"v_lshrrev_b32 v{wR}, 2, v{wC}")
    I(f"v_and_b32 v{wCP}, 3, v{wC}")
    I(f"v_lshlrev_b32 v{wL16}, 4, v{wLN}")
    I(f"s_mov_b32 s{sSPIN}, 0")

def touch_weights(A, dst, mats):
    I = A.I
    if not mats: return
    I(f"s_lshl_b32 s26, s{sG}, 5"); I(f"s_add_u32 s26, s26, s{sH}"); I("s_sub_u32 s26, s26, 32"); I("s_mul_i32 s26, s26, 18944")
    I("v_lshlrev_b32 v7, 4, v0")
    I(f"s_mov_b32 s46, {4<<20}"); I("s_mov_b32 s47, 0x20000")
    n = 0
    for m in mats:
        if m == "i":
            I("s_load_dwordx2 s[44:45], s[0:1], 64"); I(f"s_mov_b32 s46, {512*1376*2}")
            I(f"s_lshl_b32 s27, s{sG}, 5"); I(f"s_add_u32 s27, s27, s{sH}"); I("s_sub_u32 s27, s27, 32"); I("s_mul_i32 s27, s27, 6400"); I("s_add_u32 s26, s27, 4096")
            I("s_waitcnt lgkmcnt(0)")
            I(f"buffer_load_dwordx4 v[{dst}:{dst+3}], v7, s[44:47], s27 offen"); I(f"buffer_load_dwordx4 v[{dst}:{dst+3}], v7, s[44:47], s26 offen")
            continue
        r = {"q": 48, "k": 50, "v": 52, "o": 54}[m]
        I(f"s_mov_b32 s44, s{r}"); I(f"s_mov_b32 s45, s{r+1}"); I("s_mov_b32 s27, s26")
        for i in range(5):
            I(f"buffer_load_dwordx4 v[{dst+4*n}:{dst+3+4*n}], v7, s[44:47], s27 offen"); n += 1
            I("s_add_u32 s27, s27, 4096")

def p_init(A, opt={}):
    I = A.I
    sJ = 18
    I(f"s_sub_u32 s{sJ}, s{sG}, 6"); I(f"s_lshl_b32 s{sJ}, s{sJ}, 5"); I(f"s_add_u32 s{sJ}, s{sJ}, s{sH}")
    srd(A, 0, 2 << 20)
    I(f"s_lshl_b32 s24, s{sJ}, 15"); I(f"s_lshl_b32 s25, s{sWV}, 13"); I("s_add_u32 s24, s24, s25")
    I("s_add_u32 s25, s24, 4096")
    for i in range(8): I(f"buffer_load_dwordx4 {vr(32+4*i,4)}, v{wL16}, {SW}, s{24 if i < 4 else 25} offen offset:{(i&3)*1024}")
    tw = opt.get("tw", ["k", "v", "qo", "i"])
    touch_weights(A, 128, tw[0])
    I("v_lshlrev_b32 v10, 2, v0"); I("v_mov_b32 v11, 0"); I(f"s_lshl_b32 s26, s{sJ}, 10")
    I(f"buffer_store_dword v11, v10, {WSS}, s26 offen sc1")
    I(f"s_add_u32 s24, s24, {WS_XN}"); I(f"s_add_u32 s25, s25, {WS_XN}")
    for i in range(8):
        I(f"s_waitcnt vmcnt({8 + 5*len(tw[0])})")
        unpack(A, 32 + 4*i, 12, 4)
        ln_row(A, 12, 64 + 4*i, 20)
        I(f"buffer_store_dwordx4 {vr(64+4*i,4)}, v{wL16}, {WSS}, s{24 if i < 4 else 25} offen offset:{(i&3)*1024} sc1")
    I("s_waitcnt vmcnt(0)")
    I("s_barrier")
    signal_add(A, DBG, D_PINIT, 1, 10, 11)
    if TRACE[0]: I("v_writelane_b32 v113, s64, 0")
    TS(A, 113, 1)
    touch_weights(A, 128, "".join(tw[1:]))

def w256_addr(A, vd, vt):
    I = A.I
    I(f"s_lshl_b32 s24, s{sWV}, 2")
    I(f"v_add_u32 v{vd}, s24, v{wG}")
    I(f"v_lshlrev_b32 v{vd}, 13, v{vd}")
    I(f"s_lshr_b32 s24, s{sWV}, 1"); I("s_lshl_b32 s24, s24, 3")
    I(f"v_lshlrev_b32 v{vt}, 1, v{wG}")
    I(f"v_or_b32 v{vt}, s24, v{vt}")
    I(f"v_xor_b32 v{vt}, v{wC}, v{vt}")
    I(f"v_lshl_add_u32 v{vd}, v{vt}, 4, v{vd}")
    I(f"s_lshl_b32 s24, s{sH}, 8")
    I(f"v_add_u32 v{vd}, s24, v{vd}")
    I(f"v_and_b32 v{vt}, 1, v{wG}")
    I(f"v_lshl_add_u32 v{vt}, v{vt}, 2, v{wR}")
    I(f"s_lshl_b32 s24, s{sWV}, 1")
    I(f"v_xor_b32 v{vt}, s24, v{vt}")
    I(f"v_lshlrev_b32 v{vt}, 5, v{vt}")
    I(f"v_lshl_add_u32 v{vt}, v{wCP}, 3, v{vt}")
    I(f"v_lshl_add_u32 v{vt+1}, v{wG}, 3, v{wR}")
    I(f"v_lshl_add_u32 v{vt}, v{vt+1}, 8, v{vt}")
    I(f"v_xor_b32 v{vt+1}, 32, v{vt}")
def w256_dma(A, vd, half, thr=0):
    I = A.I
    I(f"s_lshl_b32 s24, s{sWV}, 10")
    for i in range(16):
        I(f"s_add_u32 m0, s24, {half*65536 + i*4096}")
        I(f"s_mov_b32 s25, {(256*half + 16*i)*8192}")
        if thr: I(f"s_waitcnt vmcnt({thr - 1})")
        I(f"buffer_load_dwordx4 v{vd}, {SW}, s25 offen lds")
def w256_read(A, vt, half, abase):
    for eps in range(2):
        for k in range(8):
            for u in range(2):
                A.I(f"ds_read_b64_tr_b16 {ar(abase + (eps*16 + 8*half + k)*4 + 2*u, 2)}, v{vt+eps} offset:{(32*k + 4*u)*256}")
    A.I("s_waitcnt lgkmcnt(0)")
    A.I(f"v_xor_b32 v{vt}, 0x10000, v{vt}"); A.I(f"v_xor_b32 v{vt+1}, 0x10000, v{vt+1}")

def w1k_addr(A, vd, vt, sbase_bytes):
    I = A.I
    I(f"s_lshl_b32 s24, s{sWV}, 6")
    I(f"v_xor_b32 v{vd}, s24, v{wL16}")
    I(f"s_lshl_b32 s24, s{sWV}, 10")
    if sbase_bytes: I(f"s_add_u32 s24, s24, {sbase_bytes}")
    I(f"v_add_u32 v{vd}, s24, v{vd}")
    I(f"v_lshl_add_u32 v{vt}, v{wG}, 2, v{wR}")
    I(f"v_lshlrev_b32 v{vt}, 10, v{vt}")
    I(f"v_lshl_add_u32 v{vt}, v{wR}, 6, v{vt}")
    I(f"v_lshl_add_u32 v{vt}, v{wCP}, 4, v{vt}")
    I(f"s_lshl_b32 s24, s{sWV}, 8")
    I(f"v_add_u32 v{vt}, s24, v{vt}")
    for p in range(1, 4): I(f"v_xor_b32 v{vt+p}, {p<<6}, v{vt}")
def w1k_dma(A, vd, row0, nrows, lds, thr=0):
    I = A.I
    I(f"s_lshl_b32 s24, s{sWV}, 10")
    for i in range(nrows // 4):
        I(f"s_add_u32 m0, s24, {lds + i*4096}")
        I(f"s_mov_b32 s25, {(row0 + 4*i)*1024}")
        if thr: I(f"s_waitcnt vmcnt({thr - 1})")
        I(f"buffer_load_dwordx4 v{vd}, {SW}, s25 offen lds")
def w1k_rd(vt, t8, ksl, u, dst):
    return f"ds_read_b64_tr_b16 {dst}, v{vt + (t8>>1)} offset:{(32*ksl + 16*u)*1024 + (t8&1)*8}"

def rows_addr(A, vd, va, perm=False):
    I = A.I
    if not perm:
        I(f"v_xor_b32 v{va}, v{wG}, v{wC}")
        I(f"v_lshlrev_b32 v{va}, 4, v{va}")
        I(f"v_lshl_add_u32 v{va}, v{wC}, 10, v{va}")
    for k in range(1, 4): I(f"v_xor_b32 v{va+k}, {k<<6}, v{va}")
def rows_dma(A, vtmp, sbase, lds, ld="sc1"):
    I = A.I
    I(f"s_lshl_b32 s24, s{sWV}, 13")
    I(f"s_add_u32 s25, s24, s{sbase}")
    I(f"s_and_b32 s26, s{sWV}, 1"); I("s_lshl_b32 s26, s26, 7")
    for i in range(8):
        I(f"s_add_u32 s27, s26, {i<<4}")
        I(f"v_xor_b32 v{vtmp}, s27, v{wL16}")
        if isinstance(lds, int): I(f"s_add_u32 m0, s24, {lds + i*1024}")
        else:
            I(f"s_add_u32 s27, s24, {i*1024}"); I(f"s_add_u32 m0, s27, {lds}")
        I(f"buffer_load_dwordx4 v{vtmp}, {WSS}, s25 offen {ld} lds")
        I("s_add_u32 s25, s25, 1024")

def rows_dma_prep(A, sbase, lds):
    I = A.I
    I(f"s_lshl_b32 s{sD0}, s{sWV}, 13")
    I(f"s_add_u32 s{sD1}, s{sD0}, s{sbase}")
    I(f"s_add_u32 s{sD0}, s{sD0}, {lds}")
    I(f"s_and_b32 s{sD2}, s{sWV}, 1"); I(f"s_lshl_b32 s{sD2}, s{sD2}, 7")
def rows_dma_items(vtmp):
    return [([f"s_mov_b32 m0, s{sD0}", f"s_add_u32 s{sD0}, s{sD0}, 1024", f"v_xor_b32 v{vtmp}, s{sD2}, v{wL16}"],
             [f"buffer_load_dwordx4 v{vtmp}, {WSS}, s{sD1} offen sc1 lds", f"s_add_u32 s{sD1}, s{sD1}, 1024", f"s_add_u32 s{sD2}, s{sD2}, 16"]) for i in range(8)]

def h_phase1(A, opt={}):
    I = A.I
    vD, vTt, vXA, vTm = 8, 10, 12, 16
    if TRACE[0]: I("v_writelane_b32 v112, s64, 0")
    TS(A, 112, 1)
    tw = opt.get("tw", ["k", "v", "qo", "i"])
    touch_weights(A, 128, tw[0])
    A.label("L_h1")
    w256_addr(A, vD, vTt)
    if opt.get("hold"):
        I(f"s_cmp_lt_u32 s{sG}, {opt['hold'][0]}"); I("s_cbranch_scc1 H1_nohold")
        wait_ge(A, DBG, D_PROG, 32, 20, 21, 24, sleep=16)
        A.label("H1_nohold")
    srd(A, 24, 4 << 20)
    thr = opt.get('thr', 4)
    def late(i):
        if tw[i]:
            l = A.newlabel("tw")
            I(f"s_cmp_ge_u32 s{sG}, 6"); I(f"s_cbranch_scc1 {l}")
            touch_weights(A, 128, tw[i]); A.label(l)
    def wd(half):
        t2 = opt.get("thr2")
        if not t2: return w256_dma(A, vD, half, thr)
        l = A.newlabel("th"); e = A.newlabel("te")
        I(f"s_cmp_ge_u32 s{sG}, {t2[0]}"); I(f"s_cbranch_scc1 {l}")
        w256_dma(A, vD, half, thr); I(f"s_branch {e}")
        A.label(l); w256_dma(A, vD, half, t2[1]); A.label(e)
    wd(0); late(1); wd(1)
    rows_addr(A, None, vXA)
    I(f"s_sub_u32 s{sSEG}, s{sG}, 1")
    for ci in range(4):
        I(f"s_waitcnt vmcnt({16 if ci < 3 else 0})")
        I("s_barrier")
        w256_read(A, vTt, ci & 1, 128 * (ci >> 1))
        I("s_barrier")
        if ci == 0: srd(A, 32, 4 << 20)
        if ci < 2: late(2 + ci); wd(ci)
        if ci == 2:
            wait_ge(A, DBG, D_PINIT, 64, 20, 21, 24)
            I(f"s_lshl_b32 s{sA0}, s{sSEG}, 15"); I(f"s_add_u32 s{sA0}, s{sA0}, {WS_XN}")
            I(f"s_mov_b32 s{sXB}, 0")
            rows_dma(A, vTm, sA0, 0)
    TS(A, 112, 2)
    TS(A, 112, 3)
    I(f"s_mov_b32 s{sCNT}, 0")
    for i in range(4): I(f"v_mov_b32 v{104+i}, -1")
    I(f"s_mul_i32 s37, s{sH}, 65"); I(f"s_add_u32 s37, s37, s{sSEG}"); I("s_lshl_b32 s37, s37, 12"); I(f"s_lshl_b32 s24, s{sWV}, 10")
    I("s_add_u32 s37, s37, s24"); I(f"s_add_u32 s37, s37, {WS_KM}")
    bg = opt.get("bg", 1)
    vBG, vWD, vWT = 17, 18, 108
    sBM, sBO, sBS = 30, 31, 32
    if bg:
        I(f"s_lshl_b32 s28, s{sH}, 17")
        w1k_addr(A, vWD, vWT, "s28")
        I("s_mov_b32 s40, s48"); I("s_mov_b32 s41, s49"); I(f"s_mov_b32 s42, {4<<20}"); I("s_mov_b32 s43, 0x20000"); I("s_mov_b64 vcc, 0")
        I(f"v_mov_b32 v{vBG}, v{vD}"); I(f"s_mov_b32 s{sBS}, {16*8192}"); I(f"s_mov_b32 s{sBO}, 0"); I(f"s_mov_b32 s{sBM}, 65536")
        I(f"v_xor_b32 v{vTt}, 0x10000, v{vTt}"); I(f"v_xor_b32 v{vTt+1}, 0x10000, v{vTt+1}")
    A.label("H1_loop")
    I(f"s_cmp_gt_u32 s{sCNT}, 1"); I("s_cbranch_scc1 H1_lag")
    I("s_waitcnt vmcnt(0)")
    A.label("H1_lag")
    I("s_waitcnt vmcnt(5)")
    I("s_barrier")
    I(f"s_lshl_b32 s28, s{sH}, 7"); I(f"s_lshl_b32 s29, s{sG}, 2"); I("s_add_u32 s28, s28, s29"); I(f"s_add_u32 s28, s28, {F_KV - 4}")
    I(f"s_sub_u32 s29, s{sCNT}, 1"); I(f"s_cmp_gt_u32 s{sCNT}, 1"); I(f"s_cselect_b32 s29, s29, s{sCNT}")
    signal_store(A, "s28", "s29", 20, 21)
    if TRACE[0]: I(f"s_add_u32 s61, s{sCNT}, 8")
    TS(A, 112, "s61")
    if bg:
        I(f"s_cmp_ge_u32 s{sG}, 6"); I("s_cbranch_scc1 H1_bgd")
        b0 = opt.get("bg0", 2)
        for it, name in ((b0, "a"), (b0 + 2, "b"), (b0 + 4, "c"), (b0 + 7, "e")):
            I(f"s_cmp_eq_u32 s{sCNT}, {it}"); I(f"s_cbranch_scc1 H1_bg{name}")
        I("s_branch H1_bgd")
        def rq(half):
            for eps in range(2):
                for k in range(8):
                    for u in range(2):
                        I(f"ds_read_b64_tr_b16 {vr(128 + (eps*16 + 8*half + k)*4 + 2*u, 2)}, v{vTt+eps} offset:{(32*k + 4*u)*256}")
            I("s_waitcnt lgkmcnt(0)"); I("s_barrier")
        A.label("H1_bge")
        I("s_mov_b64 vcc, 0"); I("s_branch H1_bgd")
        A.label("H1_bgc")
        rq(1)
        I("s_mov_b32 s40, s54"); I("s_mov_b32 s41, s55"); I(f"v_mov_b32 v{vBG}, v{vWD}"); I(f"s_mov_b32 s{sBS}, 4096"); I(f"s_mov_b32 s{sBO}, 0")
        I("s_branch H1_bga2")
        A.label("H1_bgb")
        rq(0)
        I("s_branch H1_bga2")
        A.label("H1_bga")
        I("s_mov_b64 vcc, -1"); I(f"s_mov_b32 s{sBO}, 0")
        A.label("H1_bga2")
        I(f"s_lshl_b32 s{sBM}, s{sWV}, 10"); I(f"s_add_u32 s{sBM}, s{sBM}, 65536")
        A.label("H1_bgd")
    I(f"s_add_u32 s{sA0}, s{sA0}, {NG1 << 15}")
    I(f"s_xor_b32 s{sXB}, s{sXB}, 32768")
    I(f"s_cmp_ge_u32 s{sSEG}, {64 - NG1}"); I(f"s_cselect_b32 s{sA0}, {OOB}, s{sA0}")
    rows_dma_prep(A, sA0, f"s{sXB}")
    items = rows_dma_items(vTm)
    XF = 24; AC = 56
    def rd(ks): return [f"ds_read_b128 {vr(XF + 8*(ks&3) + 4*t,4)}, v{vXA + (ks&3)} offset:{(ks>>2)*256 + t*16384}" for t in range(2)]
    for ks in range(3):
        for x in rd(ks): I(x)
    for ks in range(16):
        I(f"s_waitcnt lgkmcnt({4 if ks < 14 else (2 if ks == 14 else 0)})")
        ms = []
        for eps in range(2):
            for t in range(2):
                xk = vr(XF + 8*(ks&3) + 4*t, 4)
                dk = AC + 8*t + 4*eps; dv = AC + 16 + 8*eps + 4*t
                ms.append(f"v_mfma_f32_16x16x32_bf16 {vr(dk,4)}, {ar((eps*16+ks)*4,4)}, {xk}, {'0' if ks == 0 else vr(dk,4)}")
                ms.append(f"v_mfma_f32_16x16x32_bf16 {vr(dv,4)}, {xk}, {ar(128+(eps*16+ks)*4,4)}, {'0' if ks == 0 else vr(dv,4)}")
        fl = [[x] for x in rd(ks + 3)] if ks + 3 < 16 else [[], []]
        if ks < 8:
            fl += [items[ks][0], items[ks][1]]
            if bg: fl += [[], [], [f"s_mov_b32 m0, s{sBM}", f"s_add_u32 s{sBM}, s{sBM}, 4096"],
                          [f"s_cbranch_vccz H1_nb{ks}", f"buffer_load_dwordx4 v{vBG}, s[40:43], s{sBO} offen lds", f"H1_nb{ks}:", f"s_add_u32 s{sBO}, s{sBO}, s{sBS}"]]
        slots(A, ms, fl)
    for k in range(4): I(f"v_xor_b32 v{vXA+k}, 0x8000, v{vXA+k}")
    I(f"s_lshl_b32 s24, s{sSEG}, 19"); I(f"s_lshl_b32 s25, s{sH}, 14"); I("s_add_u32 s24, s24, s25"); I(f"s_add_u32 s24, s24, {WS_KV}")
    I(f"s_lshl_b32 s25, s{sWV}, 10"); I("s_add_u32 s26, s24, s25"); I("s_add_u32 s27, s26, 4096")
    I("s_add_u32 s25, s25, s26"); I("s_add_u32 s25, s25, 8192")
    for j in range(4):
        for i in range(4): I(cv(88 + 4*j + i, AC + 8*j + 2*i))
    I(f"buffer_store_dwordx4 v[88:91], v{wL16}, {WSS}, s26 offen sc1")
    I(f"buffer_store_dwordx4 v[92:95], v{wL16}, {WSS}, s27 offen sc1")
    I(f"buffer_store_dwordx4 v[96:99], v{wL16}, {WSS}, s25 offen sc1")
    I(f"buffer_store_dwordx4 v[100:103], v{wL16}, {WSS}, s25 offen offset:1024 sc1")
    I(f"buffer_store_dwordx4 v[104:107], v{wL16}, {WSS}, s37 offen sc1")
    I(f"s_add_u32 s37, s37, {NG1*4096}")
    I(f"s_add_u32 s{sCNT}, s{sCNT}, 1")
    I(f"s_add_u32 s{sSEG}, s{sSEG}, {NG1}")
    I(f"s_cmp_lt_u32 s{sSEG}, 64"); I("s_cbranch_scc1 H1_loop")
    I("s_waitcnt vmcnt(0)")
    I("s_barrier")
    signal_store(A, "s28", 100, 20, 21)
    TS(A, 112, 4)

def chain_role(A, opt):
    I = A.I
    if TRACE[0]: I("s_memrealtime s[66:67]")
    def hooks(A, what, ci):
        if TRACE[0] and what == ("ts" if opt.get("tsfine") else "landed"):
            I("s_memrealtime s[62:63]"); I("s_waitcnt lgkmcnt(0)"); I(f"s_mov_b32 s{92+ci}, s62")
        if what == "first":
            I("v_lshlrev_b32 v28, 4, v0")
            for i in range(4): I(f"v_mov_b32 v{32+i}, -1")
            I(f"s_lshl_b32 s24, s{sH}, 13"); I(f"s_add_u32 s24, s24, {WS_HA}")
            for sl in range(2):
                for hf in range(2):
                    I(f"s_add_u32 s25, s24, {sl*(256<<10) + hf*4096}")
                    I(f"buffer_store_dwordx4 v[32:35], v28, {WSS}, s25 offen sc1")
            I("v_lshlrev_b32 v28, 2, v0")
            I(f"s_lshl_b32 s24, s{sH}, 10"); I(f"s_add_u32 s24, s24, {WS_HB}")
            I(f"buffer_store_dword v32, v28, {WSS}, s24 offen sc1")
        if what == "landed" and ci == 0:
            I("s_lshl_b32 s41, s40, 16"); I("s_add_u32 s41, s41, 1")
            signal_add(A, DBG, D_CHAIN, "s41", vT, vT + 1)
        if what == "landed" and ci == 1 and opt.get("tlb", 0):
            I(f"v_subrev_u32 v28, {LW}, v{vL16}"); I("v_lshlrev_b32 v28, 15, v28")
            I(f"s_add_u32 s43, s{sKV}, {LW}")
            I(f"buffer_load_dword v29, v28, {WSS}, s43 offen sc1")
        if what == "landed" and opt.get("hold") and ci == opt["hold"][1]:
            signal_add(A, DBG, D_PROG, 1, vT, vT + 1)
        if what == "issued" and ci == 6:
            I(f"v_mov_b32 v28, {D_PINIT}")
            I(f"buffer_load_dwordx2 {vr(vT,2)}, v28, {DBG}, 0 offen sc1")
        if what == "landed" and ci == 6:
            I(f"v_readfirstlane_b32 s43, v{vT}"); I(f"v_readfirstlane_b32 s42, v{vT+1}")
            I("s_cmp_lt_u32 s43, 64"); I("s_cbranch_scc1 L_ch_slow")
            I("s_and_b32 s43, s42, 0xffff"); I("s_cmp_ge_u32 s43, 32"); I("s_cbranch_scc1 L_ch_fast")
            A.label("L_ch_slow")
            wait_ge(A, DBG, D_PINIT, 64, vT, vT + 1, 42, barrier=False, allwaves=True, sleep=4)
            wait_ge(A, DBG, D_CHAIN, 32, vT, vT + 1, 42, mask=0xffff, barrier=False, allwaves=True, sleep=4)
            A.label("L_ch_fast")
            I(f"s_add_u32 m0, s{sM0A}, 8192")
            for sl in range(2):
                I(f"s_add_u32 s43, s{sRC}, {WS_HA + sl*(256<<10)}")
                for i in range(2): I(f"buffer_load_dwordx4 v{vMW}, {WSS}, s43 offen offset:{i*1024} sc1 lds")
            I(f"s_lshl_b32 s43, s{sH}, 10"); I(f"s_add_u32 s43, s43, {WS_HB - LW}")
            I(f"buffer_load_dwordx4 v{vL16}, {WSS}, s43 offen sc1 lds")
            kv_flag_load(A)
        if what == "landed" and ci == 7:
            if TRACE[0]: I("s_memrealtime s[66:67]"); I("s_waitcnt lgkmcnt(0)")
            kv_wait(A, "CI", 0, preloaded=True)
            for x in kv_dma(A, "sc1"): I(x)
    chain_setup(A, "", hooks, opt.get("order", (1, 2, 0)))
    if TRACE[0]: I("s_memrealtime s[68:69]"); I("s_waitcnt lgkmcnt(0)")
    if TRACE[0]: I("s_memrealtime s[70:71]"); I("s_memtime s[80:81]"); I("s_waitcnt lgkmcnt(0)")
    I("s_lshr_b32 s42, s42, 16")
    I("s_cmp_lg_u32 s42, 0")
    I("s_cbranch_scc1 L_chain_global")
    o = dict(opt); o["mega"] = 1
    def stamp(A, i):
        if i == 6:
            l = A.newlabel("st")
            tsd = opt.get("tsd", 8)
            if tsd == 8: A.I(f"s_and_b32 s60, s{sSTEP}, 7"); A.I("s_cmp_eq_u32 s60, 1"); A.I(f"s_cbranch_scc0 {l}")
            A.I("s_memrealtime s[62:63]"); A.I("s_memtime s[60:61]"); A.I("s_waitcnt lgkmcnt(0)")
            for k in range(8):
                A.I(f"s_cmp_eq_u32 s{sSTEP}, {tsd*k+1+opt.get('ts0',0)}"); A.I(f"s_cselect_b32 s{72+k}, s62, s{72+k}"); A.I(f"s_cselect_b32 s{84+k}, s60, s{84+k}")
            A.label(l)
    chain_loop(A, "", "CL", stamp if TRACE[0] else None, "sc1", o)
    I("s_branch L_chain_end")
    A.label("L_chain_global")
    chain_loop(A, "sc1", "CG", None, "sc1", o)
    A.label("L_chain_end")
    wait_ge(A, DBG, D_P2, 64, vT, vT + 1, 24, sleep=4, barrier=False, allwaves=True)
    I("s_mov_b32 s38, 0")
    if TRACE[0]:
        for i, r in enumerate([64, 66, 68, 70]): I(f"v_writelane_b32 v20, s{r}, {i}")
        TS(A, 20, 4)
        I("s_memtime s[62:63]"); I("s_waitcnt lgkmcnt(0)"); I("s_sub_u32 s62, s62, s80"); I("v_writelane_b32 v20, s62, 7")
        I(f"v_writelane_b32 v20, s{sSPIN}, 5"); I(f"v_writelane_b32 v20, s{sSPA}, 6")
        for k in range(8): I(f"v_writelane_b32 v20, s{72+k}, {8+k}")
        for k in range(8): I(f"v_writelane_b32 v20, s{84+k}, {16+k}")
        for k in range(8): I(f"v_writelane_b32 v20, s{92+k}, {24+k}")
        TDUMP(A, [20], 21, (0, 4, 0, 5))
```

```python
from work import *

L_XB, L_HB, L_PT, L_QX, L_OX, L_KM, L_RED, L_KV2 = 0, 32768, 65536, 102400, 110592, 118784, 122880, 131072
PSTR = 1040
sMK = 44
sTILE = 30
L_U = 98304
sJ6, sQ6 = 18, 19
def wout_preload(A, t, rounds=((0, 8), (8, 16), (16, 22)), sq=None):
    I = A.I
    sq = sQ6 if sq is None else sq
    I("s_load_dwordx2 s[40:41], s[0:1], 88"); I(f"s_mov_b32 s42, {688*1024}"); I("s_mov_b32 s43, 0x20000")
    I(f"v_lshrrev_b32 v{t}, 6, v{wL16}"); I(f"v_lshlrev_b32 v{t}, 10, v{t}")
    I(f"v_and_b32 v{t+1}, 48, v{wL16}"); I(f"v_add_u32 v{t}, v{t}, v{t+1}")
    I(f"s_lshl_b32 s24, s{sq}, 8"); I(f"s_lshl_b32 s25, s{sWV}, 6"); I("s_add_u32 s25, s25, s24"); I(f"s_add_u32 s25, s25, {rounds[0][0]*32768}")
    I(f"s_mul_i32 s24, s{sWV}, 24576")
    I(f"v_add_u32 v{t+1}, s24, v{wL16}")
    I("s_waitcnt lgkmcnt(0)")
    kss = [k for lo, hi in rounds for k in range(lo, hi)]
    D = 12
    def dma(n):
        for i in range(2):
            I(f"s_add_u32 m0, s24, {(n % D)*2048 + i*1024}")
            I("s_nop 0")
            I(f"buffer_load_dwordx4 v{t}, s[40:43], s25 offen lds")
            I("s_add_u32 s25, s25, 16384")
    for n in range(min(D - 1, len(kss))): dma(n)
    for n, ks in enumerate(kss):
        I(f"s_waitcnt vmcnt({2*(min(n + D - 1, len(kss)) - n - 1)}) lgkmcnt(0)")
        for par in range(2):
            for u in range(2):
                I(f"ds_read_b64_tr_b16 {ar((ks*2 + par)*4 + 2*u, 2)}, v{t+1} offset:{(n % D)*2048 + u*1024 + par*8}")
        if n + D - 1 < len(kss): dma(n + D - 1)
    I("s_waitcnt lgkmcnt(0)")

def helper_ids(A, sj, sq):
    I = A.I
    I(f"s_lshl_b32 s24, s{sG}, 5"); I(f"s_add_u32 s24, s24, s{sH}")
    I(f"s_mul_i32 s{sj}, s24, 171"); I(f"s_lshr_b32 s{sj}, s{sj}, 9"); I(f"s_mul_i32 s25, s{sj}, 3"); I(f"s_sub_u32 s{sq}, s24, s25"); I(f"s_add_u32 s{sq}, s{sq}, 1")
sPRE = 38

def h_phase2(A, opt):
    I = A.I
    vD, vTt, vXA, vHA, vTm = 8, 10, 12, 16, 24
    vKW, vTR2, vPW, vPR, vZ = 25, 26, 27, 28, 30
    WIN = 192
    if TRACE[0]: I("v_mov_b32 v7, v112")
    if opt.get("bg", 1):
        srd(A, 40, 4 << 20)
        w1k_dma(A, 18, 96, 32, 0)
        for i in range(128): I(f"v_accvgpr_write_b32 a{i}, v{128+i}")
        for p in range(4): I(f"v_add_u32 v{44+p}, 0x10000, v{108+p}")
        for ks in range(3):
            if ks == 2:
                for p in range(4): I(f"v_add_u32 v{44+p}, 0x20000, v{108+p}")
            for t8 in range(8):
                for u in range(2): I(w1k_rd(44, t8, ks & 1, u, ar(128 + (t8*4 + ks)*4 + 2*u, 2)))
        I("s_waitcnt lgkmcnt(0)")
        I("s_barrier")
        WIB = 65536
    else:
        w256_addr(A, vD, vTt)
        srd(A, 16, 4 << 20)
        t3 = opt.get('thr3', 0)
        w256_dma(A, vD, 0, t3); w256_dma(A, vD, 1, t3)
        I(f"s_lshl_b32 s28, s{sH}, 17")
        w1k_addr(A, 40, 44, "s28")
        for ci in range(4):
            I(f"s_waitcnt vmcnt({16 if ci < 3 else 0})")
            I("s_barrier")
            if ci < 2: w256_read(A, vTt, ci, 0)
            else:
                for t8 in range(8):
                    for ksl in range(2):
                        for u in range(2): I(w1k_rd(44, t8, ksl, u, ar(128 + (t8*4 + 2*(ci-2) + ksl)*4 + 2*u, 2)))
                I("s_waitcnt lgkmcnt(0)")
                for p in range(4): I(f"v_xor_b32 v{44+p}, 0x10000, v{44+p}")
            I("s_barrier")
            if ci == 0: srd(A, 40, 4 << 20)
            if ci < 2: w1k_dma(A, 40, 64*ci, 64, 65536*ci, t3)
        WIB = 0
    if TRACE[0]: I("v_mov_b32 v188, v7")
    srd(A, 64, 512*1376*2)
    I(f"s_lshl_b32 s{sTILE}, s{sWV}, 5"); I(f"s_add_u32 s{sTILE}, s{sTILE}, s{sH}")
    I(f"s_cmp_ge_u32 s{sTILE}, 86"); I("s_cbranch_scc1 H2_nowin")
    I(f"v_lshrrev_b32 v40, 1, v{wLN}"); I("v_mul_u32_u24 v40, 2752, v40")
    I(f"v_and_b32 v41, 1, v{wLN}"); I("v_lshl_add_u32 v40, v41, 4, v40")
    I(f"s_lshl_b32 s25, s{sTILE}, 5"); I(f"s_lshl_b32 s24, s{sWV}, 14"); I(f"s_add_u32 s24, s24, {WIB}")
    for i in range(16):
        I(f"s_add_u32 m0, s24, {i*1024}")
        I("s_nop 0")
        I(f"buffer_load_dwordx4 v40, {SW}, s25 offen lds")
        I(f"s_add_u32 s25, s25, {32*2752}")
    I(f"v_lshl_add_u32 v41, v{wG}, 3, v{wR}"); I("v_lshlrev_b32 v41, 5, v41"); I(f"v_lshl_add_u32 v41, v{wCP}, 3, v41"); I("v_add_u32 v41, s24, v41")
    I("s_waitcnt vmcnt(0)")
    for ks in range(16):
        for u in range(2): I(f"ds_read_b64_tr_b16 {vr(WIN + 4*ks + 2*u, 2)}, v41 offset:{ks*1024 + u*128}")
    I("s_waitcnt lgkmcnt(0)")
    A.label("H2_nowin")
    if opt.get("bg", 1):
        I("s_waitcnt vmcnt(0)")
        I("s_barrier")
        for t8 in range(8):
            for u in range(2): I(w1k_rd(108, t8, 0, u, ar(128 + (t8*4 + 3)*4 + 2*u, 2)))
        I("s_waitcnt lgkmcnt(0)")
    srd(A, 0, 2 << 20)
    for _ in range(opt.get("hdelay", 0)): I("s_sleep 32")
    group_mode(A, 40, 41)
    rows_addr(A, None, vXA)
    I(f"v_lshl_add_u32 v40, v{wR}, 3, v{wCP}")
    I(f"s_cmp_lt_u32 s{sTILE}, 43"); I("s_cselect_b64 vcc, -1, 0"); I("s_cselect_b32 s24, 16, 4")
    I(f"v_cndmask_b32 v40, v40, v{wC}, vcc")
    for t in range(2):
        if t: I("v_add_u32 v40, s24, v40")
        I("v_and_b32 v41, 15, v40"); I(f"v_xor_b32 v41, v41, v{wG}"); I("v_lshlrev_b32 v41, 4, v41")
        I("v_lshl_add_u32 v41, v40, 10, v41"); I(f"v_add_u32 v{vHA+4*t}, {L_HB}, v41")
        for k in range(1, 4): I(f"v_xor_b32 v{vHA+4*t+k}, {k<<6}, v{vHA+4*t}")
    I(f"v_lshlrev_b32 v{vKW}, 5, v{wC}"); I(f"v_lshl_add_u32 v{vKW}, v{wG}, 3, v{vKW}")
    I(f"s_lshl_b32 s24, s{sWV}, 10"); I(f"s_add_u32 s24, s24, {L_KM}"); I(f"v_add_u32 v{vKW}, s24, v{vKW}")
    I(f"v_lshlrev_b32 v{vTR2}, 3, v{wLN}"); I(f"v_add_u32 v{vTR2}, {L_KM}, v{vTR2}")
    QS = 272
    I(f"s_mul_i32 s24, s{sWV}, {32*QS}"); I(f"s_add_u32 s24, s24, {L_PT}")
    I(f"v_mul_u32_u24 v{vPW}, {QS}, v{wC}"); I(f"v_lshl_add_u32 v{vPW}, v{wG}, 4, v{vPW}"); I(f"v_add_u32 v{vPW}, s24, v{vPW}")
    I(f"v_mul_u32_u24 v{vPR}, {QS}, v{wG}"); I(f"v_lshl_add_u32 v{vPR}, v{wC}, 4, v{vPR}"); I(f"v_add_u32 v{vPR}, s24, v{vPR}")
    vPG, vRL, vRO, vKVR, vSEL4 = 29, 38, 39, 9, 184
    I(f"s_lshl_b32 s24, s{sWV}, 8")
    I(f"v_lshlrev_b32 v40, 4, v{wC}"); I("v_add_u32 v40, s24, v40")
    I(f"v_lshl_add_u32 v{vPG}, v{wG}, 15, v40")
    I(f"v_lshl_add_u32 v{vRL}, v{wG}, 10, v40")
    I(f"v_lshl_add_u32 v{vRO}, v{wG}, 2, v40")
    I(f"v_add_u32 v{vKVR}, {L_KV2}, v{wL16}")
    I(f"s_lshr_b32 s24, s{sWV}, 1"); I("s_lshl_b32 s24, s24, 12"); I(f"v_add_u32 v8, s24, v{vKVR}")
    I(f"v_and_b32 v40, 1, v{wC}"); I("v_lshlrev_b32 v40, 4, v40"); I("v_mov_b32 v41, 0x3f80"); I("v_lshlrev_b32 v41, v40, v41")
    for i in range(4):
        I(f"v_cmp_eq_u32 vcc, {i}, v{wR}"); I(f"v_cndmask_b32 v{vSEL4+i}, 0, v41, vcc")
    vQW, vQR, vOWr, vL64 = 34, 35, 36, 37
    I(f"v_add_u32 v{vL64}, 65536, v{wL16}")
    I(f"s_lshl_b32 s24, s{sWV}, 10"); I(f"v_add_u32 v{vQW}, s24, v{vL64}")
    I(f"s_and_b32 s24, s{sWV}, 1"); I("s_lshl_b32 s24, s24, 12"); I(f"v_add_u32 v{vQR}, s24, v{vL64}")
    I(f"s_lshr_b32 s25, s{sWV}, 1"); I("s_lshl_b32 s25, s25, 11"); I(f"v_add_u32 v{vOWr}, s25, v{vQR}")
    I(f"s_and_b32 s24, s{sWV}, 1"); I("s_lshl_b32 s24, s24, 4"); I(f"v_add_u32 v40, s24, v{wC}")
    I(f"v_lshlrev_b32 v41, 2, v{wG}"); I("v_sub_u32 v40, v40, v41")
    for j in range(8): I(f"v_cmp_le_i32 s[{sMK+2*j}:{sMK+2*j+1}], {16*(j>>2) + (j&3)}, v40")
    for i in range(4): I(f"v_mov_b32 v{vZ+i}, 0")
    I(f"s_sub_u32 s{sSEG}, s{sG}, 1")
    sGR = 33
    I(f"s_mov_b32 s{sPRE}, 0")
    I(f"s_lshl_b32 s{sGR}, s{sG}, 5"); I(f"s_add_u32 s{sGR}, s{sGR}, s{sH}")
    I("s_barrier")
    XF = 40; KF = 72; VF = 104; QF = 120; SS = 136; KMF = 148; T0 = 164; XR = 10
    TS(A, 188, 5)
    if TRACE[0]: I("s_mov_b32 s60, 0")
    def TH(k):
        if not TRACE[0]: return
        I(f"s_add_u32 s61, s60, {k & 3}"); TS(A, 189 + (k >> 2), "s61")
    def issue(tag, segoff):
        I(f"s_add_u32 s26, s{sSEG}, {segoff}")
        I("s_lshl_b32 s25, s26, 15"); I(f"s_add_u32 s25, s25, {WS_XN}")
        I("s_mov_b32 s24, 0")
        A.label(f"H2_is{tag}")
        I("s_and_b32 s27, s24, 15"); I("s_lshl_b32 s27, s27, 4")
        I(f"v_xor_b32 v{vTm}, s27, v{wL16}")
        I("s_lshl_b32 m0, s24, 10")
        I("s_add_u32 s24, s24, 1")
        I(f"buffer_load_dwordx4 v{vTm}, {WSS}, s25 offen sc1 lds")
        I("s_add_u32 s25, s25, 1024")
        I("s_cmp_lt_u32 s24, 32"); I(f"s_cbranch_scc1 H2_is{tag}")
        I("s_lshl_b32 s25, s26, 19"); I(f"s_lshl_b32 s27, s{sH}, 14"); I("s_add_u32 s25, s25, s27"); I(f"s_add_u32 s25, s25, {WS_KV}")
        for q in range(4):
            I(f"s_mov_b32 m0, {L_KV2 + q*4096}")
            I("s_nop 0")
            for i in range(4): I(f"buffer_load_dwordx4 v{wL16}, {WSS}, s25 offen offset:{i*1024} sc1 lds")
            I("s_add_u32 s25, s25, 4096")
    I(f"s_lshl_b32 s{sA0}, s{sSEG}, 15"); I(f"s_add_u32 s{sA0}, s{sA0}, {WS_XN}")
    rows_dma(A, vTm, sA0, L_XB)
    I(f"s_lshl_b32 s27, s{sSEG}, 19"); I(f"s_lshl_b32 s25, s{sH}, 14"); I("s_add_u32 s27, s27, s25"); I(f"s_lshl_b32 s25, s{sWV}, 12"); I("s_add_u32 s27, s27, s25"); I(f"s_add_u32 s27, s27, {WS_KV}")
    I(f"s_add_u32 m0, s25, {L_KV2}")
    I("s_nop 0")
    for i in range(4): I(f"buffer_load_dwordx4 v{wL16}, {WSS}, s27 offen offset:{i*1024} sc1 lds")
    I(f"s_lshl_b32 s24, s{sGR}, 10"); I(f"s_add_u32 s24, s24, {WS_HN}")
    I(f"buffer_load_dword v11, v{vRO}, {WSS}, s24 offen sc1")
    I(f"s_lshl_b32 s24, s{sGR}, 15"); I(f"s_add_u32 s24, s24, {WS_PART}")
    I(f"buffer_load_dword v11, v{vRO}, {WSS}, s24 offen sc1")
    I(f"s_lshl_b32 s24, s{sG}, 7"); I(f"v_lshlrev_b32 v{T0+1}, 11, v{wG}"); I(f"s_add_u32 s24, s24, {F_PART}")
    I(f"buffer_load_dword v11, v{T0+1}, {WSS}, s24 offen sc1")
    I("s_waitcnt vmcnt(3)")
    A.label("H2_loop")
    TH(0)
    I(f"s_lshl_b32 s{sA1}, s{sSEG}, 5"); I(f"s_add_u32 s{sA1}, s{sA1}, s{sH}")
    I(f"s_lshl_b32 s24, s{sA1}, 10")
    I(f"buffer_load_dword v{XR}, v{vRO}, {SW}, s24 offen")
    I("s_barrier")
    AC = T0
    def rd(ks): return [f"ds_read_b128 {vr(XF + 8*(ks&3) + 4*t,4)}, v{vXA + (ks&3)} offset:{L_XB + (ks>>2)*256 + t*16384}" for t in range(2)]
    for ks in range(3):
        for x in rd(ks): I(x)
    for ks in range(16):
        I(f"s_waitcnt lgkmcnt({4 if ks < 14 else (2 if ks == 14 else 0)})")
        ms = []
        for eps in range(2):
            for t in range(2):
                dk = AC + 8*t + 4*eps
                ms.append(f"v_mfma_f32_16x16x32_bf16 {vr(dk,4)}, {ar((eps*16+ks)*4,4)}, {vr(XF + 8*(ks&3) + 4*t, 4)}, {'0' if ks == 0 else vr(dk,4)}")
        slots(A, ms, [[x] for x in rd(ks + 3)] if ks + 3 < 16 else [])
    for i in range(8): I(f"ds_read_b128 {vr(KF+4*i,4)}, v{vKVR} offset:{i*1024}")
    for i in range(4): I(f"ds_read_b128 {vr(VF+4*i,4)}, v8 offset:{8192 + i*1024}")
    for t in range(2):
        for i in range(4): I(cv(XF + 4*t + i, AC + 8*t + 2*i))
        I(f"ds_write_b128 v{vQW}, {vr(XF+4*t,4)} offset:{L_QX - 65536 + t*4096}")
    I("s_waitcnt lgkmcnt(0)")
    I("s_barrier")
    for sg in range(4): I(f"ds_read_b128 {vr(QF+4*sg,4)}, v{vQR} offset:{L_QX - 65536 + sg*1024}")
    I("s_waitcnt lgkmcnt(0)")
    for tk in range(2):
        for sg in range(4): I(mf32(SS + 4 + 4*tk, KF + 16*tk + 4*sg, QF + 4*sg, "0" if sg == 0 else vr(SS + 4 + 4*tk, 4)))
    regs = [SS + 4 + j for j in range(8)] + [SS, SS + 1]
    tm = T0 + 8
    def rb2(a, b, t):
        I(f"v_cvt_pk_bf16_f32 v{t}, v{a}, v{b}"); I(f"v_lshlrev_b32 v{a}, 16, v{t}"); I(f"v_and_b32 v{b}, 0xffff0000, v{t}")
    def scal(i):
        a, b = regs[i], regs[i+1]
        rb2(a, b, tm + 2)
        I(f"v_mul_f32 v{a}, {hex(f2u(128 ** -0.5))}, v{a}"); I(f"v_mul_f32 v{b}, {hex(f2u(128 ** -0.5))}, v{b}")
        rb2(a, b, tm + 2)
    I(f"v_mov_b32 v{tm+1}, {hex(f2u(-1e9))}")
    for i in range(0, 8, 2): scal(i)
    for j in range(8): I(f"v_cndmask_b32 v{regs[j]}, v{tm+1}, v{regs[j]}, s[{sMK+2*j}:{sMK+2*j+1}]")
    I(f"v_max3_f32 v{tm}, v{regs[0]}, v{regs[1]}, v{regs[2]}")
    for i in range(3, 7, 2): I(f"v_max3_f32 v{tm}, v{tm}, v{regs[i]}, v{regs[i+1]}")
    I(f"v_max_f32 v{tm}, v{tm}, v{regs[7]}")
    I(f"s_cmp_ge_u32 s{sSEG}, {NG}"); I("s_cbranch_scc1 H2_kvd")
    I(f"v_lshlrev_b32 v{T0+1}, 2, v{wLN}"); I(f"s_lshl_b32 s28, s{sH}, 7"); I(f"s_add_u32 s28, s28, {F_KV}")
    A.label("H2_kvw")
    I(f"buffer_load_dword v{T0}, v{T0+1}, {WSS}, s28 offen sc1")
    I(f"s_add_u32 s{sSPIN}, s{sSPIN}, 1"); I(f"s_cmp_gt_u32 s{sSPIN}, {SPIN_MAX}")
    I("s_waitcnt vmcnt(0)")
    I("s_cbranch_scc1 H2_kvd")
    I(f"v_cmp_gt_u32 vcc, 64, v{T0}"); I("s_nop 0"); I(f"s_and_b32 s24, vcc_lo, {(1 << NG1) - 1}")
    I("s_cbranch_scc1 H2_kvw")
    A.label("H2_kvd")
    I(f"s_mul_i32 s26, s{sH}, 65"); I(f"s_add_u32 s26, s26, s{sSEG}"); I("s_lshl_b32 s26, s26, 12"); I(f"s_add_u32 s26, s26, {WS_KM}")
    I(f"s_lshl_b32 s27, s{sWV}, 10"); I("s_add_u32 s27, s27, s26")
    I(f"s_lshr_b32 s24, s{sWV}, 1"); I("s_lshl_b32 s24, s24, 11"); I("s_add_u32 s26, s26, s24")
    TH(1)
    VM = T0 + 4
    I("s_branch H2_kmp")
    A.label("H2_kmr")
    I(f"s_cmp_ge_u32 s{sSEG}, {opt.get('ktight', 61)}"); I("s_cbranch_scc1 H2_kmp")
    I(f"v_mov_b32 v{T0+3}, 0")
    A.label("H2_kmc")
    I(f"s_sleep {opt.get('ksleep', 8)}")
    I(f"buffer_load_dword v{T0+2}, v{T0+3}, {WSS}, s27 offen sc1")
    I(f"s_add_u32 s{sSPIN}, s{sSPIN}, 1")
    I(f"s_cmp_gt_u32 s{sSPIN}, {SPIN_MAX}")
    I("s_waitcnt vmcnt(0)")
    I("s_cbranch_scc1 H2_kmp")
    I(f"v_cmp_eq_u32 vcc, -1, v{T0+2}")
    I("s_cbranch_vccnz H2_kmc")
    A.label("H2_kmp")
    I(f"buffer_load_dwordx2 {vr(T0,2)}, v{wL16}, {WSS}, s27 offen sc1")
    I(f"buffer_load_dwordx2 {vr(VM,2)}, v{wL16}, {WSS}, s26 offen offset:8 sc1")
    I(f"buffer_load_dwordx2 {vr(VM+2,2)}, v{wL16}, {WSS}, s26 offen offset:1032 sc1")
    I(f"s_add_u32 s{sSPIN}, s{sSPIN}, 1")
    I(f"s_cmp_gt_u32 s{sSPIN}, {SPIN_MAX}")
    I("s_waitcnt vmcnt(0)")
    I("s_cbranch_scc1 H2_kmd")
    I(f"v_max3_u32 v{T0+2}, v{T0}, v{T0+1}, v{VM}"); I(f"v_max3_u32 v{T0+2}, v{T0+2}, v{VM+1}, v{VM+2}"); I(f"v_max_u32 v{T0+2}, v{T0+2}, v{VM+3}")
    I(f"v_cmp_eq_u32 vcc, -1, v{T0+2}")
    I("s_cbranch_vccnz H2_kmr")
    A.label("H2_kmd")
    TH(2)
    I(f"ds_write2st64_b32 v{vKW}, v{T0}, v{T0+1} offset0:0 offset1:2")
    I("s_waitcnt lgkmcnt(0)")
    I("s_barrier")
    for sg in range(4):
        for rho in range(2): I(f"ds_read_b64_tr_b16 {vr(KMF+4*sg+2*rho,2)}, v{vTR2} offset:{sg*1024 + rho*512}")
    I(f"s_add_u32 s26, s{sSEG}, {NG}")
    I(f"s_lshl_b32 s{sA0}, s26, 15"); I(f"s_add_u32 s{sA0}, s{sA0}, {WS_XN}")
    I("s_lshl_b32 s27, s26, 19"); I(f"s_lshl_b32 s25, s{sH}, 14"); I("s_add_u32 s27, s27, s25"); I(f"s_lshl_b32 s25, s{sWV}, 12"); I("s_add_u32 s27, s27, s25"); I(f"s_add_u32 s27, s27, {WS_KV}")
    I(f"s_add_u32 m0, s25, {L_KV2}")
    I("s_cmp_ge_u32 s26, 64"); I(f"s_cselect_b32 s{sA0}, {OOB}, s{sA0}"); I(f"s_cselect_b32 s27, {OOB}, s27")
    kvd = [f"buffer_load_dwordx4 v{wL16}, {WSS}, s27 offen offset:{i*1024} sc1 lds" for i in range(4)]
    for sg in range(4):
        I(f"s_waitcnt lgkmcnt({6-2*sg})")
        I(mf32(SS, KMF + 4*sg, QF + 4*sg, "0" if sg == 0 else vr(SS, 4)))
    I(kvd[0])
    scal(8)
    I(f"v_max3_f32 v{tm}, v{tm}, v{regs[8]}, v{regs[9]}")
    def xred(r, op):
        for sw in ("16", "32"):
            I(f"v_mov_b32 v{tm+2}, v{r}"); I(f"v_permlane{sw}_swap_b32 v{r}, v{tm+2}"); I(f"v_{op}_f32 v{r}, v{r}, v{tm+2}")
    xred(tm, "max")
    I(f"v_mov_b32 v{tm+2}, {hex(f2u(1.4426950408889634))}")
    prs = [SS + 4, SS + 6, SS + 8, SS + 10, SS]
    for r in prs: I(f"v_pk_add_f32 {vr(r,2)}, {vr(r,2)}, {vr(tm,2)} op_sel_hi:[1,0] neg_lo:[0,1] neg_hi:[0,1]")
    for r in prs: I(f"v_pk_mul_f32 {vr(r,2)}, {vr(r,2)}, {vr(tm+2,2)} op_sel_hi:[1,0]")
    for r in regs: I(f"v_exp_f32 v{r}, v{r}")
    I(f"v_pk_add_f32 {vr(tm,2)}, {vr(prs[0],2)}, {vr(prs[1],2)}")
    for r in prs[2:]: I(f"v_pk_add_f32 {vr(tm,2)}, {vr(tm,2)}, {vr(r,2)}")
    I(f"v_add_f32 v{tm}, v{tm}, v{tm+1}")
    xred(tm, "add")
    I(f"v_rcp_f32 v{tm}, v{tm}")
    for r in prs: I(f"v_pk_mul_f32 {vr(r,2)}, {vr(r,2)}, {vr(tm,2)} op_sel_hi:[1,0]")
    for i in range(4): I(cv(SS + 4 + i, SS + 4 + 2*i))
    I(cv(vZ, SS)); I(cv(vZ + 3, SS))
    OA = XF
    slots(A, [mf32(OA + 4*e, VF + 4*e, SS + 4, "0") for e in range(4)], [[kvd[1]]])
    slots(A, [mf16(OA + 4*e, VM + 2*(e>>1), vZ + 2*(e&1), vr(OA + 4*e, 4)) for e in range(4)], [[], [], [], [kvd[2]]])
    for i in range(2):
        for j in range(4): I(cv(QF + 4*i + j, OA + 8*i + 2*j))
        I(f"ds_write_b128 v{vOWr}, {vr(QF+4*i,4)} offset:{L_OX - 65536 + i*1024}")
    I(f"s_lshl_b32 s24, s{sG}, 20"); I(f"s_lshl_b32 s25, s{sH}, 10"); I("s_add_u32 s24, s24, s25"); I(f"s_add_u32 s24, s24, {WS_PART}")
    I("s_waitcnt lgkmcnt(0)")
    I("s_barrier")
    OF = XF
    for i in range(8): I(f"ds_read_b128 {vr(OF+4*i,4)}, v{vL64} offset:{L_OX - 65536 + i*1024}")
    I(kvd[3])
    rows_dma_prep(A, sA0, L_XB)
    items = rows_dma_items(vTm)
    PA = KF
    PB_ = SS
    def wo(t): return [f"v_mfma_f32_16x16x32_bf16 {vr(PA + 32*t + 4*t8,4)}, {ar(128 + (t8*4 + ks)*4,4)}, {vr(OF + 16*t + 4*ks,4)}, {'0' if ks == 0 else vr(PA + 32*t + 4*t8,4)}"
                       for t8 in range(8) for ks in range(4)]
    def pkw(t, p):
        d = PA + 32*t + 8*p
        return [cv(d + i, d + 2*i) for i in range(4)] + [f"ds_write_b128 v{vPW}, {vr(d,4)} offset:{t*16*QS + p*64}"]
    def rdb(t): return [f"ds_read_b128 {vr(PB_+4*i,4)}, v{vPR} offset:{(t*16 + 4*i)*QS}" for i in range(4)]
    def body(f):
        def st(i): return [f"buffer_store_dwordx4 {vr(PB_+4*i,4)}, v{vPG}, {WSS}, s24 offen {f}", "s_add_u32 s24, s24, 131072"]
        fl = [[] for _ in range(64)]
        for t in range(2):
            for p in range(4):
                q = pkw(t, p); at = 32*t + 8*p + 11
                if at + 2 < 64:
                    fl[at] += q[:2]; fl[at+1] += q[2:4]; fl[at+2] += q[4:]
        fl[40] += ["s_waitcnt lgkmcnt(0)"] + rdb(0)[:2]; fl[41] += rdb(0)[2:]
        fl[47] += ["s_waitcnt lgkmcnt(1)"] + st(0); fl[51] = st(1) + fl[51]; fl[55] += st(2); fl[59] = st(3) + fl[59]
        I("s_waitcnt lgkmcnt(4)")
        ms = wo(0) + wo(1)
        fl[30] += ["s_waitcnt lgkmcnt(3)"]
        for i, at in enumerate([1, 5, 9, 15, 17+5, 25, 31, 33+5]):
            fl[at] += items[i][0]; fl[at+1] = items[i][1] + fl[at+1]
        slots(A, ms, fl)
        for x in pkw(1, 3): I(x)
        I("s_waitcnt lgkmcnt(0)")
        for x in rdb(1): I(x)
        for i in range(4):
            I(f"s_waitcnt lgkmcnt({3-i})")
            for x in st(i): I(x)
    dual(A, body)
    TH(3)
    I("s_waitcnt vmcnt(0)")
    I("s_barrier")
    TH(4)
    I(f"s_lshl_b32 s29, s{sG}, 7"); I(f"s_add_u32 s28, s29, {F_PART}")
    gsignal(A, 28, T0, T0 + 1)
    I(f"s_lshl_b32 s26, s{sGR}, 15"); I(f"s_add_u32 s26, s26, {WS_PART}")
    gwait(A, 28, T0, T0 + 1)
    TH(5)
    for i in range(8):
        I(f"buffer_load_dwordx4 {vr(XF+4*i,4)}, v{vRL}, {WSS}, s26 offen sc1")
        I("s_add_u32 s26, s26, 4096")
    RS = KF; RT = KF + 4
    unpack(A, XR, RT, 1)
    for i in range(8):
        I(f"s_waitcnt vmcnt({7-i})")
        I(mf32(RS, vSEL4, XF + 4*i, "0" if i == 0 else vr(RS, 4)))
    I(cv(RS + 2, RS)); unpack(A, RS + 2, RS, 1)
    I(f"v_add_f32 v{RS}, v{RS}, v{RT}"); I(f"v_add_f32 v{RS+1}, v{RS+1}, v{RT+1}")
    I(cv(XR, RS)); unpack(A, XR, RS, 1)
    I(f"v_add_f32 v{RT}, v{RS}, v{RS+1}")
    I(f"v_mul_f32 v{RT+1}, v{RS}, v{RS}"); I(f"v_fmac_f32 v{RT+1}, v{RS+1}, v{RS+1}")
    allreduce(A, [RT, RT + 1], RT + 2)
    I(f"s_lshl_b32 s24, s{sWV}, 3"); I(f"s_add_u32 s24, s24, {L_RED}"); I(f"v_mov_b32 v{RT+2}, s24"); I(f"v_mov_b32 v{RT+3}, {L_RED}")
    I(f"ds_write_b64 v{RT+2}, {vr(RT,2)}")
    I(f"s_lshl_b32 s24, s{sGR}, 10"); I(f"s_add_u32 s26, s24, {WS_HN}")
    I("s_waitcnt lgkmcnt(0)")
    I("s_barrier")
    I(f"ds_read_b128 {vr(RT+4,4)}, v{RT+3}"); I(f"ds_read_b128 {vr(RT+8,4)}, v{RT+3} offset:16")
    I("s_waitcnt lgkmcnt(0)")
    I(f"v_pk_add_f32 {vr(RT+4,2)}, {vr(RT+4,2)}, {vr(RT+6,2)}"); I(f"v_pk_add_f32 {vr(RT+8,2)}, {vr(RT+8,2)}, {vr(RT+10,2)}")
    I(f"v_pk_add_f32 {vr(RT,2)}, {vr(RT+4,2)}, {vr(RT+8,2)}")
    I(f"v_mul_f32 v{RT}, {hex(f2u(1/512))}, v{RT}"); I(f"v_mul_f32 v{RT+1}, {hex(f2u(1/512))}, v{RT+1}")
    I(f"v_fma_f32 v{RT+1}, -v{RT}, v{RT}, v{RT+1}"); I(f"v_max_f32 v{RT+1}, 0, v{RT+1}")
    ln_finish(A, RT, RT + 1)
    I(f"v_sub_f32 v{RS}, v{RS}, v{RT}"); I(f"v_sub_f32 v{RS+1}, v{RS+1}, v{RT}")
    I(cv(RS + 2, RS)); unpack(A, RS + 2, RS, 1)
    I(f"v_mul_f32 v{RS}, v{RS}, v{RT+1}"); I(f"v_mul_f32 v{RS+1}, v{RS+1}, v{RT+1}")
    I(cv(RS + 2, RS))
    dual(A, lambda f: I(f"buffer_store_dword v{RS+2}, v{vRO}, {WSS}, s26 offen {f}"))
    I("s_waitcnt vmcnt(0)")
    I("s_barrier")
    I(f"s_add_u32 s28, s29, {F_HN}")
    gsignal(A, 28, T0, T0 + 1)
    TH(6)
    gwait(A, 28, T0, T0 + 1)
    TH(7)
    I(f"s_cmp_ge_u32 s{sSEG}, {NG}"); I("s_cbranch_scc1 H2_sent")
    wait_ge(A, DBG, D_P2, 64, T0, T0 + 1, 24, sleep=4, barrier=False, allwaves=True)
    A.label("H2_sent")
    I(f"s_lshl_b32 s{sA0}, s{sG}, 15"); I(f"s_add_u32 s{sA0}, s{sA0}, {WS_HN}")
    rows_dma(A, vTm, sA0, L_HB)
    I(f"s_lshl_b32 s25, s{sA1}, 10"); I(f"s_add_u32 s25, s25, {WS_H}")
    I(f"buffer_store_dword v{XR}, v{vRO}, {WSS}, s25 offen sc1")
    I("s_waitcnt vmcnt(1)")
    I("s_barrier")
    TH(8)
    I(f"s_cmp_ge_u32 s{sTILE}, 86"); I("s_cbranch_scc1 H2_skipz")
    HF = XF
    for ks in range(16):
        for t in range(2): I(f"ds_read_b128 {vr(HF + 8*ks + 4*t,4)}, v{vHA + 4*t + (ks&3)} offset:{(ks>>2)*256}") if ks < 4 else None
    ZA = 168
    I(f"s_cmp_lt_u32 s{sTILE}, 43"); I("s_cbranch_scc1 H2_z1")
    for var in range(2):
        if var == 1: A.label("H2_z1")
        for ks in range(16):
            I(f"s_waitcnt lgkmcnt({6 if ks < 13 else 2*(15-ks)})")
            for t in range(2):
                a, b = (HF + 8*ks + 4*t, WIN + 4*ks) if var == 0 else (WIN + 4*ks, HF + 8*ks + 4*t)
                I(mf32(ZA + 4*t, a, b, "0" if ks == 0 else vr(ZA + 4*t, 4)))
                k2 = ks + 4
                if k2 < 16: I(f"ds_read_b128 {vr(HF + 8*k2 + 4*t,4)}, v{vHA + 4*t + (k2&3)} offset:{(k2>>2)*256}")
        if var == 0: I("s_branch H2_zc")
    A.label("H2_zc")
    I("s_nop 7")
    tm = 176
    k1 = -2 * 0.7978845608028654 * 1.4426950408889634
    I(f"v_mov_b32 v{XF}, {hex(f2u(k1 * 0.044715))}"); I(f"v_mov_b32 v{XF+2}, {hex(f2u(k1))}")
    for i in range(0, 8, 2):
        I(f"v_cvt_pk_bf16_f32 v{tm}, v{ZA+i}, v{ZA+i+1}"); I(f"v_lshlrev_b32 v{ZA+i}, 16, v{tm}"); I(f"v_and_b32 v{ZA+i+1}, 0xffff0000, v{tm}")
    for i in range(0, 8, 2):
        I(f"v_pk_mul_f32 {vr(tm+i,2)}, {vr(ZA+i,2)}, {vr(ZA+i,2)}")
        I(f"v_pk_fma_f32 {vr(tm+i,2)}, {vr(tm+i,2)}, {vr(XF,2)}, {vr(XF+2,2)} op_sel_hi:[1,0,0]")
        I(f"v_pk_mul_f32 {vr(tm+i,2)}, {vr(tm+i,2)}, {vr(ZA+i,2)}")
    for i in range(8): I(f"v_exp_f32 v{tm+i}, v{tm+i}")
    for i in range(0, 8, 2): I(f"v_pk_add_f32 {vr(tm+i,2)}, {vr(tm+i,2)}, 1.0 op_sel_hi:[1,0]")
    for i in range(8): I(f"v_rcp_f32 v{tm+i}, v{tm+i}")
    for i in range(0, 8, 2): I(f"v_pk_mul_f32 {vr(ZA+i,2)}, {vr(ZA+i,2)}, {vr(tm+i,2)}")
    for i in range(4): I(cv(tm + i, ZA + 2*i))
    I(f"s_mul_i32 s24, s{sSEG}, 86"); I(f"s_add_u32 s24, s24, s{sTILE}"); I("s_lshl_b32 s24, s24, 10"); I(f"s_add_u32 s24, s24, {WS_Z}")
    I(f"buffer_store_dwordx4 {vr(tm,4)}, v{wL16}, {WSS}, s24 offen sc1")
    I(f"s_cmp_lt_u32 s{sTILE}, 43"); I("s_cbranch_scc1 H2_nostat")
    ST = XF
    for i in range(4):
        I(f"v_lshlrev_b32 v{ST+4*i}, 16, v{tm+i}"); I(f"v_and_b32 v{ST+4*i+2}, 0xffff0000, v{tm+i}")
    for i in range(8): I(f"v_mul_f32 v{ST+2*i+1}, v{ST+2*i}, v{ST+2*i}")
    for r in range(16): I(f"v_add_f32_dpp v{ST+r}, v{ST+r}, v{ST+r} row_ror:8 row_mask:0xf bank_mask:0xf")
    for r in range(8): I(f"v_mov_b32_dpp v{ST+r}, v{ST+8+r} quad_perm:[0,1,2,3] row_mask:0xf bank_mask:0xc")
    for r in range(8): I(f"v_add_f32_dpp v{ST+r}, v{ST+r}, v{ST+r} row_half_mirror row_mask:0xf bank_mask:0xf")
    for r in range(4): I(f"v_mov_b32_dpp v{ST+r}, v{ST+4+r} quad_perm:[0,1,2,3] row_mask:0xf bank_mask:0xa")
    for r in range(4): I(f"v_add_f32_dpp v{ST+r}, v{ST+r}, v{ST+r} quad_perm:[1,0,3,2] row_mask:0xf bank_mask:0xf")
    for r in range(4): I(f"v_add_f32_dpp v{ST+r}, v{ST+r}, v{ST+r} quad_perm:[2,3,0,1] row_mask:0xf bank_mask:0xf")
    I(f"v_lshlrev_b32 v{ST+4}, 2, v{wLN}")
    I(f"v_mov_b32 v{ST+5}, {OOB}"); I(f"v_cmp_eq_u32 vcc, 0, v{wCP}"); I(f"v_cndmask_b32 v{ST+4}, v{ST+5}, v{ST+4}, vcc")
    I(f"s_lshl_b32 s24, s{sSEG}, 6"); I(f"s_add_u32 s24, s24, s{sTILE}"); I("s_lshl_b32 s24, s24, 8"); I(f"s_add_u32 s24, s24, {WS_ZS - 43*256}")
    I(f"buffer_store_dwordx4 {vr(ST,4)}, v{ST+4}, {WSS}, s24 offen sc1")
    A.label("H2_nostat")
    I("s_waitcnt vmcnt(0)")
    A.label("H2_skipz")
    I("s_waitcnt vmcnt(0)")
    A.label("H2_zend")
    I("s_barrier")
    I(f"s_add_u32 s28, s29, {F_ZL}")
    gsignal(A, 28, T0, T0 + 1)
    I(f"s_cmp_lg_u32 s{sH}, 31"); I("s_cbranch_scc1 H2_nosig")
    gwait(A, 28, T0, T0 + 1, barrier=False)
    I(f"s_lshl_b32 s28, s{sSEG}, 7"); I(f"s_add_u32 s28, s28, {F_Z}")
    signal_store(A, "s28", 1, T0, T0 + 1)
    A.label("H2_nosig")
    TH(9)
    if TRACE[0]: I("s_add_u32 s60, s60, 4")
    I(f"s_add_u32 s{sSEG}, s{sSEG}, {NG}")
    I(f"s_cmp_lt_u32 s{sSEG}, 64"); I("s_cbranch_scc1 H2_loop")
    TDUMP(A, [188, 189, 190, 191], 40, (4, 9, 3, 3))


def t6_mm(A, kss, first, YA, UF, vU, extra=()):
    I = A.I
    extra = list(extra)
    def rd(n): return [f"ds_read_b128 {vr(UF + 8*(n%3) + 4*t,4)}, v{vU} offset:{kss[n]*2048 + t*1024}" for t in range(2)]
    for n in range(2):
        for x in rd(n): I(x)
    for n, ks in enumerate(kss):
        I(f"s_waitcnt lgkmcnt({2 if n + 1 < len(kss) else 0})")
        ms = [f"v_mfma_f32_16x16x32_bf16 {vr(YA + 8*t + 4*par,4)}, {ar((ks*2+par)*4,4)}, {vr(UF + 8*(n%3) + 4*t,4)}, {'0' if (first and n == 0) else vr(YA + 8*t + 4*par,4)}"
              for t in range(2) for par in range(2)]
        fl = [[x] for x in rd(n + 2)] if n + 2 < len(kss) else [[], []]
        fl += [[extra.pop(0)] if extra else []]
        slots(A, ms, fl)

def t6_addr(A, vO):
    I = A.I
    I(f"v_lshlrev_b32 v{vO}, 10, v{wC}"); I(f"v_lshl_add_u32 v{vO}, v{wG}, 4, v{vO}")
    I(f"s_lshl_b32 s26, s{sJ6}, 15"); I(f"s_lshl_b32 s24, s{sQ6}, 8"); I("s_add_u32 s26, s26, s24"); I(f"s_lshl_b32 s24, s{sWV}, 6"); I("s_add_u32 s26, s26, s24")
    I("s_add_u32 s27, s26, 16384"); I(f"s_add_u32 s28, s26, {WS_H}"); I(f"s_add_u32 s29, s27, {WS_H}")
def t6_hload(HR, vO): return [f"buffer_load_dwordx4 {vr(HR+4*t,4)}, v{vO}, {WSS}, s{28+t} offen sc1" for t in range(2)]
OUTF = ['']
def t6_out(A, YA, HR, T, vO):
    I = A.I
    I("s_waitcnt vmcnt(0)")
    for t in range(2):
        d = YA + 8*t
        unpack(A, HR + 4*t, T, 4)
        for i in range(4): I(cv(T + 8 + i, d + 2*i))
        unpack(A, T + 8, d, 4)
        for j in range(4): I(f"v_pk_add_f32 {vr(d+2*j,2)}, {vr(d+2*j,2)}, {vr(T+2*j,2)}")
        for j in range(4): I(cv(d + j, d + 2*j))
        I(f"buffer_store_dwordx4 {vr(d,4)}, v{vO}, {SW}, s{26+t} offen {OUTF[0]}")

def helper_t6(A, opt):
    I = A.I
    I("v_mbcnt_lo_u32_b32 v0, -1, 0"); I("v_mbcnt_hi_u32_b32 v0, -1, v0")
    lanes(A)
    helper_ids(A, sJ6, sQ6)
    I("s_waitcnt vmcnt(0) lgkmcnt(0)")
    I("s_barrier")
    TS(A, 15, 47)
    OUTF[0] = opt.get("outf", "")
    if opt.get("wb"):
        I(f"s_cmp_lg_u32 s{sH}, 31"); I("s_cbranch_scc1 T6_nowb"); I(f"s_cmp_lg_u32 s{sWV}, 3"); I("s_cbranch_scc1 T6_nowb")
        I("buffer_wbl2 sc1")
        A.label("T6_nowb")
    I(f"s_cmp_eq_u32 s{sPRE}, 1"); I("s_cbranch_scc1 T6_rest")
    wout_preload(A, 8, ((0, 16),))
    A.label("T6_rest")
    wout_preload(A, 8, ((16, 22),))
    TS(A, 15, 48)
    vU, vW, vO, vX, YA, UF, HR, LB, T = 8, 9, 10, 11, 16, 32, 56, 64, 112
    srd(A, 96, 2 << 20)
    t6_addr(A, vO)
    I(f"v_add_u32 v{vU}, {L_U}, v{wL16}"); I(f"s_lshl_b32 s24, s{sWV}, 11"); I(f"v_add_u32 v{vW}, s24, v{vU}")
    I(f"s_mul_i32 s31, s{sJ6}, 49152"); I("s_add_u32 s31, s31, s24"); I(f"s_add_u32 s31, s31, {WS_U}")
    for i in range(1, 6): I(f"s_add_u32 s{31+i}, s31, {i*8192}")
    I(f"s_lshl_b32 s37, s{sJ6}, 7"); I(f"s_add_u32 s37, s37, {F_Z}")
    def lds(bt): return [f"buffer_load_dwordx4 {vr(LB + 24*bt + 8*i + 4*t,4)}, v{wL16}, {WSS}, s{31 + 3*bt + i} offen offset:{t*1024} sc1" for i in range(3) for t in range(2)]
    I("v_mov_b32 v12, 0")
    TS(A, 15, 49)
    mode = opt.get("t6mode", "adapt")
    def canload(bt): return f"buffer_load_dword v13, v12, {WSS}, s{33 + 3*bt} offen offset:{opt.get('cano', 1024)} sc1"
    def canary(bt, tag):
        A.label(f"T6_c{tag}")
        I(canload(bt))
        if tag == "a": I(f"buffer_load_dword v14, v12, {WSS}, s37 offen sc1")
        I(f"s_add_u32 s{sSPIN}, s{sSPIN}, 1"); I(f"s_cmp_gt_u32 s{sSPIN}, {SPIN_MAX}")
        I("s_waitcnt vmcnt(0)")
        I(f"s_cbranch_scc1 T6_ce{tag}")
        if tag == "a":
            I("v_add_u32 v14, -1, v14"); I("v_max_u32 v13, v13, v14")
        I("v_cmp_eq_u32 vcc, -1, v13")
        I(f"s_cbranch_vccz T6_ce{tag}")
        if tag == "a": I(f"s_sleep {opt.get('csleep', 1)}")
        I(f"s_branch T6_c{tag}")
        A.label(f"T6_ce{tag}")
    def check(bt, keep):
        A.label(f"T6_w{bt}")
        I(f"s_add_u32 s{sSPIN}, s{sSPIN}, 1"); I(f"s_cmp_gt_u32 s{sSPIN}, {SPIN_MAX}")
        I(f"s_cbranch_scc1 T6_d{bt}")
        b = LB + 24*bt
        I(f"v_max3_u32 v{vX}, v{b}, v{b+1}, v{b+2}")
        for r in range(3, 23, 2): I(f"v_max3_u32 v{vX}, v{vX}, v{b+r}, v{b+r+1}")
        I(f"v_max_u32 v{vX}, v{vX}, v{b+23}")
        I(f"v_cmp_eq_u32 vcc, -1, v{vX}")
        I(f"s_cbranch_vccz T6_d{bt}")
        for x in lds(bt): I(x)
        I("s_waitcnt vmcnt(0)")
        I(f"s_branch T6_w{bt}")
        A.label(f"T6_d{bt}")
    def share(bt):
        b = LB + 24*bt
        for i in range(3):
            for t in range(2): I(f"ds_write_b128 v{vW}, {vr(b + 8*i + 4*t,4)} offset:{(3*bt + i)*8192 + t*1024}")
        I("s_waitcnt lgkmcnt(0)")
        I("s_barrier")
    if mode == "last":
        canary(1, "a"); TS(A, 15, 50)
        for x in lds(0) + lds(1): I(x)
        I("s_waitcnt vmcnt(6)")
        check(0, 6); TS(A, 15, 51); share(0); TS(A, 15, 52)
        t6_mm(A, list(range(12)), True, YA, UF, vU, t6_hload(HR, vO)); TS(A, 15, 53)
        I("s_waitcnt vmcnt(2)")
    else:
        canary(0, "a"); TS(A, 15, 50)
        for x in lds(0): I(x)
        I("s_waitcnt vmcnt(0)")
        I(canload(1))
        check(0, 0); TS(A, 15, 51); share(0); TS(A, 15, 52)
        I("s_waitcnt vmcnt(0)")
        I("v_cmp_eq_u32 vcc, -1, v13")
        I("s_cbranch_vccnz T6_late")
        t6_mm(A, list(range(12)), True, YA, UF, vU, lds(1) + t6_hload(HR, vO))
        I("s_branch T6_join")
        A.label("T6_late")
        t6_mm(A, list(range(12)), True, YA, UF, vU, t6_hload(HR, vO))
        canary(1, "b")
        for x in lds(1): I(x)
        A.label("T6_join")
        TS(A, 15, 53)
        I("s_waitcnt vmcnt(0)")
    check(1, 0); TS(A, 15, 55); share(1); TS(A, 15, 56)
    t6_mm(A, list(range(12, 22)), False, YA, UF, vU); TS(A, 15, 57)
    t6_out(A, YA, HR, T, vO)

def p_main(A, opt):
    I = A.I
    sJ = 18; sS = 36; sZ = 20; sSP = 21; sRD = 22; sISS = 32
    L_ST = 147456; L_ST2 = L_ST + 2048
    vO5, vSO, vWS, vSW, vSR, vS2W, vS2R, vFA, vFD = 7, 9, 12, 13, 14, 15, 16, 4, 5
    TRC = 17
    COR = 0
    ACC = 20; BUF = [116, 164]; SB = 212; MU = 224; RS = 232; WF = 240; TM = 248
    if TRACE[0]: I(f"v_mov_b32 v{TRC}, v113")
    I(f"s_sub_u32 s{sJ}, s{sG}, 6"); I(f"s_lshl_b32 s{sJ}, s{sJ}, 5"); I(f"s_add_u32 s{sJ}, s{sJ}, s{sH}")
    pt = opt.get('pthr', 0)
    for i in range(4): I(f"v_mov_b32 v{TM+i}, -1")
    I(f"s_mul_i32 s37, s{sJ}, 49152"); I(f"s_lshl_b32 s24, s{sWV}, 11"); I("s_add_u32 s37, s37, s24"); I(f"s_add_u32 s37, s37, {WS_U}")
    I(f"v_lshlrev_b32 v{TM+4}, 4, v0")
    I(f"s_mul_i32 s24, s{sJ}, {86*1024}"); I(f"s_add_u32 s24, s24, {WS_Z}")
    for i in range(22):
        if i == 21: I("s_sub_u32 s24, s24, 2048")
        if pt: I(f"s_waitcnt vmcnt({pt - 1})")
        I(f"buffer_store_dwordx4 {vr(TM,4)}, v{TM+4}, {WSS}, s24 offen sc1"); I("s_add_u32 s24, s24, 4096")
    I(f"s_lshl_b32 s24, s{sJ}, 14"); I(f"s_add_u32 s24, s24, {WS_ZS}")
    for i in range(3):
        I(f"buffer_store_dwordx4 {vr(TM,4)}, v{TM+4}, {WSS}, s24 offen sc1"); I("s_add_u32 s24, s24, 4096")
    I("s_mov_b32 s24, s37")
    for i in range(6):
        if pt: I(f"s_waitcnt vmcnt({max(pt - 2, 0)})")
        for t in range(2): I(f"buffer_store_dwordx4 {vr(TM,4)}, v{wL16}, {WSS}, s24 offen offset:{t*1024} sc1")
        I("s_add_u32 s24, s24, 8192")
    I("s_waitcnt vmcnt(0)")
    I("s_barrier")
    signal_add(A, DBG, D_P2, 1, TM, TM + 1)
    I(f"s_mov_b32 s{sQ6}, 0")
    wout_preload(A, TM)
    srd(A, 72, 8 << 20)
    I(f"s_lshl_b32 s{sSP}, s{sJ}, 17")
    I(f"s_lshl_b32 s24, s{sWV}, 15"); I(f"s_add_u32 s24, s24, s{sSP}")
    for i in range(32 if opt.get("wsp", 1) else 0):
        if pt: I(f"s_waitcnt vmcnt({pt - 1})")
        I(f"buffer_load_dwordx4 {vr(ACC + 4*(i&15),4)}, v{wL16}, {SW}, s24 offen offset:{(i&3)*1024}")
        if (i & 3) == 3: I("s_add_u32 s24, s24, 4096")
    I(f"v_mov_b32 v{TM}, {OOB}")
    for par in range(2):
        I(f"s_lshl_b32 s24, s{sWV}, 1"); I(f"s_add_u32 s24, s24, {40 + par}"); I("s_cmp_lt_u32 s24, 43"); I("s_cselect_b64 vcc, -1, 0")
        I(f"v_cndmask_b32 v{vO5+par}, v{TM}, v{wL16}, vcc")
    for n in range(3):
        I(f"s_mul_i32 s24, s{sWV}, 12"); I(f"s_add_u32 s24, s24, {4*n}")
        I(f"v_add_u32 v{TM+1}, s24, v{wG}"); I(f"v_cmp_gt_u32 vcc, 43, v{TM+1}")
        I("s_lshl_b32 s24, s24, 8"); I(f"v_add_u32 v{TM+1}, s24, v{wL16}")
        I(f"v_cndmask_b32 v{vSO+n}, v{TM}, v{TM+1}, vcc")
    I(f"v_lshlrev_b32 v{vWS}, 12, v{wC}"); I(f"v_lshl_add_u32 v{vWS}, v{wG}, 4, v{vWS}")
    I(f"v_lshlrev_b32 v{vSR}, 4, v{wC}"); I(f"v_add_u32 v{vSR}, {L_ST}, v{vSR}")
    I(f"s_lshl_b32 s24, s{sWV}, 8"); I(f"v_add_u32 v{vSW}, s24, v{vSR}")
    I(f"s_add_u32 s24, s24, {L_ST2}")
    I(f"v_lshlrev_b32 v{vS2W}, 3, v{wC}"); I(f"v_add_u32 v{vS2W}, s24, v{vS2W}")
    I(f"v_lshlrev_b32 v{vS2R}, 5, v{wG}"); I(f"v_add_u32 v{vS2R}, s24, v{vS2R}")
    I("s_load_dwordx2 s[48:49], s[0:1], 80"); I("s_mov_b32 s50, 4096"); I("s_mov_b32 s51, 0x20000")
    I(f"v_lshlrev_b32 v{TM}, 1, v{wC}"); I(f"s_lshl_b32 s24, s{sJ}, 6")
    I("s_waitcnt lgkmcnt(0)")
    I(f"buffer_load_ushort v{COR}, v{TM}, s[48:51], s24 offen"); I(f"buffer_load_ushort v{COR+1}, v{TM}, s[48:51], s24 offen offset:32")
    I("s_waitcnt vmcnt(0)")
    I(f"v_cmp_eq_u32 vcc, 0, v{wG}")
    for t in range(2):
        I(f"v_lshlrev_b32 v{COR+t}, 16, v{COR+t}"); I(f"v_xor_b32 v{COR+t}, 0x80000000, v{COR+t}"); I(f"v_cndmask_b32 v{COR+t}, 0, v{COR+t}, vcc")
    for x in zero(ACC, 96): I(x)
    I(f"s_mov_b32 s{sS}, 0"); I(f"s_mov_b32 s{sRD}, 0"); I(f"s_mov_b32 s{sISS}, 0")
    I(f"s_lshl_b32 s{sZ}, s{sWV}, 11"); I(f"s_add_u32 s{sZ}, s{sZ}, {WS_Z + 43*1024}")
    TS(A, TRC, 2)
    CR = TM + 4 - 4 + 0
    def tiles(dst, sb):
        out = []
        for i in range(6):
            for par in range(2):
                v = vO5 + par if i == 5 else wL16
                x = [f"buffer_load_dwordx4 {vr(dst + 8*i + 4*par,4)}, v{v}, {WSS}, s{sb} offen offset:{par*1024} sc1"]
                if par == 1 and i < 5: x.append(f"s_add_u32 s{sb}, s{sb}, 8192")
                out.append(x)
        return out
    def wf_load():
        I(f"s_add_u32 s24, s{sSP}, 65536")
        I(f"buffer_load_dwordx4 {vr(WF,4)}, v{vWS}, {SW}, s{sSP} offen"); I(f"buffer_load_dwordx4 {vr(WF+4,4)}, v{vWS}, {SW}, s24 offen")
        I(f"s_add_u32 s{sSP}, s{sSP}, 64")
    def stat_loads(): return [[f"buffer_load_dwordx4 {vr(SB+4*n,4)}, v{vSO+n}, {WSS}, s27 offen sc1"] for n in range(3)]
    sVAL = 35
    def mxchk(base, n):
        out = [f"v_max3_u32 v{TM}, v{base}, v{base+1}, v{base+2}"]
        for r in range(3, n - 1, 2): out.append(f"v_max3_u32 v{TM}, v{TM}, v{base+r}, v{base+r+1}")
        return out + [f"v_max_u32 v{TM}, v{TM}, v{base+n-1}", f"v_cmp_eq_u32 vcc, -1, v{TM}"]
    def z1dma():
        I(f"s_lshl_b32 s24, s{sWV}, 11"); I(f"s_add_u32 s24, s24, {L_U}"); I("s_mov_b32 s25, s33")
        for i in range(6):
            I(f"s_add_u32 m0, s24, {i*8192}")
            I("s_nop 0")
            for par in range(2): I(f"buffer_load_dwordx4 v{vO5 + par if i == 5 else wL16}, {WSS}, s25 offen offset:{par*1024} sc1 lds")
            I("s_add_u32 s25, s25, 8192")
    def flag_load():
        I("s_add_u32 s28, s27, 16384")
        I(f"buffer_load_dword v{vFD}, v{vFA}, {WSS}, s28 offen sc1")
    I(f"s_mul_i32 s33, s{sJ}, {86*1024}"); I(f"s_lshl_b32 s27, s{sWV}, 11"); I("s_add_u32 s33, s33, s27"); I(f"s_add_u32 s33, s33, {WS_Z}")
    I(f"s_lshl_b32 s34, s{sJ}, 2"); I(f"s_add_u32 s34, s34, s{sWV}"); I("s_mul_i32 s34, s34, 86"); I("s_lshr_b32 s34, s34, 8"); I("s_lshl_b32 s34, s34, 7")
    I(f"v_mov_b32 v{vFA}, s34"); I(f"s_mov_b32 s27, {WS_ZS}")
    wait_ge(A, DBG, D_P2, 64, TM, TM + 1, 24, sleep=4)
    wf_load()
    def stat_ld(sreg): return [f"buffer_load_dwordx4 {vr(SB+4*n,4)}, v{vSO+n}, {WSS}, s{sreg} offen sc1" for n in range(3)]
    def can_ld(sreg): return f"buffer_load_dword v{vFD}, v{vFA}, {WSS}, s{sreg} offen sc1"
    def body(b, pf):
        RAW = BUF[b]; tg = f"{b}{pf}"
        q = []
        if pf:
            I(f"s_add_u32 s26, s{sZ}, {86*1024}"); I("s_add_u32 s29, s28, 16384")
            q = [[x] for x in stat_ld(28)] + [[can_ld(29)]] + tiles(BUF[1 - b], 26)
        n_iss = [0]
        def L(k=1):
            for _ in range(k):
                if q:
                    for x in q.pop(0): I(x)
                    n_iss[0] += 1
        for n in (1, 2):
            for j in range(2): I(f"v_pk_add_f32 {vr(MU+2*j,2)}, {vr((SB if n == 1 else MU)+2*j,2)}, {vr(SB+4*n+2*j,2)}")
        L()
        for sw in ("16", "32"):
            for r in range(4): I(f"v_mov_b32 v{MU+4+r}, v{MU+r}")
            for r in range(4): I(f"v_permlane{sw}_swap_b32 v{MU+r}, v{MU+4+r}")
            for j in range(2): I(f"v_pk_add_f32 {vr(MU+2*j,2)}, {vr(MU+2*j,2)}, {vr(MU+4+2*j,2)}")
            if sw == "16": L()
        I(f"ds_write_b128 v{vSW}, {vr(MU,4)} offset:{b*1024}")
        L(2)
        I("s_waitcnt lgkmcnt(0)")
        I("s_barrier")
        for w in range(4): I(f"ds_read_b128 {vr(MU+4*w,4)}, v{vSR} offset:{b*1024 + w*256}")
        L()
        if not pf: I(can_ld(28))
        I("s_waitcnt lgkmcnt(0)")
        for w in range(1, 4):
            for j in range(2): I(f"v_pk_add_f32 {vr(MU+2*j,2)}, {vr(MU+2*j,2)}, {vr(MU+4*w+2*j,2)}")
        for r in range(4): I(f"v_mul_f32 v{MU+r}, {hex(f2u(1/688))}, v{MU+r}")
        for j in range(2):
            L()
            I(f"v_fma_f32 v{MU+2*j+1}, -v{MU+2*j}, v{MU+2*j}, v{MU+2*j+1}")
            I(f"v_max_f32 v{MU+2*j+1}, 0, v{MU+2*j+1}")
            ln_finish(A, MU + 2*j, MU + 2*j + 1)
        I(f"ds_write2_b32 v{vS2W}, v{MU}, v{MU+2} offset0:0 offset1:1"); I(f"ds_write2_b32 v{vS2W}, v{MU+1}, v{MU+3} offset0:32 offset1:33")
        L()
        I("s_waitcnt lgkmcnt(0)")
        for i in range(2):
            I(f"ds_read_b128 {vr(RS+4*i,4)}, v{vS2R} offset:{128+16*i}"); I(f"ds_read_b128 {vr(MU+4*i,4)}, v{vS2R} offset:{16*i}")
        WP = WF if pf else RS
        if not pf:
            I(f"s_cmp_eq_u32 s{sVAL}, 0"); I(f"s_cbranch_scc1 P_wf{tg}")
            I("s_waitcnt vmcnt(1)")
            A.label(f"P_wf{tg}")
            unpack(A, WF, TM, 4); unpack(A, WF + 4, SB, 4)
            I("s_waitcnt lgkmcnt(0)")
            for r in (TM, SB):
                for j in range(4): I(f"v_pk_mul_f32 {vr(r+2*j,2)}, {vr(r+2*j,2)}, {vr(RS+2*j,2)}")
            for t, r in enumerate((TM, SB)):
                for j in range(4): I(cv(RS + 4*t + j, r + 2*j))
        I(f"s_waitcnt vmcnt({n_iss[0]})")
        A.label(f"P_val{tg}")
        for x in mxchk(RAW, 48): I(x)
        I(f"s_cbranch_vccz P_ok{tg}")
        I(f"s_mov_b32 s25, s{sZ}")
        for x in sum(tiles(RAW, 25), []): I(x)
        I(f"s_add_u32 s{sSPIN}, s{sSPIN}, 1"); I(f"s_cmp_gt_u32 s{sSPIN}, {SPIN_MAX}")
        I("s_waitcnt vmcnt(0)")
        I(f"s_cbranch_scc0 P_val{tg}")
        A.label(f"P_ok{tg}")
        if pf:
            L()
            I("s_waitcnt lgkmcnt(0)")
            for t in range(2):
                unpack(A, WF + 4*t, TM, 4)
                for j in range(4): I(f"v_pk_mul_f32 {vr(TM+2*j,2)}, {vr(TM+2*j,2)}, {vr(RS+2*j,2)}")
                for j in range(4): I(cv(WF + 4*t + j, TM + 2*j))
                L()
        cor = []
        for t in range(2):
            for j in range(4):
                cor += [f"v_lshlrev_b32 v{TM}, 16, v{WP+4*t+j}", f"v_fmac_f32 v{COR+t}, v{TM}, v{MU+2*j}",
                        f"v_and_b32 v{TM+1}, 0xffff0000, v{WP+4*t+j}", f"v_fmac_f32 v{COR+t}, v{TM+1}, v{MU+2*j+1}"]
        ms = [mf32(ACC + 16*(n>>1) + 8*t + 4*(n&1), RAW + 4*n, WP + 4*t, vr(ACC + 16*(n>>1) + 8*t + 4*(n&1), 4)) for n in range(12) for t in range(2)]
        fl = [cor[2*i:2*i+2] for i in range(24)]
        if pf:
            for i in range(6):
                if q: fl[4*i+2] = q.pop(0) + fl[4*i+2]
            assert not q
            slots(A, ms, fl)
            I(f"s_cmp_eq_u32 s{sS}, s{sJ}"); I(f"s_cbranch_scc0 P_noz1{tg}")
            z1dma()
            I("s_waitcnt vmcnt(12)")
            A.label(f"P_noz1{tg}")
            wf_load()
        else:
            I(f"s_cmp_eq_u32 s{sS}, s{sJ}"); I(f"s_cbranch_scc0 P_noz1{tg}")
            z1dma()
            A.label(f"P_noz1{tg}")
            wf_load()
            I(f"v_cmp_eq_u32 vcc, -1, v{vFD}")
            I(f"s_cbranch_vccnz P_plain{tg}")
            if b == 1:
                I(f"s_cmp_eq_u32 s{sS}, 63"); I(f"s_cbranch_scc1 P_plain{tg}")
            I(f"s_mov_b32 s{sISS}, 1")
            I(f"s_add_u32 s26, s{sZ}, {86*1024}"); I("s_add_u32 s29, s28, 16384")
            q2 = [[x] for x in stat_ld(28)] + [[can_ld(29)]] + tiles(BUF[1 - b], 26)
            f2 = [list(x) for x in fl]
            for i in range(6): f2[4*i] = q2.pop(0) + f2[4*i]
            slots(A, ms, f2)
            for x in sum(q2, []): I(x)
            I("s_waitcnt vmcnt(12)")
            I(f"s_branch P_done{b}")
            A.label(f"P_plain{tg}")
            slots(A, ms, fl)
    A.label("P_loop")
    for b in range(2):
        I("s_add_u32 s28, s27, 16384")
        I(f"s_cmp_lg_u32 s{sISS}, 0"); I(f"s_cbranch_scc1 P_have{b}")
        A.label(f"P_poll{b}")
        I(can_ld(27))
        I(f"s_add_u32 s{sSPIN}, s{sSPIN}, 1")
        I("s_waitcnt vmcnt(0)")
        I(f"v_cmp_eq_u32 vcc, -1, v{vFD}")
        I(f"s_cbranch_vccz P_rdy{b}")
        I(f"s_sleep {opt.get('psleep', 1)}")
        I(f"s_cmp_gt_u32 s{sSPIN}, {SPIN_MAX}"); I(f"s_cbranch_scc0 P_poll{b}")
        A.label(f"P_rdy{b}")
        TS(A, TRC + 1, f"s{sS}")
        I(f"s_mov_b32 s26, s{sZ}")
        for x in stat_ld(27) + [can_ld(28)] + sum(tiles(BUF[b], 26), []): I(x)
        I("s_waitcnt vmcnt(12)")
        A.label(f"P_have{b}")
        I("s_waitcnt vmcnt(14)")
        A.label(f"P_sv{b}")
        for x in mxchk(SB, 12): I(x)
        I(f"s_cbranch_vccz P_sok{b}")
        for x in stat_ld(27): I(x)
        I(f"s_add_u32 s{sSPIN}, s{sSPIN}, 1"); I(f"s_cmp_gt_u32 s{sSPIN}, {SPIN_MAX}")
        I("s_waitcnt vmcnt(0)")
        I(f"s_cbranch_scc0 P_sv{b}")
        A.label(f"P_sok{b}")
        I(f"v_cmp_eq_u32 vcc, -1, v{vFD}")
        I(f"s_mov_b32 s{sVAL}, s{sISS}"); I(f"s_mov_b32 s{sISS}, 0")
        I(f"s_cbranch_vccnz P_nopf{b}")
        if b == 1:
            I(f"s_cmp_eq_u32 s{sS}, 63"); I(f"s_cbranch_scc1 P_nopf{b}")
        I(f"s_mov_b32 s{sISS}, 1")
        body(b, 1)
        I(f"s_branch P_done{b}")
        A.label(f"P_nopf{b}")
        body(b, 0)
        A.label(f"P_done{b}")
        I(f"s_add_u32 s{sZ}, s{sZ}, {86*1024}"); I("s_add_u32 s27, s27, 16384")
        TS(A, TRC + 2, f"s{sS}")
        I(f"s_add_u32 s{sS}, s{sS}, 1")
    I(f"s_cmp_lt_u32 s{sS}, 64"); I("s_cbranch_scc1 P_loop")
    vU, vO = SB, SB + 1
    I(f"v_add_u32 v{vU}, {L_U}, v{wL16}")
    I(f"s_lshl_b32 s24, s{sWV}, 11"); I(f"v_add_u32 v{vSW}, s24, v{vU}")
    ZB = BUF[0]; HR = BUF[1]; UF = BUF[1] + 8; YA = BUF[1] + 32
    def zread():
        for i in range(6):
            for par in range(2): I(f"ds_read_b128 {vr(ZB+8*i+4*par,4)}, v{vSW} offset:{i*8192 + par*1024}")
    I("s_waitcnt vmcnt(2)")
    zread()
    for sw in ("16", "32"):
        for t in range(2):
            I(f"v_mov_b32 v{TM}, v{COR+t}"); I(f"v_permlane{sw}_swap_b32 v{COR+t}, v{TM}"); I(f"v_add_f32 v{COR+t}, v{COR+t}, v{TM}")
    A.label("P_z1c")
    I("s_waitcnt lgkmcnt(0)")
    for x in mxchk(ZB, 48): I(x)
    I("s_cbranch_vccz P_z1ok")
    z1dma()
    I(f"s_add_u32 s{sSPIN}, s{sSPIN}, 1"); I(f"s_cmp_gt_u32 s{sSPIN}, {SPIN_MAX}")
    I("s_waitcnt vmcnt(0)")
    I("s_cbranch_scc1 P_z1ok")
    zread()
    I("s_branch P_z1c")
    A.label("P_z1ok")
    for i in range(6):
        for t in range(2):
            d = ACC + 16*i + 8*t
            for j in range(4): I(f"v_pk_add_f32 {vr(d+2*j,2)}, {vr(d+2*j,2)}, {vr(COR,2)} op_sel:[0,{t}] op_sel_hi:[1,{t}] neg_lo:[0,1] neg_hi:[0,1]")
            for j in range(4): I(cv(MU + j, d + 2*j))
            unpack(A, MU, d, 4)
            for par in range(2): unpack(A, ZB + 8*i + 4*par + 2*t, TM + 4*par, 2)
            for j in range(4): I(f"v_pk_mul_f32 {vr(d+2*j,2)}, {vr(d+2*j,2)}, {vr(TM+2*j,2)}")
            for j in range(4): I(cv(d + j, d + 2*j))
            I(f"buffer_store_dwordx4 {vr(d,4)}, v{wL16}, {WSS}, s37 offen offset:{t*1024} sc1")
        I("s_add_u32 s37, s37, 8192")
    for i in range(6):
        for t in range(2): I(f"ds_write_b128 v{vSW}, {vr(ACC + 16*i + 8*t,4)} offset:{i*8192 + t*1024}")
    srd(A, 96, 2 << 20)
    I("s_barrier")
    TS(A, TRC, 3)
    t6_mm(A, list(range(22)), True, YA, UF, vU)
    TS(A, TRC, 4)
    I(f"s_lshl_b32 s28, s{sJ}, 7"); I(f"s_add_u32 s28, s28, {F_Z}")
    wait_ge(A, WSS, "s28", 1, TM, TM + 1, 24, sleep=0, barrier=False, allwaves=True)
    t6_addr(A, vO)
    for x in t6_hload(HR, vO): I(x)
    t6_out(A, YA, HR, MU, vO)
    if TRACE[0]: I("s_waitcnt vmcnt(0)")
    TS(A, TRC, 5)
    TDUMP(A, [TRC, TRC + 1, TRC + 2], TM, (6, 12, 2, 4))
```

```python
from asmlib import *
import struct

WS_KV = 2 << 20
WS_KM = (36 << 20) + 4096
WS_HA = 48 << 20
WS_HB = 49 << 20
WS_XN = 50 << 20
WS_H = 52 << 20
WS_HN = 54 << 20
WS_Z = 56 << 20
WS_ZS = 62 << 20
WS_U = 72 << 20
WS_PART = 64 << 20
F_KV = 0; F_PART = 4096; F_HN = 6144; F_ZL = 8192; F_Z = 16384
NG = 4
NG1 = 6
WS_BYTES = 256 << 20
LW = 128 << 10
L_MEM = 0; L_QK = 0; L_O = 4096; L_V = 8192; L_K = 16384
LDS_BYTES = 160 << 10
SCALE_LOG2E = (128 ** -0.5) * 1.4426950408889634

SPIN_MAX = 1 << 18
def f2u(x): return struct.unpack("<I", struct.pack("<f", x))[0]
def vr(b, n): return f"v[{b}:{b+n-1}]"
def ar(b, n): return f"a[{b}:{b+n-1}]"

vIDX, vL16, vT, vMW, vOR, vKR, vSEL = 0, 1, 2, 4, 5, 6, 7
vXW, vTR, vOW, vF0, vF1, vAST, vALD, vBST = 8, 9, 10, 11, 12, 13, 14, 15
PZ = 16
M = 20; AQ = 52; AK = 60; AV = 68; KX = 76; VX = 108; S = 116
sWS = 4
sW = 8
sDBG = 12
sH, sWV, sSTEP, sHA, sHB, sKV, sKM, sSPIN, sT0, sT1, sT2, sT3, sSC = 16, 17, 18, 19, 20, 21, 22, 23, 24, 25, 26, 27, 28
sM0A, sM0B, sRA, sRB, sRC, sPF, sSPA, sB0, sB1 = 29, 30, 31, 32, 33, 34, 35, 36, 37
sRDY = 38
sKVM = 50
vFL = 14
sMSK = 52

LRES = [(0, 0, 0), (0, 1, 0), (1, 0, 0), (1, 1, 0), (0, 0, 1), (0, 1, 1)]
LBUF = [VX, VX + 8, KX, KX + 8, KX + 16, KX + 24]
WOL = [(3, 0, 2), (3, 1, 1), (3, 1, 3), (3, 1, 2), (3, 2, 1), (3, 2, 3), (3, 2, 2), (3, 3, 1), (3, 3, 3), (3, 3, 2)]
WBUF = [M + 24, KX + 16, KX + 24, KX, KX + 8, M, M + 8, M + 16, S, M + 24]
NL = len(LRES); NW = len(WOL)
_slots = {}
def _assign():
    n = 0
    for mat in range(3):
        for tau in range(2):
            for p in range(8):
                if (mat, tau, p) in LRES: continue
                _slots[(mat, tau, p)] = n; n += 1
    for p in range(4):
        for j in range(4):
            if (3, p, j) in WOL: continue
            _slots[(3, p, j)] = n; n += 1
    assert n == 48
_assign()
def slot_reg(key, off, n):
    i = _slots[key] * 8 + off
    return ar(i, n) if i < 256 else vr(128 + i - 256, n)
def wfrag(*key):
    if key in LRES: return vr(LBUF[LRES.index(key)], 8)
    if key in WOL: return vr(WBUF[WOL.index(key)], 8)
    return slot_reg(key, 0, 8)

def smf(acc, a, b): return f"v_smfmac_f32_16x16x64_bf16 {vr(acc,4)}, {vr(a,4)}, {b}, v{vIDX}"
def mf32(d, a, b, c): return f"v_mfma_f32_16x16x32_bf16 {vr(d,4)}, {vr(a,4)}, {vr(b,4)}, {c}"
def mf16(d, a, b, c): return f"v_mfma_f32_16x16x16_bf16 {vr(d,4)}, {vr(a,2)}, {vr(b,2)}, {c}"

def chain_setup(A, st, hooks=None, order=(1, 2, 0)):
    I = A.I
    WS = f"s[{sWS}:{sWS+3}]"
    LN, C, G, R, R0, R1, G0, G1, CP, X, Y, Z = 40, 41, 42, 43, 44, 45, 46, 47, 48, 49, 50, 51
    I(f"v_lshrrev_b32 v{X}, 6, v0")
    I(f"v_and_b32 v{LN}, 63, v0")
    I(f"v_readfirstlane_b32 s{sWV}, v{X}")
    I(f"v_and_b32 v{C}, 15, v{LN}")
    I(f"v_lshrrev_b32 v{G}, 4, v{LN}")
    I(f"v_lshrrev_b32 v{R}, 2, v{C}")
    I(f"v_and_b32 v{R0}, 1, v{R}")
    I(f"v_lshrrev_b32 v{R1}, 1, v{R}")
    I(f"v_and_b32 v{G0}, 1, v{G}")
    I(f"v_lshrrev_b32 v{G1}, 1, v{G}")
    I(f"v_and_b32 v{CP}, 3, v{C}")
    I(f"s_and_b32 s{sT0}, s{sWV}, 1")
    I(f"s_lshl_b32 s{sT0}, s{sT0}, 2")
    I(f"s_lshr_b32 s{sT1}, s{sWV}, 1")
    I(f"s_lshl_b32 s{sT1}, s{sT1}, 4")
    I(f"s_add_u32 s{sT0}, s{sT0}, s{sT1}")
    I(f"v_add_u32 v20, s{sT0}, v{G}")
    I("v_lshlrev_b32 v20, 13, v20")
    I(f"s_lshl_b32 s{sT0}, s{sWV}, 2")
    I(f"v_lshlrev_b32 v{X}, 1, v{G1}")
    I(f"v_or_b32 v{X}, s{sT0}, v{X}")
    I(f"v_xor_b32 v{X}, v{C}, v{X}")
    I(f"v_lshl_add_u32 v20, v{X}, 4, v20")
    I(f"s_lshl_b32 s{sT1}, s{sH}, 8")
    I(f"v_add_u32 v20, s{sT1}, v20")

    chunks = [(m, h) for m in list(order) + [3] for h in range(2)]
    HOLD = 32; HW = HOLD + 8*NL
    def srd_for(mat):
        I(f"s_load_dwordx2 s[{sW}:{sW+1}], s[0:1], {16 + 8*mat}")
        I(f"s_mov_b32 s{sW+2}, {4<<20}")
        I(f"s_mov_b32 s{sW+3}, 0x20000")
        I("s_waitcnt lgkmcnt(0)")
    def dma(ci):
        mat, half = chunks[ci]
        if half == 0: srd_for(mat)
        reg = half * 65536
        if mat < 3:
            I(f"s_lshl_b32 s{sT0}, s{sWV}, 10")
            for i in range(16):
                I(f"s_add_u32 m0, s{sT0}, {reg + i*4096}")
                I(f"s_mov_b32 s{sT1}, {(32*i + 8*half)*8192}")
                I(f"buffer_load_dwordx4 v20, s[{sW}:{sW+3}], s{sT1} offen lds")
        else:
            I(f"s_lshl_b32 s{sT0}, s{sWV}, 14")
            for i in range(16):
                I(f"s_add_u32 m0, s{sT0}, {reg + i*1024}")
                I(f"s_mov_b32 s{sT1}, {((i&7) + 64*(i>>3) + 8*half)*1024}")
                I(f"buffer_load_dwordx4 v{21 + (i&1)}, s[{sW}:{sW+3}], s{sT1} offen lds")
    if hooks: hooks(A, 'ts', 0)
    dma(0)
    if hooks: hooks(A, 'ts', 1)
    I(f"s_load_dwordx2 s[44:45], s[0:1], 8")
    I(f"s_mov_b32 s46, 8192"); I(f"s_mov_b32 s47, 0x20000")
    I(f"v_and_b32 v{Y}, 1, v{C}")
    I(f"v_lshl_add_u32 v{X}, v{R}, 1, v{Y}")
    I(f"v_lshlrev_b32 v{X}, 10, v{X}")
    I(f"v_lshl_add_u32 v{X}, v{G}, 8, v{X}")
    I(f"v_and_b32 v{Y}, 2, v{C}")
    I(f"v_lshl_add_u32 v{vT}, v{Y}, 2, v{X}")
    I("s_waitcnt lgkmcnt(0)")
    for k in range(8):
        I(f"buffer_load_dwordx2 {vr(60+4*k,2)}, v{vT}, s[44:47], 0 offen offset:{64*(k>>1) + 16*(k&1)}")
        I(f"buffer_load_dwordx2 {vr(62+4*k,2)}, v{vT}, s[44:47], 0 offen offset:{64*(k>>1) + 16*(k&1) + 32}")
    if hooks: hooks(A, 'first', 0)
    if hooks: hooks(A, 'ts', 2)
    dma(1)
    if hooks: hooks(A, 'ts', 3)
    I(f"s_and_b32 s{sT0}, s{sWV}, 1")
    I(f"s_lshl_b32 s{sT0}, s{sT0}, 3")
    I(f"v_xor_b32 v21, s{sT0}, v{LN}")
    I("v_xor_b32 v22, 4, v21")
    I(f"s_lshl_b32 s{sT1}, s{sH}, 17")
    I(f"s_lshl_b32 s{sT2}, s{sWV}, 14")
    I(f"s_add_u32 s{sT1}, s{sT1}, s{sT2}")
    I("v_lshlrev_b32 v21, 4, v21")
    I("v_lshlrev_b32 v22, 4, v22")
    I(f"v_add_u32 v21, s{sT1}, v21")
    I(f"v_add_u32 v22, s{sT1}, v22")
    I(f"v_lshl_add_u32 v{X}, v{R1}, 1, v{G0}")
    I(f"v_lshl_add_u32 v{X}, v{R0}, 2, v{X}")
    I(f"v_lshlrev_b32 v{Y}, 9, v{X}")
    I(f"v_lshl_add_u32 v{Y}, v{G1}, 14, v{Y}")
    I(f"v_lshl_add_u32 v{Y}, v{CP}, 3, v{Y}")
    I(f"s_lshl_b32 s{sT1}, s{sWV}, 1")
    I(f"v_xor_b32 v{X}, s{sT1}, v{X}")
    I(f"v_lshl_add_u32 v23, v{X}, 5, v{Y}")
    I("v_xor_b32 v24, 32, v23")
    I(f"v_lshl_add_u32 v{Y}, v{G1}, 2, v{R0}")
    I(f"v_lshl_add_u32 v{Y}, v{G0}, 4, v{Y}")
    I(f"v_lshlrev_b32 v{Y}, 10, v{Y}")
    I(f"v_lshl_add_u32 v{Y}, v{CP}, 3, v{Y}")
    I(f"v_lshl_add_u32 v{X}, v{R0}, 1, v{R1}")
    I(f"v_lshl_add_u32 v{X}, v{G0}, 2, v{X}")
    I(f"v_lshl_add_u32 v{Y}, v{X}, 5, v{Y}")
    I(f"s_lshl_b32 s{sT1}, s{sWV}, 8")
    I(f"v_add_u32 v25, s{sT1}, v{Y}")
    I(f"v_lshlrev_b32 v{vL16}, 4, v{LN}")
    I(f"s_lshl_b32 s{sT1}, s{sWV}, 14")
    I(f"v_add_u32 v{vF0}, s{sT1}, v{vL16}")
    I(f"v_add_u32 v{vF1}, 0x10000, v{vF0}")
    I(f"v_add_u32 v{vL16}, {LW}, v{vL16}")
    I(f"s_lshl_b32 s{sT1}, s{sWV}, 11")
    I(f"v_add_u32 v{vMW}, s{sT1}, v{vL16}")
    I(f"s_lshl_b32 s{sT1}, s{sWV}, 10")
    I(f"v_add_u32 v{vOW}, s{sT1}, v{vL16}")
    I(f"v_and_b32 v{vOR}, {hex(0xffffffff ^ 32)}, v{vL16}")
    I(f"v_lshlrev_b32 v{X}, 5, v{C}")
    I(f"v_xor_b32 v{Y}, v{G}, v{R}")
    I(f"v_lshl_add_u32 v{X}, v{Y}, 3, v{X}")
    I(f"s_add_u32 s{sT1}, s{sT1}, {LW}")
    I(f"v_add_u32 v{vXW}, s{sT1}, v{X}")
    I(f"v_xor_b32 v{X}, v{LN}, v{G}")
    I(f"v_lshlrev_b32 v{X}, 3, v{X}")
    I(f"v_add_u32 v{vTR}, {LW}, v{X}")
    I(f"v_lshl_add_u32 v{X}, v{R1}, 2, v{G}")
    I(f"v_lshlrev_b32 v{X}, 13, v{X}")
    I(f"v_and_b32 v{Y}, 7, v{C}")
    I(f"v_lshl_add_u32 v{X}, v{Y}, 3, v{X}")
    I(f"s_lshl_b32 s{sT1}, s{sWV}, 16")
    I(f"s_lshl_b32 s{sT2}, s{sH}, 6")
    I(f"s_add_u32 s{sT1}, s{sT1}, s{sT2}")
    I(f"v_add_u32 v{vAST}, s{sT1}, v{X}")
    I(f"s_lshl_b32 s{sT1}, s{sWV}, 11")
    I(f"s_and_b32 s{sT2}, s{sH}, 4")
    I(f"s_lshl_b32 s{sT2}, s{sT2}, 8")
    I(f"s_add_u32 s{sT1}, s{sT1}, s{sT2}")
    I(f"s_lshr_b32 s{sT2}, s{sH}, 3")
    I(f"s_lshl_b32 s{sT2}, s{sT2}, 8")
    I(f"s_add_u32 s{sT1}, s{sT1}, s{sT2}")
    I(f"s_and_b32 s{sT2}, s{sH}, 3")
    I(f"s_lshl_b32 s{sT2}, s{sT2}, 6")
    I(f"s_add_u32 s{sT1}, s{sT1}, s{sT2}")
    I(f"v_and_b32 v{Y}, 1, v{C}")
    I(f"v_and_b32 v{Z}, 2, v{C}")
    I(f"v_add_u32 v{X}, v{Z}, v{G0}")
    I(f"v_lshlrev_b32 v{X}, 4, v{X}")
    I(f"v_lshl_add_u32 v{X}, v{Y}, 3, v{X}")
    I(f"v_lshl_add_u32 v{X}, v{G1}, 2, v{X}")
    I(f"v_add_u32 v{X}, s{sT1}, v{X}")
    I(f"v_mov_b32 v{Z}, 0x40000000")
    I(f"v_cmp_gt_u32 vcc, 4, v{C}")
    I(f"v_cndmask_b32 v{vBST}, v{Z}, v{X}, vcc")
    for i in range(4):
        I(f"s_mov_b32 s{sMSK+2*i}, {hex(0x000f000f << (4*i))}")
        I(f"s_mov_b32 s{sMSK+2*i+1}, {hex(0x000f000f << (4*i))}")
    I(f"v_lshlrev_b32 v{Z}, 4, v{Y}")
    I(f"v_mov_b32 v{X}, 0x3f80")
    I(f"v_lshlrev_b32 v{vSEL}, v{Z}, v{X}")
    I(f"v_add_u32 v{vKR}, {L_K}, v{vL16}")
    I(f"v_and_b32 v{Y}, 2, v{C}")
    I(f"v_mov_b32 v{X}, 0x44444444")
    I(f"v_mov_b32 v{Z}, 0xeeeeeeee")
    I(f"v_cmp_eq_u32 vcc, 0, v{Y}")
    I(f"v_cndmask_b32 v{vIDX}, v{Z}, v{X}, vcc")
    for i in range(4): I(f"v_mov_b32 v{PZ+i}, 0")
    I(f"s_mov_b32 s{sT1}, 0x05040100")
    I(f"s_mov_b32 s{sT2}, 0x07060302")
    if hooks: hooks(A, 'ts', 4)
    I("s_waitcnt vmcnt(16)")
    if hooks: hooks(A, 'ts', 5)
    for k in range(8):
        for x in range(4):
            I(f"v_perm_b32 v{92+4*k+x}, v{62+4*k+(x>>1)}, v{60+4*k+(x>>1)}, s{sT2 if x&1 else sT1}")
            I(f"v_min_u32 v{92+4*k+x}, -2, v{92+4*k+x}")
    for k in range(8):
        I(f"ds_write_b128 v{vL16}, {vr(92+4*k,4)} offset:{L_MEM + k*1024}")
    I(f"s_mov_b32 s{sHB}, {WS_HB}")
    I(f"s_mov_b32 s{sB0}, {WS_HB - LW}")
    I(f"s_mov_b32 s{sSTEP}, 0")
    I(f"s_mov_b32 s{sHA}, {WS_HA}")
    I(f"s_lshl_b32 s{sRC}, s{sH}, 13")
    I(f"s_sub_u32 s{sRC}, s{sRC}, {LW}")
    I(f"s_add_u32 s{sRA}, s{sRC}, {WS_HA + (256<<10)}")
    I(f"s_mov_b32 s{sRB}, {WS_HB + 3*8192}")
    I(f"s_lshl_b32 s{sKV}, s{sH}, 14")
    I(f"s_add_u32 s{sKV}, s{sKV}, {WS_KV - LW}")
    I(f"s_mul_i32 s{sKM}, s{sH}, {65*4096}")
    I(f"s_add_u32 s{sKM}, s{sKM}, {WS_KM - LW - 4096}")
    I(f"s_mov_b32 s{sSPIN}, 0")
    I(f"s_mov_b32 s{sSPA}, 0")
    I(f"s_mov_b32 s{sSC}, {hex(f2u(SCALE_LOG2E))}")
    I(f"s_lshl_b32 s{sM0A}, s{sWV}, 11")
    I(f"s_add_u32 s{sM0B}, s{sM0A}, {LW + L_V}")
    I(f"s_add_u32 s{sM0A}, s{sM0A}, {LW + L_K}")
    I(f"s_mov_b64 s[{sKVM}:{sKVM+1}], -1")
    I("s_waitcnt lgkmcnt(0)")

    for ci in range(8):
        mat, half = chunks[ci]
        I(f"s_waitcnt vmcnt({(16 + (hooks(A, 'extra', ci + 1) if hooks else 0)) if ci < 7 else 0})")
        I("s_barrier")
        if hooks: hooks(A, "landed", ci)
        if mat < 3:
            for pp in range(4):
                for tau in range(2):
                    key = (mat, tau, 2*pp + half)
                    for u in range(4):
                        off = (u >> 1) * 32768 + (u & 1) * 256 + pp * 4096
                        dst = vr(HOLD + 8*LRES.index(key) + 2*u, 2) if key in LRES else slot_reg(key, 2*u, 2)
                        I(f"ds_read_b64_tr_b16 {dst}, v{23+tau} offset:{off}")
            I("s_waitcnt lgkmcnt(0)")
            I("v_xor_b32 v23, 0x10000, v23"); I("v_xor_b32 v24, 0x10000, v24")
            I("s_barrier")
            if hooks: hooks(A, "before", ci + 2)
            if ci + 2 < 8: dma(ci + 2)
            if hooks: hooks(A, "issued", ci + 2)
        else:
            for j in range(4):
                I(f"s_xor_b32 s{sT1}, s{sWV}, {j}")
                I(f"s_lshr_b32 s{sT2}, s{sT1}, 1")
                I(f"s_lshl_b32 s{sT2}, s{sT2}, 13")
                I(f"s_and_b32 s{sT1}, s{sT1}, 1")
                I(f"s_lshl_b32 s{sT1}, s{sT1}, 15")
                I(f"s_add_u32 s{sT1}, s{sT1}, s{sT2}")
                I(f"s_add_u32 s{sT1}, s{sT1}, {half*65536}")
                I(f"v_add_u32 v26, s{sT1}, v25")
                for p in range(4):
                    I(f"v_xor_b32 v27, {p<<6}, v26")
                    key = (3, p, j)
                    for u1 in range(2):
                        dst = vr(HW + 4*WOL.index(key) + 2*u1, 2) if key in WOL else slot_reg(key, 4*half + 2*u1, 2)
                        I(f"ds_read_b64_tr_b16 {dst}, v27 offset:{u1*2048}")
            I("s_waitcnt lgkmcnt(0)")
            I("s_barrier")
            a = vF1 if half else vF0
            for i in range(NL): I(f"ds_write_b128 v{a}, {vr(HOLD+8*i+4*half,4)} offset:{i*1024}")
            for i in range(NW): I(f"ds_write_b128 v{a}, {vr(HW+4*i,4)} offset:{(NL+i)*1024}")
            I("s_waitcnt lgkmcnt(0)")

def kv_dma(A, ld=""):
    return [f"s_mov_b32 m0, s{sM0A}",
            f"s_add_u32 s{sT3}, s{sKV}, 8192",
            f"buffer_load_dwordx4 v{vMW}, s[{sWS}:{sWS+3}], s{sKV} offen {ld} lds",
            f"buffer_load_dwordx4 v{vMW}, s[{sWS}:{sWS+3}], s{sKV} offen offset:1024 {ld} lds",
            f"s_mov_b32 m0, s{sM0B}",
            f"s_xor_b32 s{sM0A}, s{sM0A}, 8192",
            f"buffer_load_dwordx4 v{vMW}, s[{sWS}:{sWS+3}], s{sT3} offen {ld} lds",
            f"buffer_load_dwordx4 v{vMW}, s[{sWS}:{sWS+3}], s{sT3} offen offset:1024 {ld} lds",
            f"s_add_u32 s{sKV}, s{sKV}, {32*16384}"]

def kv_flag_load(A):
    I = A.I
    I(f"v_lshrrev_b32 v{vT}, 2, v{vL16}")
    I(f"s_lshl_b32 s{sT3}, s{sH}, 7")
    I(f"v_subrev_u32 v{vT}, {LW//4}, v{vT}")
    I(f"s_add_u32 s{sT3}, s{sT3}, {F_KV}")
    I(f"buffer_load_dword v{vFL}, v{vT}, s[{sWS}:{sWS+3}], s{sT3} offen sc1")

def kv_eval(A):
    I = A.I
    I(f"v_readlane_b32 s{sRDY}, v{vFL}, 0")
    for g in range(1, NG1):
        I(f"v_readlane_b32 s{sT3}, v{vFL}, {g}")
        I(f"s_max_u32 s{sT3}, s{sT3}, {g}")
        I(f"s_min_u32 s{sRDY}, s{sRDY}, s{sT3}")

def kv_wait(A, pfx, need, preloaded=False):
    I = A.I
    if preloaded: I(f"s_branch {pfx}_kve")
    A.label(f"{pfx}_kvw")
    kv_flag_load(A)
    I(f"s_add_u32 s{sSPIN}, s{sSPIN}, 1")
    I("s_waitcnt vmcnt(0)")
    A.label(f"{pfx}_kve")
    kv_eval(A)
    I(f"s_cmp_gt_u32 s{sSPIN}, {SPIN_MAX}")
    I(f"s_cbranch_scc1 {pfx}_kvw_done")
    I(f"s_add_u32 s{sT3}, s{sSTEP}, {need}")
    I(f"s_cmp_ge_u32 s{sT3}, s{sRDY}")
    I(f"s_cbranch_scc1 {pfx}_kvw")
    A.label(f"{pfx}_kvw_done")

def hs(x): return f"v_pk_add_f32 {vr(x,2)}, {vr(x,2)}, {vr(x+2,2)}"
def hs2(x): return [f"v_add_f32 v{x}, v{x}, v{x+2}", f"v_add_f32 v{x+1}, v{x+1}, v{x+3}"]
def cv(d, x): return f"v_cvt_pk_bf16_f32 v{d}, v{x}, v{x+1}"
def zero(base, n): return [f"v_mov_b64 {vr(base+2*i,2)}, 0" for i in range(n // 2)]
def frag_rd(i, dst):
    return [f"ds_read_b128 {vr(dst,4)}, v{vF0} offset:{i*1024}", f"ds_read_b128 {vr(dst+4,4)}, v{vF1} offset:{i*1024}"]
def chk(base, tmp):
    return [f"v_max3_u32 v{tmp}, v{base}, v{base+1}, v{base+2}", f"v_max3_u32 v{tmp+1}, v{base+3}, v{base+4}, v{base+5}",
            f"v_max3_u32 v{tmp}, v{tmp}, v{base+6}, v{base+7}", f"v_max_u32 v{tmp}, v{tmp}, v{tmp+1}", f"v_cmp_eq_u32 vcc, -1, v{tmp}"]
SLEEPY = [0]
def delay(A, n):
    if SLEEPY[0] and n >= 20:
        k = (n - 4) // 16; A.I(f"s_sleep {k}"); n -= 16*k + SLEEPY[0]
    while n > 0:
        k = min(n, 16); A.I(f"s_nop {k-1}"); n -= k
def slots(A, mfmas, fills):
    for i, m in enumerate(mfmas):
        A.I(m)
        if i < len(fills):
            for f in fills[i]: A.I(f)


def chain_loop(A, st, pfx, stamp=None, pub="sc1", opt={}):
    SLEEPY[0] = opt.get("sleepy", 0)
    I = A.I
    for w in range(3):
        I(f"s_cmp_eq_u32 s{sWV}, {w}"); I(f"s_cbranch_scc1 {pfx}{w}_entry")
    for w in (3, 2, 1, 0):
        A.label(f"{pfx}{w}_entry")
        chain_wave(A, st, f"{pfx}{w}", w, stamp, pub, opt)
        if w: I(f"s_branch {pfx}_exit")
    A.label(f"{pfx}_exit")

def chain_wave(A, st, pfx, w, stamp, pub, opt):
    I = A.I
    WS = f"s[{sWS}:{sWS+3}]"
    nohop = opt.get("nohop")
    def T(i):
        if stamp: stamp(A, i)
    lres_rd = sum([frag_rd(i, LBUF[i]) for i in range(NL)], [])
    PB = S + 8
    mega = opt.get("mega")
    kld = "sc1" if mega else ""
    I("s_waitcnt lgkmcnt(0)")
    for x in ([] if mega else kv_dma(A, kld)) + lres_rd + zero(AQ, 24): I(x)
    if mega:
        I(f"s_cmp_le_u32 s{sRDY}, 1"); I(f"s_cselect_b64 s[{sKVM}:{sKVM+1}], -1, 0")
        I(f"s_lshl_b32 s{sPF}, s{sH}, 7"); I(f"s_add_u32 s{sPF}, s{sPF}, {F_KV}")
    I("s_waitcnt vmcnt(0) lgkmcnt(0)")
    if opt.get("dm", 0) and w >= 2: I(f"s_branch {pfx}_e0")
    else:
        I("s_barrier")
        I(f"s_branch {pfx}_b1")
    rsc = opt.get('rsc', 1)
    e2 = opt.get("e2", 1)
    BS = [M + 16, M + 24] if e2 else [M + 16, M + 20, M + 24]
    NB_ = 2 if e2 else 1
    NEG = S + 4 if rsc == 1 else (M + 28 if rsc == 0 else KX)
    m0E = LW + L_MEM + w*1024*NB_; m0L = LW + L_MEM + w*1024 + 4096
    vE = vMW if e2 else vOW
    def pollB(b): return ([f"buffer_load_dwordx4 {vr(b+4*i,4)}, v{vE}, {WS}, s{sB0} offen offset:{1024*i} sc1" for i in range(NB_)] +
                          [f"buffer_load_dwordx4 v{vE}, {WS}, s{sB0} offen offset:{1024*i} sc1 lds" for i in range(NB_)])
    mr = [f"ds_read_b128 {vr(M+4*k,4)}, v{vL16} offset:{L_MEM+1024*k}" for k in range(8)]
    def ckr(base, n):
        regs = list(range(base, base + n))
        out = [f"v_max3_u32 v{vT}, v{regs[0]}, v{regs[1]}, v{regs[2]}"]
        for i in range(3, len(regs) - 1, 2): out.append(f"v_max3_u32 v{vT}, v{vT}, v{regs[i]}, v{regs[i+1]}")
        out.append(f"v_max_u32 v{vT}, v{vT}, v{regs[-1]}")
        out.append(f"v_cmp_eq_u32 vcc, -1, v{vT}")
        return out
    dm = opt.get("dm", 0)
    lateD = f"buffer_load_dwordx4 v{vOW}, {WS}, s{sT2} offen sc1 lds"
    if dm == 2:
        m0L = LW + L_MEM + 4096 + w*2048
        lateD = "\n".join(f"buffer_load_dwordx4 v{vMW}, {WS}, s{sT2} offen offset:{1024*i} sc1 lds" for i in range(2)) if w < 2 else "s_nop 0"
    hw = w - 2
    def kdma(): return [f"s_add_u32 m0, s{sM0A}, {hw*4096 - w*2048}", f"s_add_u32 s{sT3}, s{sKV}, {hw*4096}"] + [f"buffer_load_dwordx4 v{vL16}, {WS}, s{sT3} offen offset:{1024*i} {kld} lds" for i in range(4)]
    def vdma(): return [f"s_mov_b32 m0, {LW + L_V + hw*4096}", f"s_add_u32 s{sT3}, s{sKV}, {8192 + hw*4096}"] + [f"buffer_load_dwordx4 v{vL16}, {WS}, s{sT3} offen offset:{1024*i} {kld} lds" for i in range(4)]
    kvadv = [f"s_xor_b32 s{sM0A}, s{sM0A}, 8192", f"s_add_u32 s{sKV}, s{sKV}, {32*16384}"]
    A.label(f"{pfx}_side")
    I(f"v_cmp_eq_u32 vcc, -1, v{vT}")
    I(f"s_cbranch_vccz {pfx}_side2")
    A.label(f"{pfx}_lateB")
    if dm: I(f"s_mov_b32 m0, {m0L}")
    I(lateD)
    I(f"s_add_u32 s{sSPIN}, s{sSPIN}, 1")
    I(f"s_cmp_gt_u32 s{sSPIN}, {SPIN_MAX}")
    if not (dm == 2 and w >= 2): I(f"s_waitcnt vmcnt({2 if dm == 2 else 1})")
    I(f"s_cbranch_scc1 {pfx}_lateB_ok")
    for x in mr[4:]: I(x)
    I("s_waitcnt lgkmcnt(0)")
    for x in ckr(M + 16, 16): I(x)
    I(f"s_cbranch_vccnz {pfx}_lateB")
    A.label(f"{pfx}_lateB_ok")
    if not (dm == 2 and w >= 2): I("s_waitcnt vmcnt(0)")
    A.label(f"{pfx}_side2")
    if mega and not dm:
        I(f"s_cmp_eq_u32 s{sKVM}, 0"); I(f"s_cbranch_scc1 {pfx}_late_done")
        kv_wait(A, pfx + "_l", 1)
    I(f"s_branch {pfx}_late_done")
    NR = 0 if rsc else 3
    resets = [f"buffer_store_dwordx4 {vr(NEG,4)}, v{vMW}, {WS}, s{sRA} offen {st}", f"buffer_store_dwordx4 {vr(NEG,4)}, v{vMW}, {WS}, s{sRA} offen offset:1024 {st}",
              f"buffer_store_dword v{NEG}, v{vBST}, {WS}, s{sRB} offen {st}"]
    neg = [f"v_mov_b64 {vr(NEG,2)}, -1", f"v_mov_b64 {vr(NEG+2,2)}, -1"]
    npB = opt.get("npB", 2)
    if e2:
        def chkB(b):
            I("s_waitcnt vmcnt(6)")
            for x in chk(b, vT): I(x)
            I("s_waitcnt vmcnt(4)")
        A.label(f"{pfx}_e1")
        for x in pollB(BS[0]): I(x)
        chkB(BS[1])
        I(f"s_cbranch_vccz {pfx}_go")
        for x in pollB(BS[1]): I(x)
        I(f"s_add_u32 s{sSPIN}, s{sSPIN}, 1")
        I(f"s_cmp_gt_u32 s{sSPIN}, {SPIN_MAX}")
        I(f"s_cbranch_scc1 {pfx}_go")
        A.label(f"{pfx}_e0")
        if w < 2:
            chkB(BS[0])
            if not nohop: I(f"s_cbranch_vccnz {pfx}_e1")
        else:
            I("s_waitcnt vmcnt(0)")
            if dm and mega:
                I(f"s_cmp_eq_u32 s{sKVM}, 0"); I(f"s_cbranch_scc1 {pfx}_kvgo")
                kv_wait(A, pfx + "_l", 1)
                A.label(f"{pfx}_kvgo")
            if dm == 2:
                delay(A, opt.get("dK", 0))
                for x in kdma(): I(x)
            if dm in (1, 3):
                I(f"s_cmp_eq_u32 s{sSTEP}, 0"); I(f"s_cbranch_scc0 {pfx}_go"); I("s_barrier"); I(f"s_branch {pfx}_b1")
    else:
        A.label(f"{pfx}_eslow")
        for x in pollB(BS[0]): I(x)
        I(f"s_add_u32 s{sSPIN}, s{sSPIN}, 1")
        I(f"s_cmp_gt_u32 s{sSPIN}, {SPIN_MAX}")
        I("s_waitcnt vmcnt(0)")
        I(f"s_cbranch_scc1 {pfx}_go")
        for x in ckr(BS[0], 4): I(x)
        I(f"s_cbranch_vccnz {pfx}_eslow")
        I(f"s_branch {pfx}_go")
        npB = opt.get("npB", 2)
        A.label(f"{pfx}_e1")
        for i in range(1, npB):
            y = 2*(npB - 1 - i) + NR
            I(f"s_waitcnt vmcnt({y+1})")
            for x in ckr(BS[i], 4): I(x)
            I(f"s_waitcnt vmcnt({y})")
            I(f"s_cbranch_vccz {pfx}_go")
        I(f"s_branch {pfx}_eslow")
        A.label(f"{pfx}_e0")
        y = 2*(npB - 1) + NR
        I(f"s_waitcnt vmcnt({y+1})")
        for x in ckr(BS[0], 4): I(x)
        I(f"s_waitcnt vmcnt({y})")
        if not nohop: I(f"s_cbranch_vccnz {pfx}_e1")
    A.label(f"{pfx}_go")
    I(f"s_mov_b32 m0, {m0L}")
    T(53)
    if not e2: I(lateD)
    I("s_barrier")
    if e2: I(lateD)
    A.label(f"{pfx}_b1")
    T(0)
    acc = {0: AQ, 1: AK, 2: AV}
    def m1(mat, tau, p): return smf(acc[mat] + 4*tau, M + 4*p, wfrag(mat, tau, p))
    def mm(mat, p): return [m1(mat, 0, p), m1(mat, 1, p)]
    kx = [f"ds_read_b128 {vr(KX+4*i,4)}, v{vKR} offset:{1024*i}" for i in range(8)]
    vx = [f"ds_read_b128 {vr(VX+4*i,4)}, v{vMW} offset:{L_V+1024*i}" for i in range(2)]
    q0p = hs2(AQ) + [cv(AQ+2, AQ)]; q1p = hs2(AQ+4) + [cv(AQ+6, AQ+4)]
    k0p = hs2(AK) + [cv(AQ+3, AK)]; k1p = hs2(AK+4) + [cv(AQ+7, AK+4)]
    dma = ["s_nop 0"]*9 if opt.get("nodma") else kv_dma(A, kld)
    publish = [] if opt.get("nopub") else [f"buffer_store_dwordx4 {vr(PB,4)}, v{vOW}, {WS}, s{sKM} offen {pub}"]
    for x in mr[:4]: I(x)
    I("s_waitcnt lgkmcnt(3)")
    T(10)
    vm = sum([mm(2, p) for p in range(8)], [])
    nb = opt.get("nb", 10)
    ph1 = sum([mm(0, k) + mm(1, k) for k in range(4)], []) + vm[:8]
    vm = vm[8:]
    kvr = vx + kx
    fl = [[] for _ in range(24)]
    fl[2].append("s_waitcnt lgkmcnt(0)")
    for i in range(5, nb - 1): fl[i].append(kvr.pop(0))
    nrd = nb - 1 - 5
    fl[nb-1] += [("s_waitcnt" + ("" if (dm == 2 and w >= 2) else (" vmcnt(4)" if (dm == 3 and w >= 2) else " vmcnt(0)")) + (f" lgkmcnt({nrd - 2})" if dm else "")), "s_barrier"]
    if nb >= 11:
        fl[nb-1] += [mr[4]]; fl[nb] += [mr[5], mr[6]]; fl[nb+1] += [mr[7]]
    else:
        for i in range(4): fl[nb+i].append(mr[4+i])
    c = ckr(M + 16, 16)
    st0 = 22 - len(c) if (mega and not dm) else 23 - len(c)
    assert st0 >= (nb + 1 if nb >= 11 else nb + 3)
    fl[st0].append("s_waitcnt lgkmcnt(2)"); fl[st0+3].append("s_waitcnt lgkmcnt(0)")
    for i, x in enumerate(c):
        if i >= 4 and kvr: fl[st0+i].append(kvr.pop(0))
        fl[st0+i].append(x)
    if rsc == 2 and publish:
        k = nb + 2 + w; fl[k] = [x for x in fl[k] if not x.startswith('v_')] + publish + [x for x in fl[k] if x.startswith('v_')]
    if rsc == 1 and not dm:
        fl[3].append(neg[0]); fl[4].append(neg[1])
        if opt.get("pubat", 1) == 1 and publish: resets[2] = publish[0]
        for i in range(3):
            k = min(nb + 4*i + w + opt.get("rso", 0), 22)
            nv_ = [x for x in fl[k] if not x.startswith("v_")]; vv = [x for x in fl[k] if x.startswith("v_")]
            fl[k] = nv_ + [resets[i]] + vv
    def put(fl, k, items):
        fl[k] = [x for x in fl[k] if not x.startswith("v_")] + items + [x for x in fl[k] if x.startswith("v_")]
    late_vm = []
    if dm:
        if rsc == 1: fl[3].append(neg[0]); fl[4].append(neg[1])
        st3 = [resets[0], resets[1]] + publish
        if dm == 3:
            if w < 2:
                k0 = nb + 8 + w
                put(fl, k0, [st3[0]]); put(fl, k0 + 2, [st3[1]])
                late_vm = [[]]*3 + [[x] for x in st3[2:]]
            else:
                d = kdma()
                put(fl, 0, d[:2])
                for i in range(4): put(fl, 1 + 2*i + hw, [d[2+i]])
                d = vdma()
                fl[nb-1] = d[:2] + fl[nb-1]
                for i in range(4): put(fl, nb + 2*i + hw, [d[2+i]])
                late_vm = [[x] for x in st3]
        elif w < 2:
            for i, x in enumerate(st3): put(fl, nb + 4*i + w, [x])
        else:
            d = vdma() if dm == 2 else kdma()
            put(fl, nb + w - 1, d[:2])
            for i in range(3): put(fl, nb + 4*i + w, [d[2+i]])
            late_vm = [[d[5]]] + ([] if dm == 2 else [vdma()[:3]] + [[x] for x in vdma()[3:]]) + [[x] for x in st3]
    if mega and not dm: fl[22].append(f"s_or_b64 vcc, vcc, s[{sKVM}:{sKVM+1}]")
    slots(A, ph1, fl)
    if not nohop: I(f"s_cbranch_vccnz {pfx}_side")
    A.label(f"{pfx}_late_done")
    T(14)
    assert dm == 3 and rsc == 1 and L_QK == 0
    F1 = [M, M + 4, M + 8, M + 12]; F2 = [AQ, AQ + 4, M + 16, M + 20]
    ONES = AV; LA = AK + 4; OA = AQ; tmx = AK + 4
    def sx(tau, sg): return mf32(S + 4 + 4*tau, KX + 16*tau + 4*sg, F1[sg], "0" if sg == 0 else vr(S + 4 + 4*tau, 4))
    def s0(sg): return mf32(S, F2[sg], F1[sg], "0" if sg == 0 else vr(S, 4))
    def trd(F): return [f"ds_read_b64_tr_b16 {vr(F[sg]+2*rho,2)}, v{vTR} offset:{L_QK + sg*1024 + rho*512}" for sg in range(4) for rho in range(2)]
    ph2 = ([m1(m, t, p) for m in range(2) for t in range(2) for p in range(4, 8)] + vm +
           [sx(1, sg) for sg in range(4)] + [sx(0, sg) for sg in range(4)] + [s0(sg) for sg in range(4)])
    pre = [[] for _ in range(36)]; val = [[] for _ in range(36)]
    kvw = mega and w >= 2
    for i, x in enumerate(late_vm): pre[2*i + (w & 1)] += x
    free = [i for i in range(6) if not pre[i]]
    while kvr: pre[free.pop(0)].append(kvr.pop(0))
    if kvw:
        val[0] += [f"v_lshrrev_b32 v{vT}, 2, v{vL16}"]; val[1] += [f"v_subrev_u32 v{vT}, {LW//4}, v{vT}"]
        pre[14 + hw] += [f"buffer_load_dword v{vFL}, v{vT}, {WS}, s{sPF} offen sc1"]
    if w >= 2: pre[16] += kvadv
    pre[9 + w] += [f"buffer_store_dword v{NEG}, v{vBST}, {WS}, s{sRB} offen {st}"]
    def seq(at, xs):
        for i, x in enumerate(xs): val[at + i].append(x)
    seq(6, hs2(AQ) + [cv(AQ, AQ)]); seq(10, hs2(AQ+4) + [cv(AQ+1, AQ+4)])
    pre[13] = [f"ds_write2_b32 v{vXW}, v{AQ}, v{AQ+1} offset0:0 offset1:128"] + pre[13]
    seq(14, hs2(AK) + [cv(AK, AK)]); seq(18, hs2(AK+4) + [cv(AK+1, AK+4)])
    bq = opt.get("bq", 18); bk = opt.get("bk", 26)
    r1 = trd(F1); r2 = trd(F2)
    wo = sum([frag_rd(NL + i, WBUF[i]) for i in range(NW)], [])
    ops = []
    for i in range(4): ops += [(bq + 1 + i, r1[2*i], None), (bq + 1 + i, r1[2*i+1], f"q{i}")]
    ops.append((21, f"ds_write2_b32 v{vXW}, v{AK}, v{AK+1} offset0:1 offset1:129", "kw"))
    ops += [(24, wo[0], None), (25, wo[1], None)]
    for i in range(4): ops += [(bk + 1 + i, r2[2*i], None), (bk + 1 + i, r2[2*i+1], f"k{i}")]
    nwo = 2
    for sl in range(bk + 5, 36): ops.append((sl, wo[nwo], None)); nwo += 1
    ops.sort(key=lambda o: (o[0], 0 if o[2] == "kw" else 1))
    pre[bq] += ["s_waitcnt lgkmcnt(0)", "s_barrier"]
    for sl, x, tg in ops: pre[sl].append(x)
    def need(sl, tag):
        iss = [o for o in ops if o[0] <= sl]
        k = max(i for i, o in enumerate(iss) if o[2] == tag)
        return f"s_waitcnt lgkmcnt({len(iss) - 1 - k})"
    for i in range(4): pre[23 + i].append(need(23 + i, f"q{i}"))
    pre[bk] += [need(bk, "kw"), "s_barrier"]
    for i in range(4): pre[31 + i].append(need(31 + i, f"k{i}"))
    pre[16] += [f"s_cmp_ge_u32 s{sSTEP}, {opt.get('imm', 61)}"]
    seq(27, hs2(AV) + hs2(AV+4) + [cv(AK+2, AV), cv(AK+3, AV+4)])
    seq(34, [f"v_max3_f32 v{tmx}, v{S+8}, v{S+9}, v{S+10}", f"v_max3_f32 v{tmx}, v{tmx}, v{S+11}, v{S+4}"])
    for i in (4, 5, 8, 9, 12, 17):
        n = len(pre[i]) + len(val[i])
        if n < 2 and not any(x.startswith(("buffer_store", "ds_")) for x in pre[i]): pre[i].append(f"s_nop {1 - n + (0 if val[i] else 1)}")
    slots(A, ph2[:16], [pre[i] + val[i] for i in range(16)])
    T(13)
    slots(A, ph2[16:24], [pre[i] + val[i] for i in range(16, 24)])
    T(2)
    slots(A, ph2[24:], [pre[i] + val[i] for i in range(24, 36)])
    I(f"s_cbranch_scc1 {pfx}_done")
    A.label(f"{pfx}_resume")
    T(3)
    for x in wo[nwo:8]: I(x)
    I(f"v_max3_f32 v{tmx}, v{tmx}, v{S+5}, v{S+6}")
    I(f"v_max_f32 v{tmx}, v{tmx}, v{S+7}")
    I(f"v_mov_b32 v{tmx+2}, s{sSC}")
    I(f"v_xor_b32 v{vKR}, {0 if opt.get('nodma') else 8192}, v{vKR}")
    I(f"v_max3_f32 v{tmx+1}, v{tmx}, v{S+2}, v{S+3}")
    I(f"v_max3_f32 v{tmx}, v{tmx}, v{S+2}, v{S+3}")
    I(f"v_mov_b32 v{ONES}, 0x3f803f80")
    I(f"v_mov_b32 v{ONES+1}, 0x3f803f80")
    I(f"v_permlane32_swap_b32 v{tmx}, v{tmx+1}")
    I(f"v_max_f32 v{tmx}, v{tmx}, v{tmx+1}")
    I(f"v_mov_b32 v{tmx+1}, v{tmx}")
    I(f"v_mov_b64 {vr(ONES+2,2)}, {vr(ONES,2)}")
    I(zero(AV + 4, 4)[0])
    I(f"v_permlane16_swap_b32 v{tmx}, v{tmx+1}")
    I(f"v_max_f32 v{tmx}, v{tmx}, v{tmx+1}")
    I(f"v_mul_f32 v{tmx}, s{sSC}, v{tmx}")
    for i in range(1, 6):
        I(f"v_pk_fma_f32 {vr(S+2*i,2)}, {vr(S+2*i,2)}, {vr(tmx+2,2)}, {vr(tmx,2)} op_sel_hi:[1,0,0] neg_lo:[0,0,1] neg_hi:[0,0,1]")
    ex = [f"v_exp_f32 v{S+i}, v{S+i}" for i in range(12)]
    I(ex[2]); I(ex[3]); I(ex[4])
    I(cv(PZ, S+2)); I(cv(PZ+3, S+2))
    I(ex[5])
    T(4)
    pk = [cv(S+4+i, S+4+2*i) for i in range(4)]
    slots(A, [mf16(OA, AK+2, PZ, "0"), mf16(OA+4, AK+2, PZ+2, "0"), mf16(LA, ONES, PZ, "0")],
          [[wo[8], ex[6], ex[7]], [wo[9], ex[8], ex[9]], [wo[10], ex[10], ex[11]]])
    for x in pk: I(x)
    I(f"v_mov_b64 {vr(PB,2)}, {vr(AK,2)}"); I(f"v_mov_b64 {vr(PB+2,2)}, {vr(AK+2,2)}")
    slots(A, [mf32(LA, ONES, S+4, vr(LA,4)), mf32(OA, VX, S+4, vr(OA,4)), mf32(OA+4, VX+4, S+4, vr(OA+4,4))],
          [[wo[11]] + zero(AK, 2), [wo[12]] + zero(AK+2, 2), [wo[13]] + zero(AV, 4) + zero(AV + 4, 4)[1:]])
    wrest = wo[16:]
    T(40)
    I(f"v_rcp_f32 v{LA}, v{LA}")
    for i in range(4):
        I(f"v_pk_mul_f32 {vr(OA+2*i,2)}, {vr(OA+2*i,2)}, {vr(LA,2)} op_sel_hi:[1,0]")
    for i in range(4): I(cv(OA+i, OA+2*i))
    I(f"ds_write_b128 v{vOW}, {vr(OA,4)} offset:{L_O}")
    T(41)
    WA = [AV, AV + 4, AK, AK + 4]
    OF = [OA, OA + 4, VX, VX + 4]
    def wm(p, j): return smf(WA[p], OF[j], wfrag(3, p, j))
    for i in range(4): I(f"v_mov_b32_dpp v{OA+i}, v{OA+i} quad_perm:[0,1,0,1] row_mask:0xf bank_mask:0xf")
    z = zero(AK + 4, 4)
    I(z[0]); I(z[1])
    sal = [f"s_add_u32 s{sT1}, s{sHA}, 4096", f"s_mov_b32 s{sRB}, s{sHB}", f"s_add_u32 s{sHB}, s{sHB}, 8192",
           f"s_and_b32 s{sHB}, s{sHB}, {hex(0xffffffff ^ (1<<15))}", f"s_sub_u32 s{sB0}, s{sHB}, {LW}", f"s_add_u32 s{sRA}, s{sRC}, s{sHA}",
           f"s_add_u32 s{sKM}, s{sKM}, 4096", f"s_add_u32 s{sSTEP}, s{sSTEP}, 1"]
    npre3 = opt.get("npre3", 2)
    own = [wm(p, 0) for p in range(4)]
    slots(A, own[:npre3], [[wo[14], sal[0]], [wo[15]] + sal[1:3]])
    I("s_waitcnt lgkmcnt(2)")
    T(42)
    I("s_barrier")
    T(5)
    for j in (1, 3, 2): I(f"ds_read_b128 {vr(OF[j],4)}, v{vOR} offset:{L_O + ((j ^ w) << 10)}")
    for x in own[npre3:]: I(x)
    I("s_waitcnt lgkmcnt(2)")
    T(31)
    def post(p):
        x = WA[p]
        return [f"v_cvt_pk_bf16_f32 v{x}, v{x}, v{x+2}", f"v_cvt_pk_bf16_f32 v{x+1}, v{x+1}, v{x+3}",
                f"buffer_store_dwordx2 {vr(x,2)}, v{vAST}, {WS}, s{sHA if p < 2 else sT1} offen offset:{2048*(p&1)} {st}"]
    P = [post(p) for p in range(4)]
    ms = [wm(p, j) for p in range(4) for j in (1, 3, 2)]
    fl = [["s_waitcnt lgkmcnt(1)", wrest[0]], ["s_waitcnt lgkmcnt(1)", wrest[1]], [wrest[2], sal[3]],
          [wrest[3], sal[4]], sal[5:7] + [P[0][0]], sal[7:8] + ["s_nop 0", P[0][1]],
          [P[0][2]], ["s_nop 1", P[1][0]], ["s_waitcnt lgkmcnt(0)", "s_nop 0", P[1][1]],
          [P[1][2]], ["s_nop 1", P[2][0]], P[2][1:3]]
    if opt.get("p6", 0) == 1:
        fl = [["s_waitcnt lgkmcnt(1)", wrest[0]], ["s_waitcnt lgkmcnt(1)", wrest[1]], [wrest[2], sal[3]],
              [wrest[3], sal[4]], sal[5:7] + P[0][0:2], [P[0][2]],
              sal[7:8] + ["s_nop 1"], ["s_nop 1"] + P[1][0:2], [P[1][2], "s_waitcnt lgkmcnt(0)"],
              ["s_nop 2"], ["s_nop 0"] + P[2][0:2], P[2][2:3]]
    if opt.get("p6", 0) == 2:
        fl = [["s_waitcnt lgkmcnt(1)", wrest[0]], ["s_waitcnt lgkmcnt(1)", wrest[1]], sal[3:6],
              sal[6:8] + ["s_nop 1"] + P[0][0:2], [P[0][2]], [wrest[2], "s_nop 0"],
              [wrest[3], "s_nop 0"], ["s_nop 1"] + P[1][0:2], [P[1][2]],
              ["s_waitcnt lgkmcnt(0)", "s_nop 1"], ["s_nop 0"] + P[2][0:2], P[2][2:3]]
    hl = opt.get("hl", 0)
    if hl: fl[11] = P[2][1:2]
    slots(A, ms, fl)
    T(34)
    for x in (P[3][:2] if hl else P[3]): I(x)
    T(6)
    RAs = [M, M + 8]; SEL = M + 16; RD = M + 20
    def pollA(b): return [f"buffer_load_dwordx4 {vr(b,4)}, v{vMW}, {WS}, s{sRA} offen sc1", f"buffer_load_dwordx4 {vr(b+4,4)}, v{vMW}, {WS}, s{sRA} offen offset:1024 sc1"]
    if opt.get("bar6", 1): I("s_barrier")
    work = zero(AQ, 24) + [f"v_cndmask_b32 v{SEL+i}, 0, v{vSEL}, s[{sMSK+2*i}:{sMSK+2*i+1}]" for i in range(4)] + ([] if rsc else neg)
    if rsc == 2:
        for x in neg: I(x)
        if w >= 2:
            I(f"s_xor_b32 s{sT3}, s{sHA}, {256<<10}"); I(f"s_add_u32 s{sT3}, s{sT3}, s{sRC}")
            if w == 3: I(f"s_add_u32 s{sT3}, s{sT3}, 4096")
            for i in range(4): I(f"buffer_store_dwordx4 {vr(NEG,4)}, v{vL16}, {WS}, s{sT3} offen offset:{i*1024} {st}")
    if hl and w >= 2:
        delay(A, opt.get("dH", 24)); I(P[2][2]); I(P[3][2])
    delay(A, opt.get("dA", [20, 32, 48, 60])[w])
    T(51)
    for x in pollA(RAs[0]): I(x)
    if hl and w < 2:
        if w == 0: delay(A, opt.get("dH0", 8))
        I(P[2][2]); I(P[3][2])
    for x in work: I(x)
    delay(A, opt.get("gapA", 4))
    for x in pollA(RAs[1]): I(x)
    I(f"s_xor_b32 s{sHA}, s{sHA}, {256<<10}")
    I(f"s_mov_b32 m0, {m0E}")
    I(f"s_add_u32 s{sT2}, s{sB0}, 4096")
    I(f"s_branch {pfx}_waitA")
    def red(b, n=2):
        I(f"s_waitcnt vmcnt({n})")
        c = chk(b, vT)
        slots(A, [mf32(RD, SEL, b, "0"), mf32(RD, SEL, b + 4, vr(RD, 4))], [c[:2], c[2:]])
    A.label(f"{pfx}_pollA_retry")
    for x in pollA(RAs[0]): I(x)
    I(f"s_add_u32 s{sSPA}, s{sSPA}, 1")
    red(RAs[1])
    I(f"s_cbranch_vccz {pfx}_goA")
    for x in pollA(RAs[1]): I(x)
    I(f"s_cmp_gt_u32 s{sSPA}, {SPIN_MAX}")
    I(f"s_cbranch_scc1 {pfx}_goA")
    if hl and w < 2: I("s_waitcnt vmcnt(2)")
    A.label(f"{pfx}_waitA")
    red(RAs[0], 4 if (hl and w < 2) else 2)
    I("s_nop 3")
    if not nohop: I(f"s_cbranch_vccnz {pfx}_pollA_retry")
    A.label(f"{pfx}_goA_n")
    T(7)
    for rot in (4, 8):
        I(f"v_add_f32_dpp v{RD}, v{RD}, v{RD} row_ror:{rot} row_mask:0xf bank_mask:0xf")
        I(f"v_add_f32_dpp v{RD+1}, v{RD+1}, v{RD+1} row_ror:{rot} row_mask:0xf bank_mask:0xf")
    I(cv(RD, RD))
    I(f"buffer_store_dword v{RD}, v{vBST}, {WS}, s{sHB} offen {st}")
    T(8)
    if rsc == 2: I(resets[2])
    nl0 = opt.get("nl0", 8)
    for x in lres_rd[:nl0]: I(x)
    if kvw:
        I(f"s_cmp_gt_u32 s{sRDY}, 64"); I(f"s_cbranch_scc1 {pfx}_kvall")
        kv_eval(A)
        I(f"s_add_u32 s{sT3}, s{sSTEP}, 1"); I(f"s_cmp_ge_u32 s{sT3}, s{sRDY}"); I(f"s_cselect_b64 s[{sKVM}:{sKVM+1}], -1, 0")
        I(f"s_cmp_gt_u32 s{sRDY}, 64"); I(f"s_cselect_b32 s{sPF}, 0x40000000, s{sPF}")
        I(f"s_branch {pfx}_kvdone")
        A.label(f"{pfx}_kvall")
        I(f"s_mov_b64 s[{sKVM}:{sKVM+1}], 0")
    delay(A, opt.get("dB", [36, 24, 24, 12])[w])
    A.label(f"{pfx}_kvdone")
    T(50)
    rest = lres_rd[nl0:]
    for i in range(0 if (e2 and w >= 2) else npB):
        for x in pollB(BS[i]): I(x)
        if i < npB - 1:
            for x in rest[:2]: I(x)
            delay(A, opt.get("gapB", 16)); rest = rest[2:]
    for x in rest: I(x)
    if not rsc:
        for x in resets: I(x)
    T(52)
    I("s_waitcnt lgkmcnt(0)")
    I(f"s_branch {pfx}_e0")
    A.label(f"{pfx}_goA")
    I("s_nop 3")
    I(f"s_branch {pfx}_goA_n")
    A.label(f"{pfx}_done")
    I(f"s_add_u32 s{sKM}, s{sKM}, 4096")
    if publish: I(f"buffer_store_dwordx4 {vr(AK,4)}, v{vOW}, {WS}, s{sKM} offen {pub}")
    I(f"s_sub_u32 s{sKM}, s{sKM}, 4096")
    I(f"s_cmp_lt_u32 s{sSTEP}, 63")
    I(f"s_cbranch_scc1 {pfx}_resume")
```

```python
from work import *
NAME = "sequential_preLN__memory_aug_recurrent_mem_tr__mixer_gmlp__prompt_kernel"
def gen(opt={}):
    A = Asm(); I = A.I
    TRACE[0] = bool(opt.get('trace'))
    CODEPF[0] = NAME if opt.get('cpf', 1) else None
    A.raw(f"; @launch grid=(256,1,1) block=(256,1,1) lds={LDS_BYTES}")
    A.raw(f'.amdgcn_target "amdgcn-amd-amdhsa--gfx950"\n.text\n.globl {NAME}\n.p2align 8\n.type {NAME},@function\n{NAME}:')
    lt = opt.get("lt")
    if lt: I("s_memrealtime s[96:97]")
    def ltend():
        if not lt: return
        I("s_waitcnt vmcnt(0)"); I("s_memrealtime s[98:99]"); I("s_waitcnt lgkmcnt(0)")
        I("v_mov_b32 v20, s96"); I("v_mov_b32 v21, s98"); I(f"s_lshl_b32 s62, s2, 2"); I(f"s_add_u32 s62, s62, s{sWV}"); I("s_lshl_b32 s62, s62, 3"); I(f"s_add_u32 s62, s62, {WS_TR}")
        I("v_mov_b32 v22, 0"); I("s_mov_b64 exec, 1"); I(f"buffer_store_dwordx2 v[20:21], v22, {WSS}, s62 offen")
    prologue(A, opt.get("force"), opt.get("early", 0), opt.get("rot", 1))
    I(f"s_cmp_eq_u32 s{sG}, 0"); I("s_cbranch_scc0 L_notchain")
    chain_role(A, dict(dict(dA=[24,36,50,60], dB=[28,28,0,0], gapA=14, gapB=28, p6=2, nb=10, dm=3, hold=opt.get('hold')), **opt.get('chain', {})))
    I("s_branch L_helper" if opt.get("stage", 9) >= 3 else "s_endpgm")
    A.label("L_notchain")
    lanes(A)
    I(f"s_cmp_eq_u32 s{sG}, 5"); I("s_cbranch_scc1 L_post")
    h_phase1(A, opt)
    I(f"s_cmp_ge_u32 s{sG}, 6"); I("s_cbranch_scc1 L_post2")
    if opt.get("stage", 9) >= 2:
        import work2; work2.h_phase2(A, opt)
    if opt.get("stage", 9) >= 3:
        A.label("L_helper")
        if opt.get("pexit"): I("s_endpgm")
        work2.helper_t6(A, opt)
        if TRACE[0]:
            I("s_waitcnt vmcnt(0)"); TS(A, 15, 63)
            I(f"s_cmp_lg_u32 s{sWV}, 0"); I("s_cbranch_scc1 L_end")
            I(f"s_lshl_b32 s62, s{sG}, 5"); I(f"s_add_u32 s62, s62, s{sH}"); I("s_lshl_b32 s62, s62, 10"); I(f"s_add_u32 s62, s62, {WS_TR}")
            I("v_lshlrev_b32 v21, 2, v0"); I("s_mov_b32 exec_lo, 0"); I("s_mov_b32 exec_hi, 0xffff8000"); I(f"buffer_store_dword v15, v21, {WSS}, s62 offen")
    ltend()
    I("s_endpgm")
    A.label("L_post")
    s_init(A, opt)
    I("s_branch L_helper" if opt.get("stage", 9) >= 3 else "s_endpgm")
    A.label("L_post2")
    if opt.get("stage", 9) >= 3:
        import work2; work2.p_main(A, opt)
    ltend()
    A.label("L_end"); I("s_endpgm")
    A.raw('.section .rodata,"a"\n.p2align 6'); A.raw(kd(NAME, 512, 100, 256))
    return A.text()
if __name__ == "__main__":
    import sys
    open("mega_test.s", "w").write(gen({"stage": int(sys.argv[1]) if len(sys.argv) > 1 else 9}))
```

```python
from chain import *

sG = 39
D_OVF, D_PINIT, D_CHAIN, D_PROG, D_P2 = 192, 200, 204, 136, 208
WSS = f"s[{sWS}:{sWS+3}]"
DBG = f"s[{sDBG}:{sDBG+3}]"
SW = f"s[{sW}:{sW+3}]"
OOB = 0x40000000
wLN, wC, wG, wR, wCP, wL16 = 1, 2, 3, 4, 5, 6

TRACE = [False]
WS_TR = 1 << 20
def TS(A, vreg, lane):
    if not TRACE[0]: return
    A.I("s_memrealtime s[62:63]"); A.I("s_waitcnt lgkmcnt(0)")
    if isinstance(lane, int): A.I(f"v_writelane_b32 v{vreg}, s62, {lane}")
    else:
        A.I(f"s_mov_b32 m0, {lane}"); A.I("s_nop 0"); A.I(f"v_writelane_b32 v{vreg}, s62, m0")
def TDUMP(A, vregs, tmp, dbgw=None):
    if not TRACE[0]: return
    I = A.I
    l = A.newlabel("td")
    I(f"s_cmp_lg_u32 s{sWV}, 0"); I(f"s_cbranch_scc1 {l}")
    I(f"s_lshl_b32 s62, s{sG}, 5"); I(f"s_add_u32 s62, s62, s{sH}"); I("s_lshl_b32 s62, s62, 10"); I(f"s_add_u32 s62, s62, {WS_TR}")
    I(f"v_mbcnt_lo_u32_b32 v{tmp}, -1, 0"); I(f"v_mbcnt_hi_u32_b32 v{tmp}, -1, v{tmp}"); I(f"v_lshlrev_b32 v{tmp}, 2, v{tmp}")
    for i, r in enumerate(vregs): I(f"buffer_store_dword v{r}, v{tmp}, {WSS}, s62 offen offset:{256*i}")
    if dbgw:
        g, w0, lo, n = dbgw
        e = A.newlabel("te")
        I(f"s_cmp_lg_u32 s{sG}, {g}"); I(f"s_cbranch_scc1 {e}"); I(f"s_cmp_lg_u32 s{sH}, 0"); I(f"s_cbranch_scc1 {e}")
        I(f"s_mov_b64 exec, {hex(((1 << n) - 1) << lo)}")
        I(f"buffer_store_dword v{vregs[0]}, v{tmp}, {DBG}, 0 offen offset:{4*(w0 - lo)}")
        I("s_mov_b64 exec, -1")
        A.label(e)
    I("s_waitcnt vmcnt(0)")
    A.label(l)

def srd(A, karg_off, nbytes):
    A.I(f"s_load_dwordx2 s[{sW}:{sW+1}], s[0:1], {karg_off}")
    A.I(f"s_mov_b32 s{sW+2}, {nbytes}")
    A.I(f"s_mov_b32 s{sW+3}, 0x20000")
    A.I("s_waitcnt lgkmcnt(0)")

def prologue(A, force=None, early=1, rot=0):
    I = A.I
    if TRACE[0]: I("s_memrealtime s[64:65]")
    I(f"s_load_dwordx2 s[{sWS}:{sWS+1}], s[0:1], 112")
    I(f"s_load_dwordx2 s[{sDBG}:{sDBG+1}], s[0:1], 104")
    I("s_load_dwordx4 s[48:51], s[0:1], 16"); I("s_load_dwordx4 s[52:55], s[0:1], 32"); I("s_load_dwordx4 s[56:59], s[0:1], 0")
    I("s_cmp_ge_u32 s2, 256")
    I("s_cbranch_scc1 L_end")
    I(f"s_mov_b32 s{sWS+2}, {WS_BYTES}"); I(f"s_mov_b32 s{sWS+3}, 0x20000")
    I(f"s_mov_b32 s{sDBG+2}, 256"); I(f"s_mov_b32 s{sDBG+3}, 0x20000")
    I("v_lshrrev_b32 v1, 6, v0")
    I(f"v_mov_b32 v4, {LDS_BYTES - 16}")
    I(f"v_readfirstlane_b32 s{sWV}, v1")
    I("s_waitcnt lgkmcnt(0)")
    I("s_getreg_b32 s24, hwreg(HW_REG_XCC_ID, 0, 4)")
    if rot:
        I(f"s_sub_u32 s25, s24, {rot}"); I("s_and_b32 s25, s25, 7"); I("s_cmp_lt_u32 s24, 8"); I("s_cselect_b32 s24, s25, s24")
    I("s_xor_b32 s25, s24, 2"); I("s_or_b32 s26, s24, 2"); I("s_cmp_eq_u32 s26, 7"); I("s_cselect_b32 s24, s25, s24")
    I(f"s_cmp_eq_u32 s{sWV}, 0")
    I("s_cbranch_scc1 L_elect")
    if early:
        I("s_mov_b32 s47, 0x20000")
        I("v_and_b32 v8, 63, v0")
        I(f"s_cmp_eq_u32 s{sWV}, 1"); I("s_cbranch_scc0 L_tw2")
        I("v_lshlrev_b32 v8, 20, v8"); I(f"s_mov_b32 s46, {4<<20}")
        for r in (50, 52, 48, 54):
            I(f"s_mov_b32 s44, s{r}"); I(f"s_mov_b32 s45, s{r+1}")
            I("buffer_load_dword v220, v8, s[44:47], 0 offen")
        I("s_branch L_elect_wait")
        A.label("L_tw2")
        I(f"s_cmp_eq_u32 s{sWV}, 2"); I("s_cbranch_scc0 L_tw3")
        I("v_lshlrev_b32 v8, 20, v8")
        I("s_mov_b32 s44, s58"); I("s_mov_b32 s45, s59"); I("s_mov_b32 s46, 8192")
        I("buffer_load_dword v220, v8, s[44:47], 0 offen")
        I("s_mov_b32 s44, s56"); I("s_mov_b32 s45, s57"); I(f"s_mov_b32 s46, {2<<20}")
        I("buffer_load_dword v220, v8, s[44:47], 0 offen")
        I("s_branch L_elect_wait")
        A.label("L_tw3")
        I("v_lshlrev_b32 v8, 21, v8")
        mask = sum(1 << i for i in ([0, 1, 24, 25] if early == 1 else range(38)))
        I(f"s_mov_b32 exec_lo, {hex(mask & 0xffffffff)}"); I(f"s_mov_b32 exec_hi, {hex(mask >> 32)}")
        I(f"buffer_load_dword v220, v8, {WSS}, 0 offen offset:4092 sc1")
        I("s_mov_b64 exec, -1")
    I("s_branch L_elect_wait")
    A.label("L_elect")
    if force == "skew":
        I("s_lshr_b32 s24, s2, 4"); I("s_and_b32 s24, s24, 15")
    I("s_and_b32 s25, s24, 1"); I("s_lshl_b32 s25, s25, 6")
    I("s_lshr_b32 s26, s24, 1"); I("s_lshl_b32 s26, s26, 2")
    I("s_add_u32 s25, s25, s26")
    I("s_cmp_eq_u32 s24, 0")
    I("s_cselect_b32 s25, 128, s25")
    I("s_mov_b64 exec, 1")
    I("v_mov_b32 v1, 1"); I("v_mov_b32 v2, s25")
    I(f"buffer_atomic_add v1, v2, {DBG}, 0 offen sc0")
    I("s_waitcnt vmcnt(0)")
    I("v_readfirstlane_b32 s25, v1")
    I("s_mov_b64 exec, -1")
    I("s_mov_b32 s40, 0")
    I("s_cmp_ge_u32 s24, 8"); I("s_cbranch_scc1 L_ovf")
    I("s_cmp_lt_u32 s25, 32"); I("s_cbranch_scc1 L_elect_pub")
    A.label("L_ovf")
    I("s_mov_b64 exec, 1")
    I("v_mov_b32 v1, 1"); I(f"v_mov_b32 v2, {D_OVF}")
    I(f"buffer_atomic_add v1, v2, {DBG}, 0 offen sc0")
    I("s_waitcnt vmcnt(0)")
    I("v_readfirstlane_b32 s26, v1")
    I("s_mov_b64 exec, -1")
    I("v_lshlrev_b32 v2, 2, v0")
    I("s_mov_b32 s28, 0")
    def word(x): return 32 if x == 0 else (x & 1) * 16 + (x >> 1)
    A.label("L_ovf_poll")
    I(f"buffer_load_dword v1, v2, {DBG}, 0 offen sc1")
    I("s_add_u32 s28, s28, 1")
    I("s_waitcnt vmcnt(0)")
    I("s_mov_b32 s27, 0")
    for x in range(16):
        I(f"v_readlane_b32 s25, v1, {word(x)}"); I("s_add_u32 s27, s27, s25")
    I(f"s_cmp_gt_u32 s28, {SPIN_MAX}"); I("s_cbranch_scc1 L_ovf_go")
    I("s_cmp_lt_u32 s27, 256"); I("s_cbranch_scc1 L_ovf_poll")
    A.label("L_ovf_go")
    I("s_mov_b32 s40, 1")
    for x in range(8):
        I(f"v_readlane_b32 s25, v1, {word(x)}")
        I("s_min_u32 s25, s25, 32")
        I("s_add_u32 s25, s25, s26")
        I(f"s_mov_b32 s24, {x}")
        I("s_cmp_lt_u32 s25, 32"); I("s_cbranch_scc1 L_elect_pub")
        I("s_sub_u32 s26, s25, 32")
    I("s_mov_b32 s24, 8")
    A.label("L_elect_pub")
    I("s_lshl_b32 s24, s24, 8"); I("s_lshl_b32 s26, s40, 16"); I("s_add_u32 s24, s24, s25"); I("s_add_u32 s24, s24, s26")
    I("v_mov_b32 v1, s24")
    I("ds_write_b32 v4, v1")
    I("s_waitcnt lgkmcnt(0)")
    A.label("L_elect_wait")
    I("s_barrier")
    I("ds_read_b32 v1, v4")
    I("s_waitcnt lgkmcnt(0)")
    I("v_readfirstlane_b32 s24, v1")
    I(f"s_and_b32 s{sH}, s24, 31")
    I(f"s_bfe_u32 s{sG}, s24, {hex((8 << 16) | 8)}")
    I("s_lshr_b32 s40, s24, 16")
    I(f"s_cmp_ge_u32 s{sG}, 8"); I("s_cbranch_scc1 L_end")

def signal_add(A, srdname, off_sgpr_or_imm, val, t0, t1):
    I = A.I
    l = A.newlabel("sig")
    I(f"s_cmp_lg_u32 s{sWV}, 0"); I(f"s_cbranch_scc1 {l}")
    I(f"v_mov_b32 v{t0}, {val}"); I(f"v_mov_b32 v{t1}, {off_sgpr_or_imm}")
    I("s_mov_b64 exec, 1")
    I(f"buffer_atomic_add v{t0}, v{t1}, {srdname}, 0 offen")
    I("s_mov_b64 exec, -1")
    A.label(l)

def signal_store(A, off, val, t0, t1):
    I = A.I
    l = A.newlabel("sig")
    I(f"s_cmp_lg_u32 s{sWV}, 0"); I(f"s_cbranch_scc1 {l}")
    I(f"v_mov_b32 v{t0}, {val}"); I(f"v_mov_b32 v{t1}, {off}")
    I("s_mov_b64 exec, 1")
    I(f"buffer_store_dword v{t0}, v{t1}, {WSS}, 0 offen sc1")
    I("s_mov_b64 exec, -1")
    A.label(l)

def wait_ge(A, srdname, off, target, t0, t1, sres, sleep=2, mask=None, barrier=True, allwaves=False):
    I = A.I
    l = A.newlabel("wt"); e = A.newlabel("wte")
    if not allwaves:
        I(f"s_cmp_lg_u32 s{sWV}, 0"); I(f"s_cbranch_scc1 {e}")
    I(f"v_mov_b32 v{t1}, {off}")
    A.label(l)
    I(f"buffer_load_dword v{t0}, v{t1}, {srdname}, 0 offen sc1")
    I(f"s_add_u32 s{sSPIN}, s{sSPIN}, 1")
    I("s_waitcnt vmcnt(0)")
    I(f"v_readfirstlane_b32 s{sres}, v{t0}")
    I(f"s_cmp_gt_u32 s{sSPIN}, {SPIN_MAX}"); I(f"s_cbranch_scc1 {e}")
    if mask is not None:
        I(f"s_and_b32 s{sres+1}, s{sres}, {mask}"); I(f"s_cmp_ge_u32 s{sres+1}, {target}")
    else:
        I(f"s_cmp_ge_u32 s{sres}, {target}")
    I(f"s_cbranch_scc1 {e}")
    if sleep: I(f"s_sleep {sleep}")
    I(f"s_branch {l}")
    A.label(e)
    if barrier: I("s_barrier")

sLOC = 31
sSEG, sXB, sCNT, sA0, sA1 = 18, 19, 20, 21, 22
sD0, sD1, sD2 = 34, 35, 36
def dual(A, fn):
    g = A.newlabel("dg"); e = A.newlabel("de")
    A.I(f"s_cmp_eq_u32 s{sLOC}, 0"); A.I(f"s_cbranch_scc1 {g}")
    fn(""); A.I(f"s_branch {e}")
    A.label(g); fn("sc1"); A.label(e)

def group_mode(A, t0, t1):
    I = A.I
    I(f"s_and_b32 s24, s{sG}, 1"); I("s_lshl_b32 s24, s24, 6"); I(f"s_lshr_b32 s25, s{sG}, 1"); I("s_lshl_b32 s25, s25, 2"); I("s_add_u32 s24, s24, s25")
    I(f"v_mov_b32 v{t1}, s24")
    I(f"buffer_load_dword v{t0}, v{t1}, {DBG}, 0 offen sc1")
    I("s_waitcnt vmcnt(0)")
    I(f"v_readfirstlane_b32 s24, v{t0}")
    I("s_cmp_ge_u32 s24, 32"); I(f"s_cselect_b32 s{sLOC}, 1, 0")

def gsignal(A, sline, t0, t1):
    I = A.I
    l = A.newlabel("gs")
    I(f"s_cmp_lg_u32 s{sWV}, 0"); I(f"s_cbranch_scc1 {l}")
    I(f"s_lshl_b32 s24, s{sH}, 2")
    I(f"s_add_u32 s25, s{sSEG}, 1"); I(f"v_mov_b32 v{t0}, s25"); I(f"v_mov_b32 v{t1}, s24")
    I("s_mov_b64 exec, 1")
    dual(A, lambda f: I(f"buffer_store_dword v{t0}, v{t1}, {WSS}, s{sline} offen {f}"))
    I("s_mov_b64 exec, -1")
    A.label(l)

def gwait(A, sline, t0, t1, sleep=0, barrier=True):
    I = A.I
    l = A.newlabel("gw"); e = A.newlabel("gwe")
    I(f"s_cmp_lg_u32 s{sWV}, 0"); I(f"s_cbranch_scc1 {e}")
    I(f"v_and_b32 v{t1}, 31, v{wLN}"); I(f"v_lshlrev_b32 v{t1}, 2, v{t1}")
    A.label(l)
    I(f"buffer_load_dword v{t0}, v{t1}, {WSS}, s{sline} offen sc1")
    I(f"s_add_u32 s{sSPIN}, s{sSPIN}, 1")
    I(f"s_cmp_gt_u32 s{sSPIN}, {SPIN_MAX}"); I(f"s_cbranch_scc1 {e}")
    I("s_waitcnt vmcnt(0)")
    I(f"v_cmp_ge_u32 vcc, s{sSEG}, v{t0}")
    if sleep: I(f"s_sleep {sleep}")
    I(f"s_cbranch_vccnz {l}")
    A.label(e)
    if barrier: I("s_barrier")

def allreduce(A, regs, tmp, op="add"):
    I = A.I
    for rot in (8, 4, 2, 1):
        for r in regs: I(f"v_{op}_f32_dpp v{r}, v{r}, v{r} row_ror:{rot} row_mask:0xf bank_mask:0xf")
    for sw in ("16", "32"):
        for r in regs:
            I(f"v_mov_b32 v{tmp}, v{r}")
            I(f"v_permlane{sw}_swap_b32 v{r}, v{tmp}")
            I(f"v_{op}_f32 v{r}, v{r}, v{tmp}")

def unpack(A, src, dst, n):
    for i in range(n):
        A.I(f"v_lshlrev_b32 v{dst+2*i}, 16, v{src+i}")
        A.I(f"v_and_b32 v{dst+2*i+1}, 0xffff0000, v{src+i}")

def rbf(A, r):
    A.I(f"v_cvt_pk_bf16_f32 v{r}, v{r}, v{r}")
    A.I(f"v_and_b32 v{r}, 0xffff0000, v{r}")

def ln_finish(A, mean, var):
    I = A.I
    rbf(A, mean); rbf(A, var)
    I(f"v_add_f32 v{var}, {hex(f2u(1e-5))}, v{var}")
    rbf(A, var)
    I(f"v_sqrt_f32 v{var}, v{var}")
    rbf(A, var)
    I(f"v_rcp_f32 v{var}, v{var}")

def ln_row(A, x, out, t):
    I = A.I
    m, v, tm, d = t, t + 1, t + 2, t + 4
    I(f"v_add_f32 v{m}, v{x}, v{x+1}")
    for i in range(2, 8): I(f"v_add_f32 v{m}, v{m}, v{x+i}")
    allreduce(A, [m], tm)
    I(f"v_mul_f32 v{m}, {hex(f2u(1/512))}, v{m}")
    for i in range(8): I(f"v_sub_f32 v{d+i}, v{x+i}, v{m}")
    I(f"v_mul_f32 v{v}, v{d}, v{d}")
    for i in range(1, 8): I(f"v_fmac_f32 v{v}, v{d+i}, v{d+i}")
    allreduce(A, [v], tm)
    I(f"v_mul_f32 v{v}, {hex(f2u(1/512))}, v{v}")
    ln_finish(A, m, v)
    for i in range(8): I(f"v_sub_f32 v{d+i}, v{x+i}, v{m}")
    for i in range(4): I(cv(out + i, d + 2*i))
    unpack(A, out, d, 4)
    for i in range(8): I(f"v_mul_f32 v{d+i}, v{d+i}, v{v}")
    for i in range(4): I(cv(out + i, d + 2*i))

def lanes(A):
    I = A.I
    I(f"v_and_b32 v{wLN}, 63, v0")
    I(f"v_and_b32 v{wC}, 15, v{wLN}")
    I(f"v_lshrrev_b32 v{wG}, 4, v{wLN}")
    I(f"v_lshrrev_b32 v{wR}, 2, v{wC}")
    I(f"v_and_b32 v{wCP}, 3, v{wC}")
    I(f"v_lshlrev_b32 v{wL16}, 4, v{wLN}")
    I(f"s_mov_b32 s{sSPIN}, 0")

def touch_weights(A, dst, mats):
    I = A.I
    if not mats: return
    I(f"s_lshl_b32 s26, s{sG}, 5"); I(f"s_add_u32 s26, s26, s{sH}"); I("s_sub_u32 s26, s26, 32"); I("s_mul_i32 s26, s26, 18944")
    I("v_lshlrev_b32 v7, 4, v0")
    I(f"s_mov_b32 s46, {4<<20}"); I("s_mov_b32 s47, 0x20000")
    n = 0
    for m in mats:
        if m == "i":
            I("s_load_dwordx2 s[44:45], s[0:1], 64"); I(f"s_mov_b32 s46, {512*1376*2}")
            I(f"s_lshl_b32 s27, s{sG}, 5"); I(f"s_add_u32 s27, s27, s{sH}"); I("s_sub_u32 s27, s27, 32"); I("s_mul_i32 s27, s27, 6400"); I("s_add_u32 s26, s27, 4096")
            I("s_waitcnt lgkmcnt(0)")
            I(f"buffer_load_dwordx4 v[{dst}:{dst+3}], v7, s[44:47], s27 offen"); I(f"buffer_load_dwordx4 v[{dst}:{dst+3}], v7, s[44:47], s26 offen")
            continue
        r = {"q": 48, "k": 50, "v": 52, "o": 54}[m]
        I(f"s_mov_b32 s44, s{r}"); I(f"s_mov_b32 s45, s{r+1}"); I("s_mov_b32 s27, s26")
        for i in range(5):
            I(f"buffer_load_dwordx4 v[{dst+4*n}:{dst+3+4*n}], v7, s[44:47], s27 offen"); n += 1
            I("s_add_u32 s27, s27, 4096")

def s_init(A, opt={}):
    I = A.I
    for _ in range(opt.get("sdelay", 0)): I("s_sleep 32")
    srd(A, 0, 2 << 20)
    I(f"s_lshl_b32 s24, s{sH}, 16"); I(f"s_lshl_b32 s25, s{sWV}, 14"); I("s_add_u32 s24, s24, s25")
    I("s_mov_b32 s25, s24")
    for i in range(16):
        I(f"buffer_load_dwordx4 {vr(32+4*i,4)}, v{wL16}, {SW}, s25 offen offset:{(i&3)*1024}")
        if (i & 3) == 3: I("s_add_u32 s25, s25, 4096")
    tw = opt.get("tw", ["k", "v", "qo", "i"])
    touch_weights(A, 128, tw[0])
    I("v_lshlrev_b32 v10, 3, v0"); I("v_mov_b64 v[12:13], 0"); I(f"s_lshl_b32 s26, s{sH}, 11")
    I(f"buffer_store_dwordx2 v[12:13], v10, {WSS}, s26 offen sc1")
    I(f"s_add_u32 s24, s24, {WS_XN}")
    for i in range(16):
        I(f"s_waitcnt vmcnt({16 + 5*len(tw[0])})")
        unpack(A, 32 + 4*i, 12, 4)
        ln_row(A, 12, 32 + 4*i, 20)
        I(f"buffer_store_dwordx4 {vr(32+4*i,4)}, v{wL16}, {WSS}, s24 offen offset:{(i&3)*1024} sc1")
        if (i & 3) == 3: I("s_add_u32 s24, s24, 4096")
    I("s_waitcnt vmcnt(0)")
    I("s_barrier")
    signal_add(A, DBG, D_PINIT, 2, 10, 11)
    if TRACE[0]: I("v_writelane_b32 v112, s64, 0")
    TS(A, 112, 1)
    touch_weights(A, 128, "".join(tw[1:]))
    for i in range(4): I(f"v_mov_b32 v{12+i}, -1")
    I("v_lshlrev_b32 v10, 4, v0")
    pt = opt.get("pthr", 0)
    for base, mul, n in ((WS_Z, 172*1024, 43), (WS_ZS, 32768, 8), (WS_U, 98304, 24)):
        l = A.newlabel("si")
        I(f"s_mul_i32 s24, s{sH}, {mul}"); I(f"s_add_u32 s24, s24, {base}"); I("s_mov_b32 s25, 0")
        A.label(l)
        if pt: I(f"s_waitcnt vmcnt({pt - 1})")
        I(f"buffer_store_dwordx4 v[12:15], v10, {WSS}, s24 offen sc1")
        I("s_add_u32 s24, s24, 4096"); I("s_add_u32 s25, s25, 1"); I(f"s_cmp_lt_u32 s25, {n}"); I(f"s_cbranch_scc1 {l}")
    I("s_waitcnt vmcnt(0)")
    I("s_barrier")
    signal_add(A, DBG, D_P2, 2, 10, 11)
    TS(A, 112, 2)
    TDUMP(A, [112], 10)
    wait_ge(A, DBG, D_P2, 64, 10, 11, 24, sleep=16, barrier=False, allwaves=True)
    I("s_mov_b32 s38, 0")

def w256_addr(A, vd, vt):
    I = A.I
    I(f"s_lshl_b32 s24, s{sWV}, 2")
    I(f"v_add_u32 v{vd}, s24, v{wG}")
    I(f"v_lshlrev_b32 v{vd}, 13, v{vd}")
    I(f"s_lshr_b32 s24, s{sWV}, 1"); I("s_lshl_b32 s24, s24, 3")
    I(f"v_lshlrev_b32 v{vt}, 1, v{wG}")
    I(f"v_or_b32 v{vt}, s24, v{vt}")
    I(f"v_xor_b32 v{vt}, v{wC}, v{vt}")
    I(f"v_lshl_add_u32 v{vd}, v{vt}, 4, v{vd}")
    I(f"s_lshl_b32 s24, s{sH}, 8")
    I(f"v_add_u32 v{vd}, s24, v{vd}")
    I(f"v_and_b32 v{vt}, 1, v{wG}")
    I(f"v_lshl_add_u32 v{vt}, v{vt}, 2, v{wR}")
    I(f"s_lshl_b32 s24, s{sWV}, 1")
    I(f"v_xor_b32 v{vt}, s24, v{vt}")
    I(f"v_lshlrev_b32 v{vt}, 5, v{vt}")
    I(f"v_lshl_add_u32 v{vt}, v{wCP}, 3, v{vt}")
    I(f"v_lshl_add_u32 v{vt+1}, v{wG}, 3, v{wR}")
    I(f"v_lshl_add_u32 v{vt}, v{vt+1}, 8, v{vt}")
    I(f"v_xor_b32 v{vt+1}, 32, v{vt}")
def w256_dma(A, vd, half, thr=0):
    I = A.I
    I(f"s_lshl_b32 s24, s{sWV}, 10")
    for i in range(16):
        I(f"s_add_u32 m0, s24, {half*65536 + i*4096}")
        I(f"s_mov_b32 s25, {(256*half + 16*i)*8192}")
        if thr: I(f"s_waitcnt vmcnt({thr - 1})")
        I(f"buffer_load_dwordx4 v{vd}, {SW}, s25 offen lds")
def w256_read(A, vt, half, abase):
    for eps in range(2):
        for k in range(8):
            for u in range(2):
                A.I(f"ds_read_b64_tr_b16 {ar(abase + (eps*16 + 8*half + k)*4 + 2*u, 2)}, v{vt+eps} offset:{(32*k + 4*u)*256}")
    A.I("s_waitcnt lgkmcnt(0)")
    A.I(f"v_xor_b32 v{vt}, 0x10000, v{vt}"); A.I(f"v_xor_b32 v{vt+1}, 0x10000, v{vt+1}")

def w1k_addr(A, vd, vt, sbase_bytes):
    I = A.I
    I(f"s_lshl_b32 s24, s{sWV}, 6")
    I(f"v_xor_b32 v{vd}, s24, v{wL16}")
    I(f"s_lshl_b32 s24, s{sWV}, 10")
    if sbase_bytes: I(f"s_add_u32 s24, s24, {sbase_bytes}")
    I(f"v_add_u32 v{vd}, s24, v{vd}")
    I(f"v_lshl_add_u32 v{vt}, v{wG}, 2, v{wR}")
    I(f"v_lshlrev_b32 v{vt}, 10, v{vt}")
    I(f"v_lshl_add_u32 v{vt}, v{wR}, 6, v{vt}")
    I(f"v_lshl_add_u32 v{vt}, v{wCP}, 4, v{vt}")
    I(f"s_lshl_b32 s24, s{sWV}, 8")
    I(f"v_add_u32 v{vt}, s24, v{vt}")
    for p in range(1, 4): I(f"v_xor_b32 v{vt+p}, {p<<6}, v{vt}")
def w1k_dma(A, vd, row0, nrows, lds, thr=0):
    I = A.I
    I(f"s_lshl_b32 s24, s{sWV}, 10")
    for i in range(nrows // 4):
        I(f"s_add_u32 m0, s24, {lds + i*4096}")
        I(f"s_mov_b32 s25, {(row0 + 4*i)*1024}")
        if thr: I(f"s_waitcnt vmcnt({thr - 1})")
        I(f"buffer_load_dwordx4 v{vd}, {SW}, s25 offen lds")
def w1k_rd(vt, t8, ksl, u, dst):
    return f"ds_read_b64_tr_b16 {dst}, v{vt + (t8>>1)} offset:{(32*ksl + 16*u)*1024 + (t8&1)*8}"

def rows_addr(A, vd, va, perm=False):
    I = A.I
    if not perm:
        I(f"v_xor_b32 v{va}, v{wG}, v{wC}")
        I(f"v_lshlrev_b32 v{va}, 4, v{va}")
        I(f"v_lshl_add_u32 v{va}, v{wC}, 10, v{va}")
    for k in range(1, 4): I(f"v_xor_b32 v{va+k}, {k<<6}, v{va}")
def rows_dma(A, vtmp, sbase, lds, ld="sc1"):
    I = A.I
    I(f"s_lshl_b32 s24, s{sWV}, 13")
    I(f"s_add_u32 s25, s24, s{sbase}")
    I(f"s_and_b32 s26, s{sWV}, 1"); I("s_lshl_b32 s26, s26, 7")
    for i in range(8):
        I(f"s_add_u32 s27, s26, {i<<4}")
        I(f"v_xor_b32 v{vtmp}, s27, v{wL16}")
        if isinstance(lds, int): I(f"s_add_u32 m0, s24, {lds + i*1024}")
        else:
            I(f"s_add_u32 s27, s24, {i*1024}"); I(f"s_add_u32 m0, s27, {lds}")
        I(f"buffer_load_dwordx4 v{vtmp}, {WSS}, s25 offen {ld} lds")
        I("s_add_u32 s25, s25, 1024")

def rows_dma_prep(A, sbase, lds):
    I = A.I
    I(f"s_lshl_b32 s{sD0}, s{sWV}, 13")
    I(f"s_add_u32 s{sD1}, s{sD0}, s{sbase}")
    I(f"s_add_u32 s{sD0}, s{sD0}, {lds}")
    I(f"s_and_b32 s{sD2}, s{sWV}, 1"); I(f"s_lshl_b32 s{sD2}, s{sD2}, 7")
def rows_dma_items(vtmp):
    return [([f"s_mov_b32 m0, s{sD0}", f"s_add_u32 s{sD0}, s{sD0}, 1024", f"v_xor_b32 v{vtmp}, s{sD2}, v{wL16}"],
             [f"buffer_load_dwordx4 v{vtmp}, {WSS}, s{sD1} offen sc1 lds", f"s_add_u32 s{sD1}, s{sD1}, 1024", f"s_add_u32 s{sD2}, s{sD2}, 16"]) for i in range(8)]

def h_phase1(A, opt={}):
    I = A.I
    vD, vTt, vXA, vTm = 8, 10, 12, 16
    if TRACE[0]: I("v_writelane_b32 v112, s64, 0")
    TS(A, 112, 1)
    tw = opt.get("tw", ["k", "v", "qo", "i"])
    touch_weights(A, 128, tw[0])
    w256_addr(A, vD, vTt)
    if opt.get("hold"):
        I(f"s_cmp_lt_u32 s{sG}, {opt['hold'][0]}"); I("s_cbranch_scc1 H1_nohold")
        wait_ge(A, DBG, D_PROG, 32, 20, 21, 24, sleep=16)
        A.label("H1_nohold")
    srd(A, 24, 4 << 20)
    thr = opt.get('thr', 4)
    def late(i):
        if tw[i]:
            touch_weights(A, 128, tw[i])
    def wd(half):
        t2 = opt.get("thr2")
        if not t2: return w256_dma(A, vD, half, thr)
        l = A.newlabel("th"); e = A.newlabel("te")
        I(f"s_cmp_ge_u32 s{sG}, {t2[0]}"); I(f"s_cbranch_scc1 {l}")
        w256_dma(A, vD, half, thr); I(f"s_branch {e}")
        A.label(l); w256_dma(A, vD, half, t2[1]); A.label(e)
    wd(0); late(1); wd(1)
    rows_addr(A, None, vXA)
    sSTP, sSTX, sPRV, sFLG = 33, 56, 57, 58
    I(f"s_cmp_ge_u32 s{sG}, 6"); I("s_cselect_b32 s24, 2, 1"); I(f"s_cselect_b32 s{sSTP}, 2, 8"); I(f"s_cselect_b32 s{sSTX}, 4, 0")
    I(f"s_sub_u32 s{sSEG}, s{sG}, s24")
    I(f"s_lshl_b32 s{sFLG}, s{sH}, 7"); I(f"s_lshl_b32 s24, s{sSEG}, 2"); I(f"s_add_u32 s{sFLG}, s{sFLG}, s24"); I(f"s_add_u32 s{sFLG}, s{sFLG}, {F_KV}")
    for ci in range(4):
        I(f"s_waitcnt vmcnt({16 if ci < 3 else 0})")
        I("s_barrier")
        w256_read(A, vTt, ci & 1, 128 * (ci >> 1))
        I("s_barrier")
        if ci == 0: srd(A, 32, 4 << 20)
        if ci < 2: late(2 + ci); wd(ci)
        if ci == 2:
            wait_ge(A, DBG, D_PINIT, 64, 20, 21, 24)
            I(f"s_lshl_b32 s{sA0}, s{sSEG}, 15"); I(f"s_add_u32 s{sA0}, s{sA0}, {WS_XN}")
            I(f"s_mov_b32 s{sXB}, 0")
            rows_dma(A, vTm, sA0, 0)
    TS(A, 112, 2)
    TS(A, 112, 3)
    I(f"s_mov_b32 s{sCNT}, 0")
    for i in range(4): I(f"v_mov_b32 v{104+i}, -1")
    I(f"s_mul_i32 s37, s{sH}, 65"); I(f"s_add_u32 s37, s37, s{sSEG}"); I("s_lshl_b32 s37, s37, 12"); I(f"s_lshl_b32 s24, s{sWV}, 10")
    I("s_add_u32 s37, s37, s24"); I(f"s_add_u32 s37, s37, {WS_KM}")
    bg = opt.get("bg", 1)
    vBG, vWD, vWT = 17, 18, 108
    sBM, sBO, sBS = 30, 31, 32
    if bg:
        I(f"s_lshl_b32 s28, s{sH}, 17")
        w1k_addr(A, vWD, vWT, "s28")
        I("s_mov_b32 s40, s48"); I("s_mov_b32 s41, s49"); I(f"s_mov_b32 s42, {4<<20}"); I("s_mov_b32 s43, 0x20000"); I("s_mov_b64 vcc, 0")
        I(f"v_mov_b32 v{vBG}, v{vD}"); I(f"s_mov_b32 s{sBS}, {16*8192}"); I(f"s_mov_b32 s{sBO}, 0"); I(f"s_mov_b32 s{sBM}, 65536")
        I(f"v_xor_b32 v{vTt}, 0x10000, v{vTt}"); I(f"v_xor_b32 v{vTt+1}, 0x10000, v{vTt+1}")
    A.label("H1_loop")
    I(f"s_cmp_gt_u32 s{sCNT}, 1"); I("s_cbranch_scc1 H1_lag")
    I("s_waitcnt vmcnt(0)")
    A.label("H1_lag")
    I("s_waitcnt vmcnt(5)")
    I("s_barrier")
    I(f"s_cmp_gt_u32 s{sCNT}, 1"); I(f"s_cselect_b32 s29, s{sPRV}, s{sSEG}")
    signal_store(A, f"s{sFLG}", "s29", 20, 21)
    if TRACE[0]: I(f"s_add_u32 s61, s{sCNT}, 8")
    TS(A, 112, "s61")
    if bg:
        I(f"s_cmp_ge_u32 s{sG}, 6"); I("s_cbranch_scc1 H1_bgd")
        b0 = opt.get("bg0", 1)
        for it, name in ((b0, "a"), (b0 + 2, "b"), (b0 + 4, "c"), (b0 + 7, "e")):
            I(f"s_cmp_eq_u32 s{sCNT}, {it}"); I(f"s_cbranch_scc1 H1_bg{name}")
        I("s_branch H1_bgd")
        def rq(half):
            for eps in range(2):
                for k in range(8):
                    for u in range(2):
                        I(f"ds_read_b64_tr_b16 {vr(128 + (eps*16 + 8*half + k)*4 + 2*u, 2)}, v{vTt+eps} offset:{(32*k + 4*u)*256}")
            I("s_waitcnt lgkmcnt(0)"); I("s_barrier")
        A.label("H1_bge")
        I("s_mov_b64 vcc, 0"); I("s_branch H1_bgd")
        A.label("H1_bgc")
        rq(1)
        I("s_mov_b32 s40, s54"); I("s_mov_b32 s41, s55"); I(f"v_mov_b32 v{vBG}, v{vWD}"); I(f"s_mov_b32 s{sBS}, 4096"); I(f"s_mov_b32 s{sBO}, 0")
        I("s_branch H1_bga2")
        A.label("H1_bgb")
        rq(0)
        I("s_branch H1_bga2")
        A.label("H1_bga")
        I("s_mov_b64 vcc, -1"); I(f"s_mov_b32 s{sBO}, 0")
        A.label("H1_bga2")
        I(f"s_lshl_b32 s{sBM}, s{sWV}, 10"); I(f"s_add_u32 s{sBM}, s{sBM}, 65536")
        A.label("H1_bgd")
    I(f"s_lshl_b32 s24, s{sSTP}, 15"); I(f"s_add_u32 s{sA0}, s{sA0}, s24")
    I(f"s_xor_b32 s{sXB}, s{sXB}, 32768")
    I(f"s_add_u32 s24, s{sSEG}, s{sSTP}"); I("s_cmp_ge_u32 s24, 64"); I(f"s_cselect_b32 s{sA0}, {OOB}, s{sA0}")
    rows_dma_prep(A, sA0, f"s{sXB}")
    items = rows_dma_items(vTm)
    XF = 24; AC = 56
    def rd(ks): return [f"ds_read_b128 {vr(XF + 8*(ks&3) + 4*t,4)}, v{vXA + (ks&3)} offset:{(ks>>2)*256 + t*16384}" for t in range(2)]
    for ks in range(3):
        for x in rd(ks): I(x)
    for ks in range(16):
        I(f"s_waitcnt lgkmcnt({4 if ks < 14 else (2 if ks == 14 else 0)})")
        ms = []
        for eps in range(2):
            for t in range(2):
                xk = vr(XF + 8*(ks&3) + 4*t, 4)
                dk = AC + 8*t + 4*eps; dv = AC + 16 + 8*eps + 4*t
                ms.append(f"v_mfma_f32_16x16x32_bf16 {vr(dk,4)}, {ar((eps*16+ks)*4,4)}, {xk}, {'0' if ks == 0 else vr(dk,4)}")
                ms.append(f"v_mfma_f32_16x16x32_bf16 {vr(dv,4)}, {xk}, {ar(128+(eps*16+ks)*4,4)}, {'0' if ks == 0 else vr(dv,4)}")
        fl = [[x] for x in rd(ks + 3)] if ks + 3 < 16 else [[], []]
        if ks < 8:
            fl += [items[ks][0], items[ks][1]]
            if bg: fl += [[], [], [f"s_mov_b32 m0, s{sBM}", f"s_add_u32 s{sBM}, s{sBM}, 4096"],
                          [f"s_cbranch_vccz H1_nb{ks}", f"buffer_load_dwordx4 v{vBG}, s[40:43], s{sBO} offen lds", f"H1_nb{ks}:", f"s_add_u32 s{sBO}, s{sBO}, s{sBS}"]]
        slots(A, ms, fl)
    for k in range(4): I(f"v_xor_b32 v{vXA+k}, 0x8000, v{vXA+k}")
    I(f"s_lshl_b32 s24, s{sSEG}, 19"); I(f"s_lshl_b32 s25, s{sH}, 14"); I("s_add_u32 s24, s24, s25"); I(f"s_add_u32 s24, s24, {WS_KV}")
    I(f"s_lshl_b32 s25, s{sWV}, 10"); I("s_add_u32 s26, s24, s25"); I("s_add_u32 s27, s26, 4096")
    I("s_add_u32 s25, s25, s26"); I("s_add_u32 s25, s25, 8192")
    for j in range(4):
        for i in range(4): I(cv(88 + 4*j + i, AC + 8*j + 2*i))
    I(f"buffer_store_dwordx4 v[88:91], v{wL16}, {WSS}, s26 offen sc1")
    I(f"buffer_store_dwordx4 v[92:95], v{wL16}, {WSS}, s27 offen sc1")
    I(f"buffer_store_dwordx4 v[96:99], v{wL16}, {WSS}, s25 offen sc1")
    I(f"buffer_store_dwordx4 v[100:103], v{wL16}, {WSS}, s25 offen offset:1024 sc1")
    I(f"buffer_store_dwordx4 v[104:107], v{wL16}, {WSS}, s37 offen sc1")
    I(f"s_lshl_b32 s24, s{sSTP}, 12"); I("s_add_u32 s37, s37, s24")
    I(f"s_add_u32 s{sCNT}, s{sCNT}, 1")
    I(f"s_mov_b32 s{sPRV}, s{sSEG}"); I(f"s_add_u32 s{sSEG}, s{sSEG}, s{sSTP}"); I(f"s_xor_b32 s{sSTP}, s{sSTP}, s{sSTX}")
    I(f"s_cmp_lt_u32 s{sSEG}, 64"); I("s_cbranch_scc1 H1_loop")
    I("s_waitcnt vmcnt(0)")
    I("s_barrier")
    signal_store(A, f"s{sFLG}", 100, 20, 21)
    TS(A, 112, 4)

def chain_role(A, opt):
    I = A.I
    if TRACE[0]: I("s_memrealtime s[66:67]")
    ll = opt.get("lead")
    def hooks(A, what, ci):
        if what == "extra":
            return (1 if ci == 6 else 0) + (1 if (ll and 2 <= ci <= 5 and ci + 2 - ll >= 0) else 0)
        if ll:
            if what == "landed" and ci <= 7 - ll: signal_add(A, DBG, 144 + 4*ci, 1, 28, 29)
            if what == "issued" and 2 <= ci <= 5 and ci + 2 - ll >= 0:
                I(f"v_mov_b32 v28, {144 + 4*(ci + 2 - ll)}")
                I(f"buffer_load_dword v{30 + (ci & 1)}, v28, {DBG}, 0 offen sc1")
            if what == "before" and 4 <= ci <= 7 and ci - ll >= 0:
                l = A.newlabel("ld")
                I(f"v_readfirstlane_b32 s43, v{30 + (ci & 1)}"); I("s_cmp_ge_u32 s43, 32"); I(f"s_cbranch_scc1 {l}")
                wait_ge(A, DBG, 144 + 4*(ci - ll), 32, 28, 29, 42, barrier=False, allwaves=True, sleep=2)
                A.label(l)
        if TRACE[0] and what == ("ts" if opt.get("tsfine") else "landed"):
            I("s_memrealtime s[62:63]"); I("s_waitcnt lgkmcnt(0)"); I(f"s_mov_b32 s{92+ci}, s62")
        if what == "first":
            I("v_lshlrev_b32 v28, 4, v0")
            for i in range(4): I(f"v_mov_b32 v{32+i}, -1")
            I(f"s_lshl_b32 s24, s{sH}, 13"); I(f"s_add_u32 s24, s24, {WS_HA}")
            for sl in range(2):
                for hf in range(2):
                    I(f"s_add_u32 s25, s24, {sl*(256<<10) + hf*4096}")
                    I(f"buffer_store_dwordx4 v[32:35], v28, {WSS}, s25 offen sc1")
            I("v_lshlrev_b32 v28, 2, v0")
            I(f"s_lshl_b32 s24, s{sH}, 10"); I(f"s_add_u32 s24, s24, {WS_HB}")
            I(f"buffer_store_dword v32, v28, {WSS}, s24 offen sc1")
        if what == "landed" and ci == 0:
            I("s_lshl_b32 s41, s40, 16"); I("s_add_u32 s41, s41, 1")
            signal_add(A, DBG, D_CHAIN, "s41", vT, vT + 1)
        if what == "landed" and ci == 1 and opt.get("tlb", 0):
            I(f"v_subrev_u32 v28, {LW}, v{vL16}"); I("v_lshlrev_b32 v28, 15, v28")
            I(f"s_add_u32 s43, s{sKV}, {LW}")
            I(f"buffer_load_dword v29, v28, {WSS}, s43 offen sc1")
        if what == "landed" and opt.get("hold") and ci == opt["hold"][1]:
            signal_add(A, DBG, D_PROG, 1, vT, vT + 1)
        if what == "issued" and ci == 6:
            I(f"v_mov_b32 v28, {D_PINIT}")
            I(f"buffer_load_dwordx2 {vr(vT,2)}, v28, {DBG}, 0 offen sc1")
        if what == "landed" and ci == 6:
            I(f"v_readfirstlane_b32 s43, v{vT}"); I(f"v_readfirstlane_b32 s42, v{vT+1}")
            I("s_cmp_lt_u32 s43, 64"); I("s_cbranch_scc1 L_ch_slow")
            I("s_and_b32 s43, s42, 0xffff"); I("s_cmp_ge_u32 s43, 32"); I("s_cbranch_scc1 L_ch_fast")
            A.label("L_ch_slow")
            wait_ge(A, DBG, D_PINIT, 64, vT, vT + 1, 42, barrier=False, allwaves=True, sleep=4)
            wait_ge(A, DBG, D_CHAIN, 32, vT, vT + 1, 42, mask=0xffff, barrier=False, allwaves=True, sleep=4)
            A.label("L_ch_fast")
            I(f"s_add_u32 m0, s{sM0A}, 8192")
            for sl in range(2):
                I(f"s_add_u32 s43, s{sRC}, {WS_HA + sl*(256<<10)}")
                for i in range(2): I(f"buffer_load_dwordx4 v{vMW}, {WSS}, s43 offen offset:{i*1024} sc1 lds")
            I(f"s_lshl_b32 s43, s{sH}, 10"); I(f"s_add_u32 s43, s43, {WS_HB - LW}")
            I(f"buffer_load_dwordx4 v{vL16}, {WSS}, s43 offen sc1 lds")
            kv_flag_load(A)
        if what == "landed" and ci == 7:
            if TRACE[0]: I("s_memrealtime s[66:67]"); I("s_waitcnt lgkmcnt(0)")
            kv_wait(A, "CI", 0, preloaded=True)
            for x in kv_dma(A, "sc1"): I(x)
    chain_setup(A, "", hooks, opt.get("order", (1, 2, 0)))
    if TRACE[0]: I("s_memrealtime s[68:69]"); I("s_waitcnt lgkmcnt(0)")
    if TRACE[0]: I("s_memrealtime s[70:71]"); I("s_memtime s[80:81]"); I("s_waitcnt lgkmcnt(0)")
    for _ in range(opt.get("cdelay", 0)): I("s_sleep 32")
    I("s_lshr_b32 s42, s42, 16")
    I("s_cmp_lg_u32 s42, 0")
    I("s_cbranch_scc1 L_chain_global")
    o = dict(opt); o["mega"] = 1
    def stamp(A, i):
        if i == 6:
            l = A.newlabel("st")
            tsd = opt.get("tsd", 8)
            if tsd == 8: A.I(f"s_and_b32 s60, s{sSTEP}, 7"); A.I("s_cmp_eq_u32 s60, 1"); A.I(f"s_cbranch_scc0 {l}")
            A.I("s_memrealtime s[62:63]"); A.I("s_memtime s[60:61]"); A.I("s_waitcnt lgkmcnt(0)")
            for k in range(8):
                A.I(f"s_cmp_eq_u32 s{sSTEP}, {tsd*k+1+opt.get('ts0',0)}"); A.I(f"s_cselect_b32 s{72+k}, s62, s{72+k}"); A.I(f"s_cselect_b32 s{84+k}, s60, s{84+k}")
            A.label(l)
    chain_loop(A, "", "CL", stamp if TRACE[0] else None, "sc1", o)
    I("s_branch L_chain_end")
    A.label("L_chain_global")
    chain_loop(A, "sc1", "CG", None, "sc1", o)
    A.label("L_chain_end")
    wait_ge(A, DBG, D_P2, 64, vT, vT + 1, 24, sleep=4, barrier=False, allwaves=True)
    I("s_mov_b32 s38, 0")
    if TRACE[0]:
        for i, r in enumerate([64, 66, 68, 70]): I(f"v_writelane_b32 v20, s{r}, {i}")
        TS(A, 20, 4)
        I("s_memtime s[62:63]"); I("s_waitcnt lgkmcnt(0)"); I("s_sub_u32 s62, s62, s80"); I("v_writelane_b32 v20, s62, 7")
        I(f"v_writelane_b32 v20, s{sSPIN}, 5"); I(f"v_writelane_b32 v20, s{sSPA}, 6")
        for k in range(8): I(f"v_writelane_b32 v20, s{72+k}, {8+k}")
        for k in range(8): I(f"v_writelane_b32 v20, s{84+k}, {16+k}")
        for k in range(8): I(f"v_writelane_b32 v20, s{92+k}, {24+k}")
        TDUMP(A, [20], 21, (0, 4, 0, 5))
```

```python
from work import *

L_XB, L_HB, L_PT, L_QX, L_OX, L_KM, L_RED, L_KV2 = 0, 32768, 65536, 102400, 110592, 118784, 122880, 131072
PSTR = 1040
sMK = 44
sTILE = 30
L_U = 98304
sJ6, sQ6 = 18, 19
def wout_preload(A, t, rounds=((0, 8), (8, 16), (16, 22)), sq=None):
    I = A.I
    sq = sQ6 if sq is None else sq
    I("s_load_dwordx2 s[40:41], s[0:1], 88"); I(f"s_mov_b32 s42, {688*1024}"); I("s_mov_b32 s43, 0x20000")
    I(f"v_lshrrev_b32 v{t}, 6, v{wL16}"); I(f"v_lshlrev_b32 v{t}, 10, v{t}")
    I(f"v_and_b32 v{t+1}, 48, v{wL16}"); I(f"v_add_u32 v{t}, v{t}, v{t+1}")
    I(f"s_lshl_b32 s24, s{sq}, 8"); I(f"s_lshl_b32 s25, s{sWV}, 6"); I("s_add_u32 s25, s25, s24"); I(f"s_add_u32 s25, s25, {rounds[0][0]*32768}")
    I(f"s_mul_i32 s24, s{sWV}, 24576")
    I(f"v_add_u32 v{t+1}, s24, v{wL16}")
    I("s_waitcnt lgkmcnt(0)")
    kss = [k for lo, hi in rounds for k in range(lo, hi)]
    D = 12
    def dma(n):
        for i in range(2):
            I(f"s_add_u32 m0, s24, {(n % D)*2048 + i*1024}")
            I("s_nop 0")
            I(f"buffer_load_dwordx4 v{t}, s[40:43], s25 offen lds")
            I("s_add_u32 s25, s25, 16384")
    for n in range(min(D - 1, len(kss))): dma(n)
    for n, ks in enumerate(kss):
        I(f"s_waitcnt vmcnt({2*(min(n + D - 1, len(kss)) - n - 1)}) lgkmcnt(0)")
        for par in range(2):
            for u in range(2):
                I(f"ds_read_b64_tr_b16 {ar((ks*2 + par)*4 + 2*u, 2)}, v{t+1} offset:{(n % D)*2048 + u*1024 + par*8}")
        if n + D - 1 < len(kss): dma(n + D - 1)
    I("s_waitcnt lgkmcnt(0)")

def helper_ids(A, sj, sq):
    I = A.I
    I(f"s_lshl_b32 s24, s{sG}, 5"); I(f"s_add_u32 s24, s24, s{sH}")
    I(f"s_mul_i32 s{sj}, s24, 171"); I(f"s_lshr_b32 s{sj}, s{sj}, 9"); I(f"s_mul_i32 s25, s{sj}, 3"); I(f"s_sub_u32 s{sq}, s24, s25"); I(f"s_add_u32 s{sq}, s{sq}, 1")
sPRE = 38

def h_phase2(A, opt):
    I = A.I
    vD, vTt, vXA, vHA, vTm = 8, 10, 12, 16, 24
    vKW, vTR2, vPW, vPR, vZ = 25, 26, 27, 28, 30
    WIN = 192
    if TRACE[0]: I("v_mov_b32 v7, v112")
    if opt.get("bg", 1):
        srd(A, 40, 4 << 20)
        w1k_dma(A, 18, 96, 32, 0)
        for i in range(128): I(f"v_accvgpr_write_b32 a{i}, v{128+i}")
        for p in range(4): I(f"v_add_u32 v{44+p}, 0x10000, v{108+p}")
        for ks in range(3):
            if ks == 2:
                for p in range(4): I(f"v_add_u32 v{44+p}, 0x20000, v{108+p}")
            for t8 in range(8):
                for u in range(2): I(w1k_rd(44, t8, ks & 1, u, ar(128 + (t8*4 + ks)*4 + 2*u, 2)))
        I("s_waitcnt lgkmcnt(0)")
        I("s_barrier")
        WIB = 65536
    else:
        w256_addr(A, vD, vTt)
        srd(A, 16, 4 << 20)
        t3 = opt.get('thr3', 0)
        w256_dma(A, vD, 0, t3); w256_dma(A, vD, 1, t3)
        I(f"s_lshl_b32 s28, s{sH}, 17")
        w1k_addr(A, 40, 44, "s28")
        for ci in range(4):
            I(f"s_waitcnt vmcnt({16 if ci < 3 else 0})")
            I("s_barrier")
            if ci < 2: w256_read(A, vTt, ci, 0)
            else:
                for t8 in range(8):
                    for ksl in range(2):
                        for u in range(2): I(w1k_rd(44, t8, ksl, u, ar(128 + (t8*4 + 2*(ci-2) + ksl)*4 + 2*u, 2)))
                I("s_waitcnt lgkmcnt(0)")
                for p in range(4): I(f"v_xor_b32 v{44+p}, 0x10000, v{44+p}")
            I("s_barrier")
            if ci == 0: srd(A, 40, 4 << 20)
            if ci < 2: w1k_dma(A, 40, 64*ci, 64, 65536*ci, t3)
        WIB = 0
    if TRACE[0]: I("v_mov_b32 v188, v7")
    srd(A, 64, 512*1376*2)
    I(f"s_lshl_b32 s{sTILE}, s{sWV}, 5"); I(f"s_add_u32 s{sTILE}, s{sTILE}, s{sH}")
    I(f"s_cmp_ge_u32 s{sTILE}, 86"); I("s_cbranch_scc1 H2_nowin")
    I(f"v_lshrrev_b32 v40, 1, v{wLN}"); I("v_mul_u32_u24 v40, 2752, v40")
    I(f"v_and_b32 v41, 1, v{wLN}"); I("v_lshl_add_u32 v40, v41, 4, v40")
    I(f"s_lshl_b32 s25, s{sTILE}, 5"); I(f"s_lshl_b32 s24, s{sWV}, 14"); I(f"s_add_u32 s24, s24, {WIB}")
    for i in range(16):
        I(f"s_add_u32 m0, s24, {i*1024}")
        I("s_nop 0")
        I(f"buffer_load_dwordx4 v40, {SW}, s25 offen lds")
        I(f"s_add_u32 s25, s25, {32*2752}")
    I(f"v_lshl_add_u32 v41, v{wG}, 3, v{wR}"); I("v_lshlrev_b32 v41, 5, v41"); I(f"v_lshl_add_u32 v41, v{wCP}, 3, v41"); I("v_add_u32 v41, s24, v41")
    I("s_waitcnt vmcnt(0)")
    for ks in range(16):
        for u in range(2): I(f"ds_read_b64_tr_b16 {vr(WIN + 4*ks + 2*u, 2)}, v41 offset:{ks*1024 + u*128}")
    I("s_waitcnt lgkmcnt(0)")
    A.label("H2_nowin")
    if opt.get("bg", 1):
        I("s_waitcnt vmcnt(0)")
        I("s_barrier")
        for t8 in range(8):
            for u in range(2): I(w1k_rd(108, t8, 0, u, ar(128 + (t8*4 + 3)*4 + 2*u, 2)))
        I("s_waitcnt lgkmcnt(0)")
    srd(A, 0, 2 << 20)
    for _ in range(opt.get("hdelay", 0)): I("s_sleep 32")
    group_mode(A, 40, 41)
    rows_addr(A, None, vXA)
    I(f"v_lshl_add_u32 v40, v{wR}, 3, v{wCP}")
    I(f"s_cmp_lt_u32 s{sTILE}, 43"); I("s_cselect_b64 vcc, -1, 0"); I("s_cselect_b32 s24, 16, 4")
    I(f"v_cndmask_b32 v40, v40, v{wC}, vcc")
    for t in range(2):
        if t: I("v_add_u32 v40, s24, v40")
        I("v_and_b32 v41, 15, v40"); I(f"v_xor_b32 v41, v41, v{wG}"); I("v_lshlrev_b32 v41, 4, v41")
        I("v_lshl_add_u32 v41, v40, 10, v41"); I(f"v_add_u32 v{vHA+4*t}, {L_HB}, v41")
        for k in range(1, 4): I(f"v_xor_b32 v{vHA+4*t+k}, {k<<6}, v{vHA+4*t}")
    I(f"v_lshlrev_b32 v{vKW}, 5, v{wC}"); I(f"v_lshl_add_u32 v{vKW}, v{wG}, 3, v{vKW}")
    I(f"s_lshl_b32 s24, s{sWV}, 10"); I(f"s_add_u32 s24, s24, {L_KM}"); I(f"v_add_u32 v{vKW}, s24, v{vKW}")
    I(f"v_lshlrev_b32 v{vTR2}, 3, v{wLN}"); I(f"v_add_u32 v{vTR2}, {L_KM}, v{vTR2}")
    QS = 272
    I(f"s_mul_i32 s24, s{sWV}, {32*QS}"); I(f"s_add_u32 s24, s24, {L_PT}")
    I(f"v_mul_u32_u24 v{vPW}, {QS}, v{wC}"); I(f"v_lshl_add_u32 v{vPW}, v{wG}, 4, v{vPW}"); I(f"v_add_u32 v{vPW}, s24, v{vPW}")
    I(f"v_mul_u32_u24 v{vPR}, {QS}, v{wG}"); I(f"v_lshl_add_u32 v{vPR}, v{wC}, 4, v{vPR}"); I(f"v_add_u32 v{vPR}, s24, v{vPR}")
    vPG, vRL, vRO, vKVR, vSEL4 = 29, 38, 39, 9, 184
    I(f"s_lshl_b32 s24, s{sWV}, 8")
    I(f"v_lshlrev_b32 v40, 4, v{wC}"); I("v_add_u32 v40, s24, v40")
    I(f"v_lshl_add_u32 v{vPG}, v{wG}, 15, v40")
    I(f"v_lshl_add_u32 v{vRL}, v{wG}, 10, v40")
    I(f"v_lshl_add_u32 v{vRO}, v{wG}, 2, v40")
    I(f"v_add_u32 v{vKVR}, {L_KV2}, v{wL16}")
    I(f"s_lshr_b32 s24, s{sWV}, 1"); I("s_lshl_b32 s24, s24, 12"); I(f"v_add_u32 v8, s24, v{vKVR}")
    I(f"v_and_b32 v40, 1, v{wC}"); I("v_lshlrev_b32 v40, 4, v40"); I("v_mov_b32 v41, 0x3f80"); I("v_lshlrev_b32 v41, v40, v41")
    for i in range(4):
        I(f"v_cmp_eq_u32 vcc, {i}, v{wR}"); I(f"v_cndmask_b32 v{vSEL4+i}, 0, v41, vcc")
    vQW, vQR, vOWr, vL64 = 34, 35, 36, 37
    I(f"v_add_u32 v{vL64}, 65536, v{wL16}")
    I(f"s_lshl_b32 s24, s{sWV}, 10"); I(f"v_add_u32 v{vQW}, s24, v{vL64}")
    I(f"s_and_b32 s24, s{sWV}, 1"); I("s_lshl_b32 s24, s24, 12"); I(f"v_add_u32 v{vQR}, s24, v{vL64}")
    I(f"s_lshr_b32 s25, s{sWV}, 1"); I("s_lshl_b32 s25, s25, 11"); I(f"v_add_u32 v{vOWr}, s25, v{vQR}")
    I(f"s_and_b32 s24, s{sWV}, 1"); I("s_lshl_b32 s24, s24, 4"); I(f"v_add_u32 v40, s24, v{wC}")
    I(f"v_lshlrev_b32 v41, 2, v{wG}"); I("v_sub_u32 v40, v40, v41")
    for j in range(8): I(f"v_cmp_le_i32 s[{sMK+2*j}:{sMK+2*j+1}], {16*(j>>2) + (j&3)}, v40")
    for i in range(4): I(f"v_mov_b32 v{vZ+i}, 0")
    I(f"s_sub_u32 s{sSEG}, s{sG}, 1")
    sGR = 33
    I(f"s_mov_b32 s{sPRE}, 0"); I("s_mov_b32 s32, 0")
    I(f"s_lshl_b32 s{sGR}, s{sG}, 5"); I(f"s_add_u32 s{sGR}, s{sGR}, s{sH}")
    I("s_barrier")
    XF = 40; KF = 72; VF = 104; QF = 120; SS = 136; KMF = 148; T0 = 164; XR = 10
    TS(A, 188, 5)
    if TRACE[0]: I("s_mov_b32 s60, 0")
    def TH(k):
        if not TRACE[0]: return
        I(f"s_add_u32 s61, s60, {k & 3}"); TS(A, 189 + (k >> 2), "s61")
    SG = (7, 11)
    I(f"s_lshl_b32 s{sA0}, s{sSEG}, 15"); I(f"s_add_u32 s{sA0}, s{sA0}, {WS_XN}")
    rows_dma(A, vTm, sA0, L_XB)
    I(f"s_lshl_b32 s27, s{sSEG}, 19"); I(f"s_lshl_b32 s25, s{sH}, 14"); I("s_add_u32 s27, s27, s25"); I(f"s_lshl_b32 s25, s{sWV}, 12"); I("s_add_u32 s27, s27, s25"); I(f"s_add_u32 s27, s27, {WS_KV}")
    I(f"s_add_u32 m0, s25, {L_KV2}")
    I("s_nop 0")
    for i in range(4): I(f"buffer_load_dwordx4 v{wL16}, {WSS}, s27 offen offset:{i*1024} sc1 lds")
    I(f"s_lshl_b32 s24, s{sGR}, 10"); I(f"s_add_u32 s24, s24, {WS_HN}")
    I(f"buffer_load_dword v183, v{vRO}, {WSS}, s24 offen sc1")
    I(f"s_lshl_b32 s24, s{sGR}, 15"); I(f"s_add_u32 s24, s24, {WS_PART}")
    I(f"buffer_load_dword v183, v{vRO}, {WSS}, s24 offen sc1")
    I(f"s_lshl_b32 s24, s{sG}, 7"); I(f"v_lshlrev_b32 v{T0+1}, 11, v{wG}"); I(f"s_add_u32 s24, s24, {F_PART}")
    I(f"buffer_load_dword v183, v{T0+1}, {WSS}, s24 offen sc1")
    I("s_waitcnt vmcnt(3)")
    AC = KMF
    regs = [SS + 4 + j for j in range(8)] + [SS, SS + 1]
    tm = T0 + 8
    VM = T0 + 4
    def rb2(a, b, t):
        I(f"v_cvt_pk_bf16_f32 v{t}, v{a}, v{b}"); I(f"v_lshlrev_b32 v{a}, 16, v{t}"); I(f"v_and_b32 v{b}, 0xffff0000, v{t}")
    def scal(i):
        a, b = regs[i], regs[i+1]
        rb2(a, b, tm + 2)
        I(f"v_mul_f32 v{a}, {hex(f2u(128 ** -0.5))}, v{a}"); I(f"v_mul_f32 v{b}, {hex(f2u(128 ** -0.5))}, v{b}")
        rb2(a, b, tm + 2)
    def apre1(mid):
        def rd(ks): return [f"ds_read_b128 {vr(XF + 8*(ks&3) + 4*t,4)}, v{vXA + (ks&3)} offset:{L_XB + (ks>>2)*256 + t*16384}" for t in range(2)]
        for ks in range(3):
            for x in rd(ks): I(x)
        for ks in range(16):
            if mid and ks == opt.get("midks", 6): mid()
            I(f"s_waitcnt lgkmcnt({4 if ks < 14 else (2 if ks == 14 else 0)})")
            ms = []
            for eps in range(2):
                for t in range(2):
                    dk = AC + 8*t + 4*eps
                    ms.append(f"v_mfma_f32_16x16x32_bf16 {vr(dk,4)}, {ar((eps*16+ks)*4,4)}, {vr(XF + 8*(ks&3) + 4*t, 4)}, {'0' if ks == 0 else vr(dk,4)}")
            slots(A, ms, [[x] for x in rd(ks + 3)] if ks + 3 < 16 else [])
        for t in range(2):
            for i in range(4): I(cv(XF + 4*t + i, AC + 8*t + 2*i))
            I(f"ds_write_b128 v{vQW}, {vr(XF+4*t,4)} offset:{L_QX - 65536 + t*4096}")
        I("s_waitcnt lgkmcnt(0)")
    def apre2():
        for sg in range(4): I(f"ds_read_b128 {vr(QF+4*sg,4)}, v{vQR} offset:{L_QX - 65536 + sg*1024}")
        for i in range(8): I(f"ds_read_b128 {vr(KF+4*i,4)}, v{vKVR} offset:{i*1024}")
        I(f"v_mov_b32 v{tm+1}, {hex(f2u(-1e9))}")
        for tk in range(2):
            I(f"s_waitcnt lgkmcnt({4 if tk == 0 else 4})")
            slots(A, [mf32(SS + 4 + 4*tk, KF + 16*tk + 4*sg, QF + 4*sg, "0" if sg == 0 else vr(SS + 4 + 4*tk, 4)) for sg in range(4)],
                  [[f"ds_read_b128 {vr(VF+4*i,4)}, v8 offset:{8192 + i*1024}"] for i in range(4)] if tk == 0 else [])
        for i in range(0, 8, 2): scal(i)
        for j in range(8): I(f"v_cndmask_b32 v{regs[j]}, v{tm+1}, v{regs[j]}, s[{sMK+2*j}:{sMK+2*j+1}]")
        I(f"v_max3_f32 v{tm}, v{regs[0]}, v{regs[1]}, v{regs[2]}")
        for i in range(3, 7, 2): I(f"v_max3_f32 v{tm}, v{tm}, v{regs[i]}, v{regs[i+1]}")
        I(f"v_max_f32 v{tm}, v{tm}, v{regs[7]}")
        I("s_waitcnt lgkmcnt(0)")
    def km_addr(off):
        I(f"s_mul_i32 s26, s{sH}, 65"); I(f"s_add_u32 s26, s26, s{sSEG}"); I("s_lshl_b32 s26, s26, 12"); I(f"s_add_u32 s26, s26, {WS_KM + off*4096}")
        I(f"s_lshl_b32 s27, s{sWV}, 10"); I("s_add_u32 s27, s27, s26")
        I(f"s_lshr_b32 s24, s{sWV}, 1"); I("s_lshl_b32 s24, s24, 11"); I("s_add_u32 s26, s26, s24")
    def km_load():
        I(f"buffer_load_dwordx2 {vr(T0,2)}, v{wL16}, {WSS}, s27 offen sc1")
        I(f"buffer_load_dwordx2 {vr(VM,2)}, v{wL16}, {WSS}, s26 offen offset:8 sc1")
        I(f"buffer_load_dwordx2 {vr(VM+2,2)}, v{wL16}, {WSS}, s26 offen offset:1032 sc1")
    I("s_barrier")
    km_addr(0); km_load()
    apre1(None)
    I("s_barrier")
    apre2()
    I("s_waitcnt vmcnt(0)")
    I(f"s_lshl_b32 s29, s{sG}, 7")
    A.label("H2_loop")
    TH(0)
    I(f"s_lshl_b32 s{sA1}, s{sSEG}, 5"); I(f"s_add_u32 s{sA1}, s{sA1}, s{sH}")
    I("s_cmp_eq_u32 s32, 1"); I("s_cbranch_scc1 H2_kvd")
    I(f"v_lshlrev_b32 v{SG[1]}, 2, v{wLN}"); I(f"s_lshl_b32 s28, s{sH}, 7"); I(f"s_add_u32 s28, s28, {F_KV}"); I(f"s_add_u32 s25, s{sSEG}, {NG}")
    A.label("H2_kvw")
    I(f"buffer_load_dword v{SG[0]}, v{SG[1]}, {WSS}, s28 offen sc1")
    I(f"s_add_u32 s{sSPIN}, s{sSPIN}, 1"); I(f"s_cmp_gt_u32 s{sSPIN}, {SPIN_MAX}")
    I("s_waitcnt vmcnt(0)")
    I("s_cbranch_scc1 H2_kvd")
    I(f"v_cmp_gt_u32 vcc, 64, v{SG[0]}"); I("s_nop 0"); I(f"s_and_b32 s24, vcc_lo, {(1 << NG1) - 1}"); I("s_cselect_b32 s32, 0, 1")
    I(f"v_cmp_ge_u32 vcc, s25, v{SG[0]}"); I("s_nop 0"); I(f"s_and_b32 s24, vcc_lo, {(1 << NG1) - 1}")
    I("s_cbranch_scc1 H2_kvw")
    A.label("H2_kvd")
    km_addr(0)
    TH(1)
    I("s_branch H2_kme")
    A.label("H2_kmr")
    I(f"s_cmp_ge_u32 s{sSEG}, {opt.get('ktight', 61)}"); I("s_cbranch_scc1 H2_kmp")
    I(f"v_mov_b32 v{T0+3}, 0")
    A.label("H2_kmc")
    I(f"s_sleep {opt.get('ksleep', 8)}")
    I(f"buffer_load_dword v{T0+2}, v{T0+3}, {WSS}, s27 offen sc1")
    I(f"s_add_u32 s{sSPIN}, s{sSPIN}, 1")
    I(f"s_cmp_gt_u32 s{sSPIN}, {SPIN_MAX}")
    I("s_waitcnt vmcnt(0)")
    I("s_cbranch_scc1 H2_kmp")
    I(f"v_cmp_eq_u32 vcc, -1, v{T0+2}")
    I("s_cbranch_vccnz H2_kmc")
    A.label("H2_kmp")
    km_load()
    I(f"s_add_u32 s{sSPIN}, s{sSPIN}, 1")
    I(f"s_cmp_gt_u32 s{sSPIN}, {SPIN_MAX}")
    I("s_waitcnt vmcnt(0)")
    I("s_cbranch_scc1 H2_kmd")
    A.label("H2_kme")
    I(f"v_max3_u32 v{T0+2}, v{T0}, v{T0+1}, v{VM}"); I(f"v_max3_u32 v{T0+2}, v{T0+2}, v{VM+1}, v{VM+2}"); I(f"v_max_u32 v{T0+2}, v{T0+2}, v{VM+3}")
    I(f"v_cmp_eq_u32 vcc, -1, v{T0+2}")
    I("s_cbranch_vccnz H2_kmr")
    A.label("H2_kmd")
    TH(2)
    I(f"ds_write2st64_b32 v{vKW}, v{T0}, v{T0+1} offset0:0 offset1:2")
    I(f"s_lshl_b32 s24, s{sA1}, 10")
    I(f"buffer_load_dword v{XR}, v{vRO}, {SW}, s24 offen")
    I("s_waitcnt lgkmcnt(0)")
    I("s_barrier")
    for sg in range(4):
        for rho in range(2): I(f"ds_read_b64_tr_b16 {vr(KMF+4*sg+2*rho,2)}, v{vTR2} offset:{sg*1024 + rho*512}")
    I(f"s_add_u32 s26, s{sSEG}, {NG}")
    I(f"s_lshl_b32 s{sA0}, s26, 15"); I(f"s_add_u32 s{sA0}, s{sA0}, {WS_XN}")
    I("s_lshl_b32 s27, s26, 19"); I(f"s_lshl_b32 s25, s{sH}, 14"); I("s_add_u32 s27, s27, s25"); I(f"s_lshl_b32 s25, s{sWV}, 12"); I("s_add_u32 s27, s27, s25"); I(f"s_add_u32 s27, s27, {WS_KV}")
    I(f"s_add_u32 m0, s25, {L_KV2}")
    I("s_cmp_ge_u32 s26, 64"); I(f"s_cselect_b32 s{sA0}, {OOB}, s{sA0}"); I(f"s_cselect_b32 s27, {OOB}, s27")
    kvd = [f"buffer_load_dwordx4 v{wL16}, {WSS}, s27 offen offset:{i*1024} sc1 lds" for i in range(4)]
    for sg in range(4):
        I(f"s_waitcnt lgkmcnt({6-2*sg})")
        I(mf32(SS, KMF + 4*sg, QF + 4*sg, "0" if sg == 0 else vr(SS, 4)))
    I(kvd[0])
    scal(8)
    I(f"v_max3_f32 v{tm}, v{tm}, v{regs[8]}, v{regs[9]}")
    def xred(r, op):
        for sw in ("16", "32"):
            I(f"v_mov_b32 v{tm+2}, v{r}"); I(f"v_permlane{sw}_swap_b32 v{r}, v{tm+2}"); I(f"v_{op}_f32 v{r}, v{r}, v{tm+2}")
    xred(tm, "max")
    I(f"v_mov_b32 v{tm+2}, {hex(f2u(1.4426950408889634))}")
    prs = [SS + 4, SS + 6, SS + 8, SS + 10, SS]
    for r in prs: I(f"v_pk_add_f32 {vr(r,2)}, {vr(r,2)}, {vr(tm,2)} op_sel_hi:[1,0] neg_lo:[0,1] neg_hi:[0,1]")
    for r in prs: I(f"v_pk_mul_f32 {vr(r,2)}, {vr(r,2)}, {vr(tm+2,2)} op_sel_hi:[1,0]")
    for r in regs: I(f"v_exp_f32 v{r}, v{r}")
    I(f"v_pk_add_f32 {vr(tm,2)}, {vr(prs[0],2)}, {vr(prs[1],2)}")
    for r in prs[2:]: I(f"v_pk_add_f32 {vr(tm,2)}, {vr(tm,2)}, {vr(r,2)}")
    I(f"v_add_f32 v{tm}, v{tm}, v{tm+1}")
    xred(tm, "add")
    I(f"v_rcp_f32 v{tm}, v{tm}")
    for r in prs: I(f"v_pk_mul_f32 {vr(r,2)}, {vr(r,2)}, {vr(tm,2)} op_sel_hi:[1,0]")
    for i in range(4): I(cv(SS + 4 + i, SS + 4 + 2*i))
    I(cv(vZ, SS)); I(cv(vZ + 3, SS))
    OA = XF
    slots(A, [mf32(OA + 4*e, VF + 4*e, SS + 4, "0") for e in range(4)], [[kvd[1]]])
    slots(A, [mf16(OA + 4*e, VM + 2*(e>>1), vZ + 2*(e&1), vr(OA + 4*e, 4)) for e in range(4)], [[], [], [], [kvd[2]]])
    for i in range(2):
        for j in range(4): I(cv(QF + 4*i + j, OA + 8*i + 2*j))
        I(f"ds_write_b128 v{vOWr}, {vr(QF+4*i,4)} offset:{L_OX - 65536 + i*1024}")
    I(f"s_lshl_b32 s24, s{sG}, 20"); I(f"s_lshl_b32 s25, s{sH}, 10"); I("s_add_u32 s24, s24, s25"); I(f"s_add_u32 s24, s24, {WS_PART}")
    I("s_waitcnt lgkmcnt(0)")
    I("s_barrier")
    OF = XF
    for i in range(8): I(f"ds_read_b128 {vr(OF+4*i,4)}, v{vL64} offset:{L_OX - 65536 + i*1024}")
    I(kvd[3])
    rows_dma_prep(A, sA0, L_XB)
    items = rows_dma_items(vTm)
    PA = KF
    PB_ = SS
    def wo(t): return [f"v_mfma_f32_16x16x32_bf16 {vr(PA + 32*t + 4*t8,4)}, {ar(128 + (t8*4 + ks)*4,4)}, {vr(OF + 16*t + 4*ks,4)}, {'0' if ks == 0 else vr(PA + 32*t + 4*t8,4)}"
                       for t8 in range(8) for ks in range(4)]
    def pkw(t, p):
        d = PA + 32*t + 8*p
        return [cv(d + i, d + 2*i) for i in range(4)] + [f"ds_write_b128 v{vPW}, {vr(d,4)} offset:{t*16*QS + p*64}"]
    def rdb(t): return [f"ds_read_b128 {vr(PB_+4*i,4)}, v{vPR} offset:{(t*16 + 4*i)*QS}" for i in range(4)]
    def body(f):
        def st(i): return [f"buffer_store_dwordx4 {vr(PB_+4*i,4)}, v{vPG}, {WSS}, s24 offen {f}", "s_add_u32 s24, s24, 131072"]
        fl = [[] for _ in range(64)]
        for t in range(2):
            for p in range(4):
                q = pkw(t, p); at = 32*t + 8*p + 11
                if at + 2 < 64:
                    fl[at] += q[:2]; fl[at+1] += q[2:4]; fl[at+2] += q[4:]
        fl[40] += ["s_waitcnt lgkmcnt(0)"] + rdb(0)[:2]; fl[41] += rdb(0)[2:]
        fl[47] += ["s_waitcnt lgkmcnt(1)"] + st(0); fl[51] = st(1) + fl[51]; fl[55] += st(2); fl[59] = st(3) + fl[59]
        I("s_waitcnt lgkmcnt(4)")
        ms = wo(0) + wo(1)
        fl[30] += ["s_waitcnt lgkmcnt(3)"]
        for i, at in enumerate([1, 5, 9, 15, 17+5, 25, 31, 33+5]):
            fl[at] += items[i][0]; fl[at+1] = items[i][1] + fl[at+1]
        slots(A, ms, fl)
        for x in pkw(1, 3): I(x)
        I("s_waitcnt lgkmcnt(0)")
        for x in rdb(1): I(x)
        for i in range(4):
            I(f"s_waitcnt lgkmcnt({3-i})")
            for x in st(i): I(x)
    dual(A, body)
    TH(3)
    I(f"s_add_u32 s28, s29, {F_PART}")
    def psig():
        I("s_waitcnt vmcnt(0)"); I("s_barrier"); gsignal(A, 28, *SG)
    I(f"s_cmp_lt_u32 s{sSEG}, {64 - NG}"); I("s_cbranch_scc1 H2_pre1")
    psig()
    I("s_branch H2_pre1d")
    A.label("H2_pre1")
    I("s_waitcnt vmcnt(8)")
    I("s_barrier")
    apre1(psig)
    A.label("H2_pre1d")
    TH(4)
    I(f"s_lshl_b32 s26, s{sGR}, 15"); I(f"s_add_u32 s26, s26, {WS_PART}")
    gwait(A, 28, *SG)
    TH(5)
    for i in range(8):
        I(f"buffer_load_dwordx4 {vr(XF+4*i,4)}, v{vRL}, {WSS}, s26 offen sc1")
        I("s_add_u32 s26, s26, 4096")
    RS = KF; RT = KF + 4
    unpack(A, XR, RT, 1)
    for i in range(8):
        I(f"s_waitcnt vmcnt({7-i})")
        I(mf32(RS, vSEL4, XF + 4*i, "0" if i == 0 else vr(RS, 4)))
    I(cv(RS + 2, RS)); unpack(A, RS + 2, RS, 1)
    I(f"v_add_f32 v{RS}, v{RS}, v{RT}"); I(f"v_add_f32 v{RS+1}, v{RS+1}, v{RT+1}")
    I(cv(XR, RS)); unpack(A, XR, RS, 1)
    I(f"v_add_f32 v{RT}, v{RS}, v{RS+1}")
    I(f"v_mul_f32 v{RT+1}, v{RS}, v{RS}"); I(f"v_fmac_f32 v{RT+1}, v{RS+1}, v{RS+1}")
    allreduce(A, [RT, RT + 1], RT + 2)
    I(f"s_lshl_b32 s24, s{sWV}, 3"); I(f"s_add_u32 s24, s24, {L_RED}"); I(f"v_mov_b32 v{RT+2}, s24"); I(f"v_mov_b32 v{RT+3}, {L_RED}")
    I(f"ds_write_b64 v{RT+2}, {vr(RT,2)}")
    I(f"s_lshl_b32 s24, s{sGR}, 10"); I(f"s_add_u32 s26, s24, {WS_HN}")
    I("s_waitcnt lgkmcnt(0)")
    I("s_barrier")
    I(f"ds_read_b128 {vr(RT+4,4)}, v{RT+3}"); I(f"ds_read_b128 {vr(RT+8,4)}, v{RT+3} offset:16")
    I("s_waitcnt lgkmcnt(0)")
    I(f"v_pk_add_f32 {vr(RT+4,2)}, {vr(RT+4,2)}, {vr(RT+6,2)}"); I(f"v_pk_add_f32 {vr(RT+8,2)}, {vr(RT+8,2)}, {vr(RT+10,2)}")
    I(f"v_pk_add_f32 {vr(RT,2)}, {vr(RT+4,2)}, {vr(RT+8,2)}")
    I(f"v_mul_f32 v{RT}, {hex(f2u(1/512))}, v{RT}"); I(f"v_mul_f32 v{RT+1}, {hex(f2u(1/512))}, v{RT+1}")
    I(f"v_fma_f32 v{RT+1}, -v{RT}, v{RT}, v{RT+1}"); I(f"v_max_f32 v{RT+1}, 0, v{RT+1}")
    ln_finish(A, RT, RT + 1)
    I(f"v_sub_f32 v{RS}, v{RS}, v{RT}"); I(f"v_sub_f32 v{RS+1}, v{RS+1}, v{RT}")
    I(cv(RS + 2, RS)); unpack(A, RS + 2, RS, 1)
    I(f"v_mul_f32 v{RS}, v{RS}, v{RT+1}"); I(f"v_mul_f32 v{RS+1}, v{RS+1}, v{RT+1}")
    I(cv(RS + 2, RS))
    dual(A, lambda f: I(f"buffer_store_dword v{RS+2}, v{vRO}, {WSS}, s26 offen {f}"))
    I("s_waitcnt vmcnt(0)")
    I("s_barrier")
    I(f"s_add_u32 s28, s29, {F_HN}")
    gsignal(A, 28, *SG)
    TH(6)
    I(f"s_cmp_ge_u32 s{sSEG}, {64 - NG}"); I("s_cbranch_scc1 H2_pre2d")
    apre2()
    A.label("H2_pre2d")
    gwait(A, 28, *SG)
    TH(7)
    I(f"s_cmp_ge_u32 s{sSEG}, {NG}"); I("s_cbranch_scc1 H2_sent")
    wait_ge(A, DBG, D_P2, 64, SG[0], SG[1], 24, sleep=4, barrier=False, allwaves=True)
    A.label("H2_sent")
    I(f"s_lshl_b32 s{sA0}, s{sG}, 15"); I(f"s_add_u32 s{sA0}, s{sA0}, {WS_HN}")
    rows_dma(A, vTm, sA0, L_HB)
    km_addr(NG); km_load()
    I(f"s_lshl_b32 s25, s{sA1}, 10"); I(f"s_add_u32 s25, s25, {WS_H}")
    I(f"buffer_store_dword v{XR}, v{vRO}, {WSS}, s25 offen sc1")
    I("s_waitcnt vmcnt(4)")
    I("s_barrier")
    I(f"s_cmp_lg_u32 s{sH}, 31"); I("s_cbranch_scc1 H2_nolead"); I(f"s_cmp_lt_u32 s{sSEG}, {NG}"); I("s_cbranch_scc1 H2_nolead")
    I(f"s_lshl_b32 s28, s{sSEG}, 7"); I(f"s_add_u32 s28, s28, {F_Z - NG*128}")
    signal_store(A, "s28", 1, *SG)
    A.label("H2_nolead")
    TH(8)
    I(f"s_cmp_ge_u32 s{sTILE}, 86"); I("s_cbranch_scc1 H2_skipz")
    HF = XF
    for ks in range(16):
        for t in range(2): I(f"ds_read_b128 {vr(HF + 8*(ks&7) + 4*t,4)}, v{vHA + 4*t + (ks&3)} offset:{(ks>>2)*256}") if ks < 4 else None
    ZA = 148
    I(f"s_cmp_lt_u32 s{sTILE}, 43"); I("s_cbranch_scc1 H2_z1")
    for var in range(2):
        if var == 1: A.label("H2_z1")
        for ks in range(16):
            I(f"s_waitcnt lgkmcnt({6 if ks < 13 else 2*(15-ks)})")
            for t in range(2):
                a, b = (HF + 8*(ks&7) + 4*t, WIN + 4*ks) if var == 0 else (WIN + 4*ks, HF + 8*(ks&7) + 4*t)
                I(mf32(ZA + 4*t, a, b, "0" if ks == 0 else vr(ZA + 4*t, 4)))
                k2 = ks + 4
                if k2 < 16: I(f"ds_read_b128 {vr(HF + 8*(k2&7) + 4*t,4)}, v{vHA + 4*t + (k2&3)} offset:{(k2>>2)*256}")
        if var == 0: I("s_branch H2_zc")
    A.label("H2_zc")
    I("s_nop 7")
    tm = 176
    k1 = -2 * 0.7978845608028654 * 1.4426950408889634
    I(f"v_mov_b32 v{XF}, {hex(f2u(k1 * 0.044715))}"); I(f"v_mov_b32 v{XF+2}, {hex(f2u(k1))}")
    for i in range(0, 8, 2):
        I(f"v_cvt_pk_bf16_f32 v{tm}, v{ZA+i}, v{ZA+i+1}"); I(f"v_lshlrev_b32 v{ZA+i}, 16, v{tm}"); I(f"v_and_b32 v{ZA+i+1}, 0xffff0000, v{tm}")
    for i in range(0, 8, 2):
        I(f"v_pk_mul_f32 {vr(tm+i,2)}, {vr(ZA+i,2)}, {vr(ZA+i,2)}")
        I(f"v_pk_fma_f32 {vr(tm+i,2)}, {vr(tm+i,2)}, {vr(XF,2)}, {vr(XF+2,2)} op_sel_hi:[1,0,0]")
        I(f"v_pk_mul_f32 {vr(tm+i,2)}, {vr(tm+i,2)}, {vr(ZA+i,2)}")
    for i in range(8): I(f"v_exp_f32 v{tm+i}, v{tm+i}")
    for i in range(0, 8, 2): I(f"v_pk_add_f32 {vr(tm+i,2)}, {vr(tm+i,2)}, 1.0 op_sel_hi:[1,0]")
    for i in range(8): I(f"v_rcp_f32 v{tm+i}, v{tm+i}")
    for i in range(0, 8, 2): I(f"v_pk_mul_f32 {vr(ZA+i,2)}, {vr(ZA+i,2)}, {vr(tm+i,2)}")
    for i in range(4): I(cv(tm + i, ZA + 2*i))
    I(f"s_mul_i32 s24, s{sSEG}, 86"); I(f"s_add_u32 s24, s24, s{sTILE}"); I("s_lshl_b32 s24, s24, 10"); I(f"s_add_u32 s24, s24, {WS_Z}")
    I("s_waitcnt vmcnt(2)")
    I(f"s_cmp_eq_u32 s{sH}, 31"); I("s_cbranch_scc1 H2_kw"); I("s_waitcnt vmcnt(1)")
    A.label("H2_kw")
    I(f"s_cmp_eq_u32 s{sWV}, 0"); I("s_cbranch_scc1 H2_kw2"); I("s_waitcnt vmcnt(1)")
    A.label("H2_kw2")
    I(f"s_cmp_ge_u32 s{sSEG}, {NG}"); I("s_cbranch_scc1 H2_kw3"); I("s_waitcnt vmcnt(1)")
    A.label("H2_kw3")
    I(f"buffer_store_dwordx4 {vr(tm,4)}, v{wL16}, {WSS}, s24 offen sc1")
    I(f"s_cmp_lt_u32 s{sTILE}, 43"); I("s_cbranch_scc1 H2_nostat")
    ST = XF
    for i in range(4):
        I(f"v_lshlrev_b32 v{ST+4*i}, 16, v{tm+i}"); I(f"v_and_b32 v{ST+4*i+2}, 0xffff0000, v{tm+i}")
    for i in range(8): I(f"v_mul_f32 v{ST+2*i+1}, v{ST+2*i}, v{ST+2*i}")
    for r in range(16): I(f"v_add_f32_dpp v{ST+r}, v{ST+r}, v{ST+r} row_ror:8 row_mask:0xf bank_mask:0xf")
    for r in range(8): I(f"v_mov_b32_dpp v{ST+r}, v{ST+8+r} quad_perm:[0,1,2,3] row_mask:0xf bank_mask:0xc")
    for r in range(8): I(f"v_add_f32_dpp v{ST+r}, v{ST+r}, v{ST+r} row_half_mirror row_mask:0xf bank_mask:0xf")
    for r in range(4): I(f"v_mov_b32_dpp v{ST+r}, v{ST+4+r} quad_perm:[0,1,2,3] row_mask:0xf bank_mask:0xa")
    for r in range(4): I(f"v_add_f32_dpp v{ST+r}, v{ST+r}, v{ST+r} quad_perm:[1,0,3,2] row_mask:0xf bank_mask:0xf")
    for r in range(4): I(f"v_add_f32_dpp v{ST+r}, v{ST+r}, v{ST+r} quad_perm:[2,3,0,1] row_mask:0xf bank_mask:0xf")
    I(f"v_lshlrev_b32 v{ST+4}, 2, v{wLN}")
    I(f"v_mov_b32 v{ST+5}, {OOB}"); I(f"v_cmp_eq_u32 vcc, 0, v{wCP}"); I(f"v_cndmask_b32 v{ST+4}, v{ST+5}, v{ST+4}, vcc")
    I(f"s_lshl_b32 s24, s{sSEG}, 6"); I(f"s_add_u32 s24, s24, s{sTILE}"); I("s_lshl_b32 s24, s24, 8"); I(f"s_add_u32 s24, s24, {WS_ZS - 43*256}")
    I(f"buffer_store_dwordx4 {vr(ST,4)}, v{ST+4}, {WSS}, s24 offen sc1")
    I("s_branch H2_nostat")
    A.label("H2_skipz")
    I("s_waitcnt vmcnt(1)")
    A.label("H2_nostat")
    TH(9)
    if TRACE[0]: I("s_add_u32 s60, s60, 4")
    I(f"s_add_u32 s{sSEG}, s{sSEG}, {NG}")
    I(f"s_cmp_lt_u32 s{sSEG}, 64"); I("s_cbranch_scc1 H2_loop")
    I(f"s_sub_u32 s{sSEG}, s{sSEG}, {NG}")
    I("s_waitcnt vmcnt(0)")
    I("s_barrier")
    I(f"s_add_u32 s28, s29, {F_ZL}")
    gsignal(A, 28, *SG)
    I(f"s_cmp_lg_u32 s{sH}, 31"); I("s_cbranch_scc1 H2_nosig")
    gwait(A, 28, SG[0], SG[1], barrier=False)
    I(f"s_lshl_b32 s28, s{sSEG}, 7"); I(f"s_add_u32 s28, s28, {F_Z}")
    signal_store(A, "s28", 1, *SG)
    A.label("H2_nosig")
    TDUMP(A, [188, 189, 190, 191], 40, (4, 9, 3, 3))


def t6_mm(A, kss, first, YA, UF, vU, extra=()):
    I = A.I
    extra = list(extra)
    def rd(n): return [f"ds_read_b128 {vr(UF + 8*(n%3) + 4*t,4)}, v{vU} offset:{kss[n]*2048 + t*1024}" for t in range(2)]
    for n in range(2):
        for x in rd(n): I(x)
    for n, ks in enumerate(kss):
        I(f"s_waitcnt lgkmcnt({2 if n + 1 < len(kss) else 0})")
        ms = [f"v_mfma_f32_16x16x32_bf16 {vr(YA + 8*t + 4*par,4)}, {ar((ks*2+par)*4,4)}, {vr(UF + 8*(n%3) + 4*t,4)}, {'0' if (first and n == 0) else vr(YA + 8*t + 4*par,4)}"
              for t in range(2) for par in range(2)]
        fl = [[x] for x in rd(n + 2)] if n + 2 < len(kss) else [[], []]
        fl += [[extra.pop(0)] if extra else []]
        slots(A, ms, fl)

def t6_addr(A, vO):
    I = A.I
    I(f"v_lshlrev_b32 v{vO}, 10, v{wC}"); I(f"v_lshl_add_u32 v{vO}, v{wG}, 4, v{vO}")
    I(f"s_lshl_b32 s26, s{sJ6}, 15"); I(f"s_lshl_b32 s24, s{sQ6}, 8"); I("s_add_u32 s26, s26, s24"); I(f"s_lshl_b32 s24, s{sWV}, 6"); I("s_add_u32 s26, s26, s24")
    I("s_add_u32 s27, s26, 16384"); I(f"s_add_u32 s28, s26, {WS_H}"); I(f"s_add_u32 s29, s27, {WS_H}")
def t6_hload(HR, vO): return [f"buffer_load_dwordx4 {vr(HR+4*t,4)}, v{vO}, {WSS}, s{28+t} offen sc1" for t in range(2)]
OUTF = ['']
def t6_out(A, YA, HR, T, vO):
    I = A.I
    I("s_waitcnt vmcnt(0)")
    for t in range(2):
        d = YA + 8*t
        unpack(A, HR + 4*t, T, 4)
        for i in range(4): I(cv(T + 8 + i, d + 2*i))
        unpack(A, T + 8, d, 4)
        for j in range(4): I(f"v_pk_add_f32 {vr(d+2*j,2)}, {vr(d+2*j,2)}, {vr(T+2*j,2)}")
        for j in range(4): I(cv(d + j, d + 2*j))
        I(f"buffer_store_dwordx4 {vr(d,4)}, v{vO}, {SW}, s{26+t} offen {OUTF[0]}")

def helper_t6(A, opt):
    I = A.I
    I("v_mbcnt_lo_u32_b32 v0, -1, 0"); I("v_mbcnt_hi_u32_b32 v0, -1, v0")
    lanes(A)
    helper_ids(A, sJ6, sQ6)
    I("s_waitcnt vmcnt(0) lgkmcnt(0)")
    I("s_barrier")
    TS(A, 15, 47)
    OUTF[0] = opt.get("outf", "")
    if opt.get("wb"):
        I(f"s_cmp_lg_u32 s{sH}, 31"); I("s_cbranch_scc1 T6_nowb"); I(f"s_cmp_lg_u32 s{sWV}, 3"); I("s_cbranch_scc1 T6_nowb")
        I("buffer_wbl2 sc1")
        A.label("T6_nowb")
    I(f"s_cmp_eq_u32 s{sPRE}, 1"); I("s_cbranch_scc1 T6_rest")
    wout_preload(A, 8, ((0, 16),))
    A.label("T6_rest")
    wout_preload(A, 8, ((16, 22),))
    TS(A, 15, 48)
    vU, vW, vO, vX, YA, UF, HR, LB, T = 8, 9, 10, 11, 16, 32, 56, 64, 112
    srd(A, 96, 2 << 20)
    t6_addr(A, vO)
    I(f"v_add_u32 v{vU}, {L_U}, v{wL16}"); I(f"s_lshl_b32 s24, s{sWV}, 11"); I(f"v_add_u32 v{vW}, s24, v{vU}")
    I(f"s_mul_i32 s31, s{sJ6}, 49152"); I("s_add_u32 s31, s31, s24"); I(f"s_add_u32 s31, s31, {WS_U}")
    for i in range(1, 6): I(f"s_add_u32 s{31+i}, s31, {i*8192}")
    I(f"s_lshl_b32 s37, s{sJ6}, 7"); I(f"s_add_u32 s37, s37, {F_Z}")
    def lds(bt): return [f"buffer_load_dwordx4 {vr(LB + 24*bt + 8*i + 4*t,4)}, v{wL16}, {WSS}, s{31 + 3*bt + i} offen offset:{t*1024} sc1" for i in range(3) for t in range(2)]
    wait_ge(A, WSS, F_Z + opt.get("wake", 56)*128, 1, 12, 13, 24, sleep=32)
    I("v_mov_b32 v12, 0")
    TS(A, 15, 49)
    mode = opt.get("t6mode", "adapt")
    def canload(bt): return f"buffer_load_dword v13, v12, {WSS}, s{33 + 3*bt} offen offset:{opt.get('cano', 1024)} sc1"
    def canary(bt, tag):
        A.label(f"T6_c{tag}")
        I(canload(bt))
        if tag == "a": I(f"buffer_load_dword v14, v12, {WSS}, s37 offen sc1")
        I(f"s_add_u32 s{sSPIN}, s{sSPIN}, 1"); I(f"s_cmp_gt_u32 s{sSPIN}, {SPIN_MAX}")
        I("s_waitcnt vmcnt(0)")
        I(f"s_cbranch_scc1 T6_ce{tag}")
        if tag == "a":
            I("v_add_u32 v14, -1, v14"); I("v_max_u32 v13, v13, v14")
        I("v_cmp_eq_u32 vcc, -1, v13")
        I(f"s_cbranch_vccz T6_ce{tag}")
        if tag == "a": I(f"s_sleep {opt.get('csleep', 1)}")
        I(f"s_branch T6_c{tag}")
        A.label(f"T6_ce{tag}")
    def check(bt, keep):
        A.label(f"T6_w{bt}")
        I(f"s_add_u32 s{sSPIN}, s{sSPIN}, 1"); I(f"s_cmp_gt_u32 s{sSPIN}, {SPIN_MAX}")
        I(f"s_cbranch_scc1 T6_d{bt}")
        b = LB + 24*bt
        I(f"v_max3_u32 v{vX}, v{b}, v{b+1}, v{b+2}")
        for r in range(3, 23, 2): I(f"v_max3_u32 v{vX}, v{vX}, v{b+r}, v{b+r+1}")
        I(f"v_max_u32 v{vX}, v{vX}, v{b+23}")
        I(f"v_cmp_eq_u32 vcc, -1, v{vX}")
        I(f"s_cbranch_vccz T6_d{bt}")
        for x in lds(bt): I(x)
        I("s_waitcnt vmcnt(0)")
        I(f"s_branch T6_w{bt}")
        A.label(f"T6_d{bt}")
    def share(bt):
        b = LB + 24*bt
        for i in range(3):
            for t in range(2): I(f"ds_write_b128 v{vW}, {vr(b + 8*i + 4*t,4)} offset:{(3*bt + i)*8192 + t*1024}")
        I("s_waitcnt lgkmcnt(0)")
        I("s_barrier")
    if mode == "last":
        canary(1, "a"); TS(A, 15, 50)
        for x in lds(0) + lds(1): I(x)
        I("s_waitcnt vmcnt(6)")
        check(0, 6); TS(A, 15, 51); share(0); TS(A, 15, 52)
        t6_mm(A, list(range(12)), True, YA, UF, vU, t6_hload(HR, vO)); TS(A, 15, 53)
        I("s_waitcnt vmcnt(2)")
    else:
        canary(0, "a"); TS(A, 15, 50)
        for x in lds(0): I(x)
        I("s_waitcnt vmcnt(0)")
        I(canload(1))
        check(0, 0); TS(A, 15, 51); share(0); TS(A, 15, 52)
        I("s_waitcnt vmcnt(0)")
        I("v_cmp_eq_u32 vcc, -1, v13")
        I("s_cbranch_vccnz T6_late")
        t6_mm(A, list(range(12)), True, YA, UF, vU, lds(1) + t6_hload(HR, vO))
        I("s_branch T6_join")
        A.label("T6_late")
        t6_mm(A, list(range(12)), True, YA, UF, vU, t6_hload(HR, vO))
        canary(1, "b")
        for x in lds(1): I(x)
        A.label("T6_join")
        TS(A, 15, 53)
        I("s_waitcnt vmcnt(0)")
    check(1, 0); TS(A, 15, 55); share(1); TS(A, 15, 56)
    t6_mm(A, list(range(12, 22)), False, YA, UF, vU); TS(A, 15, 57)
    t6_out(A, YA, HR, T, vO)

def p_main(A, opt):
    I = A.I
    sJ = 18; sS = 36; sZ = 20; sSP = 21; sRD = 22; sISS = 32
    L_ST = 147456; L_ST2 = L_ST + 2048
    vO5, vSO, vWS, vSW, vSR, vS2W, vS2R, vFA, vFD = 7, 9, 12, 13, 14, 15, 16, 4, 5
    TRC = 17
    COR = 0
    ACC = 20; BUF = [116, 164]; SB = 212; MU = 224; RS = 232; WF = 240; TM = 248
    if TRACE[0]: I(f"v_mov_b32 v{TRC}, v112")
    I(f"s_sub_u32 s{sJ}, s{sG}, 6"); I(f"s_lshl_b32 s{sJ}, s{sJ}, 5"); I(f"s_add_u32 s{sJ}, s{sJ}, s{sH}")
    pt = opt.get('pthr', 0)
    I(f"s_mul_i32 s37, s{sJ}, 49152"); I(f"s_lshl_b32 s24, s{sWV}, 11"); I("s_add_u32 s37, s37, s24"); I(f"s_add_u32 s37, s37, {WS_U}")
    for _ in range(opt.get("pdelay", 0)): I("s_sleep 32")
    if opt.get("pexit") == 1: I("s_endpgm")
    if opt.get("pexit") in (6, 7):
        I(f"s_cmp_eq_u32 s{sG}, {opt['pexit']}"); I("s_cbranch_scc1 L_end")
    I(f"s_mov_b32 s{sQ6}, 0")
    wout_preload(A, TM)
    srd(A, 72, 8 << 20)
    I(f"s_lshl_b32 s{sSP}, s{sJ}, 17")
    I(f"s_lshl_b32 s24, s{sWV}, 15"); I(f"s_add_u32 s24, s24, s{sSP}")
    for i in range(32 if opt.get("wsp", 1) else 0):
        if pt: I(f"s_waitcnt vmcnt({pt - 1})")
        I(f"buffer_load_dwordx4 {vr(ACC + 4*(i&15),4)}, v{wL16}, {SW}, s24 offen offset:{(i&3)*1024}")
        if (i & 3) == 3: I("s_add_u32 s24, s24, 4096")
    I(f"v_mov_b32 v{TM}, {OOB}")
    for par in range(2):
        I(f"s_lshl_b32 s24, s{sWV}, 1"); I(f"s_add_u32 s24, s24, {40 + par}"); I("s_cmp_lt_u32 s24, 43"); I("s_cselect_b64 vcc, -1, 0")
        I(f"v_cndmask_b32 v{vO5+par}, v{TM}, v{wL16}, vcc")
    for n in range(3):
        I(f"s_mul_i32 s24, s{sWV}, 12"); I(f"s_add_u32 s24, s24, {4*n}")
        I(f"v_add_u32 v{TM+1}, s24, v{wG}"); I(f"v_cmp_gt_u32 vcc, 43, v{TM+1}")
        I("s_lshl_b32 s24, s24, 8"); I(f"v_add_u32 v{TM+1}, s24, v{wL16}")
        I(f"v_cndmask_b32 v{vSO+n}, v{TM}, v{TM+1}, vcc")
    I(f"v_lshlrev_b32 v{vWS}, 12, v{wC}"); I(f"v_lshl_add_u32 v{vWS}, v{wG}, 4, v{vWS}")
    I(f"v_lshlrev_b32 v{vSR}, 4, v{wC}"); I(f"v_add_u32 v{vSR}, {L_ST}, v{vSR}")
    I(f"s_lshl_b32 s24, s{sWV}, 8"); I(f"v_add_u32 v{vSW}, s24, v{vSR}")
    I(f"s_add_u32 s24, s24, {L_ST2}")
    I(f"v_lshlrev_b32 v{vS2W}, 3, v{wC}"); I(f"v_add_u32 v{vS2W}, s24, v{vS2W}")
    I(f"v_lshlrev_b32 v{vS2R}, 5, v{wG}"); I(f"v_add_u32 v{vS2R}, s24, v{vS2R}")
    I("s_load_dwordx2 s[48:49], s[0:1], 80"); I("s_mov_b32 s50, 4096"); I("s_mov_b32 s51, 0x20000")
    I(f"v_lshlrev_b32 v{TM}, 1, v{wC}"); I(f"s_lshl_b32 s24, s{sJ}, 6")
    I("s_waitcnt lgkmcnt(0)")
    I(f"buffer_load_ushort v{COR}, v{TM}, s[48:51], s24 offen"); I(f"buffer_load_ushort v{COR+1}, v{TM}, s[48:51], s24 offen offset:32")
    I("s_waitcnt vmcnt(0)")
    I(f"v_cmp_eq_u32 vcc, 0, v{wG}")
    for t in range(2):
        I(f"v_lshlrev_b32 v{COR+t}, 16, v{COR+t}"); I(f"v_xor_b32 v{COR+t}, 0x80000000, v{COR+t}"); I(f"v_cndmask_b32 v{COR+t}, 0, v{COR+t}, vcc")
    for x in zero(ACC, 96): I(x)
    I(f"s_mov_b32 s{sS}, 0"); I(f"s_mov_b32 s{sRD}, 0"); I(f"s_mov_b32 s{sISS}, 0")
    I(f"s_lshl_b32 s{sZ}, s{sWV}, 11"); I(f"s_add_u32 s{sZ}, s{sZ}, {WS_Z + 43*1024}")
    TS(A, TRC, 2)
    CR = TM + 4 - 4 + 0
    def tiles(dst, sb):
        out = []
        for i in range(6):
            for par in range(2):
                v = vO5 + par if i == 5 else wL16
                x = [f"buffer_load_dwordx4 {vr(dst + 8*i + 4*par,4)}, v{v}, {WSS}, s{sb} offen offset:{par*1024} sc1"]
                if par == 1 and i < 5: x.append(f"s_add_u32 s{sb}, s{sb}, 8192")
                out.append(x)
        return out
    def wf_load():
        I(f"s_add_u32 s24, s{sSP}, 65536")
        I(f"buffer_load_dwordx4 {vr(WF,4)}, v{vWS}, {SW}, s{sSP} offen"); I(f"buffer_load_dwordx4 {vr(WF+4,4)}, v{vWS}, {SW}, s24 offen")
        I(f"s_add_u32 s{sSP}, s{sSP}, 64")
    def stat_loads(): return [[f"buffer_load_dwordx4 {vr(SB+4*n,4)}, v{vSO+n}, {WSS}, s27 offen sc1"] for n in range(3)]
    sVAL = 35
    def mxchk(base, n):
        out = [f"v_max3_u32 v{TM}, v{base}, v{base+1}, v{base+2}"]
        for r in range(3, n - 1, 2): out.append(f"v_max3_u32 v{TM}, v{TM}, v{base+r}, v{base+r+1}")
        return out + [f"v_max_u32 v{TM}, v{TM}, v{base+n-1}", f"v_cmp_eq_u32 vcc, -1, v{TM}"]
    def z1dma():
        I(f"s_lshl_b32 s24, s{sWV}, 11"); I(f"s_add_u32 s24, s24, {L_U}"); I("s_mov_b32 s25, s33")
        for i in range(6):
            I(f"s_add_u32 m0, s24, {i*8192}")
            I("s_nop 0")
            for par in range(2): I(f"buffer_load_dwordx4 v{vO5 + par if i == 5 else wL16}, {WSS}, s25 offen offset:{par*1024} sc1 lds")
            I("s_add_u32 s25, s25, 8192")
    def flag_load():
        I("s_add_u32 s28, s27, 16384")
        I(f"buffer_load_dword v{vFD}, v{vFA}, {WSS}, s28 offen sc1")
    I(f"s_mul_i32 s33, s{sJ}, {86*1024}"); I(f"s_lshl_b32 s27, s{sWV}, 11"); I("s_add_u32 s33, s33, s27"); I(f"s_add_u32 s33, s33, {WS_Z}")
    I(f"s_lshl_b32 s34, s{sJ}, 2"); I(f"s_add_u32 s34, s34, s{sWV}"); I("s_mul_i32 s34, s34, 86"); I("s_lshr_b32 s34, s34, 8"); I("s_lshl_b32 s34, s34, 7")
    I(f"v_mov_b32 v{vFA}, s34"); I(f"s_mov_b32 s27, {WS_ZS}")
    wait_ge(A, DBG, D_P2, 64, TM, TM + 1, 24, sleep=4)
    wf_load()
    def stat_ld(sreg): return [f"buffer_load_dwordx4 {vr(SB+4*n,4)}, v{vSO+n}, {WSS}, s{sreg} offen sc1" for n in range(3)]
    def can_ld(sreg): return f"buffer_load_dword v{vFD}, v{vFA}, {WSS}, s{sreg} offen sc1"
    def body(b, pf):
        RAW = BUF[b]; tg = f"{b}{pf}"
        q = []
        if pf:
            I(f"s_add_u32 s26, s{sZ}, {86*1024}"); I("s_add_u32 s29, s28, 16384")
            q = [[x] for x in stat_ld(28)] + [[can_ld(29)]] + tiles(BUF[1 - b], 26)
        n_iss = [0]
        def L(k=1):
            for _ in range(k):
                if q:
                    for x in q.pop(0): I(x)
                    n_iss[0] += 1
        for n in (1, 2):
            for j in range(2): I(f"v_pk_add_f32 {vr(MU+2*j,2)}, {vr((SB if n == 1 else MU)+2*j,2)}, {vr(SB+4*n+2*j,2)}")
        L()
        for sw in ("16", "32"):
            for r in range(4): I(f"v_mov_b32 v{MU+4+r}, v{MU+r}")
            for r in range(4): I(f"v_permlane{sw}_swap_b32 v{MU+r}, v{MU+4+r}")
            for j in range(2): I(f"v_pk_add_f32 {vr(MU+2*j,2)}, {vr(MU+2*j,2)}, {vr(MU+4+2*j,2)}")
            if sw == "16": L()
        I(f"ds_write_b128 v{vSW}, {vr(MU,4)} offset:{b*1024}")
        L(2)
        I("s_waitcnt lgkmcnt(0)")
        I("s_barrier")
        for w in range(4): I(f"ds_read_b128 {vr(MU+4*w,4)}, v{vSR} offset:{b*1024 + w*256}")
        L()
        if not pf: I(can_ld(28))
        I("s_waitcnt lgkmcnt(0)")
        for w in range(1, 4):
            for j in range(2): I(f"v_pk_add_f32 {vr(MU+2*j,2)}, {vr(MU+2*j,2)}, {vr(MU+4*w+2*j,2)}")
        for r in range(4): I(f"v_mul_f32 v{MU+r}, {hex(f2u(1/688))}, v{MU+r}")
        for j in range(2):
            L()
            I(f"v_fma_f32 v{MU+2*j+1}, -v{MU+2*j}, v{MU+2*j}, v{MU+2*j+1}")
            I(f"v_max_f32 v{MU+2*j+1}, 0, v{MU+2*j+1}")
            ln_finish(A, MU + 2*j, MU + 2*j + 1)
        I(f"ds_write2_b32 v{vS2W}, v{MU}, v{MU+2} offset0:0 offset1:1"); I(f"ds_write2_b32 v{vS2W}, v{MU+1}, v{MU+3} offset0:32 offset1:33")
        L()
        I("s_waitcnt lgkmcnt(0)")
        for i in range(2):
            I(f"ds_read_b128 {vr(RS+4*i,4)}, v{vS2R} offset:{128+16*i}"); I(f"ds_read_b128 {vr(MU+4*i,4)}, v{vS2R} offset:{16*i}")
        WP = WF if pf else RS
        if not pf:
            I(f"s_cmp_eq_u32 s{sVAL}, 0"); I(f"s_cbranch_scc1 P_wf{tg}")
            I("s_waitcnt vmcnt(1)")
            A.label(f"P_wf{tg}")
            unpack(A, WF, TM, 4); unpack(A, WF + 4, SB, 4)
            I("s_waitcnt lgkmcnt(0)")
            for r in (TM, SB):
                for j in range(4): I(f"v_pk_mul_f32 {vr(r+2*j,2)}, {vr(r+2*j,2)}, {vr(RS+2*j,2)}")
            for t, r in enumerate((TM, SB)):
                for j in range(4): I(cv(RS + 4*t + j, r + 2*j))
        I(f"s_waitcnt vmcnt({n_iss[0]})")
        A.label(f"P_val{tg}")
        for x in mxchk(RAW, 48): I(x)
        I(f"s_cbranch_vccz P_ok{tg}")
        I(f"s_mov_b32 s25, s{sZ}")
        for x in sum(tiles(RAW, 25), []): I(x)
        I(f"s_add_u32 s{sSPIN}, s{sSPIN}, 1"); I(f"s_cmp_gt_u32 s{sSPIN}, {SPIN_MAX}")
        I("s_waitcnt vmcnt(0)")
        I(f"s_cbranch_scc0 P_val{tg}")
        A.label(f"P_ok{tg}")
        if pf:
            L()
            I("s_waitcnt lgkmcnt(0)")
            for t in range(2):
                unpack(A, WF + 4*t, TM, 4)
                for j in range(4): I(f"v_pk_mul_f32 {vr(TM+2*j,2)}, {vr(TM+2*j,2)}, {vr(RS+2*j,2)}")
                for j in range(4): I(cv(WF + 4*t + j, TM + 2*j))
                L()
        cor = []
        for t in range(2):
            for j in range(4):
                cor += [f"v_lshlrev_b32 v{TM}, 16, v{WP+4*t+j}", f"v_fmac_f32 v{COR+t}, v{TM}, v{MU+2*j}",
                        f"v_and_b32 v{TM+1}, 0xffff0000, v{WP+4*t+j}", f"v_fmac_f32 v{COR+t}, v{TM+1}, v{MU+2*j+1}"]
        ms = [mf32(ACC + 16*(n>>1) + 8*t + 4*(n&1), RAW + 4*n, WP + 4*t, vr(ACC + 16*(n>>1) + 8*t + 4*(n&1), 4)) for n in range(12) for t in range(2)]
        fl = [cor[2*i:2*i+2] for i in range(24)]
        if pf:
            for i in range(6):
                if q: fl[4*i+2] = q.pop(0) + fl[4*i+2]
            assert not q
            slots(A, ms, fl)
            I(f"s_cmp_eq_u32 s{sS}, s{sJ}"); I(f"s_cbranch_scc0 P_noz1{tg}")
            z1dma()
            I("s_waitcnt vmcnt(12)")
            A.label(f"P_noz1{tg}")
            wf_load()
        else:
            I(f"s_cmp_eq_u32 s{sS}, s{sJ}"); I(f"s_cbranch_scc0 P_noz1{tg}")
            z1dma()
            A.label(f"P_noz1{tg}")
            wf_load()
            I(f"v_cmp_eq_u32 vcc, -1, v{vFD}")
            I(f"s_cbranch_vccnz P_plain{tg}")
            if b == 1:
                I(f"s_cmp_eq_u32 s{sS}, 63"); I(f"s_cbranch_scc1 P_plain{tg}")
            I(f"s_mov_b32 s{sISS}, 1")
            I(f"s_add_u32 s26, s{sZ}, {86*1024}"); I("s_add_u32 s29, s28, 16384")
            q2 = [[x] for x in stat_ld(28)] + [[can_ld(29)]] + tiles(BUF[1 - b], 26)
            f2 = [list(x) for x in fl]
            for i in range(6): f2[4*i] = q2.pop(0) + f2[4*i]
            slots(A, ms, f2)
            for x in sum(q2, []): I(x)
            I("s_waitcnt vmcnt(12)")
            I(f"s_branch P_done{b}")
            A.label(f"P_plain{tg}")
            slots(A, ms, fl)
    A.label("P_loop")
    for b in range(2):
        I("s_add_u32 s28, s27, 16384")
        I(f"s_cmp_lg_u32 s{sISS}, 0"); I(f"s_cbranch_scc1 P_have{b}")
        A.label(f"P_poll{b}")
        I(can_ld(27))
        I(f"s_add_u32 s{sSPIN}, s{sSPIN}, 1")
        I("s_waitcnt vmcnt(0)")
        I(f"v_cmp_eq_u32 vcc, -1, v{vFD}")
        I(f"s_cbranch_vccz P_rdy{b}")
        I(f"s_sleep {opt.get('psleep', 1)}")
        I(f"s_cmp_gt_u32 s{sSPIN}, {SPIN_MAX}"); I(f"s_cbranch_scc0 P_poll{b}")
        A.label(f"P_rdy{b}")
        TS(A, TRC + 1, f"s{sS}")
        I(f"s_mov_b32 s26, s{sZ}")
        for x in stat_ld(27) + [can_ld(28)] + sum(tiles(BUF[b], 26), []): I(x)
        I("s_waitcnt vmcnt(12)")
        A.label(f"P_have{b}")
        I("s_waitcnt vmcnt(14)")
        A.label(f"P_sv{b}")
        for x in mxchk(SB, 12): I(x)
        I(f"s_cbranch_vccz P_sok{b}")
        for x in stat_ld(27): I(x)
        I(f"s_add_u32 s{sSPIN}, s{sSPIN}, 1"); I(f"s_cmp_gt_u32 s{sSPIN}, {SPIN_MAX}")
        I("s_waitcnt vmcnt(0)")
        I(f"s_cbranch_scc0 P_sv{b}")
        A.label(f"P_sok{b}")
        I(f"v_cmp_eq_u32 vcc, -1, v{vFD}")
        I(f"s_mov_b32 s{sVAL}, s{sISS}"); I(f"s_mov_b32 s{sISS}, 0")
        I(f"s_cbranch_vccnz P_nopf{b}")
        if b == 1:
            I(f"s_cmp_eq_u32 s{sS}, 63"); I(f"s_cbranch_scc1 P_nopf{b}")
        I(f"s_mov_b32 s{sISS}, 1")
        body(b, 1)
        I(f"s_branch P_done{b}")
        A.label(f"P_nopf{b}")
        body(b, 0)
        A.label(f"P_done{b}")
        I(f"s_add_u32 s{sZ}, s{sZ}, {86*1024}"); I("s_add_u32 s27, s27, 16384")
        TS(A, TRC + 2, f"s{sS}")
        I(f"s_add_u32 s{sS}, s{sS}, 1")
    I(f"s_cmp_lt_u32 s{sS}, 64"); I("s_cbranch_scc1 P_loop")
    vU, vO = SB, SB + 1
    I(f"v_add_u32 v{vU}, {L_U}, v{wL16}")
    I(f"s_lshl_b32 s24, s{sWV}, 11"); I(f"v_add_u32 v{vSW}, s24, v{vU}")
    ZB = BUF[0]; HR = BUF[1]; UF = BUF[1] + 8; YA = BUF[1] + 32
    def zread():
        for i in range(6):
            for par in range(2): I(f"ds_read_b128 {vr(ZB+8*i+4*par,4)}, v{vSW} offset:{i*8192 + par*1024}")
    I("s_waitcnt vmcnt(2)")
    zread()
    for sw in ("16", "32"):
        for t in range(2):
            I(f"v_mov_b32 v{TM}, v{COR+t}"); I(f"v_permlane{sw}_swap_b32 v{COR+t}, v{TM}"); I(f"v_add_f32 v{COR+t}, v{COR+t}, v{TM}")
    A.label("P_z1c")
    I("s_waitcnt lgkmcnt(0)")
    for x in mxchk(ZB, 48): I(x)
    I("s_cbranch_vccz P_z1ok")
    z1dma()
    I(f"s_add_u32 s{sSPIN}, s{sSPIN}, 1"); I(f"s_cmp_gt_u32 s{sSPIN}, {SPIN_MAX}")
    I("s_waitcnt vmcnt(0)")
    I("s_cbranch_scc1 P_z1ok")
    zread()
    I("s_branch P_z1c")
    A.label("P_z1ok")
    for i in range(6):
        for t in range(2):
            d = ACC + 16*i + 8*t
            for j in range(4): I(f"v_pk_add_f32 {vr(d+2*j,2)}, {vr(d+2*j,2)}, {vr(COR,2)} op_sel:[0,{t}] op_sel_hi:[1,{t}] neg_lo:[0,1] neg_hi:[0,1]")
            for j in range(4): I(cv(MU + j, d + 2*j))
            unpack(A, MU, d, 4)
            for par in range(2): unpack(A, ZB + 8*i + 4*par + 2*t, TM + 4*par, 2)
            for j in range(4): I(f"v_pk_mul_f32 {vr(d+2*j,2)}, {vr(d+2*j,2)}, {vr(TM+2*j,2)}")
            for j in range(4): I(cv(d + j, d + 2*j))
            I(f"buffer_store_dwordx4 {vr(d,4)}, v{wL16}, {WSS}, s37 offen offset:{t*1024} sc1")
        I("s_add_u32 s37, s37, 8192")
    for i in range(6):
        for t in range(2): I(f"ds_write_b128 v{vSW}, {vr(ACC + 16*i + 8*t,4)} offset:{i*8192 + t*1024}")
    srd(A, 96, 2 << 20)
    I("s_barrier")
    TS(A, TRC, 3)
    t6_mm(A, list(range(22)), True, YA, UF, vU)
    TS(A, TRC, 4)
    I(f"s_lshl_b32 s28, s{sJ}, 7"); I(f"s_add_u32 s28, s28, {F_Z}")
    wait_ge(A, WSS, "s28", 1, TM, TM + 1, 24, sleep=0, barrier=False, allwaves=True)
    t6_addr(A, vO)
    for x in t6_hload(HR, vO): I(x)
    t6_out(A, YA, HR, MU, vO)
    if TRACE[0]: I("s_waitcnt vmcnt(0)")
    TS(A, TRC, 5)
    TDUMP(A, [TRC, TRC + 1, TRC + 2], TM, (6, 12, 2, 4))
```

```python
from asmlib import *
import struct

WS_KV = 2 << 20
WS_KM = (36 << 20) + 4096
WS_HA = 48 << 20
WS_HB = 49 << 20
WS_XN = 50 << 20
WS_H = 52 << 20
WS_HN = 54 << 20
WS_Z = 56 << 20
WS_ZS = 62 << 20
WS_U = 72 << 20
WS_PART = 64 << 20
F_KV = 0; F_PART = 8192; F_HN = 10240; F_ZL = 12288; F_Z = 16384; F_TK = 32768
NG = 4
NG1 = 6
WS_BYTES = 256 << 20
LW = 128 << 10
L_MEM = 0; L_QK = 0; L_O = 4096; L_V = 8192; L_K = 16384
LDS_BYTES = 160 << 10
SCALE_LOG2E = (128 ** -0.5) * 1.4426950408889634

SPIN_MAX = 1 << 18
def f2u(x): return struct.unpack("<I", struct.pack("<f", x))[0]
def vr(b, n): return f"v[{b}:{b+n-1}]"
def ar(b, n): return f"a[{b}:{b+n-1}]"

vIDX, vL16, vT, vMW, vOR, vKR, vSEL = 0, 1, 2, 4, 5, 6, 7
vXW, vTR, vOW, vF0, vF1, vAST, vALD, vBST = 8, 9, 10, 11, 12, 13, 14, 15
PZ = 16
M = 20; AQ = 52; AK = 60; AV = 68; KX = 76; VX = 108; S = 116
sWS = 4
sW = 8
sDBG = 12
sH, sWV, sSTEP, sHA, sHB, sKV, sKM, sSPIN, sT0, sT1, sT2, sT3, sSC = 16, 17, 18, 19, 20, 21, 22, 23, 24, 25, 26, 27, 28
sM0A, sM0B, sRA, sRB, sRC, sPF, sSPA, sB0, sB1 = 29, 30, 31, 32, 33, 34, 35, 36, 37
sRDY = 38
sKVM = 50
vFL = 14
sMSK = 52

LRES = [(0, 0, 0), (0, 1, 0), (1, 0, 0), (1, 1, 0), (0, 0, 1), (0, 1, 1)]
LBUF = [VX, VX + 8, KX, KX + 8, KX + 16, KX + 24]
WOL = [(3, 0, 2), (3, 1, 1), (3, 1, 3), (3, 1, 2), (3, 2, 1), (3, 2, 3), (3, 2, 2), (3, 3, 1), (3, 3, 3), (3, 3, 2)]
WBUF = [M + 24, KX + 16, KX + 24, KX, KX + 8, M, M + 8, M + 16, S, M + 24]
NL = len(LRES); NW = len(WOL)
_slots = {}
def _assign():
    n = 0
    for mat in range(3):
        for tau in range(2):
            for p in range(8):
                if (mat, tau, p) in LRES: continue
                _slots[(mat, tau, p)] = n; n += 1
    for p in range(4):
        for j in range(4):
            if (3, p, j) in WOL: continue
            _slots[(3, p, j)] = n; n += 1
    assert n == 48
_assign()
def slot_reg(key, off, n):
    i = _slots[key] * 8 + off
    return ar(i, n) if i < 256 else vr(128 + i - 256, n)
def wfrag(*key):
    if key in LRES: return vr(LBUF[LRES.index(key)], 8)
    if key in WOL: return vr(WBUF[WOL.index(key)], 8)
    return slot_reg(key, 0, 8)

def smf(acc, a, b): return f"v_smfmac_f32_16x16x64_bf16 {vr(acc,4)}, {vr(a,4)}, {b}, v{vIDX}"
def mf32(d, a, b, c): return f"v_mfma_f32_16x16x32_bf16 {vr(d,4)}, {vr(a,4)}, {vr(b,4)}, {c}"
def mf16(d, a, b, c): return f"v_mfma_f32_16x16x16_bf16 {vr(d,4)}, {vr(a,2)}, {vr(b,2)}, {c}"

def chain_setup(A, st, hooks=None, order=(1, 2, 0)):
    I = A.I
    WS = f"s[{sWS}:{sWS+3}]"
    LN, C, G, R, R0, R1, G0, G1, CP, X, Y, Z = 40, 41, 42, 43, 44, 45, 46, 47, 48, 49, 50, 51
    I(f"v_lshrrev_b32 v{X}, 6, v0")
    I(f"v_and_b32 v{LN}, 63, v0")
    I(f"v_readfirstlane_b32 s{sWV}, v{X}")
    I(f"v_and_b32 v{C}, 15, v{LN}")
    I(f"v_lshrrev_b32 v{G}, 4, v{LN}")
    I(f"v_lshrrev_b32 v{R}, 2, v{C}")
    I(f"v_and_b32 v{R0}, 1, v{R}")
    I(f"v_lshrrev_b32 v{R1}, 1, v{R}")
    I(f"v_and_b32 v{G0}, 1, v{G}")
    I(f"v_lshrrev_b32 v{G1}, 1, v{G}")
    I(f"v_and_b32 v{CP}, 3, v{C}")
    I(f"s_and_b32 s{sT0}, s{sWV}, 1")
    I(f"s_lshl_b32 s{sT0}, s{sT0}, 2")
    I(f"s_lshr_b32 s{sT1}, s{sWV}, 1")
    I(f"s_lshl_b32 s{sT1}, s{sT1}, 4")
    I(f"s_add_u32 s{sT0}, s{sT0}, s{sT1}")
    I(f"v_add_u32 v20, s{sT0}, v{G}")
    I("v_lshlrev_b32 v20, 13, v20")
    I(f"s_lshl_b32 s{sT0}, s{sWV}, 2")
    I(f"v_lshlrev_b32 v{X}, 1, v{G1}")
    I(f"v_or_b32 v{X}, s{sT0}, v{X}")
    I(f"v_xor_b32 v{X}, v{C}, v{X}")
    I(f"v_lshl_add_u32 v20, v{X}, 4, v20")
    I(f"s_lshl_b32 s{sT1}, s{sH}, 8")
    I(f"v_add_u32 v20, s{sT1}, v20")

    chunks = [(m, h) for m in list(order) + [3] for h in range(2)]
    HOLD = 32; HW = HOLD + 8*NL
    def srd_for(mat):
        I(f"s_load_dwordx2 s[{sW}:{sW+1}], s[0:1], {16 + 8*mat}")
        I(f"s_mov_b32 s{sW+2}, {4<<20}")
        I(f"s_mov_b32 s{sW+3}, 0x20000")
        I("s_waitcnt lgkmcnt(0)")
    def dma(ci):
        mat, half = chunks[ci]
        if half == 0: srd_for(mat)
        reg = half * 65536
        if mat < 3:
            I(f"s_lshl_b32 s{sT0}, s{sWV}, 10")
            for i in range(16):
                I(f"s_add_u32 m0, s{sT0}, {reg + i*4096}")
                I(f"s_mov_b32 s{sT1}, {(32*i + 8*half)*8192}")
                I(f"buffer_load_dwordx4 v20, s[{sW}:{sW+3}], s{sT1} offen lds")
        else:
            I(f"s_lshl_b32 s{sT0}, s{sWV}, 14")
            for i in range(16):
                I(f"s_add_u32 m0, s{sT0}, {reg + i*1024}")
                I(f"s_mov_b32 s{sT1}, {((i&7) + 64*(i>>3) + 8*half)*1024}")
                I(f"buffer_load_dwordx4 v{21 + (i&1)}, s[{sW}:{sW+3}], s{sT1} offen lds")
    if hooks: hooks(A, 'ts', 0)
    dma(0)
    if hooks: hooks(A, 'ts', 1)
    I(f"s_load_dwordx2 s[44:45], s[0:1], 8")
    I(f"s_mov_b32 s46, 8192"); I(f"s_mov_b32 s47, 0x20000")
    I(f"v_and_b32 v{Y}, 1, v{C}")
    I(f"v_lshl_add_u32 v{X}, v{R}, 1, v{Y}")
    I(f"v_lshlrev_b32 v{X}, 10, v{X}")
    I(f"v_lshl_add_u32 v{X}, v{G}, 8, v{X}")
    I(f"v_and_b32 v{Y}, 2, v{C}")
    I(f"v_lshl_add_u32 v{vT}, v{Y}, 2, v{X}")
    I("s_waitcnt lgkmcnt(0)")
    for k in range(8):
        I(f"buffer_load_dwordx2 {vr(60+4*k,2)}, v{vT}, s[44:47], 0 offen offset:{64*(k>>1) + 16*(k&1)}")
        I(f"buffer_load_dwordx2 {vr(62+4*k,2)}, v{vT}, s[44:47], 0 offen offset:{64*(k>>1) + 16*(k&1) + 32}")
    if hooks: hooks(A, 'first', 0)
    if hooks: hooks(A, 'ts', 2)
    dma(1)
    if hooks: hooks(A, 'ts', 3)
    I(f"s_and_b32 s{sT0}, s{sWV}, 1")
    I(f"s_lshl_b32 s{sT0}, s{sT0}, 3")
    I(f"v_xor_b32 v21, s{sT0}, v{LN}")
    I("v_xor_b32 v22, 4, v21")
    I(f"s_lshl_b32 s{sT1}, s{sH}, 17")
    I(f"s_lshl_b32 s{sT2}, s{sWV}, 14")
    I(f"s_add_u32 s{sT1}, s{sT1}, s{sT2}")
    I("v_lshlrev_b32 v21, 4, v21")
    I("v_lshlrev_b32 v22, 4, v22")
    I(f"v_add_u32 v21, s{sT1}, v21")
    I(f"v_add_u32 v22, s{sT1}, v22")
    I(f"v_lshl_add_u32 v{X}, v{R1}, 1, v{G0}")
    I(f"v_lshl_add_u32 v{X}, v{R0}, 2, v{X}")
    I(f"v_lshlrev_b32 v{Y}, 9, v{X}")
    I(f"v_lshl_add_u32 v{Y}, v{G1}, 14, v{Y}")
    I(f"v_lshl_add_u32 v{Y}, v{CP}, 3, v{Y}")
    I(f"s_lshl_b32 s{sT1}, s{sWV}, 1")
    I(f"v_xor_b32 v{X}, s{sT1}, v{X}")
    I(f"v_lshl_add_u32 v23, v{X}, 5, v{Y}")
    I("v_xor_b32 v24, 32, v23")
    I(f"v_lshl_add_u32 v{Y}, v{G1}, 2, v{R0}")
    I(f"v_lshl_add_u32 v{Y}, v{G0}, 4, v{Y}")
    I(f"v_lshlrev_b32 v{Y}, 10, v{Y}")
    I(f"v_lshl_add_u32 v{Y}, v{CP}, 3, v{Y}")
    I(f"v_lshl_add_u32 v{X}, v{R0}, 1, v{R1}")
    I(f"v_lshl_add_u32 v{X}, v{G0}, 2, v{X}")
    I(f"v_lshl_add_u32 v{Y}, v{X}, 5, v{Y}")
    I(f"s_lshl_b32 s{sT1}, s{sWV}, 8")
    I(f"v_add_u32 v25, s{sT1}, v{Y}")
    I(f"v_lshlrev_b32 v{vL16}, 4, v{LN}")
    I(f"s_lshl_b32 s{sT1}, s{sWV}, 14")
    I(f"v_add_u32 v{vF0}, s{sT1}, v{vL16}")
    I(f"v_add_u32 v{vF1}, 0x10000, v{vF0}")
    I(f"v_add_u32 v{vL16}, {LW}, v{vL16}")
    I(f"s_lshl_b32 s{sT1}, s{sWV}, 11")
    I(f"v_add_u32 v{vMW}, s{sT1}, v{vL16}")
    I(f"s_lshl_b32 s{sT1}, s{sWV}, 10")
    I(f"v_add_u32 v{vOW}, s{sT1}, v{vL16}")
    I(f"v_and_b32 v{vOR}, {hex(0xffffffff ^ 32)}, v{vL16}")
    I(f"v_lshlrev_b32 v{X}, 5, v{C}")
    I(f"v_xor_b32 v{Y}, v{G}, v{R}")
    I(f"v_lshl_add_u32 v{X}, v{Y}, 3, v{X}")
    I(f"s_add_u32 s{sT1}, s{sT1}, {LW}")
    I(f"v_add_u32 v{vXW}, s{sT1}, v{X}")
    I(f"v_xor_b32 v{X}, v{LN}, v{G}")
    I(f"v_lshlrev_b32 v{X}, 3, v{X}")
    I(f"v_add_u32 v{vTR}, {LW}, v{X}")
    I(f"v_lshl_add_u32 v{X}, v{R1}, 2, v{G}")
    I(f"v_lshlrev_b32 v{X}, 13, v{X}")
    I(f"v_and_b32 v{Y}, 7, v{C}")
    I(f"v_lshl_add_u32 v{X}, v{Y}, 3, v{X}")
    I(f"s_lshl_b32 s{sT1}, s{sWV}, 16")
    I(f"s_lshl_b32 s{sT2}, s{sH}, 6")
    I(f"s_add_u32 s{sT1}, s{sT1}, s{sT2}")
    I(f"v_add_u32 v{vAST}, s{sT1}, v{X}")
    I(f"s_lshl_b32 s{sT1}, s{sWV}, 11")
    I(f"s_and_b32 s{sT2}, s{sH}, 4")
    I(f"s_lshl_b32 s{sT2}, s{sT2}, 8")
    I(f"s_add_u32 s{sT1}, s{sT1}, s{sT2}")
    I(f"s_lshr_b32 s{sT2}, s{sH}, 3")
    I(f"s_lshl_b32 s{sT2}, s{sT2}, 8")
    I(f"s_add_u32 s{sT1}, s{sT1}, s{sT2}")
    I(f"s_and_b32 s{sT2}, s{sH}, 3")
    I(f"s_lshl_b32 s{sT2}, s{sT2}, 6")
    I(f"s_add_u32 s{sT1}, s{sT1}, s{sT2}")
    I(f"v_and_b32 v{Y}, 1, v{C}")
    I(f"v_and_b32 v{Z}, 2, v{C}")
    I(f"v_add_u32 v{X}, v{Z}, v{G0}")
    I(f"v_lshlrev_b32 v{X}, 4, v{X}")
    I(f"v_lshl_add_u32 v{X}, v{Y}, 3, v{X}")
    I(f"v_lshl_add_u32 v{X}, v{G1}, 2, v{X}")
    I(f"v_add_u32 v{X}, s{sT1}, v{X}")
    I(f"v_mov_b32 v{Z}, 0x40000000")
    I(f"v_cmp_gt_u32 vcc, 4, v{C}")
    I(f"v_cndmask_b32 v{vBST}, v{Z}, v{X}, vcc")
    for i in range(4):
        I(f"s_mov_b32 s{sMSK+2*i}, {hex(0x000f000f << (4*i))}")
        I(f"s_mov_b32 s{sMSK+2*i+1}, {hex(0x000f000f << (4*i))}")
    I(f"v_lshlrev_b32 v{Z}, 4, v{Y}")
    I(f"v_mov_b32 v{X}, 0x3f80")
    I(f"v_lshlrev_b32 v{vSEL}, v{Z}, v{X}")
    I(f"v_add_u32 v{vKR}, {L_K}, v{vL16}")
    I(f"v_and_b32 v{Y}, 2, v{C}")
    I(f"v_mov_b32 v{X}, 0x44444444")
    I(f"v_mov_b32 v{Z}, 0xeeeeeeee")
    I(f"v_cmp_eq_u32 vcc, 0, v{Y}")
    I(f"v_cndmask_b32 v{vIDX}, v{Z}, v{X}, vcc")
    for i in range(4): I(f"v_mov_b32 v{PZ+i}, 0")
    I(f"s_mov_b32 s{sT1}, 0x05040100")
    I(f"s_mov_b32 s{sT2}, 0x07060302")
    if hooks: hooks(A, 'ts', 4)
    I("s_waitcnt vmcnt(16)")
    if hooks: hooks(A, 'ts', 5)
    for k in range(8):
        for x in range(4):
            I(f"v_perm_b32 v{92+4*k+x}, v{62+4*k+(x>>1)}, v{60+4*k+(x>>1)}, s{sT2 if x&1 else sT1}")
            I(f"v_min_u32 v{92+4*k+x}, -2, v{92+4*k+x}")
    for k in range(8):
        I(f"ds_write_b128 v{vL16}, {vr(92+4*k,4)} offset:{L_MEM + k*1024}")
    I(f"s_mov_b32 s{sHB}, {WS_HB}")
    I(f"s_mov_b32 s{sB0}, {WS_HB - LW}")
    I(f"s_mov_b32 s{sSTEP}, 0")
    I(f"s_mov_b32 s{sHA}, {WS_HA}")
    I(f"s_lshl_b32 s{sRC}, s{sH}, 13")
    I(f"s_sub_u32 s{sRC}, s{sRC}, {LW}")
    I(f"s_add_u32 s{sRA}, s{sRC}, {WS_HA + (256<<10)}")
    I(f"s_mov_b32 s{sRB}, {WS_HB + 3*8192}")
    I(f"s_lshl_b32 s{sKV}, s{sH}, 14")
    I(f"s_add_u32 s{sKV}, s{sKV}, {WS_KV - LW}")
    I(f"s_mul_i32 s{sKM}, s{sH}, {65*4096}")
    I(f"s_add_u32 s{sKM}, s{sKM}, {WS_KM - LW - 4096}")
    I(f"s_mov_b32 s{sSPIN}, 0")
    I(f"s_mov_b32 s{sSPA}, 0")
    I(f"s_mov_b32 s{sSC}, {hex(f2u(SCALE_LOG2E))}")
    I(f"s_lshl_b32 s{sM0A}, s{sWV}, 11")
    I(f"s_add_u32 s{sM0B}, s{sM0A}, {LW + L_V}")
    I(f"s_add_u32 s{sM0A}, s{sM0A}, {LW + L_K}")
    I(f"s_mov_b64 s[{sKVM}:{sKVM+1}], -1")
    I("s_waitcnt lgkmcnt(0)")

    for ci in range(8):
        mat, half = chunks[ci]
        I(f"s_waitcnt vmcnt({(16 + (hooks(A, 'extra', ci + 1) if hooks else 0)) if ci < 7 else 0})")
        I("s_barrier")
        if hooks: hooks(A, "landed", ci)
        if mat < 3:
            for pp in range(4):
                for tau in range(2):
                    key = (mat, tau, 2*pp + half)
                    for u in range(4):
                        off = (u >> 1) * 32768 + (u & 1) * 256 + pp * 4096
                        dst = vr(HOLD + 8*LRES.index(key) + 2*u, 2) if key in LRES else slot_reg(key, 2*u, 2)
                        I(f"ds_read_b64_tr_b16 {dst}, v{23+tau} offset:{off}")
            I("s_waitcnt lgkmcnt(0)")
            I("v_xor_b32 v23, 0x10000, v23"); I("v_xor_b32 v24, 0x10000, v24")
            I("s_barrier")
            if hooks: hooks(A, "before", ci + 2)
            if ci + 2 < 8: dma(ci + 2)
            if hooks: hooks(A, "issued", ci + 2)
        else:
            for j in range(4):
                I(f"s_xor_b32 s{sT1}, s{sWV}, {j}")
                I(f"s_lshr_b32 s{sT2}, s{sT1}, 1")
                I(f"s_lshl_b32 s{sT2}, s{sT2}, 13")
                I(f"s_and_b32 s{sT1}, s{sT1}, 1")
                I(f"s_lshl_b32 s{sT1}, s{sT1}, 15")
                I(f"s_add_u32 s{sT1}, s{sT1}, s{sT2}")
                I(f"s_add_u32 s{sT1}, s{sT1}, {half*65536}")
                I(f"v_add_u32 v26, s{sT1}, v25")
                for p in range(4):
                    I(f"v_xor_b32 v27, {p<<6}, v26")
                    key = (3, p, j)
                    for u1 in range(2):
                        dst = vr(HW + 4*WOL.index(key) + 2*u1, 2) if key in WOL else slot_reg(key, 4*half + 2*u1, 2)
                        I(f"ds_read_b64_tr_b16 {dst}, v27 offset:{u1*2048}")
            I("s_waitcnt lgkmcnt(0)")
            I("s_barrier")
            a = vF1 if half else vF0
            for i in range(NL): I(f"ds_write_b128 v{a}, {vr(HOLD+8*i+4*half,4)} offset:{i*1024}")
            for i in range(NW): I(f"ds_write_b128 v{a}, {vr(HW+4*i,4)} offset:{(NL+i)*1024}")
            I("s_waitcnt lgkmcnt(0)")

def kv_dma(A, ld=""):
    return [f"s_mov_b32 m0, s{sM0A}",
            f"s_add_u32 s{sT3}, s{sKV}, 8192",
            f"buffer_load_dwordx4 v{vMW}, s[{sWS}:{sWS+3}], s{sKV} offen {ld} lds",
            f"buffer_load_dwordx4 v{vMW}, s[{sWS}:{sWS+3}], s{sKV} offen offset:1024 {ld} lds",
            f"s_mov_b32 m0, s{sM0B}",
            f"s_xor_b32 s{sM0A}, s{sM0A}, 8192",
            f"buffer_load_dwordx4 v{vMW}, s[{sWS}:{sWS+3}], s{sT3} offen {ld} lds",
            f"buffer_load_dwordx4 v{vMW}, s[{sWS}:{sWS+3}], s{sT3} offen offset:1024 {ld} lds",
            f"s_add_u32 s{sKV}, s{sKV}, {32*16384}"]

def kv_flag_load(A):
    I = A.I
    I(f"v_lshrrev_b32 v{vT}, 2, v{vL16}")
    I(f"s_lshl_b32 s{sT3}, s{sH}, 8")
    I(f"v_subrev_u32 v{vT}, {LW//4}, v{vT}")
    I(f"s_add_u32 s{sT3}, s{sT3}, {F_KV}")
    I(f"buffer_load_dword v{vFL}, v{vT}, s[{sWS}:{sWS+3}], s{sT3} offen sc1")

def kv_eval(A):
    A.I(f"v_cmp_ne_u32 vcc, 0, v{vFL}")
    A.I("s_nop 0")
    A.I(f"s_ff0_i32_b64 s{sRDY}, vcc")

def kv_wait(A, pfx, need, preloaded=False):
    I = A.I
    if preloaded: I(f"s_branch {pfx}_kve")
    A.label(f"{pfx}_kvw")
    kv_flag_load(A)
    I(f"s_add_u32 s{sSPIN}, s{sSPIN}, 1")
    I("s_waitcnt vmcnt(0)")
    A.label(f"{pfx}_kve")
    kv_eval(A)
    I(f"s_cmp_gt_u32 s{sSPIN}, {SPIN_MAX}")
    I(f"s_cbranch_scc1 {pfx}_kvw_done")
    I(f"s_add_u32 s{sT3}, s{sSTEP}, {need}")
    I(f"s_cmp_ge_u32 s{sT3}, s{sRDY}")
    I(f"s_cbranch_scc1 {pfx}_kvw")
    A.label(f"{pfx}_kvw_done")

def hs(x): return f"v_pk_add_f32 {vr(x,2)}, {vr(x,2)}, {vr(x+2,2)}"
def hs2(x): return [f"v_add_f32 v{x}, v{x}, v{x+2}", f"v_add_f32 v{x+1}, v{x+1}, v{x+3}"]
def cv(d, x): return f"v_cvt_pk_bf16_f32 v{d}, v{x}, v{x+1}"
def zero(base, n): return [f"v_mov_b64 {vr(base+2*i,2)}, 0" for i in range(n // 2)]
def frag_rd(i, dst):
    return [f"ds_read_b128 {vr(dst,4)}, v{vF0} offset:{i*1024}", f"ds_read_b128 {vr(dst+4,4)}, v{vF1} offset:{i*1024}"]
def chk(base, tmp):
    return [f"v_max3_u32 v{tmp}, v{base}, v{base+1}, v{base+2}", f"v_max3_u32 v{tmp+1}, v{base+3}, v{base+4}, v{base+5}",
            f"v_max3_u32 v{tmp}, v{tmp}, v{base+6}, v{base+7}", f"v_max_u32 v{tmp}, v{tmp}, v{tmp+1}", f"v_cmp_eq_u32 vcc, -1, v{tmp}"]
SLEEPY = [0]
def delay(A, n):
    if SLEEPY[0] and n >= 20:
        k = (n - 4) // 16; A.I(f"s_sleep {k}"); n -= 16*k + SLEEPY[0]
    while n > 0:
        k = min(n, 16); A.I(f"s_nop {k-1}"); n -= k
def slots(A, mfmas, fills):
    for i, m in enumerate(mfmas):
        A.I(m)
        if i < len(fills):
            for f in fills[i]: A.I(f)


def chain_loop(A, st, pfx, stamp=None, pub="sc1", opt={}):
    SLEEPY[0] = opt.get("sleepy", 0)
    I = A.I
    for w in range(3):
        I(f"s_cmp_eq_u32 s{sWV}, {w}"); I(f"s_cbranch_scc1 {pfx}{w}_entry")
    for w in (3, 2, 1, 0):
        A.label(f"{pfx}{w}_entry")
        chain_wave(A, st, f"{pfx}{w}", w, stamp, pub, opt)
        if w: I(f"s_branch {pfx}_exit")
    A.label(f"{pfx}_exit")

def chain_wave(A, st, pfx, w, stamp, pub, opt):
    I = A.I
    WS = f"s[{sWS}:{sWS+3}]"
    nohop = opt.get("nohop")
    def T(i):
        if stamp: stamp(A, i)
    lres_rd = sum([frag_rd(i, LBUF[i]) for i in range(NL)], [])
    PB = S + 8
    mega = opt.get("mega")
    kld = "sc1" if mega else ""
    I("s_waitcnt lgkmcnt(0)")
    for x in ([] if mega else kv_dma(A, kld)) + lres_rd + zero(AQ, 24): I(x)
    if mega:
        I(f"s_cmp_le_u32 s{sRDY}, 1"); I(f"s_cselect_b64 s[{sKVM}:{sKVM+1}], -1, 0")
        I(f"s_lshl_b32 s{sPF}, s{sH}, 8"); I(f"s_add_u32 s{sPF}, s{sPF}, {F_KV}")
    I("s_waitcnt vmcnt(0) lgkmcnt(0)")
    if opt.get("dm", 0) and w >= 2: I(f"s_branch {pfx}_e0")
    else:
        I("s_barrier")
        I(f"s_branch {pfx}_b1")
    rsc = opt.get('rsc', 1)
    e2 = opt.get("e2", 1)
    BS = [M + 16, M + 24] if e2 else [M + 16, M + 20, M + 24]
    NB_ = 2 if e2 else 1
    NEG = S + 4 if rsc == 1 else (M + 28 if rsc == 0 else KX)
    m0E = LW + L_MEM + w*1024*NB_; m0L = LW + L_MEM + w*1024 + 4096
    vE = vMW if e2 else vOW
    def pollB(b): return ([f"buffer_load_dwordx4 {vr(b+4*i,4)}, v{vE}, {WS}, s{sB0} offen offset:{1024*i} sc1" for i in range(NB_)] +
                          [f"buffer_load_dwordx4 v{vE}, {WS}, s{sB0} offen offset:{1024*i} sc1 lds" for i in range(NB_)])
    mr = [f"ds_read_b128 {vr(M+4*k,4)}, v{vL16} offset:{L_MEM+1024*k}" for k in range(8)]
    def ckr(base, n):
        regs = list(range(base, base + n))
        out = [f"v_max3_u32 v{vT}, v{regs[0]}, v{regs[1]}, v{regs[2]}"]
        for i in range(3, len(regs) - 1, 2): out.append(f"v_max3_u32 v{vT}, v{vT}, v{regs[i]}, v{regs[i+1]}")
        out.append(f"v_max_u32 v{vT}, v{vT}, v{regs[-1]}")
        out.append(f"v_cmp_eq_u32 vcc, -1, v{vT}")
        return out
    dm = opt.get("dm", 0)
    lateD = f"buffer_load_dwordx4 v{vOW}, {WS}, s{sT2} offen sc1 lds"
    if dm == 2:
        m0L = LW + L_MEM + 4096 + w*2048
        lateD = "\n".join(f"buffer_load_dwordx4 v{vMW}, {WS}, s{sT2} offen offset:{1024*i} sc1 lds" for i in range(2)) if w < 2 else "s_nop 0"
    hw = w - 2
    def kdma(): return [f"s_add_u32 m0, s{sM0A}, {hw*4096 - w*2048}", f"s_add_u32 s{sT3}, s{sKV}, {hw*4096}"] + [f"buffer_load_dwordx4 v{vL16}, {WS}, s{sT3} offen offset:{1024*i} {kld} lds" for i in range(4)]
    def vdma(): return [f"s_mov_b32 m0, {LW + L_V + hw*4096}", f"s_add_u32 s{sT3}, s{sKV}, {8192 + hw*4096}"] + [f"buffer_load_dwordx4 v{vL16}, {WS}, s{sT3} offen offset:{1024*i} {kld} lds" for i in range(4)]
    kvadv = [f"s_xor_b32 s{sM0A}, s{sM0A}, 8192", f"s_add_u32 s{sKV}, s{sKV}, {32*16384}"]
    A.label(f"{pfx}_side")
    I(f"v_cmp_eq_u32 vcc, -1, v{vT}")
    I(f"s_cbranch_vccz {pfx}_side2")
    A.label(f"{pfx}_lateB")
    if dm: I(f"s_mov_b32 m0, {m0L}")
    I(lateD)
    I(f"s_add_u32 s{sSPIN}, s{sSPIN}, 1")
    I(f"s_cmp_gt_u32 s{sSPIN}, {SPIN_MAX}")
    if not (dm == 2 and w >= 2): I(f"s_waitcnt vmcnt({2 if dm == 2 else 1})")
    I(f"s_cbranch_scc1 {pfx}_lateB_ok")
    for x in mr[4:]: I(x)
    I("s_waitcnt lgkmcnt(0)")
    for x in ckr(M + 16, 16): I(x)
    I(f"s_cbranch_vccnz {pfx}_lateB")
    A.label(f"{pfx}_lateB_ok")
    if not (dm == 2 and w >= 2): I("s_waitcnt vmcnt(0)")
    A.label(f"{pfx}_side2")
    if mega and not dm:
        I(f"s_cmp_eq_u32 s{sKVM}, 0"); I(f"s_cbranch_scc1 {pfx}_late_done")
        kv_wait(A, pfx + "_l", 1)
    I(f"s_branch {pfx}_late_done")
    NR = 0 if rsc else 3
    resets = [f"buffer_store_dwordx4 {vr(NEG,4)}, v{vMW}, {WS}, s{sRA} offen {st}", f"buffer_store_dwordx4 {vr(NEG,4)}, v{vMW}, {WS}, s{sRA} offen offset:1024 {st}",
              f"buffer_store_dword v{NEG}, v{vBST}, {WS}, s{sRB} offen {st}"]
    neg = [f"v_mov_b64 {vr(NEG,2)}, -1", f"v_mov_b64 {vr(NEG+2,2)}, -1"]
    npB = opt.get("npB", 2)
    if e2:
        def chkB(b):
            I("s_waitcnt vmcnt(6)")
            for x in chk(b, vT): I(x)
            I("s_waitcnt vmcnt(4)")
        A.label(f"{pfx}_e1")
        for x in pollB(BS[0]): I(x)
        chkB(BS[1])
        I(f"s_cbranch_vccz {pfx}_go")
        for x in pollB(BS[1]): I(x)
        I(f"s_add_u32 s{sSPIN}, s{sSPIN}, 1")
        I(f"s_cmp_gt_u32 s{sSPIN}, {SPIN_MAX}")
        I(f"s_cbranch_scc1 {pfx}_go")
        A.label(f"{pfx}_e0")
        if w < 2:
            chkB(BS[0])
            if not nohop: I(f"s_cbranch_vccnz {pfx}_e1")
        else:
            I("s_waitcnt vmcnt(0)")
            if dm and mega:
                I(f"s_cmp_eq_u32 s{sKVM}, 0"); I(f"s_cbranch_scc1 {pfx}_kvgo")
                kv_wait(A, pfx + "_l", 1)
                A.label(f"{pfx}_kvgo")
            if dm == 2:
                delay(A, opt.get("dK", 0))
                for x in kdma(): I(x)
            if dm in (1, 3):
                I(f"s_cmp_eq_u32 s{sSTEP}, 0"); I(f"s_cbranch_scc0 {pfx}_go"); I("s_barrier"); I(f"s_branch {pfx}_b1")
    else:
        A.label(f"{pfx}_eslow")
        for x in pollB(BS[0]): I(x)
        I(f"s_add_u32 s{sSPIN}, s{sSPIN}, 1")
        I(f"s_cmp_gt_u32 s{sSPIN}, {SPIN_MAX}")
        I("s_waitcnt vmcnt(0)")
        I(f"s_cbranch_scc1 {pfx}_go")
        for x in ckr(BS[0], 4): I(x)
        I(f"s_cbranch_vccnz {pfx}_eslow")
        I(f"s_branch {pfx}_go")
        npB = opt.get("npB", 2)
        A.label(f"{pfx}_e1")
        for i in range(1, npB):
            y = 2*(npB - 1 - i) + NR
            I(f"s_waitcnt vmcnt({y+1})")
            for x in ckr(BS[i], 4): I(x)
            I(f"s_waitcnt vmcnt({y})")
            I(f"s_cbranch_vccz {pfx}_go")
        I(f"s_branch {pfx}_eslow")
        A.label(f"{pfx}_e0")
        y = 2*(npB - 1) + NR
        I(f"s_waitcnt vmcnt({y+1})")
        for x in ckr(BS[0], 4): I(x)
        I(f"s_waitcnt vmcnt({y})")
        if not nohop: I(f"s_cbranch_vccnz {pfx}_e1")
    A.label(f"{pfx}_go")
    I(f"s_mov_b32 m0, {m0L}")
    T(53)
    if not e2: I(lateD)
    I("s_barrier")
    if e2: I(lateD)
    A.label(f"{pfx}_b1")
    T(0)
    acc = {0: AQ, 1: AK, 2: AV}
    def m1(mat, tau, p): return smf(acc[mat] + 4*tau, M + 4*p, wfrag(mat, tau, p))
    def mm(mat, p): return [m1(mat, 0, p), m1(mat, 1, p)]
    kx = [f"ds_read_b128 {vr(KX+4*i,4)}, v{vKR} offset:{1024*i}" for i in range(8)]
    vx = [f"ds_read_b128 {vr(VX+4*i,4)}, v{vMW} offset:{L_V+1024*i}" for i in range(2)]
    q0p = hs2(AQ) + [cv(AQ+2, AQ)]; q1p = hs2(AQ+4) + [cv(AQ+6, AQ+4)]
    k0p = hs2(AK) + [cv(AQ+3, AK)]; k1p = hs2(AK+4) + [cv(AQ+7, AK+4)]
    dma = ["s_nop 0"]*9 if opt.get("nodma") else kv_dma(A, kld)
    publish = [] if opt.get("nopub") else [f"buffer_store_dwordx4 {vr(PB,4)}, v{vOW}, {WS}, s{sKM} offen {pub}"]
    for x in mr[:4]: I(x)
    I("s_waitcnt lgkmcnt(3)")
    T(10)
    vm = sum([mm(2, p) for p in range(8)], [])
    nb = opt.get("nb", 10)
    ph1 = sum([mm(0, k) + mm(1, k) for k in range(4)], []) + vm[:8]
    vm = vm[8:]
    kvr = vx + kx
    fl = [[] for _ in range(24)]
    fl[2].append("s_waitcnt lgkmcnt(0)")
    for i in range(5, nb - 1): fl[i].append(kvr.pop(0))
    nrd = nb - 1 - 5
    fl[nb-1] += [("s_waitcnt" + ("" if (dm == 2 and w >= 2) else (" vmcnt(4)" if (dm == 3 and w >= 2) else " vmcnt(0)")) + (f" lgkmcnt({nrd - 2})" if dm else "")), "s_barrier"]
    if nb >= 11:
        fl[nb-1] += [mr[4]]; fl[nb] += [mr[5], mr[6]]; fl[nb+1] += [mr[7]]
    else:
        for i in range(4): fl[nb+i].append(mr[4+i])
    c = ckr(M + 16, 16)
    st0 = 22 - len(c) if (mega and not dm) else 23 - len(c)
    assert st0 >= (nb + 1 if nb >= 11 else nb + 3)
    fl[st0].append("s_waitcnt lgkmcnt(2)"); fl[st0+3].append("s_waitcnt lgkmcnt(0)")
    for i, x in enumerate(c):
        if i >= 4 and kvr: fl[st0+i].append(kvr.pop(0))
        fl[st0+i].append(x)
    if rsc == 2 and publish:
        k = nb + 2 + w; fl[k] = [x for x in fl[k] if not x.startswith('v_')] + publish + [x for x in fl[k] if x.startswith('v_')]
    if rsc == 1 and not dm:
        fl[3].append(neg[0]); fl[4].append(neg[1])
        if opt.get("pubat", 1) == 1 and publish: resets[2] = publish[0]
        for i in range(3):
            k = min(nb + 4*i + w + opt.get("rso", 0), 22)
            nv_ = [x for x in fl[k] if not x.startswith("v_")]; vv = [x for x in fl[k] if x.startswith("v_")]
            fl[k] = nv_ + [resets[i]] + vv
    def put(fl, k, items):
        fl[k] = [x for x in fl[k] if not x.startswith("v_")] + items + [x for x in fl[k] if x.startswith("v_")]
    late_vm = []
    if dm:
        if rsc == 1: fl[3].append(neg[0]); fl[4].append(neg[1])
        st3 = [resets[0], resets[1]] + publish
        if dm == 3:
            if w < 2:
                k0 = nb + 8 + w
                put(fl, k0, [st3[0]]); put(fl, k0 + 2, [st3[1]])
                late_vm = [[]]*3 + [[x] for x in st3[2:]]
            else:
                d = kdma()
                put(fl, 0, d[:2])
                for i in range(4): put(fl, 1 + 2*i + hw, [d[2+i]])
                d = vdma()
                fl[nb-1] = d[:2] + fl[nb-1]
                for i in range(4): put(fl, nb + 2*i + hw, [d[2+i]])
                late_vm = [[x] for x in st3]
        elif w < 2:
            for i, x in enumerate(st3): put(fl, nb + 4*i + w, [x])
        else:
            d = vdma() if dm == 2 else kdma()
            put(fl, nb + w - 1, d[:2])
            for i in range(3): put(fl, nb + 4*i + w, [d[2+i]])
            late_vm = [[d[5]]] + ([] if dm == 2 else [vdma()[:3]] + [[x] for x in vdma()[3:]]) + [[x] for x in st3]
    if mega and not dm: fl[22].append(f"s_or_b64 vcc, vcc, s[{sKVM}:{sKVM+1}]")
    slots(A, ph1, fl)
    if not nohop: I(f"s_cbranch_vccnz {pfx}_side")
    A.label(f"{pfx}_late_done")
    T(14)
    assert dm == 3 and rsc == 1 and L_QK == 0
    F1 = [M, M + 4, M + 8, M + 12]; F2 = [AQ, AQ + 4, M + 16, M + 20]
    ONES = AV; LA = AK + 4; OA = AQ; tmx = AK + 4
    def sx(tau, sg): return mf32(S + 4 + 4*tau, KX + 16*tau + 4*sg, F1[sg], "0" if sg == 0 else vr(S + 4 + 4*tau, 4))
    def s0(sg): return mf32(S, F2[sg], F1[sg], "0" if sg == 0 else vr(S, 4))
    def trd(F): return [f"ds_read_b64_tr_b16 {vr(F[sg]+2*rho,2)}, v{vTR} offset:{L_QK + sg*1024 + rho*512}" for sg in range(4) for rho in range(2)]
    ph2 = ([m1(m, t, p) for m in range(2) for t in range(2) for p in range(4, 8)] + vm +
           [sx(1, sg) for sg in range(4)] + [sx(0, sg) for sg in range(4)] + [s0(sg) for sg in range(4)])
    pre = [[] for _ in range(36)]; val = [[] for _ in range(36)]
    kvw = mega and w >= 2
    for i, x in enumerate(late_vm): pre[2*i + (w & 1)] += x
    free = [i for i in range(6) if not pre[i]]
    while kvr: pre[free.pop(0)].append(kvr.pop(0))
    if kvw:
        val[0] += [f"v_lshrrev_b32 v{vT}, 2, v{vL16}"]; val[1] += [f"v_subrev_u32 v{vT}, {LW//4}, v{vT}"]
        pre[14 + hw] += [f"buffer_load_dword v{vFL}, v{vT}, {WS}, s{sPF} offen sc1"]
    if w >= 2: pre[16] += kvadv
    pre[9 + w] += [f"buffer_store_dword v{NEG}, v{vBST}, {WS}, s{sRB} offen {st}"]
    def seq(at, xs):
        for i, x in enumerate(xs): val[at + i].append(x)
    seq(6, hs2(AQ) + [cv(AQ, AQ)]); seq(10, hs2(AQ+4) + [cv(AQ+1, AQ+4)])
    pre[13] = [f"ds_write2_b32 v{vXW}, v{AQ}, v{AQ+1} offset0:0 offset1:128"] + pre[13]
    seq(14, hs2(AK) + [cv(AK, AK)]); seq(18, hs2(AK+4) + [cv(AK+1, AK+4)])
    bq = opt.get("bq", 18); bk = opt.get("bk", 26)
    r1 = trd(F1); r2 = trd(F2)
    wo = sum([frag_rd(NL + i, WBUF[i]) for i in range(NW)], [])
    ops = []
    for i in range(4): ops += [(bq + 1 + i, r1[2*i], None), (bq + 1 + i, r1[2*i+1], f"q{i}")]
    ops.append((21, f"ds_write2_b32 v{vXW}, v{AK}, v{AK+1} offset0:1 offset1:129", "kw"))
    ops += [(24, wo[0], None), (25, wo[1], None)]
    for i in range(4): ops += [(bk + 1 + i, r2[2*i], None), (bk + 1 + i, r2[2*i+1], f"k{i}")]
    nwo = 2
    for sl in range(bk + 5, 36): ops.append((sl, wo[nwo], None)); nwo += 1
    ops.sort(key=lambda o: (o[0], 0 if o[2] == "kw" else 1))
    pre[bq] += ["s_waitcnt lgkmcnt(0)", "s_barrier"]
    for sl, x, tg in ops: pre[sl].append(x)
    def need(sl, tag):
        iss = [o for o in ops if o[0] <= sl]
        k = max(i for i, o in enumerate(iss) if o[2] == tag)
        return f"s_waitcnt lgkmcnt({len(iss) - 1 - k})"
    for i in range(4): pre[23 + i].append(need(23 + i, f"q{i}"))
    pre[bk] += [need(bk, "kw"), "s_barrier"]
    for i in range(4): pre[31 + i].append(need(31 + i, f"k{i}"))
    pre[16] += [f"s_cmp_ge_u32 s{sSTEP}, {opt.get('imm', 61)}"]
    seq(27, hs2(AV) + hs2(AV+4) + [cv(AK+2, AV), cv(AK+3, AV+4)])
    seq(34, [f"v_max3_f32 v{tmx}, v{S+8}, v{S+9}, v{S+10}", f"v_max3_f32 v{tmx}, v{tmx}, v{S+11}, v{S+4}"])
    for i in (4, 5, 8, 9, 12, 17):
        n = len(pre[i]) + len(val[i])
        if n < 2 and not any(x.startswith(("buffer_store", "ds_")) for x in pre[i]): pre[i].append(f"s_nop {1 - n + (0 if val[i] else 1)}")
    slots(A, ph2[:16], [pre[i] + val[i] for i in range(16)])
    T(13)
    slots(A, ph2[16:24], [pre[i] + val[i] for i in range(16, 24)])
    T(2)
    slots(A, ph2[24:], [pre[i] + val[i] for i in range(24, 36)])
    I(f"s_cbranch_scc1 {pfx}_done")
    A.label(f"{pfx}_resume")
    T(3)
    for x in wo[nwo:8]: I(x)
    I(f"v_max3_f32 v{tmx}, v{tmx}, v{S+5}, v{S+6}")
    I(f"v_max_f32 v{tmx}, v{tmx}, v{S+7}")
    I(f"v_mov_b32 v{tmx+2}, s{sSC}")
    I(f"v_xor_b32 v{vKR}, {0 if opt.get('nodma') else 8192}, v{vKR}")
    I(f"v_max3_f32 v{tmx+1}, v{tmx}, v{S+2}, v{S+3}")
    I(f"v_max3_f32 v{tmx}, v{tmx}, v{S+2}, v{S+3}")
    I(f"v_mov_b32 v{ONES}, 0x3f803f80")
    I(f"v_mov_b32 v{ONES+1}, 0x3f803f80")
    I(f"v_permlane32_swap_b32 v{tmx}, v{tmx+1}")
    I(f"v_max_f32 v{tmx}, v{tmx}, v{tmx+1}")
    I(f"v_mov_b32 v{tmx+1}, v{tmx}")
    I(f"v_mov_b64 {vr(ONES+2,2)}, {vr(ONES,2)}")
    I(zero(AV + 4, 4)[0])
    I(f"v_permlane16_swap_b32 v{tmx}, v{tmx+1}")
    I(f"v_max_f32 v{tmx}, v{tmx}, v{tmx+1}")
    I(f"v_mul_f32 v{tmx}, s{sSC}, v{tmx}")
    for i in range(1, 6):
        I(f"v_pk_fma_f32 {vr(S+2*i,2)}, {vr(S+2*i,2)}, {vr(tmx+2,2)}, {vr(tmx,2)} op_sel_hi:[1,0,0] neg_lo:[0,0,1] neg_hi:[0,0,1]")
    ex = [f"v_exp_f32 v{S+i}, v{S+i}" for i in range(12)]
    I(ex[2]); I(ex[3]); I(ex[4])
    I(cv(PZ, S+2)); I(cv(PZ+3, S+2))
    I(ex[5])
    T(4)
    pk = [cv(S+4+i, S+4+2*i) for i in range(4)]
    slots(A, [mf16(OA, AK+2, PZ, "0"), mf16(OA+4, AK+2, PZ+2, "0"), mf16(LA, ONES, PZ, "0")],
          [[wo[8], ex[6], ex[7]], [wo[9], ex[8], ex[9]], [wo[10], ex[10], ex[11]]])
    for x in pk: I(x)
    I(f"v_mov_b64 {vr(PB,2)}, {vr(AK,2)}"); I(f"v_mov_b64 {vr(PB+2,2)}, {vr(AK+2,2)}")
    slots(A, [mf32(LA, ONES, S+4, vr(LA,4)), mf32(OA, VX, S+4, vr(OA,4)), mf32(OA+4, VX+4, S+4, vr(OA+4,4))],
          [[wo[11]] + zero(AK, 2), [wo[12]] + zero(AK+2, 2), [wo[13]] + zero(AV, 4) + zero(AV + 4, 4)[1:]])
    wrest = wo[16:]
    T(40)
    I(f"v_rcp_f32 v{LA}, v{LA}")
    for i in range(4):
        I(f"v_pk_mul_f32 {vr(OA+2*i,2)}, {vr(OA+2*i,2)}, {vr(LA,2)} op_sel_hi:[1,0]")
    for i in range(4): I(cv(OA+i, OA+2*i))
    I(f"ds_write_b128 v{vOW}, {vr(OA,4)} offset:{L_O}")
    T(41)
    WA = [AV, AV + 4, AK, AK + 4]
    OF = [OA, OA + 4, VX, VX + 4]
    def wm(p, j): return smf(WA[p], OF[j], wfrag(3, p, j))
    for i in range(4): I(f"v_mov_b32_dpp v{OA+i}, v{OA+i} quad_perm:[0,1,0,1] row_mask:0xf bank_mask:0xf")
    z = zero(AK + 4, 4)
    I(z[0]); I(z[1])
    sal = [f"s_add_u32 s{sT1}, s{sHA}, 4096", f"s_mov_b32 s{sRB}, s{sHB}", f"s_add_u32 s{sHB}, s{sHB}, 8192",
           f"s_and_b32 s{sHB}, s{sHB}, {hex(0xffffffff ^ (1<<15))}", f"s_sub_u32 s{sB0}, s{sHB}, {LW}", f"s_add_u32 s{sRA}, s{sRC}, s{sHA}",
           f"s_add_u32 s{sKM}, s{sKM}, 4096", f"s_add_u32 s{sSTEP}, s{sSTEP}, 1"]
    npre3 = opt.get("npre3", 2)
    own = [wm(p, 0) for p in range(4)]
    slots(A, own[:npre3], [[wo[14], sal[0]], [wo[15]] + sal[1:3]])
    I("s_waitcnt lgkmcnt(2)")
    T(42)
    I("s_barrier")
    T(5)
    for j in (1, 3, 2): I(f"ds_read_b128 {vr(OF[j],4)}, v{vOR} offset:{L_O + ((j ^ w) << 10)}")
    for x in own[npre3:]: I(x)
    I("s_waitcnt lgkmcnt(2)")
    T(31)
    def post(p):
        x = WA[p]
        return [f"v_cvt_pk_bf16_f32 v{x}, v{x}, v{x+2}", f"v_cvt_pk_bf16_f32 v{x+1}, v{x+1}, v{x+3}",
                f"buffer_store_dwordx2 {vr(x,2)}, v{vAST}, {WS}, s{sHA if p < 2 else sT1} offen offset:{2048*(p&1)} {st}"]
    P = [post(p) for p in range(4)]
    ms = [wm(p, j) for p in range(4) for j in (1, 3, 2)]
    fl = [["s_waitcnt lgkmcnt(1)", wrest[0]], ["s_waitcnt lgkmcnt(1)", wrest[1]], [wrest[2], sal[3]],
          [wrest[3], sal[4]], sal[5:7] + [P[0][0]], sal[7:8] + ["s_nop 0", P[0][1]],
          [P[0][2]], ["s_nop 1", P[1][0]], ["s_waitcnt lgkmcnt(0)", "s_nop 0", P[1][1]],
          [P[1][2]], ["s_nop 1", P[2][0]], P[2][1:3]]
    if opt.get("p6", 0) == 1:
        fl = [["s_waitcnt lgkmcnt(1)", wrest[0]], ["s_waitcnt lgkmcnt(1)", wrest[1]], [wrest[2], sal[3]],
              [wrest[3], sal[4]], sal[5:7] + P[0][0:2], [P[0][2]],
              sal[7:8] + ["s_nop 1"], ["s_nop 1"] + P[1][0:2], [P[1][2], "s_waitcnt lgkmcnt(0)"],
              ["s_nop 2"], ["s_nop 0"] + P[2][0:2], P[2][2:3]]
    if opt.get("p6", 0) == 2:
        fl = [["s_waitcnt lgkmcnt(1)", wrest[0]], ["s_waitcnt lgkmcnt(1)", wrest[1]], sal[3:6],
              sal[6:8] + ["s_nop 1"] + P[0][0:2], [P[0][2]], [wrest[2], "s_nop 0"],
              [wrest[3], "s_nop 0"], ["s_nop 1"] + P[1][0:2], [P[1][2]],
              ["s_waitcnt lgkmcnt(0)", "s_nop 1"], ["s_nop 0"] + P[2][0:2], P[2][2:3]]
    hl = opt.get("hl", 0)
    if hl: fl[11] = P[2][1:2]
    slots(A, ms, fl)
    T(34)
    for x in (P[3][:2] if hl else P[3]): I(x)
    T(6)
    RAs = [M, M + 8]; SEL = M + 16; RD = M + 20
    def pollA(b): return [f"buffer_load_dwordx4 {vr(b,4)}, v{vMW}, {WS}, s{sRA} offen sc1", f"buffer_load_dwordx4 {vr(b+4,4)}, v{vMW}, {WS}, s{sRA} offen offset:1024 sc1"]
    if opt.get("bar6", 1): I("s_barrier")
    work = zero(AQ, 24) + [f"v_cndmask_b32 v{SEL+i}, 0, v{vSEL}, s[{sMSK+2*i}:{sMSK+2*i+1}]" for i in range(4)] + ([] if rsc else neg)
    if rsc == 2:
        for x in neg: I(x)
        if w >= 2:
            I(f"s_xor_b32 s{sT3}, s{sHA}, {256<<10}"); I(f"s_add_u32 s{sT3}, s{sT3}, s{sRC}")
            if w == 3: I(f"s_add_u32 s{sT3}, s{sT3}, 4096")
            for i in range(4): I(f"buffer_store_dwordx4 {vr(NEG,4)}, v{vL16}, {WS}, s{sT3} offen offset:{i*1024} {st}")
    if hl and w >= 2:
        delay(A, opt.get("dH", 24)); I(P[2][2]); I(P[3][2])
    delay(A, opt.get("dA", [20, 32, 48, 60])[w])
    T(51)
    for x in pollA(RAs[0]): I(x)
    if hl and w < 2:
        if w == 0: delay(A, opt.get("dH0", 8))
        I(P[2][2]); I(P[3][2])
    for x in work: I(x)
    delay(A, opt.get("gapA", 4))
    for x in pollA(RAs[1]): I(x)
    I(f"s_xor_b32 s{sHA}, s{sHA}, {256<<10}")
    I(f"s_mov_b32 m0, {m0E}")
    I(f"s_add_u32 s{sT2}, s{sB0}, 4096")
    I(f"s_branch {pfx}_waitA")
    def red(b, n=2):
        I(f"s_waitcnt vmcnt({n})")
        c = chk(b, vT)
        slots(A, [mf32(RD, SEL, b, "0"), mf32(RD, SEL, b + 4, vr(RD, 4))], [c[:2], c[2:]])
    A.label(f"{pfx}_pollA_retry")
    for x in pollA(RAs[0]): I(x)
    I(f"s_add_u32 s{sSPA}, s{sSPA}, 1")
    red(RAs[1])
    I(f"s_cbranch_vccz {pfx}_goA")
    for x in pollA(RAs[1]): I(x)
    I(f"s_cmp_gt_u32 s{sSPA}, {SPIN_MAX}")
    I(f"s_cbranch_scc1 {pfx}_goA")
    if hl and w < 2: I("s_waitcnt vmcnt(2)")
    A.label(f"{pfx}_waitA")
    red(RAs[0], 4 if (hl and w < 2) else 2)
    I("s_nop 3")
    if not nohop: I(f"s_cbranch_vccnz {pfx}_pollA_retry")
    A.label(f"{pfx}_goA_n")
    T(7)
    for rot in (4, 8):
        I(f"v_add_f32_dpp v{RD}, v{RD}, v{RD} row_ror:{rot} row_mask:0xf bank_mask:0xf")
        I(f"v_add_f32_dpp v{RD+1}, v{RD+1}, v{RD+1} row_ror:{rot} row_mask:0xf bank_mask:0xf")
    I(cv(RD, RD))
    I(f"buffer_store_dword v{RD}, v{vBST}, {WS}, s{sHB} offen {st}")
    T(8)
    if rsc == 2: I(resets[2])
    nl0 = opt.get("nl0", 8)
    for x in lres_rd[:nl0]: I(x)
    if kvw:
        I(f"s_cmp_gt_u32 s{sRDY}, 64"); I(f"s_cbranch_scc1 {pfx}_kvall")
        kv_eval(A)
        I(f"s_add_u32 s{sT3}, s{sSTEP}, 1"); I(f"s_cmp_ge_u32 s{sT3}, s{sRDY}"); I(f"s_cselect_b64 s[{sKVM}:{sKVM+1}], -1, 0")
        I(f"s_cmp_gt_u32 s{sRDY}, 64"); I(f"s_cselect_b32 s{sPF}, 0x40000000, s{sPF}")
        I(f"s_branch {pfx}_kvdone")
        A.label(f"{pfx}_kvall")
        I(f"s_mov_b64 s[{sKVM}:{sKVM+1}], 0")
    delay(A, opt.get("dB", [36, 24, 24, 12])[w])
    A.label(f"{pfx}_kvdone")
    T(50)
    rest = lres_rd[nl0:]
    for i in range(0 if (e2 and w >= 2) else npB):
        for x in pollB(BS[i]): I(x)
        if i < npB - 1:
            for x in rest[:2]: I(x)
            delay(A, opt.get("gapB", 16)); rest = rest[2:]
    for x in rest: I(x)
    if not rsc:
        for x in resets: I(x)
    T(52)
    I("s_waitcnt lgkmcnt(0)")
    I(f"s_branch {pfx}_e0")
    A.label(f"{pfx}_goA")
    I("s_nop 3")
    I(f"s_branch {pfx}_goA_n")
    A.label(f"{pfx}_done")
    I(f"s_add_u32 s{sKM}, s{sKM}, 4096")
    if publish: I(f"buffer_store_dwordx4 {vr(AK,4)}, v{vOW}, {WS}, s{sKM} offen {pub}")
    I(f"s_sub_u32 s{sKM}, s{sKM}, 4096")
    I(f"s_cmp_lt_u32 s{sSTEP}, 63")
    I(f"s_cbranch_scc1 {pfx}_resume")
```

```python
from chain import *

sG = 39
D_OVF, D_PINIT, D_CHAIN, D_PROG, D_P2, D_PIN2 = 192, 200, 204, 136, 208, 212
WSS = f"s[{sWS}:{sWS+3}]"
DBG = f"s[{sDBG}:{sDBG+3}]"
SW = f"s[{sW}:{sW+3}]"
OOB = 0x40000000
wLN, wC, wG, wR, wCP, wL16 = 1, 2, 3, 4, 5, 6

TRACE = [False]
CODEPF = [None]
WS_TR = 1 << 20
def TS(A, vreg, lane):
    if not TRACE[0]: return
    A.I("s_memrealtime s[62:63]"); A.I("s_waitcnt lgkmcnt(0)")
    if isinstance(lane, int): A.I(f"v_writelane_b32 v{vreg}, s62, {lane}")
    else:
        A.I(f"s_mov_b32 m0, {lane}"); A.I("s_nop 0"); A.I(f"v_writelane_b32 v{vreg}, s62, m0")
def TDUMP(A, vregs, tmp, dbgw=None):
    if not TRACE[0]: return
    I = A.I
    l = A.newlabel("td")
    I(f"s_cmp_lg_u32 s{sWV}, 0"); I(f"s_cbranch_scc1 {l}")
    I(f"s_lshl_b32 s62, s{sG}, 5"); I(f"s_add_u32 s62, s62, s{sH}"); I("s_lshl_b32 s62, s62, 10"); I(f"s_add_u32 s62, s62, {WS_TR}")
    I(f"v_mbcnt_lo_u32_b32 v{tmp}, -1, 0"); I(f"v_mbcnt_hi_u32_b32 v{tmp}, -1, v{tmp}"); I(f"v_lshlrev_b32 v{tmp}, 2, v{tmp}")
    for i, r in enumerate(vregs): I(f"buffer_store_dword v{r}, v{tmp}, {WSS}, s62 offen offset:{256*i}")
    if dbgw:
        g, w0, lo, n = dbgw
        e = A.newlabel("te")
        I(f"s_cmp_lg_u32 s{sG}, {g}"); I(f"s_cbranch_scc1 {e}"); I(f"s_cmp_lg_u32 s{sH}, 0"); I(f"s_cbranch_scc1 {e}")
        I(f"s_mov_b64 exec, {hex(((1 << n) - 1) << lo)}")
        I(f"buffer_store_dword v{vregs[0]}, v{tmp}, {DBG}, 0 offen offset:{4*(w0 - lo)}")
        I("s_mov_b64 exec, -1")
        A.label(e)
    I("s_waitcnt vmcnt(0)")
    A.label(l)

def srd(A, karg_off, nbytes):
    A.I(f"s_load_dwordx2 s[{sW}:{sW+1}], s[0:1], {karg_off}")
    A.I(f"s_mov_b32 s{sW+2}, {nbytes}")
    A.I(f"s_mov_b32 s{sW+3}, 0x20000")
    A.I("s_waitcnt lgkmcnt(0)")

def prologue(A, force=None, early=1, rot=0):
    I = A.I
    if TRACE[0]: I("s_memrealtime s[64:65]")
    I(f"s_load_dwordx2 s[{sWS}:{sWS+1}], s[0:1], 112")
    I(f"s_load_dwordx2 s[{sDBG}:{sDBG+1}], s[0:1], 104")
    I("s_load_dwordx4 s[48:51], s[0:1], 16"); I("s_load_dwordx4 s[52:55], s[0:1], 32"); I("s_load_dwordx4 s[56:59], s[0:1], 0")
    I("s_cmp_ge_u32 s2, 256")
    I("s_cbranch_scc1 L_end")
    I(f"s_mov_b32 s{sWS+2}, {WS_BYTES}"); I(f"s_mov_b32 s{sWS+3}, 0x20000")
    I(f"s_mov_b32 s{sDBG+2}, 256"); I(f"s_mov_b32 s{sDBG+3}, 0x20000")
    I("v_lshrrev_b32 v1, 6, v0")
    I(f"v_mov_b32 v4, {LDS_BYTES - 16}")
    I(f"v_readfirstlane_b32 s{sWV}, v1")
    I("s_waitcnt lgkmcnt(0)")
    I("s_getreg_b32 s24, hwreg(HW_REG_XCC_ID, 0, 4)")
    if rot:
        I(f"s_sub_u32 s25, s24, {rot}"); I("s_and_b32 s25, s25, 7"); I("s_cmp_lt_u32 s24, 8"); I("s_cselect_b32 s24, s25, s24")
    I("s_xor_b32 s25, s24, 2"); I("s_or_b32 s26, s24, 2"); I("s_cmp_eq_u32 s26, 7"); I("s_cselect_b32 s24, s25, s24")
    I(f"s_cmp_eq_u32 s{sWV}, 0")
    I("s_cbranch_scc1 L_elect")
    if CODEPF[0]:
        I("s_getpc_b64 s[44:45]")
        A.label("L_pc")
        I(f"s_sub_u32 s44, s44, L_pc-{CODEPF[0]}"); I("s_subb_u32 s45, s45, 0")
        I("s_lshr_b32 s26, s2, 3"); I("s_mul_i32 s26, s26, 3072")
        I("v_subrev_u32 v7, 64, v0"); I("v_lshlrev_b32 v7, 4, v7"); I("v_add_u32 v7, s26, v7")
        I(f"v_min_u32 v7, L_end-{CODEPF[0]}-16, v7")
        I("global_load_dwordx4 v[224:227], v7, s[44:45]")
    if early:
        I("s_mov_b32 s47, 0x20000")
        I("v_and_b32 v8, 63, v0")
        I(f"s_cmp_eq_u32 s{sWV}, 1"); I("s_cbranch_scc0 L_tw2")
        I("v_lshlrev_b32 v8, 20, v8"); I(f"s_mov_b32 s46, {4<<20}")
        for r in (50, 52, 48, 54):
            I(f"s_mov_b32 s44, s{r}"); I(f"s_mov_b32 s45, s{r+1}")
            I("buffer_load_dword v220, v8, s[44:47], 0 offen")
        I("s_branch L_elect_wait")
        A.label("L_tw2")
        I(f"s_cmp_eq_u32 s{sWV}, 2"); I("s_cbranch_scc0 L_tw3")
        I("v_lshlrev_b32 v8, 20, v8")
        I("s_mov_b32 s44, s58"); I("s_mov_b32 s45, s59"); I("s_mov_b32 s46, 8192")
        I("buffer_load_dword v220, v8, s[44:47], 0 offen")
        I("s_mov_b32 s44, s56"); I("s_mov_b32 s45, s57"); I(f"s_mov_b32 s46, {2<<20}")
        I("buffer_load_dword v220, v8, s[44:47], 0 offen")
        I("s_branch L_elect_wait")
        A.label("L_tw3")
        I("v_lshlrev_b32 v8, 21, v8")
        mask = sum(1 << i for i in ([0, 1, 24, 25] if early == 1 else range(38)))
        I(f"s_mov_b32 exec_lo, {hex(mask & 0xffffffff)}"); I(f"s_mov_b32 exec_hi, {hex(mask >> 32)}")
        I(f"buffer_load_dword v220, v8, {WSS}, 0 offen offset:4092 sc1")
        I("s_mov_b64 exec, -1")
    I("s_branch L_elect_wait")
    A.label("L_elect")
    if force == "skew":
        I("s_lshr_b32 s24, s2, 4"); I("s_and_b32 s24, s24, 15")
    I("s_and_b32 s25, s24, 1"); I("s_lshl_b32 s25, s25, 6")
    I("s_lshr_b32 s26, s24, 1"); I("s_lshl_b32 s26, s26, 2")
    I("s_add_u32 s25, s25, s26")
    I("s_cmp_eq_u32 s24, 0")
    I("s_cselect_b32 s25, 128, s25")
    I("s_mov_b64 exec, 1")
    I("v_mov_b32 v1, 1"); I("v_mov_b32 v2, s25")
    I(f"buffer_atomic_add v1, v2, {DBG}, 0 offen sc0")
    I("s_waitcnt vmcnt(0)")
    I("v_readfirstlane_b32 s25, v1")
    I("s_mov_b64 exec, -1")
    I("s_mov_b32 s40, 0")
    I("s_cmp_ge_u32 s24, 8"); I("s_cbranch_scc1 L_ovf")
    I("s_cmp_lt_u32 s25, 32"); I("s_cbranch_scc1 L_elect_pub")
    A.label("L_ovf")
    I("s_mov_b64 exec, 1")
    I("v_mov_b32 v1, 1"); I(f"v_mov_b32 v2, {D_OVF}")
    I(f"buffer_atomic_add v1, v2, {DBG}, 0 offen sc0")
    I("s_waitcnt vmcnt(0)")
    I("v_readfirstlane_b32 s26, v1")
    I("s_mov_b64 exec, -1")
    I("v_lshlrev_b32 v2, 2, v0")
    I("s_mov_b32 s28, 0")
    def word(x): return 32 if x == 0 else (x & 1) * 16 + (x >> 1)
    A.label("L_ovf_poll")
    I(f"buffer_load_dword v1, v2, {DBG}, 0 offen sc1")
    I("s_add_u32 s28, s28, 1")
    I("s_waitcnt vmcnt(0)")
    I("s_mov_b32 s27, 0")
    for x in range(16):
        I(f"v_readlane_b32 s25, v1, {word(x)}"); I("s_add_u32 s27, s27, s25")
    I(f"s_cmp_gt_u32 s28, {SPIN_MAX}"); I("s_cbranch_scc1 L_ovf_go")
    I("s_cmp_lt_u32 s27, 256"); I("s_cbranch_scc1 L_ovf_poll")
    A.label("L_ovf_go")
    I("s_mov_b32 s40, 1")
    for x in range(8):
        I(f"v_readlane_b32 s25, v1, {word(x)}")
        I("s_min_u32 s25, s25, 32")
        I("s_add_u32 s25, s25, s26")
        I(f"s_mov_b32 s24, {x}")
        I("s_cmp_lt_u32 s25, 32"); I("s_cbranch_scc1 L_elect_pub")
        I("s_sub_u32 s26, s25, 32")
    I("s_mov_b32 s24, 8")
    A.label("L_elect_pub")
    I("s_lshl_b32 s24, s24, 8"); I("s_lshl_b32 s26, s40, 16"); I("s_add_u32 s24, s24, s25"); I("s_add_u32 s24, s24, s26")
    I("v_mov_b32 v1, s24")
    I("ds_write_b32 v4, v1")
    I("s_waitcnt lgkmcnt(0)")
    A.label("L_elect_wait")
    I("s_barrier")
    I("ds_read_b32 v1, v4")
    I("s_waitcnt lgkmcnt(0)")
    I("v_readfirstlane_b32 s24, v1")
    I(f"s_and_b32 s{sH}, s24, 31")
    I(f"s_bfe_u32 s{sG}, s24, {hex((8 << 16) | 8)}")
    I("s_lshr_b32 s40, s24, 16")
    I(f"s_cmp_ge_u32 s{sG}, 8"); I("s_cbranch_scc1 L_end")

def signal_add(A, srdname, off_sgpr_or_imm, val, t0, t1):
    I = A.I
    l = A.newlabel("sig")
    I(f"s_cmp_lg_u32 s{sWV}, 0"); I(f"s_cbranch_scc1 {l}")
    I(f"v_mov_b32 v{t0}, {val}"); I(f"v_mov_b32 v{t1}, {off_sgpr_or_imm}")
    I("s_mov_b64 exec, 1")
    I(f"buffer_atomic_add v{t0}, v{t1}, {srdname}, 0 offen")
    I("s_mov_b64 exec, -1")
    A.label(l)

def signal_store(A, off, val, t0, t1):
    I = A.I
    l = A.newlabel("sig")
    I(f"s_cmp_lg_u32 s{sWV}, 0"); I(f"s_cbranch_scc1 {l}")
    I(f"v_mov_b32 v{t0}, {val}"); I(f"v_mov_b32 v{t1}, {off}")
    I("s_mov_b64 exec, 1")
    I(f"buffer_store_dword v{t0}, v{t1}, {WSS}, 0 offen sc1")
    I("s_mov_b64 exec, -1")
    A.label(l)

def wait_ge(A, srdname, off, target, t0, t1, sres, sleep=2, mask=None, barrier=True, allwaves=False):
    I = A.I
    l = A.newlabel("wt"); e = A.newlabel("wte")
    if not allwaves:
        I(f"s_cmp_lg_u32 s{sWV}, 0"); I(f"s_cbranch_scc1 {e}")
    I(f"v_mov_b32 v{t1}, {off}")
    A.label(l)
    I(f"buffer_load_dword v{t0}, v{t1}, {srdname}, 0 offen sc1")
    I(f"s_add_u32 s{sSPIN}, s{sSPIN}, 1")
    I("s_waitcnt vmcnt(0)")
    I(f"v_readfirstlane_b32 s{sres}, v{t0}")
    I(f"s_cmp_gt_u32 s{sSPIN}, {SPIN_MAX}"); I(f"s_cbranch_scc1 {e}")
    if mask is not None:
        I(f"s_and_b32 s{sres+1}, s{sres}, {mask}"); I(f"s_cmp_ge_u32 s{sres+1}, {target}")
    else:
        I(f"s_cmp_ge_u32 s{sres}, {target}")
    I(f"s_cbranch_scc1 {e}")
    if sleep: I(f"s_sleep {sleep}")
    I(f"s_branch {l}")
    A.label(e)
    if barrier: I("s_barrier")

sLOC = 31
sSEG, sXB, sCNT, sA0, sA1 = 18, 19, 20, 21, 22
sD0, sD1, sD2 = 34, 35, 36
def dual(A, fn):
    g = A.newlabel("dg"); e = A.newlabel("de")
    A.I(f"s_cmp_eq_u32 s{sLOC}, 0"); A.I(f"s_cbranch_scc1 {g}")
    fn(""); A.I(f"s_branch {e}")
    A.label(g); fn("sc1"); A.label(e)

def group_mode(A, t0, t1):
    I = A.I
    I(f"s_and_b32 s24, s{sG}, 1"); I("s_lshl_b32 s24, s24, 6"); I(f"s_lshr_b32 s25, s{sG}, 1"); I("s_lshl_b32 s25, s25, 2"); I("s_add_u32 s24, s24, s25")
    I(f"v_mov_b32 v{t1}, s24")
    I(f"buffer_load_dword v{t0}, v{t1}, {DBG}, 0 offen sc1")
    I("s_waitcnt vmcnt(0)")
    I(f"v_readfirstlane_b32 s24, v{t0}")
    I("s_cmp_ge_u32 s24, 32"); I(f"s_cselect_b32 s{sLOC}, 1, 0")

def gsignal(A, sline, t0, t1):
    I = A.I
    l = A.newlabel("gs")
    I(f"s_cmp_lg_u32 s{sWV}, 0"); I(f"s_cbranch_scc1 {l}")
    I(f"s_lshl_b32 s24, s{sH}, 2")
    I(f"s_add_u32 s25, s{sSEG}, 1"); I(f"v_mov_b32 v{t0}, s25"); I(f"v_mov_b32 v{t1}, s24")
    I("s_mov_b64 exec, 1")
    dual(A, lambda f: I(f"buffer_store_dword v{t0}, v{t1}, {WSS}, s{sline} offen {f}"))
    I("s_mov_b64 exec, -1")
    A.label(l)

def gwait(A, sline, t0, t1, sleep=0, barrier=True):
    I = A.I
    l = A.newlabel("gw"); e = A.newlabel("gwe")
    I(f"s_cmp_lg_u32 s{sWV}, 0"); I(f"s_cbranch_scc1 {e}")
    I(f"v_and_b32 v{t1}, 31, v{wLN}"); I(f"v_lshlrev_b32 v{t1}, 2, v{t1}")
    A.label(l)
    I(f"buffer_load_dword v{t0}, v{t1}, {WSS}, s{sline} offen sc1")
    I(f"s_add_u32 s{sSPIN}, s{sSPIN}, 1")
    I(f"s_cmp_gt_u32 s{sSPIN}, {SPIN_MAX}"); I(f"s_cbranch_scc1 {e}")
    I("s_waitcnt vmcnt(0)")
    I(f"v_cmp_ge_u32 vcc, s{sSEG}, v{t0}")
    if sleep: I(f"s_sleep {sleep}")
    I(f"s_cbranch_vccnz {l}")
    A.label(e)
    if barrier: I("s_barrier")

def allreduce(A, regs, tmp, op="add"):
    I = A.I
    for rot in (8, 4, 2, 1):
        for r in regs: I(f"v_{op}_f32_dpp v{r}, v{r}, v{r} row_ror:{rot} row_mask:0xf bank_mask:0xf")
    for sw in ("16", "32"):
        for r in regs:
            I(f"v_mov_b32 v{tmp}, v{r}")
            I(f"v_permlane{sw}_swap_b32 v{r}, v{tmp}")
            I(f"v_{op}_f32 v{r}, v{r}, v{tmp}")

def unpack(A, src, dst, n):
    for i in range(n):
        A.I(f"v_lshlrev_b32 v{dst+2*i}, 16, v{src+i}")
        A.I(f"v_and_b32 v{dst+2*i+1}, 0xffff0000, v{src+i}")

def rbf(A, r):
    A.I(f"v_cvt_pk_bf16_f32 v{r}, v{r}, v{r}")
    A.I(f"v_and_b32 v{r}, 0xffff0000, v{r}")

def ln_finish(A, mean, var):
    I = A.I
    rbf(A, mean); rbf(A, var)
    I(f"v_add_f32 v{var}, {hex(f2u(1e-5))}, v{var}")
    rbf(A, var)
    I(f"v_sqrt_f32 v{var}, v{var}")
    rbf(A, var)
    I(f"v_rcp_f32 v{var}, v{var}")

def ln_row(A, x, out, t):
    I = A.I
    m, v, tm, d = t, t + 1, t + 2, t + 4
    I(f"v_add_f32 v{m}, v{x}, v{x+1}")
    for i in range(2, 8): I(f"v_add_f32 v{m}, v{m}, v{x+i}")
    allreduce(A, [m], tm)
    I(f"v_mul_f32 v{m}, {hex(f2u(1/512))}, v{m}")
    for i in range(8): I(f"v_sub_f32 v{d+i}, v{x+i}, v{m}")
    I(f"v_mul_f32 v{v}, v{d}, v{d}")
    for i in range(1, 8): I(f"v_fmac_f32 v{v}, v{d+i}, v{d+i}")
    allreduce(A, [v], tm)
    I(f"v_mul_f32 v{v}, {hex(f2u(1/512))}, v{v}")
    ln_finish(A, m, v)
    for i in range(8): I(f"v_sub_f32 v{d+i}, v{x+i}, v{m}")
    for i in range(4): I(cv(out + i, d + 2*i))
    unpack(A, out, d, 4)
    for i in range(8): I(f"v_mul_f32 v{d+i}, v{d+i}, v{v}")
    for i in range(4): I(cv(out + i, d + 2*i))

def lanes(A):
    I = A.I
    I(f"v_and_b32 v{wLN}, 63, v0")
    I(f"v_and_b32 v{wC}, 15, v{wLN}")
    I(f"v_lshrrev_b32 v{wG}, 4, v{wLN}")
    I(f"v_lshrrev_b32 v{wR}, 2, v{wC}")
    I(f"v_and_b32 v{wCP}, 3, v{wC}")
    I(f"v_lshlrev_b32 v{wL16}, 4, v{wLN}")
    I(f"s_mov_b32 s{sSPIN}, 0")

def touch_weights(A, dst, mats):
    I = A.I
    if not mats: return
    I(f"s_lshl_b32 s26, s{sG}, 5"); I(f"s_add_u32 s26, s26, s{sH}"); I("s_sub_u32 s26, s26, 32"); I("s_mul_i32 s26, s26, 18944")
    I("v_lshlrev_b32 v7, 4, v0")
    I(f"s_mov_b32 s46, {4<<20}"); I("s_mov_b32 s47, 0x20000")
    n = 0
    for m in mats:
        if m == "i":
            I("s_load_dwordx2 s[44:45], s[0:1], 64"); I(f"s_mov_b32 s46, {512*1376*2}")
            I(f"s_lshl_b32 s27, s{sG}, 5"); I(f"s_add_u32 s27, s27, s{sH}"); I("s_sub_u32 s27, s27, 32"); I("s_mul_i32 s27, s27, 6400"); I("s_add_u32 s26, s27, 4096")
            I("s_waitcnt lgkmcnt(0)")
            I(f"buffer_load_dwordx4 v[{dst}:{dst+3}], v7, s[44:47], s27 offen"); I(f"buffer_load_dwordx4 v[{dst}:{dst+3}], v7, s[44:47], s26 offen")
            continue
        r = {"q": 48, "k": 50, "v": 52, "o": 54}[m]
        I(f"s_mov_b32 s44, s{r}"); I(f"s_mov_b32 s45, s{r+1}"); I("s_mov_b32 s27, s26")
        for i in range(5):
            I(f"buffer_load_dwordx4 v[{dst+4*n}:{dst+3+4*n}], v7, s[44:47], s27 offen"); n += 1
            I("s_add_u32 s27, s27, 4096")

def s_init(A, opt={}):
    I = A.I
    for _ in range(opt.get("sdelay", 0)): I("s_sleep 32")
    srd(A, 0, 2 << 20)
    I(f"s_lshl_b32 s25, s{sWV}, 12"); I(f"s_lshl_b32 s24, s{sH}, 14"); I("s_add_u32 s24, s24, s25")
    I(f"s_lshl_b32 s25, s{sWV}, 14"); I(f"v_add_u32 v9, s25, v{wL16}")
    I("v_lshlrev_b32 v10, 3, v0"); I("v_mov_b64 v[12:13], 0"); I(f"s_lshl_b32 s26, s{sH}, 11")
    I(f"buffer_store_dwordx2 v[12:13], v10, {WSS}, s26 offen sc1")
    for q in range(4):
        I(f"s_add_u32 m0, s25, {q*4096}"); I(f"s_add_u32 s26, s24, {q*512*1024}")
        for i in range(4): I(f"buffer_load_dwordx4 v{wL16}, {SW}, s26 offen offset:{i*1024} lds")
    tw = opt.get("tw", ["k", "v", "qo", "i"])
    I(f"s_add_u32 s24, s24, {WS_XN}"); I("s_mov_b32 s28, 0")
    I("s_waitcnt vmcnt(12)")
    class Rec:
        def __init__(self): self.l = []
        def I(self, x): self.l.append(x)
    NR_ = 4
    A.label("S_ln")
    for r in range(NR_): I(f"ds_read_b128 {vr(16+24*r,4)}, v9 offset:{r*1024}")
    I(f"v_add_u32 v9, {NR_*1024}, v9")
    I("s_waitcnt lgkmcnt(0)")
    recs = []
    for r in range(NR_):
        R = Rec(); unpack(R, 16 + 24*r, 20 + 24*r, 4); ln_row(R, 20 + 24*r, 16 + 24*r, 28 + 24*r); recs.append(R.l)
    for tup in zip(*recs):
        for x in tup: I(x)
    for r in range(NR_): I(f"buffer_store_dwordx4 {vr(16+24*r,4)}, v{wL16}, {WSS}, s24 offen offset:{r*1024} sc1")
    I(f"s_add_u32 s24, s24, {512*1024}"); I("s_add_u32 s28, s28, 1")
    I("s_cmp_lg_u32 s28, 1"); I("s_cbranch_scc1 S_ln2")
    I("s_waitcnt vmcnt(0)")
    I("s_barrier")
    signal_add(A, DBG, D_PINIT, 2, 10, 11)
    TS(A, 112, 3)
    A.label("S_ln2")
    I("s_cmp_lt_u32 s28, 4"); I("s_cbranch_scc1 S_ln")
    I("s_waitcnt vmcnt(0)")
    I("s_barrier")
    signal_add(A, DBG, D_PIN2, 2, 10, 11)
    if TRACE[0]: I("v_writelane_b32 v112, s64, 0")
    TS(A, 112, 1)
    touch_weights(A, 128, "".join(tw[2:]))
    for i in range(4): I(f"v_mov_b32 v{12+i}, -1")
    I("v_lshlrev_b32 v10, 4, v0")
    pt = opt.get("pthr", 2)
    for base, mul, n in ((WS_Z, 172*1024, 43), (WS_ZS, 32768, 8), (WS_U, 98304, 24)):
        l = A.newlabel("si")
        I(f"s_mul_i32 s24, s{sH}, {mul}"); I(f"s_add_u32 s24, s24, {base}"); I("s_mov_b32 s25, 0")
        A.label(l)
        if pt: I(f"s_waitcnt vmcnt({pt - 1})")
        I(f"buffer_store_dwordx4 v[12:15], v10, {WSS}, s24 offen sc1")
        I("s_add_u32 s24, s24, 4096"); I("s_add_u32 s25, s25, 1"); I(f"s_cmp_lt_u32 s25, {n}"); I(f"s_cbranch_scc1 {l}")
    I("s_waitcnt vmcnt(0)")
    I("s_barrier")
    signal_add(A, DBG, D_P2, 2, 10, 11)
    TS(A, 112, 2)
    if opt.get("swsp", 0):
        srd(A, 72, 8 << 20)
        I("v_lshlrev_b32 v10, 4, v0"); I(f"s_lshl_b32 s24, s{sH}, 18"); I("s_mov_b32 s25, 0")
        A.label("S_wsp")
        I(f"s_waitcnt vmcnt({opt.get('wthr', 4) - 1})")
        I(f"buffer_load_dwordx4 v[128:131], v10, {SW}, s24 offen")
        I("s_add_u32 s24, s24, 4096"); I("s_add_u32 s25, s25, 1"); I("s_cmp_lt_u32 s25, 64"); I("s_cbranch_scc1 S_wsp")
    TS(A, 112, 4)
    TDUMP(A, [112], 10)
    wait_ge(A, DBG, D_P2, 64, 10, 11, 24, sleep=16, barrier=False, allwaves=True)
    I("s_mov_b32 s38, 0")

def w256_addr(A, vd, vt):
    I = A.I
    I(f"s_lshl_b32 s24, s{sWV}, 2")
    I(f"v_add_u32 v{vd}, s24, v{wG}")
    I(f"v_lshlrev_b32 v{vd}, 13, v{vd}")
    I(f"s_lshr_b32 s24, s{sWV}, 1"); I("s_lshl_b32 s24, s24, 3")
    I(f"v_lshlrev_b32 v{vt}, 1, v{wG}")
    I(f"v_or_b32 v{vt}, s24, v{vt}")
    I(f"v_xor_b32 v{vt}, v{wC}, v{vt}")
    I(f"v_lshl_add_u32 v{vd}, v{vt}, 4, v{vd}")
    I(f"s_lshl_b32 s24, s{sH}, 8")
    I(f"v_add_u32 v{vd}, s24, v{vd}")
    I(f"v_and_b32 v{vt}, 1, v{wG}")
    I(f"v_lshl_add_u32 v{vt}, v{vt}, 2, v{wR}")
    I(f"s_lshl_b32 s24, s{sWV}, 1")
    I(f"v_xor_b32 v{vt}, s24, v{vt}")
    I(f"v_lshlrev_b32 v{vt}, 5, v{vt}")
    I(f"v_lshl_add_u32 v{vt}, v{wCP}, 3, v{vt}")
    I(f"v_lshl_add_u32 v{vt+1}, v{wG}, 3, v{wR}")
    I(f"v_lshl_add_u32 v{vt}, v{vt+1}, 8, v{vt}")
    I(f"v_xor_b32 v{vt+1}, 32, v{vt}")
def w256_dma(A, vd, half, thr=0):
    I = A.I
    I(f"s_lshl_b32 s24, s{sWV}, 10")
    for i in range(16):
        I(f"s_add_u32 m0, s24, {half*65536 + i*4096}")
        I(f"s_mov_b32 s25, {(256*half + 16*i)*8192}")
        if thr: I(f"s_waitcnt vmcnt({thr - 1})")
        I(f"buffer_load_dwordx4 v{vd}, {SW}, s25 offen lds")
def w256_read(A, vt, half, abase):
    for eps in range(2):
        for k in range(8):
            for u in range(2):
                A.I(f"ds_read_b64_tr_b16 {ar(abase + (eps*16 + 8*half + k)*4 + 2*u, 2)}, v{vt+eps} offset:{(32*k + 4*u)*256}")
    A.I("s_waitcnt lgkmcnt(0)")
    A.I(f"v_xor_b32 v{vt}, 0x10000, v{vt}"); A.I(f"v_xor_b32 v{vt+1}, 0x10000, v{vt+1}")

def w1k_addr(A, vd, vt, sbase_bytes):
    I = A.I
    I(f"s_lshl_b32 s24, s{sWV}, 6")
    I(f"v_xor_b32 v{vd}, s24, v{wL16}")
    I(f"s_lshl_b32 s24, s{sWV}, 10")
    if sbase_bytes: I(f"s_add_u32 s24, s24, {sbase_bytes}")
    I(f"v_add_u32 v{vd}, s24, v{vd}")
    I(f"v_lshl_add_u32 v{vt}, v{wG}, 2, v{wR}")
    I(f"v_lshlrev_b32 v{vt}, 10, v{vt}")
    I(f"v_lshl_add_u32 v{vt}, v{wR}, 6, v{vt}")
    I(f"v_lshl_add_u32 v{vt}, v{wCP}, 4, v{vt}")
    I(f"s_lshl_b32 s24, s{sWV}, 8")
    I(f"v_add_u32 v{vt}, s24, v{vt}")
    for p in range(1, 4): I(f"v_xor_b32 v{vt+p}, {p<<6}, v{vt}")
def w1k_dma(A, vd, row0, nrows, lds, thr=0):
    I = A.I
    I(f"s_lshl_b32 s24, s{sWV}, 10")
    for i in range(nrows // 4):
        I(f"s_add_u32 m0, s24, {lds + i*4096}")
        I(f"s_mov_b32 s25, {(row0 + 4*i)*1024}")
        if thr: I(f"s_waitcnt vmcnt({thr - 1})")
        I(f"buffer_load_dwordx4 v{vd}, {SW}, s25 offen lds")
def w1k_rd(vt, t8, ksl, u, dst):
    return f"ds_read_b64_tr_b16 {dst}, v{vt + (t8>>1)} offset:{(32*ksl + 16*u)*1024 + (t8&1)*8}"

def rows_addr(A, vd, va, perm=False):
    I = A.I
    if not perm:
        I(f"v_xor_b32 v{va}, v{wG}, v{wC}")
        I(f"v_lshlrev_b32 v{va}, 4, v{va}")
        I(f"v_lshl_add_u32 v{va}, v{wC}, 10, v{va}")
    for k in range(1, 4): I(f"v_xor_b32 v{va+k}, {k<<6}, v{va}")
def rows_dma(A, vtmp, sbase, lds, ld="sc1"):
    I = A.I
    I(f"s_lshl_b32 s24, s{sWV}, 13")
    I(f"s_add_u32 s25, s24, s{sbase}")
    I(f"s_and_b32 s26, s{sWV}, 1"); I("s_lshl_b32 s26, s26, 7")
    for i in range(8):
        I(f"s_add_u32 s27, s26, {i<<4}")
        I(f"v_xor_b32 v{vtmp}, s27, v{wL16}")
        if isinstance(lds, int): I(f"s_add_u32 m0, s24, {lds + i*1024}")
        else:
            I(f"s_add_u32 s27, s24, {i*1024}"); I(f"s_add_u32 m0, s27, {lds}")
        I(f"buffer_load_dwordx4 v{vtmp}, {WSS}, s25 offen {ld} lds")
        I("s_add_u32 s25, s25, 1024")

def rows_dma_prep(A, sbase, lds):
    I = A.I
    I(f"s_lshl_b32 s{sD0}, s{sWV}, 13")
    I(f"s_add_u32 s{sD1}, s{sD0}, s{sbase}")
    I(f"s_add_u32 s{sD0}, s{sD0}, {lds}")
    I(f"s_and_b32 s{sD2}, s{sWV}, 1"); I(f"s_lshl_b32 s{sD2}, s{sD2}, 7")
def rows_dma_items(vtmp):
    return [([f"s_mov_b32 m0, s{sD0}", f"s_add_u32 s{sD0}, s{sD0}, 1024", f"v_xor_b32 v{vtmp}, s{sD2}, v{wL16}"],
             [f"buffer_load_dwordx4 v{vtmp}, {WSS}, s{sD1} offen sc1 lds", f"s_add_u32 s{sD1}, s{sD1}, 1024", f"s_add_u32 s{sD2}, s{sD2}, 16"]) for i in range(8)]

def h_phase1(A, opt={}):
    I = A.I
    vD, vTt, vXA, vTm = 8, 10, 12, 16
    if TRACE[0]: I("v_writelane_b32 v112, s64, 0")
    TS(A, 112, 1)
    tw = opt.get("tw", ["k", "v", "qo", "i"])
    touch_weights(A, 128, tw[0])
    w256_addr(A, vD, vTt)
    if opt.get("hold"):
        I(f"s_cmp_lt_u32 s{sG}, {opt['hold'][0]}"); I("s_cbranch_scc1 H1_nohold")
        wait_ge(A, DBG, D_PROG, 32, 20, 21, 24, sleep=16)
        A.label("H1_nohold")
    srd(A, 24, 4 << 20)
    thr = opt.get('thr', 4)
    def late(i):
        if tw[i]:
            touch_weights(A, 128, tw[i])
    def wd(half):
        t2 = opt.get("thr2")
        if not t2: return w256_dma(A, vD, half, thr)
        l = A.newlabel("th"); e = A.newlabel("te")
        I(f"s_cmp_ge_u32 s{sG}, {t2[0]}"); I(f"s_cbranch_scc1 {l}")
        w256_dma(A, vD, half, thr); I(f"s_branch {e}")
        A.label(l); w256_dma(A, vD, half, t2[1]); A.label(e)
    wd(0); late(1); wd(1)
    rows_addr(A, None, vXA)
    sNXT, sPRV, sQUO = 33, 57, 56
    sSTP, sSTX = 56, 59
    I(f"s_cmp_ge_u32 s{sG}, 6"); I("s_cselect_b32 s24, 2, 1"); I(f"s_cselect_b32 s{sSTP}, 2, 8"); I(f"s_cselect_b32 s{sSTX}, 4, 0")
    I(f"s_sub_u32 s{sNXT}, s{sG}, s24")
    I(f"s_lshl_b32 s24, s{sH}, 7"); I(f"s_add_u32 s24, s24, {F_TK}"); I("v_mov_b32 v22, s24"); I(f"v_mov_b32 v19, {LDS_BYTES - 16}")
    def tk_req():
        l = A.newlabel("tk")
        I(f"s_cmp_lg_u32 s{sWV}, 0"); I(f"s_cbranch_scc1 {l}")
        I("v_mov_b32 v23, 1"); I("s_mov_b64 exec, 1")
        I(f"buffer_atomic_add v23, v22, {WSS}, 0 offen sc0")
        I("s_mov_b64 exec, -1")
        A.label(l)
    def tk_put():
        l = A.newlabel("tk")
        I(f"s_cmp_lg_u32 s{sWV}, 0"); I(f"s_cbranch_scc1 {l}")
        I("s_mov_b64 exec, 1"); I("ds_write_b32 v19, v23"); I("s_mov_b64 exec, -1"); I("s_waitcnt lgkmcnt(0)")
        A.label(l)
    def tk_get(dst):
        I("ds_read_b32 v20, v19"); I("v_xor_b32 v19, 8, v19"); I("s_waitcnt lgkmcnt(0)"); I(f"v_readfirstlane_b32 s{dst}, v20")
    for ci in range(4):
        I(f"s_waitcnt vmcnt({16 if ci < 3 else 0})")
        if ci == 2: tk_put()
        I("s_barrier")
        if ci == 2: tk_get(sSEG)
        w256_read(A, vTt, ci & 1, 128 * (ci >> 1))
        I("s_barrier")
        if ci == 0: srd(A, 32, 4 << 20)
        if ci == 1:
            wait_ge(A, DBG, D_PINIT, 64, 20, 21, 24, barrier=False)
            tk_req()
        if ci < 2: late(2 + ci); wd(ci)
        if ci == 2:
            I(f"s_lshl_b32 s{sA0}, s{sSEG}, 15"); I(f"s_add_u32 s{sA0}, s{sA0}, {WS_XN}")
            I(f"s_cmp_ge_u32 s{sSEG}, 64"); I(f"s_cselect_b32 s{sA0}, {OOB}, s{sA0}")
            I(f"s_mov_b32 s{sXB}, 0")
            rows_dma(A, vTm, sA0, 0)
    TS(A, 112, 2)
    TS(A, 112, 3)
    I(f"s_mov_b32 s{sCNT}, 0")
    for i in range(4): I(f"v_mov_b32 v{104+i}, -1")
    I(f"s_mov_b32 s{sPRV}, 64"); I("s_mov_b32 s58, 64")
    bg = opt.get("bg", 1)
    vBG, vWD, vWT = 17, 18, 108
    sBM, sBO, sBS = 30, 31, 32
    if bg:
        I(f"s_lshl_b32 s28, s{sH}, 17")
        w1k_addr(A, vWD, vWT, "s28")
        I("s_mov_b32 s40, s48"); I("s_mov_b32 s41, s49"); I(f"s_mov_b32 s42, {4<<20}"); I("s_mov_b32 s43, 0x20000"); I("s_mov_b64 vcc, 0")
        I(f"v_mov_b32 v{vBG}, v{vD}"); I(f"s_mov_b32 s{sBS}, {16*8192}"); I(f"s_mov_b32 s{sBO}, 0"); I(f"s_mov_b32 s{sBM}, 65536")
        I(f"v_xor_b32 v{vTt}, 0x10000, v{vTt}"); I(f"v_xor_b32 v{vTt+1}, 0x10000, v{vTt+1}")
    def flag(sreg):
        l = A.newlabel("fl")
        I(f"s_cmp_ge_u32 s{sreg}, 64"); I(f"s_cbranch_scc1 {l}")
        I(f"s_lshl_b32 s28, s{sH}, 6"); I(f"s_add_u32 s28, s28, s{sreg}"); I("s_lshl_b32 s28, s28, 2")
        signal_store(A, "s28", 1, 20, 21)
        A.label(l)
    assert F_KV == 0
    A.label("H1_loop")
    I(f"s_cmp_gt_u32 s{sCNT}, 1"); I("s_cbranch_scc1 H1_lag")
    I("s_waitcnt vmcnt(0)")
    I(f"s_mov_b32 s58, s{sPRV}")
    A.label("H1_lag")
    I("s_waitcnt vmcnt(5)")
    I("s_barrier")
    I(f"s_add_u32 s{sNXT}, s{sNXT}, s{sSTP}"); I(f"s_xor_b32 s{sSTP}, s{sSTP}, s{sSTX}")
    flag(58)
    I(f"s_cmp_eq_u32 s{sCNT}, 1"); I("s_cbranch_scc0 H1_np2")
    wait_ge(A, DBG, D_PIN2, 64, 20, 21, 24, barrier=False, allwaves=True)
    A.label("H1_np2")
    if TRACE[0]: I(f"s_add_u32 s61, s{sCNT}, 8")
    TS(A, 112, "s61")
    if bg:
        I(f"s_cmp_lt_u32 s{sG}, 6"); I("s_cbranch_scc1 H1_bgh")
        w0 = opt.get("w0", 6)
        I(f"s_cmp_eq_u32 s{sCNT}, {w0 + 4}"); I("s_cbranch_scc1 H1_bge")
        I(f"s_cmp_lg_u32 s{sCNT}, {w0}"); I("s_cbranch_scc1 H1_bga2")
        I("s_load_dwordx2 s[40:41], s[0:1], 72"); I(f"s_mov_b32 s42, {8<<20}")
        I(f"v_lshlrev_b32 v{vBG}, 4, v0"); I(f"s_mov_b32 s{sBS}, 4096")
        I(f"s_lshl_b32 s{sBO}, s{sG}, 5"); I(f"s_add_u32 s{sBO}, s{sBO}, s{sH}"); I(f"s_sub_u32 s{sBO}, s{sBO}, 192"); I(f"s_lshl_b32 s{sBO}, s{sBO}, 17")
        I("s_waitcnt lgkmcnt(0)")
        I("s_mov_b64 vcc, -1")
        I("s_branch H1_bga2")
        A.label("H1_bgh")
        b0 = opt.get("bg0", 1)
        for it, name in ((b0, "a"), (b0 + 2, "b"), (b0 + 4, "c"), (b0 + 7, "e")):
            I(f"s_cmp_eq_u32 s{sCNT}, {it}"); I(f"s_cbranch_scc1 H1_bg{name}")
        I("s_branch H1_bgd")
        def rq(half):
            for eps in range(2):
                for k in range(8):
                    for u in range(2):
                        I(f"ds_read_b64_tr_b16 {vr(128 + (eps*16 + 8*half + k)*4 + 2*u, 2)}, v{vTt+eps} offset:{(32*k + 4*u)*256}")
            I("s_waitcnt lgkmcnt(0)"); I("s_barrier")
        A.label("H1_bge")
        I("s_mov_b64 vcc, 0"); I("s_branch H1_bgd")
        A.label("H1_bgc")
        rq(1)
        I("s_mov_b32 s40, s54"); I("s_mov_b32 s41, s55"); I(f"v_mov_b32 v{vBG}, v{vWD}"); I(f"s_mov_b32 s{sBS}, 4096"); I(f"s_mov_b32 s{sBO}, 0")
        I("s_branch H1_bga2")
        A.label("H1_bgb")
        rq(0)
        I("s_branch H1_bga2")
        A.label("H1_bga")
        I("s_mov_b64 vcc, -1"); I(f"s_mov_b32 s{sBO}, 0")
        A.label("H1_bga2")
        I(f"s_lshl_b32 s{sBM}, s{sWV}, 10"); I(f"s_add_u32 s{sBM}, s{sBM}, 65536")
        A.label("H1_bgd")
    I(f"s_lshl_b32 s{sA0}, s{sNXT}, 15"); I(f"s_add_u32 s{sA0}, s{sA0}, {WS_XN}")
    I(f"s_xor_b32 s{sXB}, s{sXB}, 32768")
    I(f"s_cmp_ge_u32 s{sNXT}, 64"); I(f"s_cselect_b32 s{sA0}, {OOB}, s{sA0}")
    rows_dma_prep(A, sA0, f"s{sXB}")
    items = rows_dma_items(vTm)
    XF = 24; AC = 56
    def rd(ks): return [f"ds_read_b128 {vr(XF + 8*(ks&3) + 4*t,4)}, v{vXA + (ks&3)} offset:{(ks>>2)*256 + t*16384}" for t in range(2)]
    for ks in range(3):
        for x in rd(ks): I(x)
    for ks in range(16):
        I(f"s_waitcnt lgkmcnt({4 if ks < 14 else (2 if ks == 14 else 0)})")
        ms = []
        for eps in range(2):
            for t in range(2):
                xk = vr(XF + 8*(ks&3) + 4*t, 4)
                dk = AC + 8*t + 4*eps; dv = AC + 16 + 8*eps + 4*t
                ms.append(f"v_mfma_f32_16x16x32_bf16 {vr(dk,4)}, {ar((eps*16+ks)*4,4)}, {xk}, {'0' if ks == 0 else vr(dk,4)}")
                ms.append(f"v_mfma_f32_16x16x32_bf16 {vr(dv,4)}, {xk}, {ar(128+(eps*16+ks)*4,4)}, {'0' if ks == 0 else vr(dv,4)}")
        fl = [[x] for x in rd(ks + 3)] if ks + 3 < 16 else [[], []]
        if ks < 8:
            fl += [items[ks][0], items[ks][1]]
            if bg: fl += [[], [], [f"s_mov_b32 m0, s{sBM}", f"s_add_u32 s{sBM}, s{sBM}, 4096"],
                          [f"s_cbranch_vccz H1_nb{ks}", f"buffer_load_dwordx4 v{vBG}, s[40:43], s{sBO} offen lds", f"H1_nb{ks}:", f"s_add_u32 s{sBO}, s{sBO}, s{sBS}"]]
        slots(A, ms, fl)
    for k in range(4): I(f"v_xor_b32 v{vXA+k}, 0x8000, v{vXA+k}")
    I(f"s_lshl_b32 s24, s{sSEG}, 19"); I(f"s_lshl_b32 s25, s{sH}, 14"); I("s_add_u32 s24, s24, s25"); I(f"s_add_u32 s24, s24, {WS_KV}")
    I(f"s_mul_i32 s37, s{sH}, 65"); I(f"s_add_u32 s37, s37, s{sSEG}"); I("s_lshl_b32 s37, s37, 12"); I(f"s_add_u32 s37, s37, {WS_KM}")
    I(f"s_cmp_ge_u32 s{sSEG}, 64"); I(f"s_cselect_b32 s24, {OOB}, s24"); I(f"s_cselect_b32 s37, {OOB}, s37")
    I(f"s_lshl_b32 s25, s{sWV}, 10"); I("s_add_u32 s37, s37, s25"); I("s_add_u32 s26, s24, s25"); I("s_add_u32 s27, s26, 4096")
    I("s_add_u32 s25, s25, s26"); I("s_add_u32 s25, s25, 8192")
    for j in range(4):
        for i in range(4): I(cv(88 + 4*j + i, AC + 8*j + 2*i))
    I(f"buffer_store_dwordx4 v[88:91], v{wL16}, {WSS}, s26 offen sc1")
    I(f"buffer_store_dwordx4 v[92:95], v{wL16}, {WSS}, s27 offen sc1")
    I(f"buffer_store_dwordx4 v[96:99], v{wL16}, {WSS}, s25 offen sc1")
    I(f"buffer_store_dwordx4 v[100:103], v{wL16}, {WSS}, s25 offen offset:1024 sc1")
    I(f"buffer_store_dwordx4 v[104:107], v{wL16}, {WSS}, s37 offen sc1")
    I(f"s_add_u32 s{sCNT}, s{sCNT}, 1")
    I(f"s_mov_b32 s58, s{sPRV}"); I(f"s_mov_b32 s{sPRV}, s{sSEG}"); I(f"s_mov_b32 s{sSEG}, s{sNXT}")
    I(f"s_cmp_lt_u32 s{sSEG}, 64"); I("s_cbranch_scc1 H1_loop")
    I("s_waitcnt vmcnt(0)")
    I("s_barrier")
    flag(58); flag(sPRV)
    TS(A, 112, 4)

def chain_role(A, opt):
    I = A.I
    if TRACE[0]: I("s_memrealtime s[66:67]")
    ll = opt.get("lead")
    def hooks(A, what, ci):
        if what == "extra":
            return (1 if ci == 6 else 0) + (1 if (ll and 2 <= ci <= 5 and ci + 2 - ll >= 0) else 0)
        if ll:
            if what == "landed" and ci <= 7 - ll: signal_add(A, DBG, 144 + 4*ci, 1, 28, 29)
            if what == "issued" and 2 <= ci <= 5 and ci + 2 - ll >= 0:
                I(f"v_mov_b32 v28, {144 + 4*(ci + 2 - ll)}")
                I(f"buffer_load_dword v{30 + (ci & 1)}, v28, {DBG}, 0 offen sc1")
            if what == "before" and 4 <= ci <= 7 and ci - ll >= 0:
                l = A.newlabel("ld")
                I(f"v_readfirstlane_b32 s43, v{30 + (ci & 1)}"); I("s_cmp_ge_u32 s43, 32"); I(f"s_cbranch_scc1 {l}")
                wait_ge(A, DBG, 144 + 4*(ci - ll), 32, 28, 29, 42, barrier=False, allwaves=True, sleep=2)
                A.label(l)
        if TRACE[0] and what == ("ts" if opt.get("tsfine") else "landed"):
            I("s_memrealtime s[62:63]"); I("s_waitcnt lgkmcnt(0)"); I(f"s_mov_b32 s{92+ci}, s62")
        if what == "first":
            I("v_lshlrev_b32 v28, 4, v0")
            for i in range(4): I(f"v_mov_b32 v{32+i}, -1")
            I(f"s_lshl_b32 s24, s{sH}, 13"); I(f"s_add_u32 s24, s24, {WS_HA}")
            for sl in range(2):
                for hf in range(2):
                    I(f"s_add_u32 s25, s24, {sl*(256<<10) + hf*4096}")
                    I(f"buffer_store_dwordx4 v[32:35], v28, {WSS}, s25 offen sc1")
            I("v_lshlrev_b32 v28, 2, v0")
            I(f"s_lshl_b32 s24, s{sH}, 10"); I(f"s_add_u32 s24, s24, {WS_HB}")
            I(f"buffer_store_dword v32, v28, {WSS}, s24 offen sc1")
        if what == "landed" and ci == 0:
            I("s_lshl_b32 s41, s40, 16"); I("s_add_u32 s41, s41, 1")
            signal_add(A, DBG, D_CHAIN, "s41", vT, vT + 1)
        if what == "landed" and ci == 1 and opt.get("tlb", 0):
            I(f"v_subrev_u32 v28, {LW}, v{vL16}"); I("v_lshlrev_b32 v28, 15, v28")
            I(f"s_add_u32 s43, s{sKV}, {LW}")
            I(f"buffer_load_dword v29, v28, {WSS}, s43 offen sc1")
        if what == "landed" and opt.get("hold") and ci == opt["hold"][1]:
            signal_add(A, DBG, D_PROG, 1, vT, vT + 1)
        if what == "issued" and ci == 6:
            I(f"v_mov_b32 v28, {D_PINIT}")
            I(f"buffer_load_dwordx2 {vr(vT,2)}, v28, {DBG}, 0 offen sc1")
        if what == "landed" and ci == 6:
            I(f"v_readfirstlane_b32 s43, v{vT}"); I(f"v_readfirstlane_b32 s42, v{vT+1}")
            I("s_cmp_lt_u32 s43, 64"); I("s_cbranch_scc1 L_ch_slow")
            I("s_and_b32 s43, s42, 0xffff"); I("s_cmp_ge_u32 s43, 32"); I("s_cbranch_scc1 L_ch_fast")
            A.label("L_ch_slow")
            wait_ge(A, DBG, D_PINIT, 64, vT, vT + 1, 42, barrier=False, allwaves=True, sleep=4)
            wait_ge(A, DBG, D_CHAIN, 32, vT, vT + 1, 42, mask=0xffff, barrier=False, allwaves=True, sleep=4)
            A.label("L_ch_fast")
            I(f"s_add_u32 m0, s{sM0A}, 8192")
            for sl in range(2):
                I(f"s_add_u32 s43, s{sRC}, {WS_HA + sl*(256<<10)}")
                for i in range(2): I(f"buffer_load_dwordx4 v{vMW}, {WSS}, s43 offen offset:{i*1024} sc1 lds")
            I(f"s_lshl_b32 s43, s{sH}, 10"); I(f"s_add_u32 s43, s43, {WS_HB - LW}")
            I(f"buffer_load_dwordx4 v{vL16}, {WSS}, s43 offen sc1 lds")
            kv_flag_load(A)
        if what == "landed" and ci == 7:
            if TRACE[0]: I("s_memrealtime s[66:67]"); I("s_waitcnt lgkmcnt(0)")
            kv_wait(A, "CI", 0, preloaded=True)
            for x in kv_dma(A, "sc1"): I(x)
    chain_setup(A, "", hooks, opt.get("order", (1, 2, 0)))
    if TRACE[0]: I("s_memrealtime s[68:69]"); I("s_waitcnt lgkmcnt(0)")
    if TRACE[0]: I("s_memrealtime s[70:71]"); I("s_memtime s[80:81]"); I("s_waitcnt lgkmcnt(0)")
    for _ in range(opt.get("cdelay", 0)): I("s_sleep 32")
    I("s_lshr_b32 s42, s42, 16")
    I("s_cmp_lg_u32 s42, 0")
    I("s_cbranch_scc1 L_chain_global")
    o = dict(opt); o["mega"] = 1
    def stamp(A, i):
        if i == 6:
            l = A.newlabel("st")
            tsd = opt.get("tsd", 8)
            if tsd == 8: A.I(f"s_and_b32 s60, s{sSTEP}, 7"); A.I("s_cmp_eq_u32 s60, 1"); A.I(f"s_cbranch_scc0 {l}")
            A.I("s_memrealtime s[62:63]"); A.I("s_memtime s[60:61]"); A.I("s_waitcnt lgkmcnt(0)")
            for k in range(8):
                A.I(f"s_cmp_eq_u32 s{sSTEP}, {tsd*k+1+opt.get('ts0',0)}"); A.I(f"s_cselect_b32 s{72+k}, s62, s{72+k}"); A.I(f"s_cselect_b32 s{84+k}, s60, s{84+k}")
            A.label(l)
    chain_loop(A, "", "CL", stamp if TRACE[0] else None, "sc1", o)
    I("s_branch L_chain_end")
    A.label("L_chain_global")
    chain_loop(A, "sc1", "CG", None, "sc1", o)
    A.label("L_chain_end")
    wait_ge(A, DBG, D_P2, 64, vT, vT + 1, 24, sleep=4, barrier=False, allwaves=True)
    I("s_mov_b32 s38, 0")
    if TRACE[0]:
        for i, r in enumerate([64, 66, 68, 70]): I(f"v_writelane_b32 v20, s{r}, {i}")
        TS(A, 20, 4)
        I("s_memtime s[62:63]"); I("s_waitcnt lgkmcnt(0)"); I("s_sub_u32 s62, s62, s80"); I("v_writelane_b32 v20, s62, 7")
        I(f"v_writelane_b32 v20, s{sSPIN}, 5"); I(f"v_writelane_b32 v20, s{sSPA}, 6")
        for k in range(8): I(f"v_writelane_b32 v20, s{72+k}, {8+k}")
        for k in range(8): I(f"v_writelane_b32 v20, s{84+k}, {16+k}")
        for k in range(8): I(f"v_writelane_b32 v20, s{92+k}, {24+k}")
        TDUMP(A, [20], 21, (0, 4, 0, 5))
```

```python
from work import *

L_XB, L_HB, L_PT, L_QX, L_OX, L_KM, L_RED, L_KV2 = 0, 32768, 65536, 102400, 110592, 118784, 122880, 131072
PSTR = 1040
sMK = 44
sTILE = 30
L_U = 98304
sJ6, sQ6 = 18, 19
def wout_preload(A, t, rounds=((0, 8), (8, 16), (16, 22)), sq=None):
    I = A.I
    sq = sQ6 if sq is None else sq
    I("s_load_dwordx2 s[40:41], s[0:1], 88"); I(f"s_mov_b32 s42, {688*1024}"); I("s_mov_b32 s43, 0x20000")
    I(f"v_lshrrev_b32 v{t}, 6, v{wL16}"); I(f"v_lshlrev_b32 v{t}, 10, v{t}")
    I(f"v_and_b32 v{t+1}, 48, v{wL16}"); I(f"v_add_u32 v{t}, v{t}, v{t+1}")
    I(f"s_lshl_b32 s24, s{sq}, 8"); I(f"s_lshl_b32 s25, s{sWV}, 6"); I("s_add_u32 s25, s25, s24"); I(f"s_add_u32 s25, s25, {rounds[0][0]*32768}")
    I(f"s_mul_i32 s24, s{sWV}, 24576")
    I(f"v_add_u32 v{t+1}, s24, v{wL16}")
    I("s_waitcnt lgkmcnt(0)")
    kss = [k for lo, hi in rounds for k in range(lo, hi)]
    D = 12
    def dma(n):
        for i in range(2):
            I(f"s_add_u32 m0, s24, {(n % D)*2048 + i*1024}")
            I("s_nop 0")
            I(f"buffer_load_dwordx4 v{t}, s[40:43], s25 offen lds")
            I("s_add_u32 s25, s25, 16384")
    for n in range(min(D - 1, len(kss))): dma(n)
    for n, ks in enumerate(kss):
        I(f"s_waitcnt vmcnt({2*(min(n + D - 1, len(kss)) - n - 1)}) lgkmcnt(0)")
        for par in range(2):
            for u in range(2):
                I(f"ds_read_b64_tr_b16 {ar((ks*2 + par)*4 + 2*u, 2)}, v{t+1} offset:{(n % D)*2048 + u*1024 + par*8}")
        if n + D - 1 < len(kss): dma(n + D - 1)
    I("s_waitcnt lgkmcnt(0)")

def helper_ids(A, sj, sq):
    I = A.I
    I(f"s_lshl_b32 s24, s{sG}, 5"); I(f"s_add_u32 s24, s24, s{sH}")
    I(f"s_mul_i32 s{sj}, s24, 171"); I(f"s_lshr_b32 s{sj}, s{sj}, 9"); I(f"s_mul_i32 s25, s{sj}, 3"); I(f"s_sub_u32 s{sq}, s24, s25"); I(f"s_add_u32 s{sq}, s{sq}, 1")
sPRE = 38

def h_phase2(A, opt):
    I = A.I
    vD, vTt, vXA, vHA, vTm = 8, 10, 12, 16, 24
    vKW, vTR2, vPW, vPR, vZ = 25, 26, 27, 28, 30
    WIN = 192
    if TRACE[0]: I("v_mov_b32 v7, v112")
    if opt.get("bg", 1):
        srd(A, 40, 4 << 20)
        w1k_dma(A, 18, 96, 32, 0)
        for i in range(128): I(f"v_accvgpr_write_b32 a{i}, v{128+i}")
        for p in range(4): I(f"v_add_u32 v{44+p}, 0x10000, v{108+p}")
        for ks in range(3):
            if ks == 2:
                for p in range(4): I(f"v_add_u32 v{44+p}, 0x20000, v{108+p}")
            for t8 in range(8):
                for u in range(2): I(w1k_rd(44, t8, ks & 1, u, ar(128 + (t8*4 + ks)*4 + 2*u, 2)))
        I("s_waitcnt lgkmcnt(0)")
        I("s_barrier")
        WIB = 65536
    else:
        w256_addr(A, vD, vTt)
        srd(A, 16, 4 << 20)
        t3 = opt.get('thr3', 0)
        w256_dma(A, vD, 0, t3); w256_dma(A, vD, 1, t3)
        I(f"s_lshl_b32 s28, s{sH}, 17")
        w1k_addr(A, 40, 44, "s28")
        for ci in range(4):
            I(f"s_waitcnt vmcnt({16 if ci < 3 else 0})")
            I("s_barrier")
            if ci < 2: w256_read(A, vTt, ci, 0)
            else:
                for t8 in range(8):
                    for ksl in range(2):
                        for u in range(2): I(w1k_rd(44, t8, ksl, u, ar(128 + (t8*4 + 2*(ci-2) + ksl)*4 + 2*u, 2)))
                I("s_waitcnt lgkmcnt(0)")
                for p in range(4): I(f"v_xor_b32 v{44+p}, 0x10000, v{44+p}")
            I("s_barrier")
            if ci == 0: srd(A, 40, 4 << 20)
            if ci < 2: w1k_dma(A, 40, 64*ci, 64, 65536*ci, t3)
        WIB = 0
    if TRACE[0]: I("v_mov_b32 v188, v7")
    srd(A, 64, 512*1376*2)
    I(f"s_lshl_b32 s{sTILE}, s{sWV}, 5"); I(f"s_add_u32 s{sTILE}, s{sTILE}, s{sH}")
    I(f"s_cmp_ge_u32 s{sTILE}, 86"); I("s_cbranch_scc1 H2_nowin")
    I(f"v_lshrrev_b32 v40, 1, v{wLN}"); I("v_mul_u32_u24 v40, 2752, v40")
    I(f"v_and_b32 v41, 1, v{wLN}"); I("v_lshl_add_u32 v40, v41, 4, v40")
    I(f"s_lshl_b32 s25, s{sTILE}, 5"); I(f"s_lshl_b32 s24, s{sWV}, 14"); I(f"s_add_u32 s24, s24, {WIB}")
    for i in range(16):
        I(f"s_add_u32 m0, s24, {i*1024}")
        I("s_nop 0")
        I(f"buffer_load_dwordx4 v40, {SW}, s25 offen lds")
        I(f"s_add_u32 s25, s25, {32*2752}")
    I(f"v_lshl_add_u32 v41, v{wG}, 3, v{wR}"); I("v_lshlrev_b32 v41, 5, v41"); I(f"v_lshl_add_u32 v41, v{wCP}, 3, v41"); I("v_add_u32 v41, s24, v41")
    I("s_waitcnt vmcnt(0)")
    for ks in range(16):
        for u in range(2): I(f"ds_read_b64_tr_b16 {vr(WIN + 4*ks + 2*u, 2)}, v41 offset:{ks*1024 + u*128}")
    I("s_waitcnt lgkmcnt(0)")
    A.label("H2_nowin")
    if opt.get("bg", 1):
        I("s_waitcnt vmcnt(0)")
        I("s_barrier")
        for t8 in range(8):
            for u in range(2): I(w1k_rd(108, t8, 0, u, ar(128 + (t8*4 + 3)*4 + 2*u, 2)))
        I("s_waitcnt lgkmcnt(0)")
    srd(A, 0, 2 << 20)
    for _ in range(opt.get("hdelay", 0)): I("s_sleep 32")
    group_mode(A, 40, 41)
    rows_addr(A, None, vXA)
    I(f"v_lshl_add_u32 v40, v{wR}, 3, v{wCP}")
    I(f"s_cmp_lt_u32 s{sTILE}, 43"); I("s_cselect_b64 vcc, -1, 0"); I("s_cselect_b32 s24, 16, 4")
    I(f"v_cndmask_b32 v40, v40, v{wC}, vcc")
    for t in range(2):
        if t: I("v_add_u32 v40, s24, v40")
        I("v_and_b32 v41, 15, v40"); I(f"v_xor_b32 v41, v41, v{wG}"); I("v_lshlrev_b32 v41, 4, v41")
        I("v_lshl_add_u32 v41, v40, 10, v41"); I(f"v_add_u32 v{vHA+4*t}, {L_HB}, v41")
        for k in range(1, 4): I(f"v_xor_b32 v{vHA+4*t+k}, {k<<6}, v{vHA+4*t}")
    I(f"v_lshlrev_b32 v{vKW}, 5, v{wC}"); I(f"v_lshl_add_u32 v{vKW}, v{wG}, 3, v{vKW}")
    I(f"s_lshl_b32 s24, s{sWV}, 10"); I(f"s_add_u32 s24, s24, {L_KM}"); I(f"v_add_u32 v{vKW}, s24, v{vKW}")
    I(f"v_lshlrev_b32 v{vTR2}, 3, v{wLN}"); I(f"v_add_u32 v{vTR2}, {L_KM}, v{vTR2}")
    QS = 272
    I(f"s_mul_i32 s24, s{sWV}, {32*QS}"); I(f"s_add_u32 s24, s24, {L_PT}")
    I(f"v_mul_u32_u24 v{vPW}, {QS}, v{wC}"); I(f"v_lshl_add_u32 v{vPW}, v{wG}, 4, v{vPW}"); I(f"v_add_u32 v{vPW}, s24, v{vPW}")
    I(f"v_mul_u32_u24 v{vPR}, {QS}, v{wG}"); I(f"v_lshl_add_u32 v{vPR}, v{wC}, 4, v{vPR}"); I(f"v_add_u32 v{vPR}, s24, v{vPR}")
    vPG, vRL, vRO, vKVR, vSEL4 = 29, 38, 39, 9, 184
    I(f"s_lshl_b32 s24, s{sWV}, 8")
    I(f"v_lshlrev_b32 v40, 4, v{wC}"); I("v_add_u32 v40, s24, v40")
    I(f"v_lshl_add_u32 v{vPG}, v{wG}, 15, v40")
    I(f"v_lshl_add_u32 v{vRL}, v{wG}, 10, v40")
    I(f"v_lshl_add_u32 v{vRO}, v{wG}, 2, v40")
    I(f"v_add_u32 v{vKVR}, {L_KV2}, v{wL16}")
    I(f"s_lshr_b32 s24, s{sWV}, 1"); I("s_lshl_b32 s24, s24, 12"); I(f"v_add_u32 v8, s24, v{vKVR}")
    I(f"v_and_b32 v40, 1, v{wC}"); I("v_lshlrev_b32 v40, 4, v40"); I("v_mov_b32 v41, 0x3f80"); I("v_lshlrev_b32 v41, v40, v41")
    for i in range(4):
        I(f"v_cmp_eq_u32 vcc, {i}, v{wR}"); I(f"v_cndmask_b32 v{vSEL4+i}, 0, v41, vcc")
    vQW, vQR, vOWr, vL64 = 34, 35, 36, 37
    I(f"v_add_u32 v{vL64}, 65536, v{wL16}")
    I(f"s_lshl_b32 s24, s{sWV}, 10"); I(f"v_add_u32 v{vQW}, s24, v{vL64}")
    I(f"s_and_b32 s24, s{sWV}, 1"); I("s_lshl_b32 s24, s24, 12"); I(f"v_add_u32 v{vQR}, s24, v{vL64}")
    I(f"s_lshr_b32 s25, s{sWV}, 1"); I("s_lshl_b32 s25, s25, 11"); I(f"v_add_u32 v{vOWr}, s25, v{vQR}")
    I(f"s_and_b32 s24, s{sWV}, 1"); I("s_lshl_b32 s24, s24, 4"); I(f"v_add_u32 v40, s24, v{wC}")
    I(f"v_lshlrev_b32 v41, 2, v{wG}"); I("v_sub_u32 v40, v40, v41")
    for j in range(8): I(f"v_cmp_le_i32 s[{sMK+2*j}:{sMK+2*j+1}], {16*(j>>2) + (j&3)}, v40")
    for i in range(4): I(f"v_mov_b32 v{vZ+i}, 0")
    I(f"s_sub_u32 s{sSEG}, s{sG}, 1")
    sGR = 33
    I(f"s_mov_b32 s{sPRE}, 0"); I("s_mov_b32 s32, 0")
    I(f"s_lshl_b32 s{sGR}, s{sG}, 5"); I(f"s_add_u32 s{sGR}, s{sGR}, s{sH}")
    I("s_barrier")
    XF = 40; KF = 72; VF = 104; QF = 120; SS = 136; KMF = 148; T0 = 164; XR = 10
    TS(A, 188, 5)
    if TRACE[0]: I("s_mov_b32 s60, 0")
    def TH(k):
        if not TRACE[0]: return
        I(f"s_add_u32 s61, s60, {k & 3}"); TS(A, 189 + (k >> 2), "s61")
    SG = (7, 11)
    def kvcheck(tag, off):
        I(f"s_add_u32 s25, s{sSEG}, {off}"); I("s_min_u32 s25, s25, 63")
        I("s_cmp_gt_u32 s32, s25"); I(f"s_cbranch_scc1 H2_kvd{tag}")
        I(f"v_lshlrev_b32 v{SG[1]}, 2, v{wLN}"); I(f"s_lshl_b32 s28, s{sH}, 8")
        A.label(f"H2_kvw{tag}")
        I(f"buffer_load_dword v{SG[0]}, v{SG[1]}, {WSS}, s28 offen sc1")
        I(f"s_add_u32 s{sSPIN}, s{sSPIN}, 1"); I(f"s_cmp_gt_u32 s{sSPIN}, {SPIN_MAX}")
        I("s_waitcnt vmcnt(0)")
        I(f"s_cbranch_scc1 H2_kvd{tag}")
        I(f"v_cmp_ne_u32 vcc, 0, v{SG[0]}"); I("s_nop 0"); I("s_ff0_i32_b64 s32, vcc")
        I("s_cmp_gt_u32 s32, s25"); I(f"s_cbranch_scc0 H2_kvw{tag}")
        A.label(f"H2_kvd{tag}")
    kvcheck("a", 0)
    I(f"s_lshl_b32 s{sA0}, s{sSEG}, 15"); I(f"s_add_u32 s{sA0}, s{sA0}, {WS_XN}")
    rows_dma(A, vTm, sA0, L_XB)
    I(f"s_lshl_b32 s27, s{sSEG}, 19"); I(f"s_lshl_b32 s25, s{sH}, 14"); I("s_add_u32 s27, s27, s25"); I(f"s_lshl_b32 s25, s{sWV}, 12"); I("s_add_u32 s27, s27, s25"); I(f"s_add_u32 s27, s27, {WS_KV}")
    I(f"s_add_u32 m0, s25, {L_KV2}")
    I("s_nop 0")
    for i in range(4): I(f"buffer_load_dwordx4 v{wL16}, {WSS}, s27 offen offset:{i*1024} sc1 lds")
    I(f"s_lshl_b32 s24, s{sGR}, 10"); I(f"s_add_u32 s24, s24, {WS_HN}")
    I(f"buffer_load_dword v183, v{vRO}, {WSS}, s24 offen sc1")
    I(f"s_lshl_b32 s24, s{sGR}, 15"); I(f"s_add_u32 s24, s24, {WS_PART}")
    I(f"buffer_load_dword v183, v{vRO}, {WSS}, s24 offen sc1")
    I(f"s_lshl_b32 s24, s{sG}, 7"); I(f"v_lshlrev_b32 v{T0+1}, 11, v{wG}"); I(f"s_add_u32 s24, s24, {F_PART}")
    I(f"buffer_load_dword v183, v{T0+1}, {WSS}, s24 offen sc1")
    I("s_waitcnt vmcnt(3)")
    AC = KMF
    regs = [SS + 4 + j for j in range(8)] + [SS, SS + 1]
    tm = T0 + 8
    VM = T0 + 4
    def rb2(a, b, t):
        I(f"v_cvt_pk_bf16_f32 v{t}, v{a}, v{b}"); I(f"v_lshlrev_b32 v{a}, 16, v{t}"); I(f"v_and_b32 v{b}, 0xffff0000, v{t}")
    def scal(i):
        a, b = regs[i], regs[i+1]
        rb2(a, b, tm + 2)
        I(f"v_mul_f32 v{a}, {hex(f2u(128 ** -0.5))}, v{a}"); I(f"v_mul_f32 v{b}, {hex(f2u(128 ** -0.5))}, v{b}")
        rb2(a, b, tm + 2)
    def apre1(mid):
        def rd(ks): return [f"ds_read_b128 {vr(XF + 8*(ks&3) + 4*t,4)}, v{vXA + (ks&3)} offset:{L_XB + (ks>>2)*256 + t*16384}" for t in range(2)]
        for ks in range(3):
            for x in rd(ks): I(x)
        for ks in range(16):
            if mid and ks == opt.get("midks", 6): mid()
            I(f"s_waitcnt lgkmcnt({4 if ks < 14 else (2 if ks == 14 else 0)})")
            ms = []
            for eps in range(2):
                for t in range(2):
                    dk = AC + 8*t + 4*eps
                    ms.append(f"v_mfma_f32_16x16x32_bf16 {vr(dk,4)}, {ar((eps*16+ks)*4,4)}, {vr(XF + 8*(ks&3) + 4*t, 4)}, {'0' if ks == 0 else vr(dk,4)}")
            slots(A, ms, [[x] for x in rd(ks + 3)] if ks + 3 < 16 else [])
        for t in range(2):
            for i in range(4): I(cv(XF + 4*t + i, AC + 8*t + 2*i))
            I(f"ds_write_b128 v{vQW}, {vr(XF+4*t,4)} offset:{L_QX - 65536 + t*4096}")
        I("s_waitcnt lgkmcnt(0)")
    def apre2():
        for sg in range(4): I(f"ds_read_b128 {vr(QF+4*sg,4)}, v{vQR} offset:{L_QX - 65536 + sg*1024}")
        for i in range(8): I(f"ds_read_b128 {vr(KF+4*i,4)}, v{vKVR} offset:{i*1024}")
        I(f"v_mov_b32 v{tm+1}, {hex(f2u(-1e9))}")
        for tk in range(2):
            I(f"s_waitcnt lgkmcnt({4 if tk == 0 else 4})")
            slots(A, [mf32(SS + 4 + 4*tk, KF + 16*tk + 4*sg, QF + 4*sg, "0" if sg == 0 else vr(SS + 4 + 4*tk, 4)) for sg in range(4)],
                  [[f"ds_read_b128 {vr(VF+4*i,4)}, v8 offset:{8192 + i*1024}"] for i in range(4)] if tk == 0 else [])
        for i in range(0, 8, 2): scal(i)
        for j in range(8): I(f"v_cndmask_b32 v{regs[j]}, v{tm+1}, v{regs[j]}, s[{sMK+2*j}:{sMK+2*j+1}]")
        I(f"v_max3_f32 v{tm}, v{regs[0]}, v{regs[1]}, v{regs[2]}")
        for i in range(3, 7, 2): I(f"v_max3_f32 v{tm}, v{tm}, v{regs[i]}, v{regs[i+1]}")
        I(f"v_max_f32 v{tm}, v{tm}, v{regs[7]}")
        I("s_waitcnt lgkmcnt(0)")
    def km_addr(off):
        I(f"s_mul_i32 s26, s{sH}, 65"); I(f"s_add_u32 s26, s26, s{sSEG}"); I("s_lshl_b32 s26, s26, 12"); I(f"s_add_u32 s26, s26, {WS_KM + off*4096}")
        I(f"s_lshl_b32 s27, s{sWV}, 10"); I("s_add_u32 s27, s27, s26")
        I(f"s_lshr_b32 s24, s{sWV}, 1"); I("s_lshl_b32 s24, s24, 11"); I("s_add_u32 s26, s26, s24")
    def km_load():
        I(f"buffer_load_dwordx2 {vr(T0,2)}, v{wL16}, {WSS}, s27 offen sc1")
        I(f"buffer_load_dwordx2 {vr(VM,2)}, v{wL16}, {WSS}, s26 offen offset:8 sc1")
        I(f"buffer_load_dwordx2 {vr(VM+2,2)}, v{wL16}, {WSS}, s26 offen offset:1032 sc1")
    I("s_barrier")
    km_addr(0); km_load()
    apre1(None)
    I("s_barrier")
    apre2()
    I("s_waitcnt vmcnt(0)")
    I(f"s_lshl_b32 s29, s{sG}, 7")
    A.label("H2_loop")
    TH(0)
    I(f"s_lshl_b32 s{sA1}, s{sSEG}, 5"); I(f"s_add_u32 s{sA1}, s{sA1}, s{sH}")
    kvcheck("b", NG)
    km_addr(0)
    TH(1)
    I("s_branch H2_kme")
    A.label("H2_kmr")
    I(f"s_cmp_ge_u32 s{sSEG}, {opt.get('ktight', 61)}"); I("s_cbranch_scc1 H2_kmp")
    I(f"v_mov_b32 v{T0+3}, 0")
    A.label("H2_kmc")
    I(f"s_sleep {opt.get('ksleep', 8)}")
    I(f"buffer_load_dword v{T0+2}, v{T0+3}, {WSS}, s27 offen sc1")
    I(f"s_add_u32 s{sSPIN}, s{sSPIN}, 1")
    I(f"s_cmp_gt_u32 s{sSPIN}, {SPIN_MAX}")
    I("s_waitcnt vmcnt(0)")
    I("s_cbranch_scc1 H2_kmp")
    I(f"v_cmp_eq_u32 vcc, -1, v{T0+2}")
    I("s_cbranch_vccnz H2_kmc")
    A.label("H2_kmp")
    km_load()
    I(f"s_add_u32 s{sSPIN}, s{sSPIN}, 1")
    I(f"s_cmp_gt_u32 s{sSPIN}, {SPIN_MAX}")
    I("s_waitcnt vmcnt(0)")
    I("s_cbranch_scc1 H2_kmd")
    A.label("H2_kme")
    I(f"v_max3_u32 v{T0+2}, v{T0}, v{T0+1}, v{VM}"); I(f"v_max3_u32 v{T0+2}, v{T0+2}, v{VM+1}, v{VM+2}"); I(f"v_max_u32 v{T0+2}, v{T0+2}, v{VM+3}")
    I(f"v_cmp_eq_u32 vcc, -1, v{T0+2}")
    I("s_cbranch_vccnz H2_kmr")
    A.label("H2_kmd")
    TH(2)
    I(f"ds_write2st64_b32 v{vKW}, v{T0}, v{T0+1} offset0:0 offset1:2")
    I(f"s_lshl_b32 s24, s{sA1}, 10")
    I(f"buffer_load_dword v{XR}, v{vRO}, {SW}, s24 offen")
    I("s_waitcnt lgkmcnt(0)")
    I("s_barrier")
    for sg in range(4):
        for rho in range(2): I(f"ds_read_b64_tr_b16 {vr(KMF+4*sg+2*rho,2)}, v{vTR2} offset:{sg*1024 + rho*512}")
    I(f"s_add_u32 s26, s{sSEG}, {NG}")
    I(f"s_lshl_b32 s{sA0}, s26, 15"); I(f"s_add_u32 s{sA0}, s{sA0}, {WS_XN}")
    I("s_lshl_b32 s27, s26, 19"); I(f"s_lshl_b32 s25, s{sH}, 14"); I("s_add_u32 s27, s27, s25"); I(f"s_lshl_b32 s25, s{sWV}, 12"); I("s_add_u32 s27, s27, s25"); I(f"s_add_u32 s27, s27, {WS_KV}")
    I(f"s_add_u32 m0, s25, {L_KV2}")
    I("s_cmp_ge_u32 s26, 64"); I(f"s_cselect_b32 s{sA0}, {OOB}, s{sA0}"); I(f"s_cselect_b32 s27, {OOB}, s27")
    kvd = [f"buffer_load_dwordx4 v{wL16}, {WSS}, s27 offen offset:{i*1024} sc1 lds" for i in range(4)]
    for sg in range(4):
        I(f"s_waitcnt lgkmcnt({6-2*sg})")
        I(mf32(SS, KMF + 4*sg, QF + 4*sg, "0" if sg == 0 else vr(SS, 4)))
    I(kvd[0])
    scal(8)
    I(f"v_max3_f32 v{tm}, v{tm}, v{regs[8]}, v{regs[9]}")
    def xred(r, op):
        for sw in ("16", "32"):
            I(f"v_mov_b32 v{tm+2}, v{r}"); I(f"v_permlane{sw}_swap_b32 v{r}, v{tm+2}"); I(f"v_{op}_f32 v{r}, v{r}, v{tm+2}")
    xred(tm, "max")
    I(f"v_mov_b32 v{tm+2}, {hex(f2u(1.4426950408889634))}")
    prs = [SS + 4, SS + 6, SS + 8, SS + 10, SS]
    for r in prs: I(f"v_pk_add_f32 {vr(r,2)}, {vr(r,2)}, {vr(tm,2)} op_sel_hi:[1,0] neg_lo:[0,1] neg_hi:[0,1]")
    for r in prs: I(f"v_pk_mul_f32 {vr(r,2)}, {vr(r,2)}, {vr(tm+2,2)} op_sel_hi:[1,0]")
    for r in regs: I(f"v_exp_f32 v{r}, v{r}")
    I(f"v_pk_add_f32 {vr(tm,2)}, {vr(prs[0],2)}, {vr(prs[1],2)}")
    for r in prs[2:]: I(f"v_pk_add_f32 {vr(tm,2)}, {vr(tm,2)}, {vr(r,2)}")
    I(f"v_add_f32 v{tm}, v{tm}, v{tm+1}")
    xred(tm, "add")
    I(f"v_rcp_f32 v{tm}, v{tm}")
    for r in prs: I(f"v_pk_mul_f32 {vr(r,2)}, {vr(r,2)}, {vr(tm,2)} op_sel_hi:[1,0]")
    for i in range(4): I(cv(SS + 4 + i, SS + 4 + 2*i))
    I(cv(vZ, SS)); I(cv(vZ + 3, SS))
    OA = XF
    slots(A, [mf32(OA + 4*e, VF + 4*e, SS + 4, "0") for e in range(4)], [[kvd[1]]])
    slots(A, [mf16(OA + 4*e, VM + 2*(e>>1), vZ + 2*(e&1), vr(OA + 4*e, 4)) for e in range(4)], [[], [], [], [kvd[2]]])
    for i in range(2):
        for j in range(4): I(cv(QF + 4*i + j, OA + 8*i + 2*j))
        I(f"ds_write_b128 v{vOWr}, {vr(QF+4*i,4)} offset:{L_OX - 65536 + i*1024}")
    I(f"s_lshl_b32 s24, s{sG}, 20"); I(f"s_lshl_b32 s25, s{sH}, 10"); I("s_add_u32 s24, s24, s25"); I(f"s_add_u32 s24, s24, {WS_PART}")
    I("s_waitcnt lgkmcnt(0)")
    I("s_barrier")
    OF = XF
    for i in range(8): I(f"ds_read_b128 {vr(OF+4*i,4)}, v{vL64} offset:{L_OX - 65536 + i*1024}")
    I(kvd[3])
    rows_dma_prep(A, sA0, L_XB)
    items = rows_dma_items(vTm)
    PA = KF
    PB_ = SS
    def wo(t): return [f"v_mfma_f32_16x16x32_bf16 {vr(PA + 32*t + 4*t8,4)}, {ar(128 + (t8*4 + ks)*4,4)}, {vr(OF + 16*t + 4*ks,4)}, {'0' if ks == 0 else vr(PA + 32*t + 4*t8,4)}"
                       for t8 in range(8) for ks in range(4)]
    def pkw(t, p):
        d = PA + 32*t + 8*p
        return [cv(d + i, d + 2*i) for i in range(4)] + [f"ds_write_b128 v{vPW}, {vr(d,4)} offset:{t*16*QS + p*64}"]
    def rdb(t): return [f"ds_read_b128 {vr(PB_+4*i,4)}, v{vPR} offset:{(t*16 + 4*i)*QS}" for i in range(4)]
    def body(f):
        def st(i): return [f"buffer_store_dwordx4 {vr(PB_+4*i,4)}, v{vPG}, {WSS}, s24 offen {f}", "s_add_u32 s24, s24, 131072"]
        fl = [[] for _ in range(64)]
        for t in range(2):
            for p in range(4):
                q = pkw(t, p); at = 32*t + 8*p + 11
                if at + 2 < 64:
                    fl[at] += q[:2]; fl[at+1] += q[2:4]; fl[at+2] += q[4:]
        fl[40] += ["s_waitcnt lgkmcnt(0)"] + rdb(0)[:2]; fl[41] += rdb(0)[2:]
        fl[47] += ["s_waitcnt lgkmcnt(1)"] + st(0); fl[51] = st(1) + fl[51]; fl[55] += st(2); fl[59] = st(3) + fl[59]
        I("s_waitcnt lgkmcnt(4)")
        ms = wo(0) + wo(1)
        fl[30] += ["s_waitcnt lgkmcnt(3)"]
        for i, at in enumerate([1, 5, 9, 15, 17+5, 25, 31, 33+5]):
            fl[at] += items[i][0]; fl[at+1] = items[i][1] + fl[at+1]
        slots(A, ms, fl)
        for x in pkw(1, 3): I(x)
        I("s_waitcnt lgkmcnt(0)")
        for x in rdb(1): I(x)
        for i in range(4):
            I(f"s_waitcnt lgkmcnt({3-i})")
            for x in st(i): I(x)
    dual(A, body)
    TH(3)
    I(f"s_add_u32 s28, s29, {F_PART}")
    def psig():
        I("s_waitcnt vmcnt(0)"); I("s_barrier"); gsignal(A, 28, *SG)
    I(f"s_cmp_lt_u32 s{sSEG}, {64 - NG}"); I("s_cbranch_scc1 H2_pre1")
    psig()
    I("s_branch H2_pre1d")
    A.label("H2_pre1")
    I("s_waitcnt vmcnt(8)")
    I("s_barrier")
    apre1(psig)
    A.label("H2_pre1d")
    TH(4)
    I(f"s_lshl_b32 s26, s{sGR}, 15"); I(f"s_add_u32 s26, s26, {WS_PART}")
    gwait(A, 28, *SG)
    TH(5)
    for i in range(8):
        I(f"buffer_load_dwordx4 {vr(XF+4*i,4)}, v{vRL}, {WSS}, s26 offen sc1")
        I("s_add_u32 s26, s26, 4096")
    RS = KF; RT = KF + 4
    unpack(A, XR, RT, 1)
    for i in range(8):
        I(f"s_waitcnt vmcnt({7-i})")
        I(mf32(RS, vSEL4, XF + 4*i, "0" if i == 0 else vr(RS, 4)))
    I(cv(RS + 2, RS)); unpack(A, RS + 2, RS, 1)
    I(f"v_add_f32 v{RS}, v{RS}, v{RT}"); I(f"v_add_f32 v{RS+1}, v{RS+1}, v{RT+1}")
    I(cv(XR, RS)); unpack(A, XR, RS, 1)
    I(f"v_add_f32 v{RT}, v{RS}, v{RS+1}")
    I(f"v_mul_f32 v{RT+1}, v{RS}, v{RS}"); I(f"v_fmac_f32 v{RT+1}, v{RS+1}, v{RS+1}")
    allreduce(A, [RT, RT + 1], RT + 2)
    I(f"s_lshl_b32 s24, s{sWV}, 3"); I(f"s_add_u32 s24, s24, {L_RED}"); I(f"v_mov_b32 v{RT+2}, s24"); I(f"v_mov_b32 v{RT+3}, {L_RED}")
    I(f"ds_write_b64 v{RT+2}, {vr(RT,2)}")
    I(f"s_lshl_b32 s24, s{sGR}, 10"); I(f"s_add_u32 s26, s24, {WS_HN}")
    I("s_waitcnt lgkmcnt(0)")
    I("s_barrier")
    I(f"ds_read_b128 {vr(RT+4,4)}, v{RT+3}"); I(f"ds_read_b128 {vr(RT+8,4)}, v{RT+3} offset:16")
    I("s_waitcnt lgkmcnt(0)")
    I(f"v_pk_add_f32 {vr(RT+4,2)}, {vr(RT+4,2)}, {vr(RT+6,2)}"); I(f"v_pk_add_f32 {vr(RT+8,2)}, {vr(RT+8,2)}, {vr(RT+10,2)}")
    I(f"v_pk_add_f32 {vr(RT,2)}, {vr(RT+4,2)}, {vr(RT+8,2)}")
    I(f"v_mul_f32 v{RT}, {hex(f2u(1/512))}, v{RT}"); I(f"v_mul_f32 v{RT+1}, {hex(f2u(1/512))}, v{RT+1}")
    I(f"v_fma_f32 v{RT+1}, -v{RT}, v{RT}, v{RT+1}"); I(f"v_max_f32 v{RT+1}, 0, v{RT+1}")
    ln_finish(A, RT, RT + 1)
    I(f"v_sub_f32 v{RS}, v{RS}, v{RT}"); I(f"v_sub_f32 v{RS+1}, v{RS+1}, v{RT}")
    I(cv(RS + 2, RS)); unpack(A, RS + 2, RS, 1)
    I(f"v_mul_f32 v{RS}, v{RS}, v{RT+1}"); I(f"v_mul_f32 v{RS+1}, v{RS+1}, v{RT+1}")
    I(cv(RS + 2, RS))
    dual(A, lambda f: I(f"buffer_store_dword v{RS+2}, v{vRO}, {WSS}, s26 offen {f}"))
    I("s_waitcnt vmcnt(0)")
    I("s_barrier")
    I(f"s_add_u32 s28, s29, {F_HN}")
    gsignal(A, 28, *SG)
    TH(6)
    I(f"s_cmp_ge_u32 s{sSEG}, {64 - NG}"); I("s_cbranch_scc1 H2_pre2d")
    apre2()
    A.label("H2_pre2d")
    gwait(A, 28, *SG)
    TH(7)
    I(f"s_cmp_ge_u32 s{sSEG}, {NG}"); I("s_cbranch_scc1 H2_sent")
    wait_ge(A, DBG, D_P2, 64, SG[0], SG[1], 24, sleep=4, barrier=False, allwaves=True)
    A.label("H2_sent")
    I(f"s_lshl_b32 s{sA0}, s{sG}, 15"); I(f"s_add_u32 s{sA0}, s{sA0}, {WS_HN}")
    rows_dma(A, vTm, sA0, L_HB)
    km_addr(NG); km_load()
    I(f"s_lshl_b32 s25, s{sA1}, 10"); I(f"s_add_u32 s25, s25, {WS_H}")
    I(f"buffer_store_dword v{XR}, v{vRO}, {WSS}, s25 offen sc1")
    I("s_waitcnt vmcnt(4)")
    I("s_barrier")
    I(f"s_cmp_lg_u32 s{sH}, 31"); I("s_cbranch_scc1 H2_nolead"); I(f"s_cmp_lt_u32 s{sSEG}, {NG}"); I("s_cbranch_scc1 H2_nolead")
    I(f"s_lshl_b32 s28, s{sSEG}, 7"); I(f"s_add_u32 s28, s28, {F_Z - NG*128}")
    signal_store(A, "s28", 1, *SG)
    A.label("H2_nolead")
    TH(8)
    I(f"s_cmp_ge_u32 s{sTILE}, 86"); I("s_cbranch_scc1 H2_skipz")
    HF = XF
    for ks in range(16):
        for t in range(2): I(f"ds_read_b128 {vr(HF + 8*(ks&7) + 4*t,4)}, v{vHA + 4*t + (ks&3)} offset:{(ks>>2)*256}") if ks < 4 else None
    ZA = 148
    I(f"s_cmp_lt_u32 s{sTILE}, 43"); I("s_cbranch_scc1 H2_z1")
    for var in range(2):
        if var == 1: A.label("H2_z1")
        for ks in range(16):
            I(f"s_waitcnt lgkmcnt({6 if ks < 13 else 2*(15-ks)})")
            for t in range(2):
                a, b = (HF + 8*(ks&7) + 4*t, WIN + 4*ks) if var == 0 else (WIN + 4*ks, HF + 8*(ks&7) + 4*t)
                I(mf32(ZA + 4*t, a, b, "0" if ks == 0 else vr(ZA + 4*t, 4)))
                k2 = ks + 4
                if k2 < 16: I(f"ds_read_b128 {vr(HF + 8*(k2&7) + 4*t,4)}, v{vHA + 4*t + (k2&3)} offset:{(k2>>2)*256}")
        if var == 0: I("s_branch H2_zc")
    A.label("H2_zc")
    I("s_nop 7")
    tm = 176
    k1 = -2 * 0.7978845608028654 * 1.4426950408889634
    I(f"v_mov_b32 v{XF}, {hex(f2u(k1 * 0.044715))}"); I(f"v_mov_b32 v{XF+2}, {hex(f2u(k1))}")
    for i in range(0, 8, 2):
        I(f"v_cvt_pk_bf16_f32 v{tm}, v{ZA+i}, v{ZA+i+1}"); I(f"v_lshlrev_b32 v{ZA+i}, 16, v{tm}"); I(f"v_and_b32 v{ZA+i+1}, 0xffff0000, v{tm}")
    for i in range(0, 8, 2):
        I(f"v_pk_mul_f32 {vr(tm+i,2)}, {vr(ZA+i,2)}, {vr(ZA+i,2)}")
        I(f"v_pk_fma_f32 {vr(tm+i,2)}, {vr(tm+i,2)}, {vr(XF,2)}, {vr(XF+2,2)} op_sel_hi:[1,0,0]")
        I(f"v_pk_mul_f32 {vr(tm+i,2)}, {vr(tm+i,2)}, {vr(ZA+i,2)}")
    for i in range(8): I(f"v_exp_f32 v{tm+i}, v{tm+i}")
    for i in range(0, 8, 2): I(f"v_pk_add_f32 {vr(tm+i,2)}, {vr(tm+i,2)}, 1.0 op_sel_hi:[1,0]")
    for i in range(8): I(f"v_rcp_f32 v{tm+i}, v{tm+i}")
    for i in range(0, 8, 2): I(f"v_pk_mul_f32 {vr(ZA+i,2)}, {vr(ZA+i,2)}, {vr(tm+i,2)}")
    for i in range(4): I(cv(tm + i, ZA + 2*i))
    I(f"s_mul_i32 s24, s{sSEG}, 86"); I(f"s_add_u32 s24, s24, s{sTILE}"); I("s_lshl_b32 s24, s24, 10"); I(f"s_add_u32 s24, s24, {WS_Z}")
    I("s_waitcnt vmcnt(2)")
    I(f"s_cmp_eq_u32 s{sH}, 31"); I("s_cbranch_scc1 H2_kw"); I("s_waitcnt vmcnt(1)")
    A.label("H2_kw")
    I(f"s_cmp_eq_u32 s{sWV}, 0"); I("s_cbranch_scc1 H2_kw2"); I("s_waitcnt vmcnt(1)")
    A.label("H2_kw2")
    I(f"s_cmp_ge_u32 s{sSEG}, {NG}"); I("s_cbranch_scc1 H2_kw3"); I("s_waitcnt vmcnt(1)")
    A.label("H2_kw3")
    I(f"buffer_store_dwordx4 {vr(tm,4)}, v{wL16}, {WSS}, s24 offen sc1")
    I(f"s_cmp_lt_u32 s{sTILE}, 43"); I("s_cbranch_scc1 H2_nostat")
    ST = XF
    for i in range(4):
        I(f"v_lshlrev_b32 v{ST+4*i}, 16, v{tm+i}"); I(f"v_and_b32 v{ST+4*i+2}, 0xffff0000, v{tm+i}")
    for i in range(8): I(f"v_mul_f32 v{ST+2*i+1}, v{ST+2*i}, v{ST+2*i}")
    for r in range(16): I(f"v_add_f32_dpp v{ST+r}, v{ST+r}, v{ST+r} row_ror:8 row_mask:0xf bank_mask:0xf")
    for r in range(8): I(f"v_mov_b32_dpp v{ST+r}, v{ST+8+r} quad_perm:[0,1,2,3] row_mask:0xf bank_mask:0xc")
    for r in range(8): I(f"v_add_f32_dpp v{ST+r}, v{ST+r}, v{ST+r} row_half_mirror row_mask:0xf bank_mask:0xf")
    for r in range(4): I(f"v_mov_b32_dpp v{ST+r}, v{ST+4+r} quad_perm:[0,1,2,3] row_mask:0xf bank_mask:0xa")
    for r in range(4): I(f"v_add_f32_dpp v{ST+r}, v{ST+r}, v{ST+r} quad_perm:[1,0,3,2] row_mask:0xf bank_mask:0xf")
    for r in range(4): I(f"v_add_f32_dpp v{ST+r}, v{ST+r}, v{ST+r} quad_perm:[2,3,0,1] row_mask:0xf bank_mask:0xf")
    I(f"v_lshlrev_b32 v{ST+4}, 2, v{wLN}")
    I(f"v_mov_b32 v{ST+5}, {OOB}"); I(f"v_cmp_eq_u32 vcc, 0, v{wCP}"); I(f"v_cndmask_b32 v{ST+4}, v{ST+5}, v{ST+4}, vcc")
    I(f"s_lshl_b32 s24, s{sSEG}, 6"); I(f"s_add_u32 s24, s24, s{sTILE}"); I("s_lshl_b32 s24, s24, 8"); I(f"s_add_u32 s24, s24, {WS_ZS - 43*256}")
    I(f"buffer_store_dwordx4 {vr(ST,4)}, v{ST+4}, {WSS}, s24 offen sc1")
    I("s_branch H2_nostat")
    A.label("H2_skipz")
    I("s_waitcnt vmcnt(1)")
    A.label("H2_nostat")
    TH(9)
    if TRACE[0]: I("s_add_u32 s60, s60, 4")
    I(f"s_add_u32 s{sSEG}, s{sSEG}, {NG}")
    I(f"s_cmp_lt_u32 s{sSEG}, 64"); I("s_cbranch_scc1 H2_loop")
    I(f"s_sub_u32 s{sSEG}, s{sSEG}, {NG}")
    I("s_waitcnt vmcnt(0)")
    I("s_barrier")
    I(f"s_add_u32 s28, s29, {F_ZL}")
    gsignal(A, 28, *SG)
    I(f"s_cmp_lg_u32 s{sH}, 31"); I("s_cbranch_scc1 H2_nosig")
    gwait(A, 28, SG[0], SG[1], barrier=False)
    I(f"s_lshl_b32 s28, s{sSEG}, 7"); I(f"s_add_u32 s28, s28, {F_Z}")
    signal_store(A, "s28", 1, *SG)
    A.label("H2_nosig")
    TDUMP(A, [188, 189, 190, 191], 40, (4, 9, 3, 3))


def t6_mm(A, kss, first, YA, UF, vU, extra=()):
    I = A.I
    extra = list(extra)
    def rd(n): return [f"ds_read_b128 {vr(UF + 8*(n%3) + 4*t,4)}, v{vU} offset:{kss[n]*2048 + t*1024}" for t in range(2)]
    for n in range(2):
        for x in rd(n): I(x)
    for n, ks in enumerate(kss):
        I(f"s_waitcnt lgkmcnt({2 if n + 1 < len(kss) else 0})")
        ms = [f"v_mfma_f32_16x16x32_bf16 {vr(YA + 8*t + 4*par,4)}, {ar((ks*2+par)*4,4)}, {vr(UF + 8*(n%3) + 4*t,4)}, {'0' if (first and n == 0) else vr(YA + 8*t + 4*par,4)}"
              for t in range(2) for par in range(2)]
        fl = [[x] for x in rd(n + 2)] if n + 2 < len(kss) else [[], []]
        fl += [[extra.pop(0)] if extra else []]
        slots(A, ms, fl)

def t6_addr(A, vO):
    I = A.I
    I(f"v_lshlrev_b32 v{vO}, 10, v{wC}"); I(f"v_lshl_add_u32 v{vO}, v{wG}, 4, v{vO}")
    I(f"s_lshl_b32 s26, s{sJ6}, 15"); I(f"s_lshl_b32 s24, s{sQ6}, 8"); I("s_add_u32 s26, s26, s24"); I(f"s_lshl_b32 s24, s{sWV}, 6"); I("s_add_u32 s26, s26, s24")
    I("s_add_u32 s27, s26, 16384"); I(f"s_add_u32 s28, s26, {WS_H}"); I(f"s_add_u32 s29, s27, {WS_H}")
def t6_hload(HR, vO): return [f"buffer_load_dwordx4 {vr(HR+4*t,4)}, v{vO}, {WSS}, s{28+t} offen sc1" for t in range(2)]
OUTF = ['']
def t6_out(A, YA, HR, T, vO):
    I = A.I
    I("s_waitcnt vmcnt(0)")
    for t in range(2):
        d = YA + 8*t
        unpack(A, HR + 4*t, T, 4)
        for i in range(4): I(cv(T + 8 + i, d + 2*i))
        unpack(A, T + 8, d, 4)
        for j in range(4): I(f"v_pk_add_f32 {vr(d+2*j,2)}, {vr(d+2*j,2)}, {vr(T+2*j,2)}")
        for j in range(4): I(cv(d + j, d + 2*j))
        I(f"buffer_store_dwordx4 {vr(d,4)}, v{vO}, {SW}, s{26+t} offen {OUTF[0]}")

def helper_t6(A, opt):
    I = A.I
    I("v_mbcnt_lo_u32_b32 v0, -1, 0"); I("v_mbcnt_hi_u32_b32 v0, -1, v0")
    lanes(A)
    helper_ids(A, sJ6, sQ6)
    I("s_waitcnt vmcnt(0) lgkmcnt(0)")
    I("s_barrier")
    TS(A, 15, 47)
    OUTF[0] = opt.get("outf", "")
    if opt.get("wb"):
        I(f"s_cmp_lg_u32 s{sH}, 31"); I("s_cbranch_scc1 T6_nowb"); I(f"s_cmp_lg_u32 s{sWV}, 3"); I("s_cbranch_scc1 T6_nowb")
        I("buffer_wbl2 sc1")
        A.label("T6_nowb")
    I(f"s_cmp_eq_u32 s{sPRE}, 1"); I("s_cbranch_scc1 T6_rest")
    wout_preload(A, 8, ((0, 16),))
    A.label("T6_rest")
    wout_preload(A, 8, ((16, 22),))
    TS(A, 15, 48)
    vU, vW, vO, vX, YA, UF, HR, LB, T = 8, 9, 10, 11, 16, 32, 56, 64, 112
    srd(A, 96, 2 << 20)
    t6_addr(A, vO)
    I(f"v_add_u32 v{vU}, {L_U}, v{wL16}"); I(f"s_lshl_b32 s24, s{sWV}, 11"); I(f"v_add_u32 v{vW}, s24, v{vU}")
    I(f"s_mul_i32 s31, s{sJ6}, 49152"); I("s_add_u32 s31, s31, s24"); I(f"s_add_u32 s31, s31, {WS_U}")
    for i in range(1, 6): I(f"s_add_u32 s{31+i}, s31, {i*8192}")
    I(f"s_lshl_b32 s37, s{sJ6}, 7"); I(f"s_add_u32 s37, s37, {F_Z}")
    def lds(bt): return [f"buffer_load_dwordx4 {vr(LB + 24*bt + 8*i + 4*t,4)}, v{wL16}, {WSS}, s{31 + 3*bt + i} offen offset:{t*1024} sc1" for i in range(3) for t in range(2)]
    wait_ge(A, WSS, F_Z + opt.get("wake", 56)*128, 1, 12, 13, 24, sleep=32)
    I("v_mov_b32 v12, 0")
    TS(A, 15, 49)
    mode = opt.get("t6mode", "adapt")
    def canload(bt): return f"buffer_load_dword v13, v12, {WSS}, s{33 + 3*bt} offen offset:{opt.get('cano', 1024)} sc1"
    def canary(bt, tag):
        A.label(f"T6_c{tag}")
        I(canload(bt))
        if tag == "a": I(f"buffer_load_dword v14, v12, {WSS}, s37 offen sc1")
        I(f"s_add_u32 s{sSPIN}, s{sSPIN}, 1"); I(f"s_cmp_gt_u32 s{sSPIN}, {SPIN_MAX}")
        I("s_waitcnt vmcnt(0)")
        I(f"s_cbranch_scc1 T6_ce{tag}")
        if tag == "a":
            I("v_add_u32 v14, -1, v14"); I("v_max_u32 v13, v13, v14")
        I("v_cmp_eq_u32 vcc, -1, v13")
        I(f"s_cbranch_vccz T6_ce{tag}")
        if tag == "a": I(f"s_sleep {opt.get('csleep', 1)}")
        I(f"s_branch T6_c{tag}")
        A.label(f"T6_ce{tag}")
    def check(bt, keep):
        A.label(f"T6_w{bt}")
        I(f"s_add_u32 s{sSPIN}, s{sSPIN}, 1"); I(f"s_cmp_gt_u32 s{sSPIN}, {SPIN_MAX}")
        I(f"s_cbranch_scc1 T6_d{bt}")
        b = LB + 24*bt
        I(f"v_max3_u32 v{vX}, v{b}, v{b+1}, v{b+2}")
        for r in range(3, 23, 2): I(f"v_max3_u32 v{vX}, v{vX}, v{b+r}, v{b+r+1}")
        I(f"v_max_u32 v{vX}, v{vX}, v{b+23}")
        I(f"v_cmp_eq_u32 vcc, -1, v{vX}")
        I(f"s_cbranch_vccz T6_d{bt}")
        for x in lds(bt): I(x)
        I("s_waitcnt vmcnt(0)")
        I(f"s_branch T6_w{bt}")
        A.label(f"T6_d{bt}")
    def share(bt):
        b = LB + 24*bt
        for i in range(3):
            for t in range(2): I(f"ds_write_b128 v{vW}, {vr(b + 8*i + 4*t,4)} offset:{(3*bt + i)*8192 + t*1024}")
        I("s_waitcnt lgkmcnt(0)")
        I("s_barrier")
    if mode == "last":
        canary(1, "a"); TS(A, 15, 50)
        for x in lds(0) + lds(1): I(x)
        I("s_waitcnt vmcnt(6)")
        check(0, 6); TS(A, 15, 51); share(0); TS(A, 15, 52)
        t6_mm(A, list(range(12)), True, YA, UF, vU, t6_hload(HR, vO)); TS(A, 15, 53)
        I("s_waitcnt vmcnt(2)")
    else:
        canary(0, "a"); TS(A, 15, 50)
        for x in lds(0): I(x)
        I("s_waitcnt vmcnt(0)")
        I(canload(1))
        check(0, 0); TS(A, 15, 51); share(0); TS(A, 15, 52)
        I("s_waitcnt vmcnt(0)")
        I("v_cmp_eq_u32 vcc, -1, v13")
        I("s_cbranch_vccnz T6_late")
        t6_mm(A, list(range(12)), True, YA, UF, vU, lds(1) + t6_hload(HR, vO))
        I("s_branch T6_join")
        A.label("T6_late")
        t6_mm(A, list(range(12)), True, YA, UF, vU, t6_hload(HR, vO))
        canary(1, "b")
        for x in lds(1): I(x)
        A.label("T6_join")
        TS(A, 15, 53)
        I("s_waitcnt vmcnt(0)")
    check(1, 0); TS(A, 15, 55); share(1); TS(A, 15, 56)
    t6_mm(A, list(range(12, 22)), False, YA, UF, vU); TS(A, 15, 57)
    t6_out(A, YA, HR, T, vO)

def p_main(A, opt):
    I = A.I
    sJ = 18; sS = 36; sZ = 20; sSP = 21; sRD = 22; sISS = 32
    L_ST = 147456; L_ST2 = L_ST + 2048
    vO5, vSO, vWS, vSW, vSR, vS2W, vS2R, vFA, vFD = 7, 9, 12, 13, 14, 15, 16, 4, 5
    TRC = 17
    COR = 0
    ACC = 20; BUF = [116, 164]; SB = 212; MU = 224; RS = 232; WF = 240; TM = 248
    if TRACE[0]: I(f"v_mov_b32 v{TRC}, v112")
    I(f"s_sub_u32 s{sJ}, s{sG}, 6"); I(f"s_lshl_b32 s{sJ}, s{sJ}, 5"); I(f"s_add_u32 s{sJ}, s{sJ}, s{sH}")
    pt = opt.get('pthr', 0)
    I(f"s_mul_i32 s37, s{sJ}, 49152"); I(f"s_lshl_b32 s24, s{sWV}, 11"); I("s_add_u32 s37, s37, s24"); I(f"s_add_u32 s37, s37, {WS_U}")
    for _ in range(opt.get("pdelay", 0)): I("s_sleep 32")
    if opt.get("pexit") == 1: I("s_endpgm")
    if opt.get("pexit") in (6, 7):
        I(f"s_cmp_eq_u32 s{sG}, {opt['pexit']}"); I("s_cbranch_scc1 L_end")
    I(f"s_mov_b32 s{sQ6}, 0")
    wout_preload(A, TM)
    srd(A, 72, 8 << 20)
    I(f"s_lshl_b32 s{sSP}, s{sJ}, 17")
    I(f"s_lshl_b32 s24, s{sWV}, 15"); I(f"s_add_u32 s24, s24, s{sSP}")
    for i in range(32 if opt.get("wsp", 0) else 0):
        if pt: I(f"s_waitcnt vmcnt({pt - 1})")
        I(f"buffer_load_dwordx4 {vr(ACC + 4*(i&15),4)}, v{wL16}, {SW}, s24 offen offset:{(i&3)*1024}")
        if (i & 3) == 3: I("s_add_u32 s24, s24, 4096")
    I(f"v_mov_b32 v{TM}, {OOB}")
    for par in range(2):
        I(f"s_lshl_b32 s24, s{sWV}, 1"); I(f"s_add_u32 s24, s24, {40 + par}"); I("s_cmp_lt_u32 s24, 43"); I("s_cselect_b64 vcc, -1, 0")
        I(f"v_cndmask_b32 v{vO5+par}, v{TM}, v{wL16}, vcc")
    for n in range(3):
        I(f"s_mul_i32 s24, s{sWV}, 12"); I(f"s_add_u32 s24, s24, {4*n}")
        I(f"v_add_u32 v{TM+1}, s24, v{wG}"); I(f"v_cmp_gt_u32 vcc, 43, v{TM+1}")
        I("s_lshl_b32 s24, s24, 8"); I(f"v_add_u32 v{TM+1}, s24, v{wL16}")
        I(f"v_cndmask_b32 v{vSO+n}, v{TM}, v{TM+1}, vcc")
    I(f"v_lshlrev_b32 v{vWS}, 12, v{wC}"); I(f"v_lshl_add_u32 v{vWS}, v{wG}, 4, v{vWS}")
    I(f"v_lshlrev_b32 v{vSR}, 4, v{wC}"); I(f"v_add_u32 v{vSR}, {L_ST}, v{vSR}")
    I(f"s_lshl_b32 s24, s{sWV}, 8"); I(f"v_add_u32 v{vSW}, s24, v{vSR}")
    I(f"s_add_u32 s24, s24, {L_ST2}")
    I(f"v_lshlrev_b32 v{vS2W}, 3, v{wC}"); I(f"v_add_u32 v{vS2W}, s24, v{vS2W}")
    I(f"v_lshlrev_b32 v{vS2R}, 5, v{wG}"); I(f"v_add_u32 v{vS2R}, s24, v{vS2R}")
    I("s_load_dwordx2 s[48:49], s[0:1], 80"); I("s_mov_b32 s50, 4096"); I("s_mov_b32 s51, 0x20000")
    I(f"v_lshlrev_b32 v{TM}, 1, v{wC}"); I(f"s_lshl_b32 s24, s{sJ}, 6")
    I("s_waitcnt lgkmcnt(0)")
    I(f"buffer_load_ushort v{COR}, v{TM}, s[48:51], s24 offen"); I(f"buffer_load_ushort v{COR+1}, v{TM}, s[48:51], s24 offen offset:32")
    I("s_waitcnt vmcnt(0)")
    I(f"v_cmp_eq_u32 vcc, 0, v{wG}")
    for t in range(2):
        I(f"v_lshlrev_b32 v{COR+t}, 16, v{COR+t}"); I(f"v_xor_b32 v{COR+t}, 0x80000000, v{COR+t}"); I(f"v_cndmask_b32 v{COR+t}, 0, v{COR+t}, vcc")
    for x in zero(ACC, 96): I(x)
    I(f"s_mov_b32 s{sS}, 0"); I(f"s_mov_b32 s{sRD}, 0"); I(f"s_mov_b32 s{sISS}, 0")
    I(f"s_lshl_b32 s{sZ}, s{sWV}, 11"); I(f"s_add_u32 s{sZ}, s{sZ}, {WS_Z + 43*1024}")
    TS(A, TRC, 2)
    CR = TM + 4 - 4 + 0
    def tiles(dst, sb):
        out = []
        for i in range(6):
            for par in range(2):
                v = vO5 + par if i == 5 else wL16
                x = [f"buffer_load_dwordx4 {vr(dst + 8*i + 4*par,4)}, v{v}, {WSS}, s{sb} offen offset:{par*1024} sc1"]
                if par == 1 and i < 5: x.append(f"s_add_u32 s{sb}, s{sb}, 8192")
                out.append(x)
        return out
    def wf_load():
        I(f"s_add_u32 s24, s{sSP}, 65536")
        I(f"buffer_load_dwordx4 {vr(WF,4)}, v{vWS}, {SW}, s{sSP} offen"); I(f"buffer_load_dwordx4 {vr(WF+4,4)}, v{vWS}, {SW}, s24 offen")
        I(f"s_add_u32 s{sSP}, s{sSP}, 64")
    def stat_loads(): return [[f"buffer_load_dwordx4 {vr(SB+4*n,4)}, v{vSO+n}, {WSS}, s27 offen sc1"] for n in range(3)]
    sVAL = 35
    def mxchk(base, n):
        out = [f"v_max3_u32 v{TM}, v{base}, v{base+1}, v{base+2}"]
        for r in range(3, n - 1, 2): out.append(f"v_max3_u32 v{TM}, v{TM}, v{base+r}, v{base+r+1}")
        return out + [f"v_max_u32 v{TM}, v{TM}, v{base+n-1}", f"v_cmp_eq_u32 vcc, -1, v{TM}"]
    def z1dma():
        I(f"s_lshl_b32 s24, s{sWV}, 11"); I(f"s_add_u32 s24, s24, {L_U}"); I("s_mov_b32 s25, s33")
        for i in range(6):
            I(f"s_add_u32 m0, s24, {i*8192}")
            I("s_nop 0")
            for par in range(2): I(f"buffer_load_dwordx4 v{vO5 + par if i == 5 else wL16}, {WSS}, s25 offen offset:{par*1024} sc1 lds")
            I("s_add_u32 s25, s25, 8192")
    def flag_load():
        I("s_add_u32 s28, s27, 16384")
        I(f"buffer_load_dword v{vFD}, v{vFA}, {WSS}, s28 offen sc1")
    I(f"s_mul_i32 s33, s{sJ}, {86*1024}"); I(f"s_lshl_b32 s27, s{sWV}, 11"); I("s_add_u32 s33, s33, s27"); I(f"s_add_u32 s33, s33, {WS_Z}")
    I(f"s_lshl_b32 s34, s{sJ}, 2"); I(f"s_add_u32 s34, s34, s{sWV}"); I("s_mul_i32 s34, s34, 86"); I("s_lshr_b32 s34, s34, 8"); I("s_lshl_b32 s34, s34, 7")
    I(f"v_mov_b32 v{vFA}, s34"); I(f"s_mov_b32 s27, {WS_ZS}")
    wait_ge(A, DBG, D_P2, 64, TM, TM + 1, 24, sleep=4)
    wf_load()
    def stat_ld(sreg): return [f"buffer_load_dwordx4 {vr(SB+4*n,4)}, v{vSO+n}, {WSS}, s{sreg} offen sc1" for n in range(3)]
    def can_ld(sreg): return f"buffer_load_dword v{vFD}, v{vFA}, {WSS}, s{sreg} offen sc1"
    def body(b, pf):
        RAW = BUF[b]; tg = f"{b}{pf}"
        q = []
        if pf:
            I(f"s_add_u32 s26, s{sZ}, {86*1024}"); I("s_add_u32 s29, s28, 16384")
            q = [[x] for x in stat_ld(28)] + [[can_ld(29)]] + tiles(BUF[1 - b], 26)
        n_iss = [0]
        def L(k=1):
            for _ in range(k):
                if q:
                    for x in q.pop(0): I(x)
                    n_iss[0] += 1
        for n in (1, 2):
            for j in range(2): I(f"v_pk_add_f32 {vr(MU+2*j,2)}, {vr((SB if n == 1 else MU)+2*j,2)}, {vr(SB+4*n+2*j,2)}")
        L()
        for sw in ("16", "32"):
            for r in range(4): I(f"v_mov_b32 v{MU+4+r}, v{MU+r}")
            for r in range(4): I(f"v_permlane{sw}_swap_b32 v{MU+r}, v{MU+4+r}")
            for j in range(2): I(f"v_pk_add_f32 {vr(MU+2*j,2)}, {vr(MU+2*j,2)}, {vr(MU+4+2*j,2)}")
            if sw == "16": L()
        I(f"ds_write_b128 v{vSW}, {vr(MU,4)} offset:{b*1024}")
        L(2)
        I("s_waitcnt lgkmcnt(0)")
        I("s_barrier")
        for w in range(4): I(f"ds_read_b128 {vr(MU+4*w,4)}, v{vSR} offset:{b*1024 + w*256}")
        L()
        if not pf: I(can_ld(28))
        I("s_waitcnt lgkmcnt(0)")
        for w in range(1, 4):
            for j in range(2): I(f"v_pk_add_f32 {vr(MU+2*j,2)}, {vr(MU+2*j,2)}, {vr(MU+4*w+2*j,2)}")
        for r in range(4): I(f"v_mul_f32 v{MU+r}, {hex(f2u(1/688))}, v{MU+r}")
        for j in range(2):
            L()
            I(f"v_fma_f32 v{MU+2*j+1}, -v{MU+2*j}, v{MU+2*j}, v{MU+2*j+1}")
            I(f"v_max_f32 v{MU+2*j+1}, 0, v{MU+2*j+1}")
            ln_finish(A, MU + 2*j, MU + 2*j + 1)
        I(f"ds_write2_b32 v{vS2W}, v{MU}, v{MU+2} offset0:0 offset1:1"); I(f"ds_write2_b32 v{vS2W}, v{MU+1}, v{MU+3} offset0:32 offset1:33")
        L()
        I("s_waitcnt lgkmcnt(0)")
        for i in range(2):
            I(f"ds_read_b128 {vr(RS+4*i,4)}, v{vS2R} offset:{128+16*i}"); I(f"ds_read_b128 {vr(MU+4*i,4)}, v{vS2R} offset:{16*i}")
        WP = WF if pf else RS
        if not pf:
            I(f"s_cmp_eq_u32 s{sVAL}, 0"); I(f"s_cbranch_scc1 P_wf{tg}")
            I("s_waitcnt vmcnt(1)")
            A.label(f"P_wf{tg}")
            unpack(A, WF, TM, 4); unpack(A, WF + 4, SB, 4)
            I("s_waitcnt lgkmcnt(0)")
            for r in (TM, SB):
                for j in range(4): I(f"v_pk_mul_f32 {vr(r+2*j,2)}, {vr(r+2*j,2)}, {vr(RS+2*j,2)}")
            for t, r in enumerate((TM, SB)):
                for j in range(4): I(cv(RS + 4*t + j, r + 2*j))
        I(f"s_waitcnt vmcnt({n_iss[0]})")
        A.label(f"P_val{tg}")
        for x in mxchk(RAW, 48): I(x)
        I(f"s_cbranch_vccz P_ok{tg}")
        I(f"s_mov_b32 s25, s{sZ}")
        for x in sum(tiles(RAW, 25), []): I(x)
        I(f"s_add_u32 s{sSPIN}, s{sSPIN}, 1"); I(f"s_cmp_gt_u32 s{sSPIN}, {SPIN_MAX}")
        I("s_waitcnt vmcnt(0)")
        I(f"s_cbranch_scc0 P_val{tg}")
        A.label(f"P_ok{tg}")
        if pf:
            L()
            I("s_waitcnt lgkmcnt(0)")
            for t in range(2):
                unpack(A, WF + 4*t, TM, 4)
                for j in range(4): I(f"v_pk_mul_f32 {vr(TM+2*j,2)}, {vr(TM+2*j,2)}, {vr(RS+2*j,2)}")
                for j in range(4): I(cv(WF + 4*t + j, TM + 2*j))
                L()
        cor = []
        for t in range(2):
            for j in range(4):
                cor += [f"v_lshlrev_b32 v{TM}, 16, v{WP+4*t+j}", f"v_fmac_f32 v{COR+t}, v{TM}, v{MU+2*j}",
                        f"v_and_b32 v{TM+1}, 0xffff0000, v{WP+4*t+j}", f"v_fmac_f32 v{COR+t}, v{TM+1}, v{MU+2*j+1}"]
        ms = [mf32(ACC + 16*(n>>1) + 8*t + 4*(n&1), RAW + 4*n, WP + 4*t, vr(ACC + 16*(n>>1) + 8*t + 4*(n&1), 4)) for n in range(12) for t in range(2)]
        fl = [cor[2*i:2*i+2] for i in range(24)]
        if pf:
            for i in range(6):
                if q: fl[4*i+2] = q.pop(0) + fl[4*i+2]
            assert not q
            slots(A, ms, fl)
            I(f"s_cmp_eq_u32 s{sS}, s{sJ}"); I(f"s_cbranch_scc0 P_noz1{tg}")
            z1dma()
            I("s_waitcnt vmcnt(12)")
            A.label(f"P_noz1{tg}")
            wf_load()
        else:
            I(f"s_cmp_eq_u32 s{sS}, s{sJ}"); I(f"s_cbranch_scc0 P_noz1{tg}")
            z1dma()
            A.label(f"P_noz1{tg}")
            wf_load()
            I(f"v_cmp_eq_u32 vcc, -1, v{vFD}")
            I(f"s_cbranch_vccnz P_plain{tg}")
            if b == 1:
                I(f"s_cmp_eq_u32 s{sS}, 63"); I(f"s_cbranch_scc1 P_plain{tg}")
            I(f"s_mov_b32 s{sISS}, 1")
            I(f"s_add_u32 s26, s{sZ}, {86*1024}"); I("s_add_u32 s29, s28, 16384")
            q2 = [[x] for x in stat_ld(28)] + [[can_ld(29)]] + tiles(BUF[1 - b], 26)
            f2 = [list(x) for x in fl]
            for i in range(6): f2[4*i] = q2.pop(0) + f2[4*i]
            slots(A, ms, f2)
            for x in sum(q2, []): I(x)
            I("s_waitcnt vmcnt(12)")
            I(f"s_branch P_done{b}")
            A.label(f"P_plain{tg}")
            slots(A, ms, fl)
    A.label("P_loop")
    for b in range(2):
        I("s_add_u32 s28, s27, 16384")
        I(f"s_cmp_lg_u32 s{sISS}, 0"); I(f"s_cbranch_scc1 P_have{b}")
        A.label(f"P_poll{b}")
        I(can_ld(27))
        I(f"s_add_u32 s{sSPIN}, s{sSPIN}, 1")
        I("s_waitcnt vmcnt(0)")
        I(f"v_cmp_eq_u32 vcc, -1, v{vFD}")
        I(f"s_cbranch_vccz P_rdy{b}")
        I(f"s_sleep {opt.get('psleep', 1)}")
        I(f"s_cmp_gt_u32 s{sSPIN}, {SPIN_MAX}"); I(f"s_cbranch_scc0 P_poll{b}")
        A.label(f"P_rdy{b}")
        TS(A, TRC + 1, f"s{sS}")
        I(f"s_mov_b32 s26, s{sZ}")
        for x in stat_ld(27) + [can_ld(28)] + sum(tiles(BUF[b], 26), []): I(x)
        I("s_waitcnt vmcnt(12)")
        A.label(f"P_have{b}")
        I("s_waitcnt vmcnt(14)")
        A.label(f"P_sv{b}")
        for x in mxchk(SB, 12): I(x)
        I(f"s_cbranch_vccz P_sok{b}")
        for x in stat_ld(27): I(x)
        I(f"s_add_u32 s{sSPIN}, s{sSPIN}, 1"); I(f"s_cmp_gt_u32 s{sSPIN}, {SPIN_MAX}")
        I("s_waitcnt vmcnt(0)")
        I(f"s_cbranch_scc0 P_sv{b}")
        A.label(f"P_sok{b}")
        I(f"v_cmp_eq_u32 vcc, -1, v{vFD}")
        I(f"s_mov_b32 s{sVAL}, s{sISS}"); I(f"s_mov_b32 s{sISS}, 0")
        I(f"s_cbranch_vccnz P_nopf{b}")
        if b == 1:
            I(f"s_cmp_eq_u32 s{sS}, 63"); I(f"s_cbranch_scc1 P_nopf{b}")
        I(f"s_mov_b32 s{sISS}, 1")
        body(b, 1)
        I(f"s_branch P_done{b}")
        A.label(f"P_nopf{b}")
        body(b, 0)
        A.label(f"P_done{b}")
        I(f"s_add_u32 s{sZ}, s{sZ}, {86*1024}"); I("s_add_u32 s27, s27, 16384")
        TS(A, TRC + 2, f"s{sS}")
        I(f"s_add_u32 s{sS}, s{sS}, 1")
    I(f"s_cmp_lt_u32 s{sS}, 64"); I("s_cbranch_scc1 P_loop")
    vU, vO = SB, SB + 1
    I(f"v_add_u32 v{vU}, {L_U}, v{wL16}")
    I(f"s_lshl_b32 s24, s{sWV}, 11"); I(f"v_add_u32 v{vSW}, s24, v{vU}")
    ZB = BUF[0]; HR = BUF[1]; UF = BUF[1] + 8; YA = BUF[1] + 32
    def zread():
        for i in range(6):
            for par in range(2): I(f"ds_read_b128 {vr(ZB+8*i+4*par,4)}, v{vSW} offset:{i*8192 + par*1024}")
    I("s_waitcnt vmcnt(2)")
    zread()
    for sw in ("16", "32"):
        for t in range(2):
            I(f"v_mov_b32 v{TM}, v{COR+t}"); I(f"v_permlane{sw}_swap_b32 v{COR+t}, v{TM}"); I(f"v_add_f32 v{COR+t}, v{COR+t}, v{TM}")
    A.label("P_z1c")
    I("s_waitcnt lgkmcnt(0)")
    for x in mxchk(ZB, 48): I(x)
    I("s_cbranch_vccz P_z1ok")
    z1dma()
    I(f"s_add_u32 s{sSPIN}, s{sSPIN}, 1"); I(f"s_cmp_gt_u32 s{sSPIN}, {SPIN_MAX}")
    I("s_waitcnt vmcnt(0)")
    I("s_cbranch_scc1 P_z1ok")
    zread()
    I("s_branch P_z1c")
    A.label("P_z1ok")
    for i in range(6):
        for t in range(2):
            d = ACC + 16*i + 8*t
            for j in range(4): I(f"v_pk_add_f32 {vr(d+2*j,2)}, {vr(d+2*j,2)}, {vr(COR,2)} op_sel:[0,{t}] op_sel_hi:[1,{t}] neg_lo:[0,1] neg_hi:[0,1]")
            for j in range(4): I(cv(MU + j, d + 2*j))
            unpack(A, MU, d, 4)
            for par in range(2): unpack(A, ZB + 8*i + 4*par + 2*t, TM + 4*par, 2)
            for j in range(4): I(f"v_pk_mul_f32 {vr(d+2*j,2)}, {vr(d+2*j,2)}, {vr(TM+2*j,2)}")
            for j in range(4): I(cv(d + j, d + 2*j))
            I(f"buffer_store_dwordx4 {vr(d,4)}, v{wL16}, {WSS}, s37 offen offset:{t*1024} sc1")
        I("s_add_u32 s37, s37, 8192")
    for i in range(6):
        for t in range(2): I(f"ds_write_b128 v{vSW}, {vr(ACC + 16*i + 8*t,4)} offset:{i*8192 + t*1024}")
    srd(A, 96, 2 << 20)
    I("s_barrier")
    TS(A, TRC, 3)
    t6_mm(A, list(range(22)), True, YA, UF, vU)
    TS(A, TRC, 4)
    I(f"s_lshl_b32 s28, s{sJ}, 7"); I(f"s_add_u32 s28, s28, {F_Z}")
    wait_ge(A, WSS, "s28", 1, TM, TM + 1, 24, sleep=0, barrier=False, allwaves=True)
    t6_addr(A, vO)
    for x in t6_hload(HR, vO): I(x)
    t6_out(A, YA, HR, MU, vO)
    if TRACE[0]: I("s_waitcnt vmcnt(0)")
    TS(A, TRC, 5)
    TDUMP(A, [TRC, TRC + 1, TRC + 2], TM, (6, 12, 2, 4))
```
